```python
import torch

def _softmax(x, axis=-1):
    return torch.softmax(x, dim=axis)
def _gelu(x):
    return torch.nn.functional.gelu(x, approximate="tanh")
def _silu(x):
    return torch.nn.functional.silu(x)
def _sigmoid(x):
    return torch.sigmoid(x)
def _layernorm(x, axis=-1, eps=1e-5):
    m = x.mean(dim=axis, keepdim=True)
    v = x.var(dim=axis, keepdim=True, unbiased=False)
    return (x - m) / torch.sqrt(v + eps)
def _scatter_add(tgt, idx, src, axis=0):
    return tgt.clone().index_add_(axis, idx, src)
def _segment_sum(src, seg, n):
    out = torch.zeros((n,) + src.shape[1:], dtype=src.dtype)
    return out.index_add_(0, seg, src)
def _pad(x, pw):
    flat = tuple(v for pair in reversed(pw) for v in pair)
    return torch.nn.functional.pad(x, flat)

kernel_name = 'recurrent_scan__grouped_kv_mqa__swiglu_ffn__prompt'

def setup_inputs():

    _w = (lambda a: (lambda t: t.to(torch.bfloat16) if t.is_floating_point() else t)(torch.as_tensor(a)))
    def _A_setup():
        B, S, D, H = 1, 2048, 640, 32
        Dh = D // H
        return {
            "x": _w((lambda *s: torch.randn(*s, dtype=torch.bfloat16) * 0.05)(B, S, D)),
            "wq": _w((lambda *s: torch.randn(*s, dtype=torch.bfloat16) * 0.05)(D, H * Dh)),
            "wk": _w((lambda *s: torch.randn(*s, dtype=torch.bfloat16) * 0.05)(D, Dh)),
            "wv": _w((lambda *s: torch.randn(*s, dtype=torch.bfloat16) * 0.05)(D, Dh)),
            "wo": _w((lambda *s: torch.randn(*s, dtype=torch.bfloat16) * 0.05)(H * Dh, D)),
        }
    _A_in = _A_setup()

    def _B_setup():
        B, S, D, F = 1, 2048, 640, 1728
        return {
            "x": _w((lambda *s: torch.randn(*s, dtype=torch.bfloat16) * 0.05)(B, S, D)),
            "w_gate": _w((lambda *s: torch.randn(*s, dtype=torch.bfloat16) * 0.05)(D, F)),
            "w_up": _w((lambda *s: torch.randn(*s, dtype=torch.bfloat16) * 0.05)(D, F)),
            "w_down": _w((lambda *s: torch.randn(*s, dtype=torch.bfloat16) * 0.05)(F, D)),
        }
    _B_in = _B_setup()

    return {
        "A_x": _A_in["x"],
        "A_wq": _A_in["wq"],
        "A_wk": _A_in["wk"],
        "A_wv": _A_in["wv"],
        "A_wo": _A_in["wo"],
        "B_x": _B_in["x"],
        "B_w_gate": _B_in["w_gate"],
        "B_w_up": _B_in["w_up"],
        "B_w_down": _B_in["w_down"],
    }

def reference(A_x, A_wq, A_wk, A_wv, A_wo, B_x, B_w_gate, B_w_up, B_w_down):
    def _A_ref(x, wq, wk, wv, wo):
        B, S, D = x.shape
        H = 32
        Dh = D // H
        q = (lambda x, *d: x.permute(*d))((x @ wq).reshape(B, S, H, Dh), 0, 2, 1, 3)
        k = x @ wk
        v = x @ wv
        scores = torch.einsum("bhqd,bkd->bhqk", q, k) * (Dh ** -0.5)
        p = _softmax(scores, axis=-1)
        o = torch.einsum("bhqk,bkd->bhqd", p, v)
        return (lambda x, *d: x.permute(*d))(o, 0, 2, 1, 3).reshape(B, S, H * Dh) @ wo

    def _B_ref(x, w_gate, w_up, w_down):
        g = _silu(x @ w_gate)
        u = x @ w_up
        return (g * u) @ w_down

    x = A_x
    xn = _layernorm(x, axis=-1)
    s = _A_ref(xn, A_wq, A_wk, A_wv, A_wo)
    g = _silu(_B_ref(xn, B_w_gate, B_w_up, B_w_down))
    return x + s * g
```

```python
import sys
sys.path.insert(0, "tools")
from asmgen import *

WS_QP = 0x0000000
WS_KV = 0x0280000
WS_KN = 0x02A8000
WS_WF = 0x02B0000
WS_HO = 0x0600000
WS_G  = 0x1000000
WS_USED = 0x1400000

LOG2E = 1.4426950408889634
import struct
def f32bits(x):
    return struct.unpack("<I", struct.pack("<f", x))[0]

def srd(a, d, lo, hi, size):
    a("s_mov_b32 s%d, s%d" % (d, lo))
    a("s_mov_b32 s%d, s%d" % (d + 1, hi))
    if isinstance(size, str):
        a("s_mov_b32 s%d, %s" % (d + 2, size))
    else:
        a("s_mov_b32 s%d, 0x%x" % (d + 2, size))
    a("s_mov_b32 s%d, 0x20000" % (d + 3))

def vr(b, n):
    return "v[%d:%d]" % (b, b + n - 1)

def sel(a, d, x, y):
    a("s_mov_b32 s%d, 0x%x" % (d, y))
    a("s_cmov_b32 s%d, 0x%x" % (d, x))
```

```python
from common import *

STAGE = 52224
XOFF, POFF, ROFF, EOFF = 0, 32768, 40960, 49152
STATS = 3 * STAGE
ST_X = STATS
ST_C = STATS + 4096
ST_E = STATS + 6144
K1_LDS = STATS + 6656

def gen_k1(a, name="k1_kernel", stamps=False, lidx=0, dbg=""):
    a.begin_kernel(name)
    V_TID = 0; V_LANE = 1
    V_VX, V_VP, V_VR, V_VE = 2, 3, 4, 5
    V_XA = 6
    V_WA = 10
    V_XE, V_WE = 18, 19
    V_SX = 20
    V_CS = 24
    V_CE = 26
    V_ONE = 27
    V_T0 = 28
    F = [32, 48]
    ACC = 64
    ACCE = 128
    FE = 144
    V_RL = 152
    V_RA = 168
    NV = 184
    S_W = 3
    SX, SP, SR, SE, SO, SU0, SU1 = 8, 12, 16, 20, 24, 28, 32
    S_RB, S_CB, S_ISQ, S_STRIDE = 56, 57, 58, 59
    S_OX = 60
    S_OP, S_OR, S_OE = 64, 65, 66
    S_WSTEP = 67
    S_BUFW = 68
    S_STG = 69
    S_DELTA = 70
    S_EXTRA = 71
    S_TG, S_CGP = 72, 73
    S_BUFI = 74
    S_RBUF = 75
    S_U0, S_U1 = 76, 77
    S_D0, S_D1 = 78, 79
    S_HASX = 80
    S_TTE = 81
    S_T = 82

    if stamps: a.stamp("t0")
    a("s_cmp_ge_u32 s2, 256")
    a("s_cbranch_scc1 K1_END")
    a("s_load_dwordx4 s[36:39], s[0:1], 0")
    a("s_load_dwordx4 s[40:43], s[0:1], 16")
    a("s_load_dwordx2 s[44:45], s[0:1], 32")
    a("s_load_dwordx4 s[48:51], s[0:1], 48")
    a("s_load_dwordx2 s[52:53], s[0:1], 64")
    a("s_load_dwordx2 s[54:55], s[0:1], 88")
    a("v_lshrrev_b32 v%d, 6, v0" % V_T0)
    a("v_and_b32 v%d, 63, v0" % V_LANE)
    a("v_readfirstlane_b32 s%d, v%d" % (S_W, V_T0))
    a("s_and_b32 s%d, s2, 1" % S_T)
    a("s_lshl_b32 s%d, s%d, 2" % (S_T, S_T))
    a("s_lshr_b32 s%d, s2, 6" % S_RB)
    a("s_add_u32 s%d, s%d, s%d" % (S_RB, S_RB, S_T))
    a("s_bfe_u32 s%d, s2, 0x20001" % S_T)
    a("s_lshl_b32 s%d, s%d, 3" % (S_T, S_T))
    a("s_bfe_u32 s%d, s2, 0x30003" % S_CB)
    a("s_add_u32 s%d, s%d, s%d" % (S_CB, S_CB, S_T))
    a("s_lshr_b32 s%d, s%d, 1" % (S_TG, S_W))
    a("s_and_b32 s%d, s%d, 1" % (S_CGP, S_W))
    T0, T1, T2, T3 = V_T0, V_T0 + 1, V_T0 + 2, V_T0 + 3
    a("v_lshrrev_b32 v%d, 4, v%d" % (T0, V_LANE))
    a("s_lshl_b32 s%d, s%d, 2" % (S_T, S_CGP))
    a("v_add_u32 v%d, s%d, v%d" % (T0, S_T, T0))
    a("v_and_b32 v%d, 7, v%d" % (T1, V_LANE))
    a("v_xor_b32 v%d, v%d, v%d" % (T0, T0, T1))
    a("v_lshlrev_b32 v%d, 4, v%d" % (T0, T0))
    a("v_lshrrev_b32 v%d, 3, v%d" % (T1, V_LANE))
    a("v_mul_u32_u24 v%d, 1280, v%d" % (T1, T1))
    a("v_add_u32 v%d, v%d, v%d" % (V_VX, T0, T1))
    a("v_lshlrev_b32 v%d, 4, v%d" % (V_VE, V_LANE))
    a("s_waitcnt lgkmcnt(0)")
    a("s_cmp_lt_u32 s%d, 5" % S_CB)
    a("s_cselect_b32 s%d, 1, 0" % S_ISQ)
    sel(a, S_STRIDE, 1280, 3456)
    a("s_cselect_b32 s%d, s38, s48" % SP)
    a("s_cselect_b32 s%d, s39, s49" % (SP + 1))
    sel(a, SP + 2, 819200, 2211840)
    a("s_mov_b32 s%d, 0x20000" % (SP + 3))
    a("s_cselect_b32 s%d, s38, s50" % SR)
    a("s_cselect_b32 s%d, s39, s51" % (SR + 1))
    a("s_mov_b32 s%d, s%d" % (SR + 2, SP + 2))
    a("s_mov_b32 s%d, 0x20000" % (SR + 3))
    a("s_lshl_b32 s%d, s%d, 8" % (S_T, S_CB))
    a("s_lshl_b32 s%d, s%d, 7" % (S_T + 1, S_CB))
    a("s_sub_u32 s%d, s%d, 640" % (S_T + 1, S_T + 1))
    a("s_cmp_lt_u32 s%d, 5" % S_CB)
    a("s_cselect_b32 s%d, s%d, s%d" % (S_OP, S_T, S_T + 1))
    a("s_cselect_b32 s%d, 128, 0" % (S_T + 2))
    a("s_cselect_b32 s%d, 0, 2" % (S_T + 3))
    a("s_mul_i32 s%d, s%d, s%d" % (S_T + 4, S_W, S_STRIDE))
    a("s_lshl_b32 s%d, s%d, 3" % (S_T + 4, S_T + 4))
    a("s_add_u32 s%d, s%d, s%d" % (S_OP, S_OP, S_T + 4))
    a("s_add_u32 s%d, s%d, s%d" % (S_OR, S_OP, S_T + 2))
    a("s_lshl_b32 s%d, s%d, 6" % (S_WSTEP, S_STRIDE))
    srd(a, SX, 36, 37, 2621440)
    a("s_cmp_ge_u32 s%d, 24" % S_CB)
    a("s_cselect_b32 s%d, s42, s40" % SE)
    a("s_cselect_b32 s%d, s43, s41" % (SE + 1))
    a("s_mov_b32 s%d, 25600" % (SE + 2))
    a("s_mov_b32 s%d, 0x20000" % (SE + 3))
    a("s_mul_i32 s%d, s%d, 320" % (S_OE, S_W))
    a("s_and_b32 s%d, s%d, 7" % (S_TTE, S_CB))
    a("s_cmp_ge_u32 s%d, 16" % S_CB)
    a("s_cselect_b32 s%d, 1, 0" % S_HASX)
    a("s_cmp_lt_u32 s%d, 4" % S_W)
    a("s_cselect_b32 s%d, s%d, 0" % (S_EXTRA, S_HASX))
    a("s_lshl_b32 s%d, s%d, 5" % (S_T, S_RB))
    a("s_add_u32 s%d, s%d, s%d" % (S_T, S_T, S_W))
    a("s_mul_i32 s%d, s%d, 10240" % (S_OX, S_T))
    for m in range(1, 4):
        a("s_add_u32 s%d, s%d, %d" % (S_OX + m, S_OX, m * 81920))
    a("v_lshrrev_b32 v%d, 5, v%d" % (T0, V_LANE))
    a("v_bfe_u32 v%d, v%d, 2, 2" % (T1, V_LANE))
    a("v_lshl_add_u32 v%d, v%d, 2, v%d" % (T0, T0, T1))
    a("v_mul_lo_u32 v%d, v%d, s%d" % (T0, T0, S_STRIDE))
    a("v_bfe_u32 v%d, v%d, 4, 1" % (T1, V_LANE))
    a("v_lshl_add_u32 v%d, v%d, 6, v%d" % (T0, T1, T0))
    a("v_and_b32 v%d, 3, v%d" % (T1, V_LANE))
    a("v_lshl_add_u32 v%d, v%d, 4, v%d" % (V_VP, T1, T0))
    a("v_xor_b32 v%d, s%d, v%d" % (T1, S_T + 3, T1))
    a("v_lshl_add_u32 v%d, v%d, 4, v%d" % (V_VR, T1, T0))
    a("s_lshl_b32 s%d, s%d, 10" % (S_BUFW, S_W))
    a("s_mov_b32 s%d, 0" % S_BUFI)

    def dma_stage():
        a("s_add_u32 s%d, s%d, s%d" % (S_T, S_BUFI, S_BUFW))
        for m in range(4):
            a("s_add_u32 m0, s%d, %d" % (S_T, XOFF + m * 8192))
            a("s_nop 0")
            a("buffer_load_dwordx4 v%d, s[%d:%d], s%d offen lds" % (V_VX, SX, SX + 3, S_OX + m))
            a("s_add_u32 s%d, s%d, 128" % (S_OX + m, S_OX + m))
        a("s_add_u32 m0, s%d, %d" % (S_T, POFF))
        a("s_nop 0")
        a("buffer_load_dwordx4 v%d, s[%d:%d], s%d offen lds" % (V_VP, SP, SP + 3, S_OP))
        a("s_add_u32 m0, s%d, %d" % (S_T, ROFF))
        a("s_add_u32 s%d, s%d, s%d" % (S_OP, S_OP, S_WSTEP))
        a("buffer_load_dwordx4 v%d, s[%d:%d], s%d offen lds" % (V_VR, SR, SR + 3, S_OR))
        a("s_add_u32 s%d, s%d, s%d" % (S_OR, S_OR, S_WSTEP))
        a("s_mul_i32 s%d, s%d, 320" % (S_T + 1, S_W))
        a("s_add_u32 s%d, s%d, s%d" % (S_T + 1, S_T + 1, S_BUFI))
        a("s_add_u32 m0, s%d, %d" % (S_T + 1, EOFF))
        a("s_mov_b64 exec, 0xfffff")
        a("buffer_load_dwordx4 v%d, s[%d:%d], s%d offen lds" % (V_VE, SE, SE + 3, S_OE))
        a("s_mov_b64 exec, -1")
        a("s_add_u32 s%d, s%d, 2560" % (S_OE, S_OE))
        a("s_add_u32 s%d, s%d, %d" % (S_BUFI, S_BUFI, STAGE))
        a("s_cmp_eq_u32 s%d, %d" % (S_BUFI, 3 * STAGE))
        a("s_cselect_b32 s%d, 0, s%d" % (S_BUFI, S_BUFI))

    for s in range(3):
        dma_stage()

    a("s_lshl_b32 s%d, s%d, 1" % (S_T, S_CGP))
    a("s_add_u32 s%d, s%d, s%d" % (S_T, S_T, S_TG))
    a("v_and_b32 v%d, 31, v%d" % (T0, V_LANE))
    a("v_bfe_u32 v%d, v%d, 1, 3" % (T1, V_LANE))
    a("v_lshrrev_b32 v%d, 5, v%d" % (T2, V_LANE))
    a("v_xor_b32 v%d, v%d, v%d" % (T1, T1, T2))
    a("v_lshlrev_b32 v%d, 7, v%d" % (T0, T0))
    a("s_lshl_b32 s%d, s%d, 13" % (S_T + 1, S_TG))
    for i in range(4):
        a("s_add_u32 s%d, s%d, %d" % (S_T + 2, S_T, i))
        a("s_and_b32 s%d, s%d, 3" % (S_T + 2, S_T + 2))
        a("s_lshl_b32 s%d, s%d, 1" % (S_T + 3, S_T + 2))
        a("v_xor_b32 v%d, s%d, v%d" % (T3, S_T + 3, T1))
        a("v_lshl_add_u32 v%d, v%d, 4, v%d" % (T3, T3, T0))
        a("v_add_u32 v%d, s%d, v%d" % (V_XA + i, S_T + 1, T3))
    a("s_and_b32 s%d, s%d, 3" % (S_T + 2, S_W))
    a("s_lshl_b32 s%d, s%d, 1" % (S_T + 3, S_T + 2))
    a("v_xor_b32 v%d, s%d, v%d" % (T3, S_T + 3, T1))
    a("v_lshl_add_u32 v%d, v%d, 4, v%d" % (T3, T3, T0))
    a("s_lshl_b32 s%d, s%d, 12" % (S_T + 3, S_TTE))
    a("v_add_u32 v%d, s%d, v%d" % (V_XE, S_T + 3, T3))
    a("v_and_b32 v%d, 1, v%d" % (T0, V_LANE))
    a("v_bfe_u32 v%d, v%d, 1, 1" % (T1, V_LANE))
    a("v_lshl_add_u32 v%d, v%d, 1, v%d" % (T0, T0, T1))
    a("v_bfe_u32 v%d, v%d, 4, 1" % (T3, V_LANE))
    a("v_bfe_u32 v%d, v%d, 2, 2" % (T1, V_LANE))
    a("v_lshl_add_u32 v%d, v%d, 3, v%d" % (V_WE, T2, T1))
    a("v_mul_u32_u24 v%d, 40, v%d" % (V_WE, V_WE))
    a("v_lshl_add_u32 v%d, v%d, 3, v%d" % (V_WE, T0, V_WE))
    a("v_lshl_add_u32 v%d, v%d, 5, v%d" % (V_WE, T3, V_WE))
    a("s_mul_i32 s%d, s%d, 640" % (S_T + 3, S_T + 2))
    a("s_add_u32 s%d, s%d, %d" % (S_T + 3, S_T + 3, EOFF))
    a("v_add_u32 v%d, s%d, v%d" % (V_WE, S_T + 3, V_WE))
    a("v_lshlrev_b32 v%d, 3, v%d" % (T0, T0))
    a("v_lshl_add_u32 v%d, v%d, 6, v%d" % (T0, T1, T0))
    a("v_lshl_add_u32 v%d, v%d, 10, v%d" % (T0, T2, T0))
    a("s_lshl_b32 s%d, s%d, 8" % (S_T + 1, S_CGP))
    a("s_add_u32 s%d, s%d, %d" % (S_T + 1, S_T + 1, POFF))
    a("v_add_u32 v%d, s%d, v%d" % (T0, S_T + 1, T0))
    a("s_cmp_lg_u32 s%d, 0" % S_ISQ)
    a("s_cselect_b32 s%d, 32, 8224" % (S_T + 1))
    a("s_cselect_b32 s%d, 8192, 32" % (S_T + 2))
    a("s_cselect_b32 s%d, 32, 8160" % (S_T + 3))
    a("v_mad_u32_u24 v%d, v%d, s%d, v%d" % (T1, T3, S_T + 1, T0))
    a("v_mad_u32_u24 v%d, v%d, s%d, v%d" % (T2, T3, S_T + 3, T0))
    a("v_add_u32 v%d, s%d, v%d" % (T2, S_T + 2, T2))
    for i in range(4):
        a("s_add_u32 s%d, s%d, %d" % (S_T + 2, S_T, i))
        a("s_and_b32 s%d, s%d, 3" % (S_T + 2, S_T + 2))
        a("s_lshl_b32 s%d, s%d, 11" % (S_T + 2, S_T + 2))
        a("v_add_u32 v%d, s%d, v%d" % (V_WA + i, S_T + 2, T1))
        a("v_add_u32 v%d, s%d, v%d" % (V_WA + 4 + i, S_T + 2, T2))
    a("v_mov_b32 v%d, 0x3f803f80" % V_ONE)
    for r in range(V_SX, V_CE + 1):
        a("v_mov_b32 v%d, 0" % r)
    for r in range(ACC, ACCE + 16):
        a("v_mov_b32 v%d, 0" % r)
    srd(a, SO, 54, 55, WS_USED)
    a("s_lshl_b32 s%d, s2, 3" % S_T)
    a("s_add_u32 s%d, s%d, s%d" % (S_T, S_T, S_W))
    for ui, (SU, S_U, S_D) in enumerate(((SU0, S_U0, S_D0), (SU1, S_U1, S_D1))):
        if ui: a("s_add_u32 s%d, s%d, 2048" % (S_T, S_T))
        a("s_mul_hi_u32 s%d, s%d, 0x%x" % (S_T + 1, S_T, (1 << 32) // 370 + 1))
        a("s_mul_i32 s%d, s%d, 370" % (S_T + 2, S_T + 1))
        a("s_sub_u32 s%d, s%d, s%d" % (S_T + 2, S_T, S_T + 2))
        a("s_mul_hi_u32 s%d, s%d, 0x%x" % (S_T + 3, S_T + 2, (1 << 32) // 5 + 1))
        a("s_mul_i32 s%d, s%d, 5" % (S_T + 4, S_T + 3))
        a("s_sub_u32 s%d, s%d, s%d" % (S_T + 4, S_T + 2, S_T + 4))
        a("s_mul_i32 s%d, s%d, 160" % (S_T + 1, S_T + 1))
        a("s_lshl_b32 s%d, s%d, 5" % (S_T + 4, S_T + 4))
        a("s_add_u32 s%d, s%d, s%d" % (S_T + 1, S_T + 1, S_T + 4))
        a("s_sub_u32 s%d, s%d, 54" % (S_T + 5, S_T + 3))
        a("s_cmp_lt_u32 s%d, 54" % (S_T + 3))
        a("s_cselect_b32 s%d, s%d, s%d" % (S_T + 3, S_T + 3, S_T + 5))
        a("s_cselect_b32 s%d, s52, s44" % SU)
        a("s_cselect_b32 s%d, s53, s45" % (SU + 1))
        sel(a, SU + 2, 2211840, 819200)
        a("s_mov_b32 s%d, 0x20000" % (SU + 3))
        a("s_mul_i32 s%d, s%d, 40960" % (S_T + 3, S_T + 3))
        a("s_add_u32 s%d, s%d, s%d" % (S_U, S_T + 3, S_T + 1))
        a("s_lshl_b32 s%d, s%d, 10" % (S_D, S_T))
        a("s_add_u32 s%d, s%d, 0x%x" % (S_D, S_D, WS_WF))
        if ui:
            a("s_cmp_lt_u32 s%d, 2960" % S_T)
            a("s_cselect_b32 s%d, s%d, 0x40000000" % (S_U, S_U))
            a("s_cselect_b32 s%d, s%d, 0x40000000" % (S_D, S_D))
    a("v_lshrrev_b32 v%d, 4, v%d" % (T0, V_LANE))
    a("v_mul_u32_u24 v%d, 10240, v%d" % (T0, T0))
    a("v_and_b32 v%d, 15, v%d" % (T1, V_LANE))
    a("v_lshl_add_u32 v%d, v%d, 1, v%d" % (V_RA, T1, T0))
    a("v_add_u32 v%d, 5120, v%d" % (V_RA + 1, V_RA))

    def reads(p, i):
        f = F[p]
        if "noread" in dbg: return
        if "notr" in dbg:
            a("ds_read_b128 %s, v%d" % (vr(f, 4), V_XA + i))
            a("ds_read_b128 %s, v%d offset:4096" % (vr(f + 4, 4), V_XA + i))
            return
        if "nox" in dbg:
            a("ds_read_b64_tr_b16 %s, v%d" % (vr(f + 8, 2), V_WA + i))
            a("ds_read_b64_tr_b16 %s, v%d offset:512" % (vr(f + 10, 2), V_WA + i))
            a("ds_read_b64_tr_b16 %s, v%d" % (vr(f + 12, 2), V_WA + 4 + i))
            a("ds_read_b64_tr_b16 %s, v%d offset:512" % (vr(f + 14, 2), V_WA + 4 + i))
            return
        a("ds_read_b128 %s, v%d" % (vr(f, 4), V_XA + i))
        a("ds_read_b64_tr_b16 %s, v%d" % (vr(f + 8, 2), V_WA + i))
        a("ds_read_b64_tr_b16 %s, v%d offset:512" % (vr(f + 10, 2), V_WA + i))
        a("ds_read_b64_tr_b16 %s, v%d" % (vr(f + 12, 2), V_WA + 4 + i))
        a("ds_read_b64_tr_b16 %s, v%d offset:512" % (vr(f + 14, 2), V_WA + 4 + i))
        a("ds_read_b128 %s, v%d offset:4096" % (vr(f + 4, 4), V_XA + i))

    def mf(p, ti, ct):
        f = F[p]
        d = ACC + (ti * 2 + ct) * 16
        if "nomfma" in dbg: return
        a("v_mfma_f32_32x32x16_bf16 %s, %s, %s, %s" % (vr(d, 16), vr(f + 8 + 4 * ct, 4), vr(f + 4 * ti, 4), vr(d, 16)))

    def xstats(p, ti):
        f = F[p] + 4 * ti
        ops = []
        for r in range(4):
            ops.append("v_dot2c_f32_bf16 v%d, v%d, v%d" % (V_SX + 2 * ti, V_ONE, f + r))
            ops.append("v_dot2c_f32_bf16 v%d, v%d, v%d" % (V_SX + 2 * ti + 1, f + r, f + r))
        return ops
    def cstats(p, ct):
        f = F[p] + 8 + 4 * ct
        return ["v_dot2c_f32_bf16 v%d, v%d, v%d" % (V_CS + ct, V_ONE, f + r) for r in range(4)]

    def group(p, fill):
        order = [(0, 0), (0, 1), (1, 0), (1, 1)]
        if "nodot" in dbg: fill = [f for f in fill if "dot2" not in f]
        n = (len(fill) + 3) // 4
        for q, (ti, ct) in enumerate(order):
            mf(p, ti, ct)
            for op in fill[q * n:(q + 1) * n]:
                a(op)

    a("s_mov_b32 s%d, 0" % S_STG)
    a("s_mov_b32 s%d, 0" % S_RBUF)
    a("s_waitcnt vmcnt(14)")
    a("s_barrier")
    if stamps and "clk" in dbg:
        a("s_memtime s[92:93]")
        a.stamp("t0")
    elif stamps: a.stamp("mid1")
    reads(0, 0)
    a.label("K1_LOOP")
    reads(1, 1)
    a("s_waitcnt lgkmcnt(6)")
    group(0, xstats(0, 0) + cstats(0, 0) + cstats(0, 1) + xstats(0, 1))
    reads(0, 2)
    a("s_waitcnt lgkmcnt(6)")
    group(1, xstats(1, 0) + xstats(1, 1))
    reads(1, 3)
    a("s_cmp_eq_u32 s%d, 0" % S_EXTRA)
    a("s_cbranch_scc1 K1_NOX1")
    a("ds_read_b128 %s, v%d" % (vr(FE, 4), V_XE))
    a("ds_read_b64_tr_b16 %s, v%d" % (vr(FE + 4, 2), V_WE))
    a("ds_read_b64_tr_b16 %s, v%d offset:160" % (vr(FE + 6, 2), V_WE))
    a("s_waitcnt lgkmcnt(9)")
    a("s_branch K1_NOX1B")
    a.label("K1_NOX1")
    a("s_waitcnt lgkmcnt(6)")
    a.label("K1_NOX1B")
    a("s_add_u32 s%d, s%d, %d" % (S_RBUF, S_RBUF, STAGE))
    a("s_cmp_eq_u32 s%d, %d" % (S_RBUF, 3 * STAGE))
    sel(a, S_DELTA, (-2 * STAGE) & 0xffffffff, STAGE)
    a("s_cselect_b32 s%d, 0, s%d" % (S_RBUF, S_RBUF))
    upd = ["v_add_u32 v%d, s%d, v%d" % (r, S_DELTA, r) for r in range(V_XA, V_WE + 1)]
    group(0, upd)
    a("s_waitcnt lgkmcnt(0)")
    a("s_cmp_eq_u32 s%d, 9" % S_STG)
    a("s_cbranch_scc1 K1_LAST")
    a("s_cmp_eq_u32 s%d, 8" % S_STG)
    a("s_cbranch_scc1 K1_W8")
    a("s_waitcnt vmcnt(7)")
    a("s_barrier")
    reads(0, 0)
    a("s_cmp_eq_u32 s%d, 7" % S_STG)
    a("s_cbranch_scc1 K1_RL")
    if "nodma" not in dbg: dma_stage()
    a("s_branch K1_LAST")
    a.label("K1_RL")
    for ui, (SU, S_U) in enumerate(((SU0, S_U0), (SU1, S_U1))):
        for e in range(8):
            a("buffer_load_ushort v%d, v%d, s[%d:%d], s%d offen offset:%d" % (V_RL + ui * 8 + e, V_RA + (e >> 2), SU, SU + 3, S_U, (e & 3) * 1280))
    a("s_branch K1_LAST")
    a.label("K1_W8")
    a("s_waitcnt vmcnt(16)")
    a("s_barrier")
    reads(0, 0)
    a.label("K1_LAST")
    a("s_cmp_eq_u32 s%d, 0" % S_EXTRA)
    a("s_cbranch_scc1 K1_NOX2")
    a("v_mfma_f32_32x32x16_bf16 %s, %s, %s, %s" % (vr(ACCE, 16), vr(FE + 4, 4), vr(FE, 4), vr(ACCE, 16)))
    for r in range(4):
        a("v_dot2c_f32_bf16 v%d, v%d, v%d" % (V_CE, V_ONE, FE + 4 + r))
    a.label("K1_NOX2")
    group(1, [])
    a("s_add_u32 s%d, s%d, 1" % (S_STG, S_STG))
    a("s_cmp_lt_u32 s%d, 10" % S_STG)
    a("s_cbranch_scc1 K1_LOOP")
    if stamps and "clk" in dbg:
        a("s_memtime s[94:95]")
        a("s_memrealtime s[96:97]")
        a("s_waitcnt lgkmcnt(0)")
        a("s_sub_u32 s94, s94, s92")
        a("s_sub_u32 s96, s96, s90")
        a("s_load_dwordx2 s[98:99], s[0:1], 80")
        a("v_mov_b32 v32, s94")
        a("v_mov_b32 v33, s96")
        a("v_mov_b32 v34, 0")
        a("s_waitcnt lgkmcnt(0)")
        a("global_store_dwordx2 v34, v[32:33], s[98:99]")
    elif stamps: a.stamp("mid2")

    E0 = F[0]
    for n, r in enumerate(range(V_SX, V_CE + 1)):
        a("v_mov_b32 v%d, v%d" % (E0 + n, r))
    a("s_nop 1")
    for n, r in enumerate(range(V_SX, V_CE + 1)):
        a("v_permlane32_swap_b32 v%d, v%d" % (E0 + n, r))
    a("s_nop 1")
    for n, r in enumerate(range(V_SX, V_CE + 1)):
        a("v_add_f32 v%d, v%d, v%d" % (r, E0 + n, r))
    a("v_cmp_gt_u32 vcc, 32, v%d" % V_LANE)
    a("s_nop 1")
    a("v_cndmask_b32 v%d, v%d, v%d, vcc" % (E0, V_SX + 2, V_SX))
    a("v_cndmask_b32 v%d, v%d, v%d, vcc" % (E0 + 1, V_SX + 3, V_SX + 1))
    a("v_cndmask_b32 v%d, v%d, v%d, vcc" % (E0 + 2, V_CS + 1, V_CS))
    a("s_lshl_b32 s%d, s%d, 11" % (S_T, S_CGP))
    a("s_lshl_b32 s%d, s%d, 9" % (S_T + 1, S_TG))
    a("s_add_u32 s%d, s%d, s%d" % (S_T, S_T, S_T + 1))
    a("s_add_u32 s%d, s%d, %d" % (S_T, S_T, ST_X))
    a("v_lshl_add_u32 v%d, v%d, 3, s%d" % (T0, V_LANE, S_T))
    a("ds_write_b64 v%d, %s" % (T0, vr(E0, 2)))
    a("s_lshl_b32 s%d, s%d, 8" % (S_T, S_W))
    a("s_add_u32 s%d, s%d, %d" % (S_T, S_T, ST_C))
    a("v_lshl_add_u32 v%d, v%d, 2, s%d" % (T0, V_LANE, S_T))
    a("ds_write_b32 v%d, v%d" % (T0, E0 + 2))
    a("s_cmp_eq_u32 s%d, 0" % S_EXTRA)
    a("s_cbranch_scc1 K1_NOX3")
    a("s_lshl_b32 s%d, s%d, 7" % (S_T, S_W))
    a("s_add_u32 s%d, s%d, %d" % (S_T, S_T, ST_E))
    a("v_and_b32 v%d, 31, v%d" % (T0, V_LANE))
    a("v_lshl_add_u32 v%d, v%d, 2, s%d" % (T0, T0, S_T))
    a("ds_write_b32 v%d, v%d" % (T0, V_CE))
    a("s_mul_i32 s%d, s%d, 3072" % (S_T, S_W))
    a("s_add_u32 s%d, s%d, %d" % (S_T, S_T, STAGE))
    a("v_lshl_add_u32 v%d, v%d, 4, s%d" % (T0, V_LANE, S_T))
    a("s_nop 7")
    for q in range(3):
        a("ds_write_b128 v%d, %s offset:%d" % (T0, vr(ACCE + 4 * q, 4), q * 1024))
    a.label("K1_NOX3")
    a("s_waitcnt lgkmcnt(0)")
    a("s_barrier")
    a("v_and_b32 v%d, 31, v%d" % (T0, V_LANE))
    a("s_lshl_b32 s%d, s%d, 9" % (S_T, S_TG))
    a("s_add_u32 s%d, s%d, %d" % (S_T, S_T, ST_X))
    a("v_lshl_add_u32 v%d, v%d, 3, s%d" % (T0, T0, S_T))
    a("ds_read_b64 %s, v%d" % (vr(E0, 2), T0))
    a("ds_read_b64 %s, v%d offset:2048" % (vr(E0 + 2, 2), T0))
    a("ds_read_b64 %s, v%d offset:256" % (vr(E0 + 4, 2), T0))
    a("ds_read_b64 %s, v%d offset:2304" % (vr(E0 + 6, 2), T0))
    a("s_lshl_b32 s%d, s%d, 8" % (S_T, S_CGP))
    a("s_add_u32 s%d, s%d, %d" % (S_T, S_T, ST_C))
    a("v_lshl_add_u32 v%d, v%d, 2, s%d" % (T1, V_LANE, S_T))
    for q in range(4):
        a("ds_read_b32 v%d, v%d offset:%d" % (E0 + 8 + q, T1, q * 512))
    a("s_waitcnt lgkmcnt(0)")
    a("v_add_f32 v%d, v%d, v%d" % (E0 + 8, E0 + 8, E0 + 9))
    a("v_add_f32 v%d, v%d, v%d" % (E0 + 10, E0 + 10, E0 + 11))
    a("v_add_f32 v%d, v%d, v%d" % (E0 + 8, E0 + 8, E0 + 10))
    a("s_lshl_b32 s%d, s%d, 8" % (S_T, S_W))
    a("s_add_u32 s%d, s%d, %d" % (S_T, S_T, 2 * STAGE))
    a("v_lshl_add_u32 v%d, v%d, 2, s%d" % (T1, V_LANE, S_T))
    a("ds_write_b32 v%d, v%d" % (T1, E0 + 8))
    def meanrstd(dst, s0, s1):
        a("v_add_f32 v%d, v%d, v%d" % (s0, s0, s1))
        a("v_add_f32 v%d, v%d, v%d" % (s0 + 1, s0 + 1, s1 + 1))
        a("v_mul_f32 v%d, 0x%x, v%d" % (dst, f32bits(-1.0 / 640), s0))
        a("v_mul_f32 v%d, 0x%x, v%d" % (s0 + 1, f32bits(1.0 / 640), s0 + 1))
        a("v_fma_f32 v%d, -v%d, v%d, v%d" % (s0 + 1, dst, dst, s0 + 1))
        a("v_max_f32 v%d, 0, v%d" % (s0 + 1, s0 + 1))
        a("v_add_f32 v%d, 0x%x, v%d" % (s0 + 1, f32bits(1e-5), s0 + 1))
        a("v_rsq_f32 v%d, v%d" % (dst + 1, s0 + 1))
    meanrstd(V_SX, E0, E0 + 2)
    meanrstd(V_SX + 2, E0 + 4, E0 + 6)
    a("v_lshrrev_b32 v%d, 5, v%d" % (T2, V_LANE))
    a("v_lshl_add_u32 v%d, v%d, 4, s%d" % (T1, T2, S_T))
    a("s_waitcnt lgkmcnt(0)")
    CSV = E0
    for ct in range(2):
        for jj in range(4):
            a("ds_read_b128 %s, v%d offset:%d" % (vr(CSV + ct * 16 + jj * 4, 4), T1, ct * 128 + jj * 32))
    a("s_waitcnt lgkmcnt(0)")
    for ti in range(2):
        for ct in range(2):
            d = ACC + (ti * 2 + ct) * 16
            for r in range(16):
                a("v_fmac_f32 v%d, v%d, v%d" % (d + r, V_SX + 2 * ti, CSV + ct * 16 + r))
    a("s_cmp_eq_u32 s%d, 0" % S_ISQ)
    a("s_cbranch_scc1 K1_GU")
    cq = LOG2E * 20 ** -0.5
    a("v_and_b32 v%d, 31, v%d" % (T0, V_LANE))
    a("v_mul_u32_u24 v%d, 1280, v%d" % (T0, T0))
    a("v_lshl_add_u32 v%d, v%d, 4, v%d" % (T0, T2, T0))
    a("s_lshl_b32 s%d, s%d, 2" % (S_T, S_RB))
    a("s_add_u32 s%d, s%d, s%d" % (S_T, S_T, S_TG))
    a("s_mul_i32 s%d, s%d, 81920" % (S_T, S_T))
    a("s_lshl_b32 s%d, s%d, 8" % (S_T + 1, S_CB))
    a("s_add_u32 s%d, s%d, s%d" % (S_T, S_T, S_T + 1))
    a("s_lshl_b32 s%d, s%d, 6" % (S_T + 1, S_CGP))
    a("s_add_u32 s%d, s%d, s%d" % (S_T, S_T, S_T + 1))
    if WS_QP: a("s_add_u32 s%d, s%d, 0x%x" % (S_T, S_T, WS_QP))
    a("s_add_u32 s%d, s%d, 40960" % (S_T + 1, S_T))
    for ti in range(2):
        a("v_mul_f32 v%d, 0x%x, v%d" % (T1, f32bits(cq), V_SX + 2 * ti + 1))
        for ct in range(2):
            d = ACC + (ti * 2 + ct) * 16
            for r in range(16):
                a("v_mul_f32 v%d, v%d, v%d" % (d + r, T1, d + r))
            o = CSV + (ti * 2 + ct) * 8
            for r in range(8):
                a("v_cvt_pk_bf16_f32 v%d, v%d, v%d" % (o + r, d + 2 * r, d + 2 * r + 1))
            a("buffer_store_dwordx4 %s, v%d, s[%d:%d], s%d offen offset:%d" % (vr(o, 4), T0, SO, SO + 3, S_T + ti, ct * 128))
            a("buffer_store_dwordx4 %s, v%d, s[%d:%d], s%d offen offset:%d" % (vr(o + 4, 4), T0, SO, SO + 3, S_T + ti, ct * 128 + 32))
    a("s_branch K1_XE")
    a.label("K1_GU")
    a("v_and_b32 v%d, 15, v%d" % (T0, V_LANE))
    a("v_lshlrev_b32 v%d, 4, v%d" % (T0, T0))
    a("v_lshl_add_u32 v%d, v%d, 8, v%d" % (T0, T2, T0))
    a("v_bfe_u32 v%d, v%d, 4, 1" % (T1, V_LANE))
    a("v_lshl_add_u32 v%d, v%d, 10, v%d" % (T0, T1, T0))
    a("s_lshl_b32 s%d, s%d, 2" % (S_T, S_RB))
    a("s_add_u32 s%d, s%d, s%d" % (S_T, S_T, S_TG))
    a("s_mul_i32 s%d, s%d, 74" % (S_T, S_T))
    a("s_lshl_b32 s%d, s%d, 1" % (S_T + 1, S_CB))
    a("s_add_u32 s%d, s%d, s%d" % (S_T, S_T, S_T + 1))
    a("s_add_u32 s%d, s%d, s%d" % (S_T, S_T, S_CGP))
    a("s_sub_u32 s%d, s%d, 10" % (S_T, S_T))
    a("s_lshl_b32 s%d, s%d, 12" % (S_T, S_T))
    a("s_add_u32 s%d, s%d, 0x%x" % (S_T, S_T, WS_HO))
    TE = CSV + 16
    for ti in range(2):
        a("v_mul_f32 v%d, 0x%x, v%d" % (T1, f32bits(-LOG2E), V_SX + 2 * ti + 1))
        a("v_mul_f32 v%d, v%d, v%d" % (T3, V_SX + 2 * ti + 1, V_SX + 2 * ti + 1))
        for ct in range(2):
            d = ACC + (ti * 2 + ct) * 16
            for r in range(8):
                a("v_mul_f32 v%d, v%d, v%d" % (TE + r, T1, d + r))
            for r in range(8):
                a("v_exp_f32 v%d, v%d" % (TE + r, TE + r))
            for r in range(8):
                a("v_mul_f32 v%d, v%d, v%d" % (d + r, d + r, d + 8 + r))
            for r in range(8):
                a("v_add_f32 v%d, 1.0, v%d" % (TE + r, TE + r))
            for r in range(8):
                a("v_rcp_f32 v%d, v%d" % (TE + r, TE + r))
            for r in range(8):
                a("v_mul_f32 v%d, v%d, v%d" % (d + r, T3, d + r))
            for r in range(8):
                a("v_mul_f32 v%d, v%d, v%d" % (d + r, TE + r, d + r))
            o = CSV + (ti * 2 + ct) * 4
            for r in range(4):
                a("v_cvt_pk_bf16_f32 v%d, v%d, v%d" % (o + r, d + 2 * r, d + 2 * r + 1))
            a("buffer_store_dwordx4 %s, v%d, s[%d:%d], s%d offen offset:%d" % (vr(o, 4), T0, SO, SO + 3, S_T, ti * 2048 + ct * 512))
    a.label("K1_XE")
    a("s_waitcnt vmcnt(8)")
    a("s_waitcnt vmcnt(4)")
    for ui, S_D in enumerate((S_D0, S_D1)):
        for r in range(4):
            a("v_lshl_or_b32 v%d, v%d, 16, v%d" % (V_RA + 4 + ui * 4 + r, V_RL + ui * 8 + 2 * r + 1, V_RL + ui * 8 + 2 * r))
        a("buffer_store_dwordx4 %s, v%d, s[%d:%d], s%d offen" % (vr(V_RA + 4 + ui * 4, 4), V_VE, SO, SO + 3, S_D))
    a("s_cmp_eq_u32 s%d, 0" % S_EXTRA)
    a("s_cbranch_scc1 K1_DONE")
    a("s_cmp_lg_u32 s%d, 0" % S_W)
    a("s_cbranch_scc1 K1_DONE")
    X0 = ACC
    a("v_lshlrev_b32 v%d, 4, v%d" % (T0, V_LANE))
    a("v_add_u32 v%d, %d, v%d" % (T0, STAGE, T0))
    for w in range(1, 4):
        for q in range(3):
            a("ds_read_b128 %s, v%d offset:%d" % (vr(X0 + (w - 1) * 12 + q * 4, 4), T0, w * 3072 + q * 1024))
    a("v_and_b32 v%d, 31, v%d" % (T0, V_LANE))
    a("s_lshl_b32 s%d, s%d, 8" % (S_T, S_TTE))
    a("s_add_u32 s%d, s%d, %d" % (S_T, S_T, ST_X))
    a("v_lshl_add_u32 v%d, v%d, 3, s%d" % (T1, T0, S_T))
    a("ds_read_b64 %s, v%d" % (vr(X0 + 36, 2), T1))
    a("ds_read_b64 %s, v%d offset:2048" % (vr(X0 + 38, 2), T1))
    a("s_waitcnt lgkmcnt(0)")
    a("v_lshlrev_b32 v%d, 4, v%d" % (T1, T2))
    a("v_add_u32 v%d, %d, v%d" % (T1, ST_E, T1))
    C0 = E0
    a("s_waitcnt vmcnt(0)")
    for w in range(2):
        for q in range(3):
            a("ds_read_b128 %s, v%d offset:%d" % (vr(C0 + w * 12 + q * 4, 4), T1, w * 128 + q * 32))
    for r in range(12):
        a("v_add_f32 v%d, v%d, v%d" % (ACCE + r, ACCE + r, X0 + r))
        a("v_add_f32 v%d, v%d, v%d" % (X0 + 12 + r, X0 + 12 + r, X0 + 24 + r))
    for r in range(12):
        a("v_add_f32 v%d, v%d, v%d" % (ACCE + r, ACCE + r, X0 + 12 + r))
    meanrstd(V_SX, X0 + 36, X0 + 38)
    a("s_waitcnt lgkmcnt(0)")
    for w in range(2):
        for q in range(3):
            a("ds_read_b128 %s, v%d offset:%d" % (vr(X0 + w * 12 + q * 4, 4), T1, (w + 2) * 128 + q * 32))
    for r in range(12):
        a("v_add_f32 v%d, v%d, v%d" % (C0 + r, C0 + r, C0 + 12 + r))
    a("s_waitcnt lgkmcnt(0)")
    for r in range(12):
        a("v_add_f32 v%d, v%d, v%d" % (X0 + r, X0 + r, X0 + 12 + r))
    for r in range(12):
        a("v_add_f32 v%d, v%d, v%d" % (C0 + r, C0 + r, X0 + r))
    for r in range(12):
        a("v_fmac_f32 v%d, v%d, v%d" % (ACCE + r, V_SX, C0 + r))
    for r in range(12):
        a("v_mul_f32 v%d, v%d, v%d" % (ACCE + r, V_SX + 1, ACCE + r))
    P0 = X0 + 40
    for r in range(6):
        a("v_cvt_pk_bf16_f32 v%d, v%d, v%d" % (P0 + r, ACCE + 2 * r, ACCE + 2 * r + 1))
    a("s_lshl_b32 s%d, s%d, 3" % (S_T + 2, S_RB))
    a("s_add_u32 s%d, s%d, s%d" % (S_T + 2, S_T + 2, S_TTE))
    a("s_mul_i32 s%d, s%d, 2560" % (S_T, S_T + 2))
    a("s_add_u32 s%d, s%d, 0x%x" % (S_T, S_T, WS_KV))
    a("s_cmp_ge_u32 s%d, 24" % S_CB)
    a("s_cbranch_scc1 K1_V")
    a("buffer_store_dwordx4 %s, v%d, s[%d:%d], s%d offen" % (vr(P0, 4), V_VE, SO, SO + 3, S_T))
    a("v_lshlrev_b32 v%d, 3, v%d" % (T1, V_LANE))
    a("v_mov_b32 v%d, 0" % T3)
    for r in range(4):
        a("v_dot2c_f32_bf16 v%d, v%d, v%d" % (T3, P0 + r, P0 + r))
    a("s_mov_b32 exec_hi, 0")
    a("buffer_store_dwordx2 %s, v%d, s[%d:%d], s%d offen offset:1024" % (vr(P0 + 4, 2), T1, SO, SO + 3, S_T))
    for r in range(4, 6):
        a("v_dot2c_f32_bf16 v%d, v%d, v%d" % (T3, P0 + r, P0 + r))
    a("s_mov_b64 exec, -1")
    a("s_nop 3")
    a("v_mov_b32 v%d, v%d" % (T0, T3))
    a("s_nop 1")
    a("v_permlane32_swap_b32 v%d, v%d" % (T0, T3))
    a("s_nop 1")
    a("v_add_f32 v%d, v%d, v%d" % (T3, T0, T3))
    for dpp in ("quad_perm:[1,0,3,2]", "quad_perm:[2,3,0,1]", "row_half_mirror", "row_mirror"):
        a("s_nop 1")
        a("v_max_f32_dpp v%d, v%d, v%d %s row_mask:0xf bank_mask:0xf" % (T3, T3, T3, dpp))
    a("s_nop 1")
    a("v_readlane_b32 s%d, v%d, 0" % (S_T + 3, T3))
    a("v_readlane_b32 s%d, v%d, 16" % (S_T + 4, T3))
    a("s_nop 3")
    a("s_max_u32 s%d, s%d, s%d" % (S_T + 3, S_T + 3, S_T + 4))
    a("v_mov_b32 v%d, s%d" % (T3, S_T + 3))
    a("s_lshl_b32 s%d, s%d, 2" % (S_T + 2, S_T + 2))
    a("s_add_u32 s%d, s%d, 0x%x" % (S_T + 2, S_T + 2, WS_KN))
    a("v_mov_b32 v%d, 0" % T0)
    a("s_mov_b64 exec, 1")
    a("buffer_store_dword v%d, v%d, s[%d:%d], s%d offen" % (T3, T0, SO, SO + 3, S_T + 2))
    a("s_mov_b64 exec, -1")
    a("s_branch K1_DONE")
    a.label("K1_V")
    a("v_bfe_u32 v%d, v%d, 3, 2" % (T1, V_LANE))
    a("v_mul_u32_u24 v%d, 320, v%d" % (T1, T1))
    a("v_and_b32 v%d, 7, v%d" % (T3, V_LANE))
    a("v_lshl_add_u32 v%d, v%d, 1, v%d" % (T1, T3, T1))
    a("v_lshl_add_u32 v%d, v%d, 7, v%d" % (T1, T2, T1))
    for r in range(12):
        if r == 8: a("s_mov_b32 exec_hi, 0")
        op = "buffer_store_short_d16_hi" if r & 1 else "buffer_store_short"
        dd = r if r < 8 else r + 8
        a("%s v%d, v%d, s[%d:%d], s%d offen offset:%d" % (op, P0 + (r >> 1), T1, SO, SO + 3, S_T, 1280 + dd * 16))
    a("s_mov_b64 exec, -1")
    a.label("K1_DONE")
    if stamps:
        a("s_waitcnt vmcnt(0)")
        a.stamp_store(lidx, "s2", E0, "v0")
    a.label("K1_END")
    a("s_endpgm")
    a.end_kernel(name, NV)
    a.launch(name, (256, 1, 1), 512, K1_LDS)

if __name__ == "__main__":
    a = Asm()
    gen_k1(a, stamps=True, dbg=sys.argv[2] if len(sys.argv) > 2 else "")
    open(sys.argv[1], "w").write(a.text())
```

```python
from common import *

TILE = 2560
CHUNK = 8 * TILE
K2_LDS = 3 * CHUNK
VMASK = 0x000FFFFF000FFFFF

def gen_att(a, pfx="K2", stamps=False, lidx=1, dbg="", wg="s2", end_label=None):
    V_LANE = 1
    V_DMA = 2
    V_KA, V_K1A, V_V0A, V_V1A = 3, 4, 5, 6
    V_IDX = 7
    T0, T1, T2, T3 = 8, 9, 10, 11
    Q0, Q1 = 12, 16
    K0, K1 = 20, 24
    V0, V1 = 28, 32
    SA, SB = 36, 52
    O = 68
    NV = 84
    S_W = 3
    SWS = 8
    S_RB, S_HEAD, S_TI = 12, 13, 14
    S_SRC, S_DST = 15, 16
    S_C = 17
    S_DK, S_DV0, S_DV1 = 18, 19, 20
    S_T = 24
    S_VM = 40
    L = lambda s: pfx + "_" + s

    a("s_load_dwordx2 s[4:5], s[0:1], 88")
    a("v_lshrrev_b32 v%d, 6, v0" % T0)
    a("v_and_b32 v%d, 63, v0" % V_LANE)
    a("v_readfirstlane_b32 s%d, v%d" % (S_W, T0))
    a("v_lshlrev_b32 v%d, 4, v%d" % (V_DMA, V_LANE))
    a("s_and_b32 s%d, %s, 7" % (S_RB, wg))
    a("s_lshl_b32 s%d, s%d, 2" % (S_RB, S_RB))
    a("s_bfe_u32 s%d, %s, 0x20003" % (S_T, wg))
    a("s_add_u32 s%d, s%d, s%d" % (S_RB, S_RB, S_T))
    a("s_lshr_b32 s%d, %s, 5" % (S_HEAD, wg))
    a("s_lshl_b32 s%d, s%d, 2" % (S_HEAD, S_HEAD))
    a("s_lshr_b32 s%d, s%d, 1" % (S_T, S_W))
    a("s_add_u32 s%d, s%d, s%d" % (S_HEAD, S_HEAD, S_T))
    a("s_and_b32 s%d, s%d, 1" % (S_TI, S_W))
    a("s_lshl_b32 s%d, s%d, 10" % (S_DST, S_W))
    a("s_add_u32 s%d, s%d, 0x%x" % (S_SRC, S_DST, WS_KV))
    a("s_mov_b32 s%d, 0x%x" % (S_VM, VMASK & 0xffffffff))
    a("s_mov_b32 s%d, 0x%x" % (S_VM + 1, VMASK >> 32))
    a("s_waitcnt lgkmcnt(0)")
    srd(a, SWS, 4, 5, WS_USED)

    def dma_chunk(tag):
        for m in range(3):
            if m == 2:
                a("s_cmp_ge_u32 s%d, 4" % S_W)
                a("s_cbranch_scc1 %s" % L("DS" + tag))
            a("s_add_u32 m0, s%d, %d" % (S_DST, m * 8192))
            a("s_add_u32 s%d, s%d, %d" % (S_T, S_SRC, m * 8192))
            a("buffer_load_dwordx4 v%d, s[%d:%d], s%d offen lds" % (V_DMA, SWS, SWS + 3, S_T))
        a.label(L("DS" + tag))
        a("s_add_u32 s%d, s%d, %d" % (S_SRC, S_SRC, CHUNK))
        a("s_add_u32 s%d, s%d, %d" % (S_DST, S_DST, CHUNK))
        a("s_cmp_ge_u32 s%d, %d" % (S_DST, 3 * CHUNK))
        a("s_cbranch_scc0 %s" % L("DW" + tag))
        a("s_sub_u32 s%d, s%d, %d" % (S_DST, S_DST, 3 * CHUNK))
        a.label(L("DW" + tag))

    a("v_and_b32 v%d, 31, v%d" % (T0, V_LANE))
    a("v_lshrrev_b32 v%d, 5, v%d" % (T1, V_LANE))
    a("v_mul_u32_u24 v%d, 1280, v%d" % (T2, T0))
    a("v_lshl_add_u32 v%d, v%d, 4, v%d" % (T3, T1, T2))
    a("s_lshl_b32 s%d, s%d, 1" % (S_T, S_RB))
    a("s_add_u32 s%d, s%d, s%d" % (S_T, S_T, S_TI))
    a("s_mul_i32 s%d, s%d, 40960" % (S_T, S_T))
    a("s_mul_i32 s%d, s%d, 40" % (S_T + 1, S_HEAD))
    a("s_add_u32 s%d, s%d, s%d" % (S_T, S_T, S_T + 1))
    if WS_QP: a("s_add_u32 s%d, s%d, 0x%x" % (S_T, S_T, WS_QP))
    a("buffer_load_dwordx4 %s, v%d, s[%d:%d], s%d offen" % (vr(Q0, 4), T3, SWS, SWS + 3, S_T))
    a("buffer_load_dwordx2 %s, v%d, s[%d:%d], s%d offen offset:32" % (vr(Q1, 2), T2, SWS, SWS + 3, S_T))
    a("v_lshlrev_b32 v%d, 2, v%d" % (T2, V_LANE))
    a("s_mov_b32 s%d, 0x%x" % (S_T, WS_KN))
    a("buffer_load_dword v%d, v%d, s[%d:%d], s%d offen" % (SA, T2, SWS, SWS + 3, S_T))
    dma_chunk("a")
    dma_chunk("b")
    a("v_mov_b32 v%d, v%d" % (V_KA, V_DMA))
    a("v_lshlrev_b32 v%d, 3, v%d" % (V_K1A, T0))
    a("v_mul_u32_u24 v%d, 320, v%d" % (V_V0A, T1))
    a("v_lshl_add_u32 v%d, v%d, 4, v%d" % (V_V0A, T0, V_V0A))
    a("v_mov_b32 v%d, v%d" % (V_V1A, V_V0A))
    a("v_mov_b32 v%d, 0xdddddddd" % V_IDX)
    a("v_mov_b32 v%d, 0x3f803f80" % (K1 + 2))
    a("v_mov_b32 v%d, 0x00003f80" % (K1 + 3))
    for r in range(8):
        a("v_mov_b32 v%d, 0" % (V0 + r))
    if "allones" in dbg:
        a("s_mov_b64 exec, -1")
    else:
        a("s_mov_b32 exec_lo, 0x11000000")
        a("s_mov_b32 exec_hi, 0x11000000")
    for r in range(8):
        a("v_mov_b32 v%d, 0x3f803f80" % (V0 + r))
    a("s_mov_b64 exec, -1")
    for r in range(16):
        a("v_mov_b32 v%d, 0" % (O + r))
    for r in range(8, 16):
        a("v_mov_b32 v%d, 0" % (SB + r))
    a("v_mov_b32 v%d, 0" % (Q1 + 2))
    a("v_mov_b32 v%d, 0" % (Q1 + 3))
    a("s_waitcnt vmcnt(4)")
    a("s_mov_b32 exec_lo, 0")
    a("v_mov_b32 v%d, 0" % Q1)
    a("v_mov_b32 v%d, 0" % (Q1 + 1))
    a("s_mov_b64 exec, -1")
    a("v_mov_b32 v%d, 0" % T2)
    for r in range(6):
        a("v_dot2c_f32_bf16 v%d, v%d, v%d" % (T2, Q0 + r, Q0 + r))
    for dpp in ("quad_perm:[1,0,3,2]", "quad_perm:[2,3,0,1]", "row_half_mirror", "row_mirror"):
        a("s_nop 1")
        a("v_max_f32_dpp v%d, v%d, v%d %s row_mask:0xf bank_mask:0xf" % (SA, SA, SA, dpp))
    a("v_mov_b32 v%d, v%d" % (T3, T2))
    a("s_nop 1")
    a("v_permlane32_swap_b32 v%d, v%d" % (T3, T2))
    for q in range(4):
        a("v_readlane_b32 s%d, v%d, %d" % (S_T + q, SA, 16 * q))
    a("v_add_f32 v%d, v%d, v%d" % (T2, T2, T3))
    a("s_nop 2")
    a("s_max_u32 s%d, s%d, s%d" % (S_T, S_T, S_T + 1))
    a("s_max_u32 s%d, s%d, s%d" % (S_T + 2, S_T + 2, S_T + 3))
    a("s_max_u32 s%d, s%d, s%d" % (S_T, S_T, S_T + 2))
    a("v_mul_f32 v%d, s%d, v%d" % (T2, S_T, T2))
    a("v_sqrt_f32 v%d, v%d" % (T2, T2))
    a("s_nop 0")
    a("v_mul_f32 v%d, 0x%x, v%d" % (T2, f32bits(1.01), T2))
    a("v_mov_b32 v%d, 0x%x" % (T3, f32bits(48.0)))
    a("v_cmp_nle_f32 vcc, v%d, v%d" % (T2, T3))
    a("s_nop 1")
    if "forcefb" in dbg:
        a("s_branch %s" % L("FB"))
    a("s_cbranch_vccnz %s" % L("FB"))
    a.label(L("SETM"))
    a("v_sub_f32 v%d, 0, v%d" % (T2, T2))
    a("v_and_b32 v%d, 0xffff0000, v%d" % (T3, T2))
    a("v_sub_f32 v%d, v%d, v%d" % (T2, T2, T3))
    a("v_and_b32 v%d, 0xffff0000, v%d" % (T0, T2))
    a("v_sub_f32 v%d, v%d, v%d" % (T2, T2, T0))
    a("v_lshrrev_b32 v%d, 16, v%d" % (T3, T3))
    a("s_mov_b32 exec_hi, 0")
    a("v_or_b32 v%d, v%d, v%d" % (Q1 + 2, T3, T0))
    a("v_lshrrev_b32 v%d, 16, v%d" % (Q1 + 3, T2))
    a("s_mov_b64 exec, -1")
    a("s_waitcnt vmcnt(2)")
    a("s_barrier")
    if "clk" in dbg: a.clk_begin()
    elif stamps: a.stamp("mid1")

    def rdK0(off):
        if "nord" in dbg and off > TILE: return
        a("ds_read_b128 %s, v%d offset:%d" % (vr(K0, 4), V_KA, off))
    def rdK1(off):
        if "nord" in dbg and off > TILE: return
        a("ds_read_b64 %s, v%d offset:%d" % (vr(K1, 2), V_K1A, off + 1024))
    def rdV(reg, addr, off):
        if "nord" in dbg and off > TILE: return
        if "noexec" in dbg:
            a("ds_read_b128 %s, v%d offset:%d" % (vr(reg, 4), addr, off))
            return
        a("s_mov_b64 exec, s[%d:%d]" % (S_VM, S_VM + 1))
        a("ds_read_b128 %s, v%d offset:%d" % (vr(reg, 4), addr, off))
        a("s_mov_b64 exec, -1")
    def qk0(S):
        if "noqk" in dbg: return
        a("v_mfma_f32_32x32x16_bf16 %s, %s, %s, 0" % (vr(S, 16), vr(K0, 4), vr(Q0, 4)))
    def qk1(S):
        if "noqk" in dbg or "nq1" in dbg: return
        a("v_mfma_f32_32x32x16_bf16 %s, %s, %s, %s" % (vr(S, 16), vr(K1, 4), vr(Q1, 4), vr(S, 16)))
    def pv(Vf, P):
        if "nopv" in dbg: return
        a("v_smfmac_f32_32x32x32_bf16 %s, %s, %s, v%d" % (vr(O, 16), vr(Vf, 4), vr(P, 8), V_IDX))
    def ex(S, lo, hi):
        if "noexp" in dbg: return
        for r in range(lo, hi): a("v_exp_f32 v%d, v%d" % (S + r, S + r))

    rdK0(0); rdK1(0)
    a("s_waitcnt lgkmcnt(0)")
    qk0(SA); qk1(SA)
    rdK0(TILE); rdK1(TILE); rdV(V0, V_V0A, 1280)
    a("s_mov_b32 s%d, 0" % S_C)
    a("s_mov_b32 s%d, 0" % S_DV1)
    a("s_nop 7")
    a.label(L("LOOP"))
    a("s_add_u32 s%d, s%d, %d" % (S_DV1, S_DV1, CHUNK))
    a("s_cmp_eq_u32 s%d, %d" % (S_DV1, 3 * CHUNK))
    sel(a, S_DK, (-2 * CHUNK) & 0xffffffff, CHUNK)
    a("s_cselect_b32 s%d, 0, s%d" % (S_DV1, S_DV1))
    for j in range(8):
        Sc, Sn = (SA, SB) if j % 2 == 0 else (SB, SA)
        if j == 6:
            a("s_waitcnt vmcnt(0)")
            if "nobar" not in dbg: a("s_barrier")
            a("s_cmp_ge_u32 s%d, 6" % S_C)
            a("s_cbranch_scc1 %s" % L("NODMA"))
            dma_chunk("c")
            a.label(L("NODMA"))
            a("v_add_u32 v%d, s%d, v%d" % (V_KA, S_DK, V_KA))
            a("v_add_u32 v%d, s%d, v%d" % (V_K1A, S_DK, V_K1A))
        if j == 7:
            a("v_add_u32 v%d, s%d, v%d" % (V_V0A, S_DK, V_V0A))
        a("s_waitcnt lgkmcnt(3)")
        pv(V1, Sn + 8)
        rdV(V1, V_V1A, j * TILE + 1920)
        ex(Sc, 0, 4)
        a("s_waitcnt lgkmcnt(3)")
        qk0(Sn)
        rdK0(((j + 2) % 8) * TILE)
        ex(Sc, 4, 8)
        a("s_waitcnt lgkmcnt(3)")
        qk1(Sn)
        rdK1(((j + 2) % 8) * TILE)
        ex(Sc, 8, 12)
        a("s_waitcnt lgkmcnt(3)")
        pv(V0, Sc)
        rdV(V0, V_V0A, ((j + 1) % 8) * TILE + 1280)
        ex(Sc, 12, 16)
        if j == 7:
            a("v_add_u32 v%d, s%d, v%d" % (V_V1A, S_DK, V_V1A))
        else:
            a("s_nop 0")
    a("s_add_u32 s%d, s%d, 1" % (S_C, S_C))
    a("s_cmp_lt_u32 s%d, 8" % S_C)
    a("s_cbranch_scc1 %s" % L("LOOP"))
    a("s_waitcnt lgkmcnt(0)")
    pv(V1, SB + 8)
    if "clk" in dbg: a.clk_end(T0)
    elif stamps: a.stamp("mid2")
    a("v_lshrrev_b32 v%d, 5, v%d" % (T1, V_LANE))
    a("s_mul_i32 s%d, s%d, 20" % (S_T, S_HEAD))
    a("v_lshl_add_u32 v%d, v%d, 2, s%d" % (T1, T1, S_T))
    a("v_and_b32 v%d, 15, v%d" % (T0, V_LANE))
    a("v_lshlrev_b32 v%d, 4, v%d" % (T0, T0))
    a("v_bfe_u32 v%d, v%d, 4, 1" % (T2, V_LANE))
    a("v_lshl_add_u32 v%d, v%d, 10, v%d" % (T0, T2, T0))
    a("s_mul_i32 s%d, s%d, 74" % (S_T, S_RB))
    a("s_add_u32 s%d, s%d, 54" % (S_T, S_T))
    a("s_lshl_b32 s%d, s%d, 12" % (S_T, S_T))
    a("s_lshl_b32 s%d, s%d, 11" % (S_T + 1, S_TI))
    a("s_add_u32 s%d, s%d, s%d" % (S_T, S_T, S_T + 1))
    a("s_add_u32 s%d, s%d, 0x%x" % (S_T, S_T, WS_HO))
    AD = SA
    for j in range(3):
        a("v_add_u32 v%d, %d, v%d" % (T2, 8 * j, T1))
        a("v_lshrrev_b32 v%d, 5, v%d" % (T3, T2))
        a("v_lshl_add_u32 v%d, v%d, 12, v%d" % (AD + j, T3, T0))
        a("v_bfe_u32 v%d, v%d, 3, 2" % (T3, T2))
        a("v_lshl_add_u32 v%d, v%d, 8, v%d" % (AD + j, T3, AD + j))
        a("v_and_b32 v%d, 7, v%d" % (T3, T2))
        a("v_lshl_add_u32 v%d, v%d, 1, v%d" % (AD + j, T3, AD + j))
    a("v_rcp_f32 v%d, v%d" % (T3, O + 12))
    a("s_nop 0")
    for r in range(12):
        a("v_mul_f32 v%d, v%d, v%d" % (O + r, T3, O + r))
    PK = SB
    for r in range(6):
        a("v_cvt_pk_bf16_f32 v%d, v%d, v%d" % (PK + r, O + 2 * r, O + 2 * r + 1))
    a("buffer_store_dwordx2 %s, v%d, s[%d:%d], s%d offen" % (vr(PK, 2), AD, SWS, SWS + 3, S_T))
    a("buffer_store_dwordx2 %s, v%d, s[%d:%d], s%d offen" % (vr(PK + 2, 2), AD + 1, SWS, SWS + 3, S_T))
    a("s_mov_b32 exec_hi, 0")
    a("buffer_store_dwordx2 %s, v%d, s[%d:%d], s%d offen" % (vr(PK + 4, 2), AD + 2, SWS, SWS + 3, S_T))
    a("s_mov_b64 exec, -1")
    if stamps:
        a("s_waitcnt vmcnt(0)")
        a.stamp_store(lidx, "s2", SA, "v0")
    a("s_endpgm")

    a.label(L("FB"))
    a("v_mov_b32 v%d, 0xff800000" % T2)
    a("s_mov_b32 s%d, 0x%x" % (S_T, WS_KV))
    a.label(L("FBL"))
    a("buffer_load_dwordx4 %s, v%d, s[%d:%d], s%d offen" % (vr(K0, 4), V_KA, SWS, SWS + 3, S_T))
    a("buffer_load_dwordx2 %s, v%d, s[%d:%d], s%d offen offset:1024" % (vr(K1, 2), V_K1A, SWS, SWS + 3, S_T))
    a("s_waitcnt vmcnt(0)")
    qk0(SA); qk1(SA)
    a("s_nop 15")
    for r in range(0, 16, 2):
        a("v_max3_f32 v%d, v%d, v%d, v%d" % (T2, T2, SA + r, SA + r + 1))
    a("s_add_u32 s%d, s%d, %d" % (S_T, S_T, TILE))
    a("s_cmp_lt_u32 s%d, 0x%x" % (S_T, WS_KV + 64 * TILE))
    a("s_cbranch_scc1 %s" % L("FBL"))
    a("v_mov_b32 v%d, v%d" % (T3, T2))
    a("s_nop 1")
    a("v_permlane32_swap_b32 v%d, v%d" % (T3, T2))
    a("s_nop 1")
    a("v_max_f32 v%d, v%d, v%d" % (T2, T2, T3))
    a("s_branch %s" % L("SETM"))
    return NV

def gen_k2(a, name="k2_kernel", stamps=False, lidx=1, dbg=""):
    a.begin_kernel(name)
    if stamps: a.stamp("t0")
    a("s_cmp_ge_u32 s2, 256")
    a("s_cbranch_scc0 K2_GO")
    a("s_endpgm")
    a.label("K2_GO")
    nv = gen_att(a, "K2", stamps, lidx, dbg)
    a.end_kernel(name, nv)
    a.launch(name, (256, 1, 1), 512, K2_LDS)

if __name__ == "__main__":
    from k1 import gen_k1
    a = Asm()
    dbg = sys.argv[2] if len(sys.argv) > 2 else ""
    gen_k1(a, stamps=True, lidx=0)
    gen_k2(a, stamps=True, lidx=1, dbg=dbg)
    open(sys.argv[1], "w").write(a.text())
```

```python
NAME = "recurrent_scan__grouped_kv_mqa__swiglu_ffn__prompt"
WS_BYTES = 268435456
STAMP_OFF = WS_BYTES - (1 << 20)

class Asm:
    def __init__(self):
        self.lines = []
        self.launches = []
        self.kernels = []
        self._lab = 0
    def __call__(self, s=""):
        for l in s.split("\n"):
            self.lines.append("    " + l.strip() if l.strip() and not l.strip().endswith(":") else l.strip())
    def label(self, name):
        self.lines.append(name + ":")
    def newlabel(self, base="L"):
        self._lab += 1
        return "%s_%d" % (base, self._lab)
    def begin_kernel(self, name):
        self.lines.append(".text")
        self.lines.append(".globl %s" % name)
        self.lines.append(".p2align 8")
        self.lines.append(".type %s,@function" % name)
        self.lines.append(name + ":")
    def end_kernel(self, name, vgpr, sgpr=102, agpr=0, wgy=False):
        acc = (vgpr + 3) // 4 * 4
        nfv = acc + agpr if agpr else vgpr
        self.kernels.append((name, nfv, sgpr, acc, wgy))
    def launch(self, name, grid, block, lds=0):
        self.launches.append("; @launch kernel=%s grid=(%d,%d,%d) block=(%d,1,1) lds=%d" % (name, grid[0], grid[1], grid[2], block, lds))
    def text(self, header=""):
        out = []
        out += [l for l in header.split("\n") if l.strip()]
        out += self.launches
        out.append('.amdgcn_target "amdgcn-amd-amdhsa--gfx950"')
        out += self.lines
        out.append('.section .rodata,"a"')
        for name, nfv, sgpr, acc, wgy in self.kernels:
            out.append(".p2align 6")
            out.append(".amdhsa_kernel %s" % name)
            out.append("  .amdhsa_next_free_vgpr %d" % nfv)
            out.append("  .amdhsa_next_free_sgpr %d" % sgpr)
            out.append("  .amdhsa_accum_offset %d" % acc)
            out.append("  .amdhsa_group_segment_fixed_size 0")
            out.append("  .amdhsa_kernarg_size 96")
            out.append("  .amdhsa_user_sgpr_count 2")
            out.append("  .amdhsa_user_sgpr_kernarg_segment_ptr 1")
            out.append("  .amdhsa_system_sgpr_workgroup_id_x 1")
            if wgy: out.append("  .amdhsa_system_sgpr_workgroup_id_y 1")
            out.append(".end_amdhsa_kernel")
        return "\n".join(out) + "\n"

    def stamp(self, which):
        r = {"t0": 90, "mid1": 92, "mid2": 94, "t1": 96}[which]
        self("s_memrealtime s[%d:%d]" % (r, r + 1))
    def stamp_store(self, launch_idx, wg_sgpr="s2", vtmp=0, tid_v=None):
        v = vtmp
        self("s_memrealtime s[96:97]")
        self("s_load_dwordx2 s[98:99], s[0:1], 88")
        self("s_waitcnt lgkmcnt(0)")
        self("s_lshl_b32 s100, %s, 5" % wg_sgpr)
        self("s_add_u32 s100, s100, %d" % (STAMP_OFF + launch_idx * 65536))
        self("s_add_u32 s98, s98, s100")
        self("s_addc_u32 s99, s99, 0")
        self("v_cmp_eq_u32 vcc, 0, %s" % tid_v)
        self("s_and_saveexec_b64 s[100:101], vcc")
        lab = self.newlabel("Lst")
        self("s_cbranch_execz %s" % lab)
        for i, r in enumerate([90, 91, 96, 97, 92, 93, 94, 95]):
            self("v_mov_b32 v%d, s%d" % (v + 2 + i, r))
        self("v_mov_b32 v%d, 0" % v)
        self("global_store_dwordx4 v%d, v[%d:%d], s[98:99]" % (v, v + 2, v + 5))
        self("global_store_dwordx4 v%d, v[%d:%d], s[98:99] offset:16" % (v, v + 6, v + 9))
        self.label(lab)
        self("s_mov_b64 exec, s[100:101]")

    def clk_begin(self):
        self("s_memtime s[92:93]")
        self("s_memrealtime s[90:91]")
    def clk_end(self, v):
        self("s_memtime s[94:95]")
        self("s_memrealtime s[96:97]")
        self("s_load_dwordx2 s[98:99], s[0:1], 80")
        self("s_waitcnt lgkmcnt(0)")
        self("s_sub_u32 s94, s94, s92")
        self("s_sub_u32 s96, s96, s90")
        self("v_mov_b32 v%d, s94" % v)
        self("v_mov_b32 v%d, s96" % (v + 1))
        self("v_lshrrev_b32 v%d, 6, v0" % (v + 2))
        self("v_lshlrev_b32 v%d, 3, v%d" % (v + 2, v + 2))
        self("global_store_dwordx2 v%d, v[%d:%d], s[98:99]" % (v + 2, v, v + 1))
```

```python
from common import *

K3_LDS = 8 * 64 * 320

def gen_k3(a, name="k3_kernel", stamps=False, lidx=2, dbg=""):
    a.begin_kernel(name)
    V_LANE = 1; V_L16 = 2
    T0, T1, T2, T3 = 4, 5, 6, 7
    ACC = 8
    FR = 88
    ND = 4
    NV = FR + ND * 36
    S_W = 3; SWS = 8; SX = 12; SOUT = 16
    S_RB, S_CB, S_H, S_WF, S_N, S_T = 20, 21, 22, 23, 24, 26
    if stamps: a.stamp("t0")
    a("s_cmp_ge_u32 s2, 256")
    a("s_cbranch_scc1 K3_END")
    a("s_load_dwordx2 s[4:5], s[0:1], 88")
    a("s_load_dwordx2 s[6:7], s[0:1], 0")
    a("s_load_dwordx2 s[36:37], s[0:1], 72")
    a("v_lshrrev_b32 v%d, 6, v0" % T0)
    a("v_and_b32 v%d, 63, v0" % V_LANE)
    a("v_readfirstlane_b32 s%d, v%d" % (S_W, T0))
    a("v_lshlrev_b32 v%d, 4, v%d" % (V_L16, V_LANE))
    a("s_and_b32 s%d, s2, 7" % S_RB)
    a("s_lshl_b32 s%d, s%d, 2" % (S_RB, S_RB))
    a("s_bfe_u32 s%d, s2, 0x20003" % S_T)
    a("s_add_u32 s%d, s%d, s%d" % (S_RB, S_RB, S_T))
    a("s_lshr_b32 s%d, s2, 5" % S_CB)
    a("s_mul_i32 s%d, s%d, 9" % (S_T, S_W))
    a("s_mul_i32 s%d, s%d, 10" % (S_T + 1, S_W))
    a("s_sub_u32 s%d, s%d, 6" % (S_T + 1, S_T + 1))
    a("s_cmp_lt_u32 s%d, 6" % S_W)
    a("s_cselect_b32 s%d, s%d, s%d" % (S_T, S_T, S_T + 1))
    a("s_cselect_b32 s%d, 9, 10" % S_N)
    a("s_mul_i32 s%d, s%d, 74" % (S_H, S_RB))
    a("s_add_u32 s%d, s%d, s%d" % (S_H, S_H, S_T))
    a("s_lshl_b32 s%d, s%d, 12" % (S_H, S_H))
    a("s_add_u32 s%d, s%d, 0x%x" % (S_H, S_H, WS_HO))
    a("s_mul_i32 s%d, s%d, 74" % (S_WF, S_CB))
    a("s_add_u32 s%d, s%d, s%d" % (S_WF, S_WF, S_T))
    a("s_mul_i32 s%d, s%d, 5120" % (S_WF, S_WF))
    a("s_add_u32 s%d, s%d, 0x%x" % (S_WF, S_WF, WS_WF))
    a("s_waitcnt lgkmcnt(0)")
    srd(a, SWS, 4, 5, WS_USED)
    srd(a, SX, 6, 7, 2621440)
    srd(a, SOUT, 36, 37, 2621440)
    a("v_add_u32 v%d, 4096, v%d" % (T3, V_L16))
    def loads(p):
        f = FR + p * 36
        for tt in range(4):
            a("buffer_load_dwordx4 %s, v%d, s[%d:%d], s%d offen offset:%d" % (vr(f + tt * 4, 4), V_L16, SWS, SWS + 3, S_H, tt * 1024))
        for c in range(5):
            if c < 4:
                a("buffer_load_dwordx4 %s, v%d, s[%d:%d], s%d offen offset:%d" % (vr(f + 16 + c * 4, 4), V_L16, SWS, SWS + 3, S_WF, c * 1024))
            else:
                a("buffer_load_dwordx4 %s, v%d, s[%d:%d], s%d offen" % (vr(f + 16 + c * 4, 4), T3, SWS, SWS + 3, S_WF))
        a("s_add_u32 s%d, s%d, 4096" % (S_H, S_H))
        a("s_add_u32 s%d, s%d, 5120" % (S_WF, S_WF))
    def comp(p, first):
        f = FR + p * 36
        for tt in range(4):
            for c in range(5):
                d = ACC + (tt * 5 + c) * 4
                a("v_mfma_f32_16x16x32_bf16 %s, %s, %s, %s" % (vr(d, 4), vr(f + 16 + c * 4, 4), vr(f + tt * 4, 4), "0" if first else vr(d, 4)))
    for p in range(ND): loads(p)
    for s in range(10):
        p = s % ND
        if s == 9:
            a("s_cmp_eq_u32 s%d, 9" % S_N)
            a("s_cbranch_scc1 K3_RED")
        rem = min(ND - 1, 9 - s)
        a("s_waitcnt vmcnt(%d)" % (rem * 9))
        comp(p, s == 0)
        if s + ND <= 9: loads(p)
    a.label("K3_RED")
    if stamps: a.stamp("mid1")
    a("v_and_b32 v%d, 15, v%d" % (T0, V_LANE))
    a("v_mul_u32_u24 v%d, 320, v%d" % (T0, T0))
    a("v_lshrrev_b32 v%d, 4, v%d" % (T1, V_LANE))
    a("v_lshl_add_u32 v%d, v%d, 4, v%d" % (T0, T1, T0))
    a("s_mul_i32 s%d, s%d, 20480" % (S_T, S_W))
    a("v_add_u32 v%d, s%d, v%d" % (T0, S_T, T0))
    a("s_nop 7")
    for tt in range(4):
        for c in range(5):
            a("ds_write_b128 v%d, %s offset:%d" % (T0, vr(ACC + (tt * 5 + c) * 4, 4), tt * 5120 + c * 64))
    a("s_waitcnt vmcnt(0)")
    XR = FR
    a("s_lshl_b32 s%d, s%d, 6" % (S_T, S_RB))
    a("s_mul_i32 s%d, s%d, 1280" % (S_T, S_T))
    a("s_mul_i32 s%d, s%d, 160" % (S_T + 1, S_CB))
    a("s_add_u32 s%d, s%d, s%d" % (S_T, S_T, S_T + 1))
    GA = FR + 8; LA = FR + 10
    for it in range(2):
        a("v_add_u32 v%d, %d, v0" % (T0, it * 512))
        a("v_mul_u32_u24 v%d, 6554, v%d" % (T1, T0))
        a("v_lshrrev_b32 v%d, 16, v%d" % (T1, T1))
        a("v_mul_u32_u24 v%d, 10, v%d" % (T2, T1))
        a("v_sub_u32 v%d, v%d, v%d" % (T2, T0, T2))
        a("v_mul_u32_u24 v%d, 1280, v%d" % (GA + it, T1))
        a("v_lshl_add_u32 v%d, v%d, 4, v%d" % (GA + it, T2, GA + it))
        a("v_lshlrev_b32 v%d, 5, v%d" % (LA + it, T0))
        if it == 1:
            a("v_mov_b32 v%d, 0x40000000" % T1)
            a("v_cmp_gt_u32 vcc, 128, v0")
            a("s_nop 1")
            a("v_cndmask_b32 v%d, v%d, v%d, vcc" % (GA + it, T1, GA + it))
            a("v_cndmask_b32 v%d, 0, v%d, vcc" % (LA + it, LA + it))
        a("buffer_load_dwordx4 %s, v%d, s[%d:%d], s%d offen" % (vr(XR + it * 4, 4), GA + it, SX, SX + 3, S_T))
    a("s_waitcnt lgkmcnt(0)")
    a("s_barrier")
    R = ACC
    for it in range(2):
        if it == 1:
            a("s_cmp_ge_u32 s%d, 2" % S_W)
            a("s_cbranch_scc1 K3_FIN")
        a("v_add_u32 v%d, %d, v%d" % (T0, 61440, LA + it))
        a("v_add_u32 v%d, %d, v%d" % (T1, 122880, LA + it))
        for w in range(8):
            ad = (LA + it, T0, T1)[w // 3]
            off = (w % 3) * 20480
            a("ds_read_b128 %s, v%d offset:%d" % (vr(R + w * 8, 4), ad, off))
            a("ds_read_b128 %s, v%d offset:%d" % (vr(R + w * 8 + 4, 4), ad, off + 16))
            if w == 3: a("s_waitcnt lgkmcnt(4)")
        a("s_waitcnt lgkmcnt(0)")
        for r in range(8):
            for w in (1, 2, 3, 4, 5):
                a("v_add_f32 v%d, v%d, v%d" % (R + r, R + r, R + w * 8 + r))
            a("v_add_f32 v%d, v%d, v%d" % (R + 48 + r, R + 48 + r, R + 56 + r))
        for r in range(8):
            a("v_mul_f32 v%d, 0x%x, v%d" % (R + 8 + r, f32bits(-LOG2E), R + r))
        for r in range(8):
            a("v_exp_f32 v%d, v%d" % (R + 8 + r, R + 8 + r))
        for r in range(8):
            a("v_mul_f32 v%d, v%d, v%d" % (R + r, R + r, R + 48 + r))
        for r in range(8):
            a("v_add_f32 v%d, 1.0, v%d" % (R + 8 + r, R + 8 + r))
        for r in range(8):
            a("v_rcp_f32 v%d, v%d" % (R + 8 + r, R + 8 + r))
        a("s_waitcnt vmcnt(%d)" % (1 if it == 0 else 1))
        for q in range(4):
            a("v_lshlrev_b32 v%d, 16, v%d" % (R + 16 + 2 * q, XR + it * 4 + q))
            a("v_and_b32 v%d, 0xffff0000, v%d" % (R + 17 + 2 * q, XR + it * 4 + q))
        for r in range(8):
            a("v_fmac_f32 v%d, v%d, v%d" % (R + 16 + r, R + r, R + 8 + r))
        for q in range(4):
            a("v_cvt_pk_bf16_f32 v%d, v%d, v%d" % (R + 72 + it * 4 + q, R + 16 + 2 * q, R + 17 + 2 * q))
        a("buffer_store_dwordx4 %s, v%d, s[%d:%d], s%d offen" % (vr(R + 72 + it * 4, 4), GA + it, SOUT, SOUT + 3, S_T))
    a.label("K3_FIN")
    if stamps:
        a("s_waitcnt vmcnt(0)")
        a.stamp("mid2")
        a.stamp_store(lidx, "s2", FR + 20, "v0")
    a.label("K3_END")
    a("s_endpgm")
    a.end_kernel(name, NV)
    a.launch(name, (256, 1, 1), 512, K3_LDS)

HEADER = open("recurrent_scan__grouped_kv_mqa__swiglu_ffn__prompt.s.ref").read().split("; Override launch")[0]

if __name__ == "__main__":
    from k1 import gen_k1
    from k2 import gen_k2
    st = len(sys.argv) > 2 and "st" in sys.argv[2]
    a = Asm()
    gen_k1(a, stamps=st, lidx=0)
    gen_k2(a, stamps=st, lidx=1)
    gen_k3(a, stamps=st, lidx=2)
    open(sys.argv[1], "w").write(a.text(HEADER))
```

```python
import sys
sys.path.insert(0, "tools")
from asmgen import *

WS_QP = 0x0000000
WS_KV = 0x0280000
WS_KN = 0x02A8000
WS_ST = 0x02A9000
WS_FL = 0x02AE000
WS_WF = 0x02B0000
WS_HO = 0x0600000
WS_G  = 0x1000000
WS_USED = 0x1400000
FL_K, FL_W, FL_H, FL_O = WS_FL, WS_FL + 256, WS_FL + 512, WS_FL + 2048
WS_F2 = 0x02B0000
F2_K = WS_F2
F2_H = WS_F2 + 0x4000
F2_O = WS_F2 + 0xC000
F2_W = WS_F2 + 0x14000
F2_C = WS_F2 + 0x15000
F2_Q = WS_F2 + 0x16000
F2_P = 0x05B8000
F3_W = 0x05BC000
F3_C = 0x05BE000
WS_CQ = 0x02CC000
WS_CS = 0x02C8000
WS_GS = 0x0000000
WS_WF2 = 0x02D0000

LOG2E = 1.4426950408889634
import struct
def f32bits(x):
    return struct.unpack("<I", struct.pack("<f", x))[0]

def srd(a, d, lo, hi, size):
    a("s_mov_b32 s%d, s%d" % (d, lo))
    a("s_mov_b32 s%d, s%d" % (d + 1, hi))
    if isinstance(size, str):
        a("s_mov_b32 s%d, %s" % (d + 2, size))
    else:
        a("s_mov_b32 s%d, 0x%x" % (d + 2, size))
    a("s_mov_b32 s%d, 0x20000" % (d + 3))

def vr(b, n):
    return "v[%d:%d]" % (b, b + n - 1)
def sr(b, n=4):
    return "s[%d:%d]" % (b, b + n - 1)

def sel(a, d, x, y):
    a("s_mov_b32 s%d, 0x%x" % (d, y))
    a("s_cmov_b32 s%d, 0x%x" % (d, x))

HEADER = open("recurrent_scan__grouped_kv_mqa__swiglu_ffn__prompt.s.ref").read().split("; Override launch")[0] if __import__("os").path.exists("recurrent_scan__grouped_kv_mqa__swiglu_ffn__prompt.s.ref") else ""
```

```python
from common import *

LDS_BYTES = 81920
NVGPR = 128
S_W = 3
SWS, SX, SA, SB, SDBG = 8, 12, 16, 20, 24
S_ID, S_RB32, S_HI, S_XCD, S_IDX = 28, 29, 30, 31, 32
S_VM = 34
P_X, P_WQ, P_WK, P_WV, P_WO, P_WG, P_WU, P_WD, P_OUT, P_DBG, P_WS = 36, 38, 40, 42, 44, 48, 50, 52, 54, 56, 58
S_T = 60
S_R = 70
STAMP0 = 86
V_LANE, V_L16, V_NONCE = 1, 2, 3
T0, T1, T2, T3 = 4, 5, 6, 7
SC = "sc1"
VMASK = 0x000FFFFF
TILE = 2560
CHUNK = 8 * TILE
SPIN_MAX = 1 << 14

class Mega:
    def __init__(self, stamps=False, dbg=""):
        self.a = Asm()
        self.stamps = stamps
        self.dbg = dbg
        self.prio_a = 1 if "pa" in dbg.split(",") else 0
        self.prio_f = 0 if "pa" in dbg.split(",") or "p0" in dbg.split(",") else 1

    def stamp(self, i):
        if self.stamps:
            self.a("s_memrealtime s[%d:%d]" % (STAMP0 + 2 * i, STAMP0 + 2 * i + 1))

    def finish(self, i_end=7):
        a = self.a
        if self.stamps:
            a("s_waitcnt vmcnt(0)")
            self.stamp(i_end)
            a("s_waitcnt lgkmcnt(0)")
            lab = a.newlabel("LST")
            a("s_cmp_lg_u32 s%d, 0" % S_W)
            a("s_cbranch_scc1 %s" % lab)
            a("s_lshl_b32 s%d, s2, 6" % S_T)
            a("s_add_u32 s%d, s%d, 0x%x" % (S_T, S_T, STAMP_OFF))
            a("s_add_u32 s%d, s%d, s%d" % (S_T + 2, P_WS, S_T))
            a("s_addc_u32 s%d, s%d, 0" % (S_T + 3, P_WS + 1))
            for r in range(16):
                a("v_mov_b32 v%d, s%d" % (8 + r, STAMP0 + r))
            a("v_mov_b32 v%d, 0" % T0)
            a("s_mov_b64 exec, 1")
            for q in range(4):
                a("global_store_dwordx4 v%d, %s, s[%d:%d] offset:%d" % (T0, vr(8 + 4 * q, 4), S_T + 2, S_T + 3, q * 16))
            a.label(lab)
        a("s_endpgm")

    def poll(self, lists, va, vb, sleep=2):
        a = self.a
        done = a.newlabel("PD"); loop = a.newlabel("PL")
        a("s_cmp_lg_u32 s%d, 0" % S_W)
        a("s_cbranch_scc1 %s" % done)
        a("s_mov_b32 s%d, %d" % (S_T, SPIN_MAX))
        offs = []
        for i, (off, n) in enumerate(lists):
            if isinstance(off, int):
                a("s_mov_b32 s%d, 0x%x" % (S_T + 1 + i, off)); offs.append("s%d" % (S_T + 1 + i))
            else: offs.append(off)
        a("v_mov_b32 v%d, 0" % T3)
        a.label(loop)
        a("buffer_load_dword v%d, v%d, %s, 0 offen %s" % (V_NONCE, T3, sr(SDBG), SC))
        for i, (off, n) in enumerate(lists):
            a("v_min_u32 v%d, %d, v%d" % (va, n - 1, V_LANE))
            a("v_lshlrev_b32 v%d, 7, v%d" % (va, va))
            a("buffer_load_dword v%d, v%d, %s, %s offen %s" % (vb + i, va, sr(SWS), offs[i], SC))
        a("s_waitcnt vmcnt(0)")
        a("v_cmp_ne_u32 vcc, v%d, v%d" % (V_NONCE, vb))
        for i in range(1, len(lists)):
            a("v_cmp_ne_u32 s[%d:%d], v%d, v%d" % (S_T + 4, S_T + 5, V_NONCE, vb + i))
            a("s_or_b64 vcc, vcc, s[%d:%d]" % (S_T + 4, S_T + 5))
        a("v_cmp_eq_u32 s[%d:%d], 0, v%d" % (S_T + 4, S_T + 5, V_NONCE))
        a("s_or_b64 vcc, vcc, s[%d:%d]" % (S_T + 4, S_T + 5))
        a("s_cbranch_scc0 %s" % done)
        a("s_sleep %d" % sleep)
        a("s_sub_u32 s%d, s%d, 1" % (S_T, S_T))
        a("s_cmp_lg_u32 s%d, 0" % S_T)
        a("s_cbranch_scc1 %s" % loop)
        a.label(done)
        a("s_barrier")

    def set_flag(self, soff, have_nonce):
        a = self.a
        done = a.newlabel("FD"); loop = a.newlabel("FL")
        a("v_mov_b32 v%d, 0" % T3)
        if not have_nonce:
            a("buffer_load_dword v%d, v%d, %s, 0 offen %s" % (V_NONCE, T3, sr(SDBG), SC))
        a("s_waitcnt vmcnt(0)")
        a("s_barrier")
        a("s_cmp_lg_u32 s%d, 0" % S_W)
        a("s_cbranch_scc1 %s" % done)
        if not have_nonce:
            a("s_mov_b32 s%d, %d" % (S_T + 6, SPIN_MAX))
            a.label(loop)
            a("v_cmp_ne_u32 vcc, 0, v%d" % V_NONCE)
            ok = a.newlabel("FK")
            a("s_nop 0")
            a("s_cbranch_vccnz %s" % ok)
            a("buffer_load_dword v%d, v%d, %s, 0 offen %s" % (V_NONCE, T3, sr(SDBG), SC))
            a("s_waitcnt vmcnt(0)")
            a("s_sub_u32 s%d, s%d, 1" % (S_T + 6, S_T + 6))
            a("s_cmp_lg_u32 s%d, 0" % (S_T + 6))
            a("s_cbranch_scc1 %s" % loop)
            a.label(ok)
        a("s_mov_b64 exec, 1")
        a("buffer_store_dword v%d, v%d, %s, %s offen %s" % (V_NONCE, T3, sr(SWS), soff, SC))
        a("s_mov_b64 exec, -1")
        a.label(done)

    def flag_store(self, soff):
        a = self.a
        loop = a.newlabel("GL"); ok = a.newlabel("GK")
        a("v_mov_b32 v%d, 0" % T0)
        a("s_mov_b32 s%d, %d" % (S_T + 6, SPIN_MAX))
        a.label(loop)
        a("v_cmp_ne_u32 vcc, 0, v%d" % V_NONCE)
        a("s_nop 0")
        a("s_cbranch_vccnz %s" % ok)
        a("buffer_load_dword v%d, v%d, %s, 0 offen %s" % (V_NONCE, T0, sr(SDBG), SC))
        a("s_waitcnt vmcnt(0)")
        a("s_sub_u32 s%d, s%d, 1" % (S_T + 6, S_T + 6))
        a("s_cmp_lg_u32 s%d, 0" % (S_T + 6))
        a("s_cbranch_scc1 %s" % loop)
        a.label(ok)
        a("s_mov_b64 exec, 1")
        a("buffer_store_dword v%d, v%d, %s, %s offen %s" % (V_NONCE, T0, sr(SWS), soff, SC))
        a("s_mov_b64 exec, -1")

    def meanrstd(self, dst, s0):
        a = self.a
        a("v_mul_f32 v%d, 0x%x, v%d" % (dst, f32bits(-1.0 / 640), s0))
        a("v_mul_f32 v%d, 0x%x, v%d" % (s0 + 1, f32bits(1.0 / 640), s0 + 1))
        a("v_fma_f32 v%d, -v%d, v%d, v%d" % (s0 + 1, dst, dst, s0 + 1))
        a("v_max_f32 v%d, 0, v%d" % (s0 + 1, s0 + 1))
        a("v_add_f32 v%d, 0x%x, v%d" % (s0 + 1, f32bits(1e-5), s0 + 1))
        a("v_rsq_f32 v%d, v%d" % (dst + 1, s0 + 1))
        a("s_nop 0")

    def halfsum(self, regs, tmp):
        a = self.a
        for n, r in enumerate(regs): a("v_mov_b32 v%d, v%d" % (tmp + n, r))
        a("s_nop 1")
        for n, r in enumerate(regs): a("v_permlane32_swap_b32 v%d, v%d" % (tmp + n, r))
        a("s_nop 1")
        for n, r in enumerate(regs): a("v_add_f32 v%d, v%d, v%d" % (r, tmp + n, r))

    def prologue(self, name):
        a = self.a
        a.begin_kernel(name)
        if self.stamps:
            for i in range(1, 8): a("s_mov_b64 s[%d:%d], 0" % (STAMP0 + 2 * i, STAMP0 + 2 * i + 1))
        self.stamp(0)
        a("s_cmp_ge_u32 s2, 512")
        a("s_cbranch_scc0 M_GO")
        a("s_endpgm")
        a.label("M_GO")
        a("s_load_dwordx4 s[36:39], s[0:1], 0")
        a("s_load_dwordx4 s[40:43], s[0:1], 16")
        a("s_load_dwordx2 s[44:45], s[0:1], 32")
        a("s_load_dwordx4 s[48:51], s[0:1], 48")
        a("s_load_dwordx4 s[52:55], s[0:1], 64")
        a("s_load_dwordx4 s[56:59], s[0:1], 80")
        a("s_memrealtime s[%d:%d]" % (S_T, S_T + 1))
        a("v_lshrrev_b32 v%d, 6, v0" % T0)
        a("v_and_b32 v%d, 63, v0" % V_LANE)
        a("v_readfirstlane_b32 s%d, v%d" % (S_W, T0))
        a("v_lshlrev_b32 v%d, 4, v%d" % (V_L16, V_LANE))
        a("v_mov_b32 v%d, 0" % V_NONCE)
        a("s_and_b32 s%d, s2, 255" % S_ID)
        a("s_and_b32 s%d, s2, 7" % S_XCD)
        a("s_lshr_b32 s%d, s%d, 3" % (S_IDX, S_ID))
        a("s_lshl_b32 s%d, s%d, 2" % (S_RB32, S_XCD))
        a("s_and_b32 s%d, s%d, 3" % (S_T + 2, S_IDX))
        a("s_add_u32 s%d, s%d, s%d" % (S_RB32, S_RB32, S_T + 2))
        a("s_lshr_b32 s%d, s%d, 5" % (S_HI, S_ID))
        a("s_mov_b32 s%d, 0x%x" % (S_VM, VMASK))
        a("s_mov_b32 s%d, 0x%x" % (S_VM + 1, VMASK))
        a("s_waitcnt lgkmcnt(0)")
        srd(a, SWS, P_WS, P_WS + 1, WS_USED)
        srd(a, SX, P_X, P_X + 1, 2621440)
        srd(a, SDBG, P_DBG, P_DBG + 1, 256)
        a("s_or_b32 s%d, s2, s%d" % (S_T + 2, S_W))
        a("s_cmp_lg_u32 s%d, 0" % (S_T + 2))
        a("s_cbranch_scc1 M_NT")
        a("s_or_b32 s%d, s%d, 1" % (S_T, S_T))
        a("v_mov_b32 v%d, s%d" % (T0, S_T))
        a("v_mov_b32 v%d, 0" % T1)
        a("s_mov_b64 exec, 1")
        a("buffer_store_dword v%d, v%d, %s, 0 offen %s" % (T0, T1, sr(SDBG), SC))
        a("s_mov_b64 exec, -1")
        a.label("M_NT")
        a("s_cmp_ge_u32 s2, 256")
        a("s_cbranch_scc1 ROLE_F")

    def a1_regs(self):
        return dict(V_VX=120, V_VW=121, S_OX=S_R + 8, S_OW=S_R + 9, S_BUF=S_R + 10, BUF=18432)

    def a1_dma(self, tag):
        a = self.a; R = self.a1_regs()
        V_VX, V_VW, S_OX, S_OW, S_BUF, BUF = R["V_VX"], R["V_VW"], R["S_OX"], R["S_OW"], R["S_BUF"], R["BUF"]
        a("s_mov_b32 m0, s%d" % S_BUF)
        a("s_nop 0")
        a("buffer_load_dwordx4 v%d, %s, s%d offen lds" % (V_VX, sr(SX), S_OX))
        a("s_add_u32 m0, s%d, 8192" % S_BUF)
        a("s_add_u32 s%d, s%d, 128" % (S_OX, S_OX))
        a("buffer_load_dwordx4 v%d, %s, s%d offen lds" % (V_VW, sr(SA), S_OW))
        a("s_cmp_ge_u32 s%d, 2" % S_W)
        a("s_cbranch_scc1 A1_D%s" % tag)
        a("s_add_u32 m0, s%d, 16384" % S_BUF)
        a("s_nop 0")
        a("buffer_load_dwordx4 v%d, %s, s%d offen lds" % (V_VW + 1, sr(SA), S_OW))
        a.label("A1_D%s" % tag)
        a("s_add_u32 s%d, s%d, 81920" % (S_OW, S_OW))
        a("s_add_u32 s%d, s%d, %d" % (S_BUF, S_BUF, BUF))
        a("s_cmp_ge_u32 s%d, %d" % (S_BUF, 4 * BUF))
        a("s_cbranch_scc0 A1_E%s" % tag)
        a("s_sub_u32 s%d, s%d, %d" % (S_BUF, S_BUF, 4 * BUF))
        a.label("A1_E%s" % tag)

    def role_a(self):
        a = self.a; dbg = self.dbg
        S_TI, S_HEAD = S_R, S_R + 1
        R_ = self.a1_regs()
        V_VX, V_VW, S_OX, S_OW, S_BUF, BUF = R_["V_VX"], R_["V_VW"], R_["S_OX"], R_["S_OW"], R_["S_BUF"], R_["BUF"]
        a("s_setprio 3")
        srd(a, SA, P_WQ, P_WQ + 1, 819200)
        a("s_and_b32 s%d, s%d, 1" % (S_TI, S_W))
        a("s_lshr_b32 s%d, s%d, 1" % (S_T + 2, S_W))
        a("s_lshl_b32 s%d, s%d, 2" % (S_HEAD, S_HI))
        a("s_add_u32 s%d, s%d, s%d" % (S_HEAD, S_HEAD, S_T + 2))
        def dma_setup():
            a("v_lshrrev_b32 v%d, 4, v%d" % (T0, V_LANE))
            a("s_lshl_b32 s%d, s%d, 2" % (S_T, S_TI))
            a("v_add_u32 v%d, s%d, v%d" % (T0, S_T, T0))
            a("v_and_b32 v%d, 7, v%d" % (T1, V_LANE))
            a("v_xor_b32 v%d, v%d, v%d" % (T0, T0, T1))
            a("v_lshrrev_b32 v%d, 3, v%d" % (T1, V_LANE))
            a("v_mul_u32_u24 v%d, 1280, v%d" % (T1, T1))
            a("v_lshl_add_u32 v%d, v%d, 4, v%d" % (V_VX, T0, T1))
            for m in range(2):
                a("v_add_u32 v%d, %d, v0" % (T0, 512 * m))
                a("v_mul_u32_u24 v%d, 6554, v%d" % (T1, T0))
                a("v_lshrrev_b32 v%d, 16, v%d" % (T1, T1))
                a("v_mul_u32_u24 v%d, 1120, v%d" % (T1, T1))
                a("v_lshl_add_u32 v%d, v%d, 4, v%d" % (V_VW + m, T0, T1))
            a("s_lshl_b32 s%d, s%d, 3" % (S_T, S_RB32))
            a("s_add_u32 s%d, s%d, s%d" % (S_T, S_T, S_W))
            a("s_mul_i32 s%d, s%d, 10240" % (S_OX, S_T))
            a("s_mul_i32 s%d, s%d, 160" % (S_OW, S_HI))
            a("s_lshl_b32 s%d, s%d, 10" % (S_BUF, S_W))
            a("s_add_u32 s%d, s%d, %d" % (S_BUF, S_BUF, 2 * BUF))
        self.a1_setup = dma_setup
        S_KVF = S_R + 11
        a("s_mov_b32 s%d, 0" % S_KVF)
        a("s_cmp_lt_u32 s%d, 4" % S_HI)
        a("s_cbranch_scc1 KV_JOB")
        if "noA" in dbg: self.finish()
        dma_setup()
        self.a1_dma("a"); self.a1_dma("b")
        a.label("A1_GO")
        if "noA" in dbg: self.finish()
        self.a1_dma("c"); self.a1_dma("e")
        V_XA, V_WA = 11, 12
        V_ONE, V_CS = 14, 15
        XF = 16
        ACC = 56 + 48
        S_STG, S_DL, S_RB_ = S_R + 5, S_R + 6, S_R + 7
        a("v_and_b32 v%d, 31, v%d" % (T0, V_LANE))
        a("v_lshrrev_b32 v%d, 5, v%d" % (T1, V_LANE))
        a("v_bfe_u32 v%d, v%d, 1, 3" % (T2, V_LANE))
        a("v_xor_b32 v%d, v%d, v%d" % (T2, T2, T1))
        a("s_lshl_b32 s%d, s%d, 2" % (S_T, S_TI))
        a("v_xor_b32 v%d, s%d, v%d" % (T2, S_T, T2))
        a("v_lshlrev_b32 v%d, 4, v%d" % (T2, T2))
        a("v_lshl_add_u32 v%d, v%d, 7, v%d" % (T2, T0, T2))
        a("s_lshl_b32 s%d, s%d, 12" % (S_T, S_TI))
        a("s_add_u32 s%d, s%d, %d" % (S_T, S_T, 2 * BUF))
        a("v_add_u32 v%d, s%d, v%d" % (V_XA, S_T, T2))
        a("v_bfe_u32 v%d, v%d, 2, 2" % (T2, V_LANE))
        a("v_lshl_add_u32 v%d, v%d, 3, v%d" % (T2, T1, T2))
        a("v_mul_u32_u24 v%d, 160, v%d" % (T2, T2))
        a("v_and_b32 v%d, 1, v%d" % (T3, V_LANE))
        a("v_lshl_add_u32 v%d, v%d, 4, v%d" % (T2, T3, T2))
        a("v_bfe_u32 v%d, v%d, 1, 1" % (T3, V_LANE))
        a("v_lshl_add_u32 v%d, v%d, 3, v%d" % (T2, T3, T2))
        a("v_bfe_u32 v%d, v%d, 4, 1" % (T3, V_LANE))
        a("v_lshl_add_u32 v%d, v%d, 5, v%d" % (T2, T3, T2))
        a("s_lshr_b32 s%d, s%d, 1" % (S_T + 2, S_W))
        a("s_mul_i32 s%d, s%d, 40" % (S_T, S_T + 2))
        a("s_add_u32 s%d, s%d, %d" % (S_T, S_T, 8192 + 2 * BUF))
        a("s_mul_i32 s%d, s%d, 5120" % (S_T + 1, S_TI))
        a("s_add_u32 s%d, s%d, s%d" % (S_T + 2, S_T, S_T + 1))
        a("v_add_u32 v%d, s%d, v%d" % (V_WA, S_T + 2, T2))
        a("s_sub_u32 s%d, s%d, s%d" % (S_T + 2, S_T, S_T + 1))
        a("s_add_u32 s%d, s%d, 5120" % (S_T + 2, S_T + 2))
        a("v_add_u32 v%d, s%d, v%d" % (V_WA + 1, S_T + 2, T2))
        a("v_mov_b32 v%d, 0x3f803f80" % V_ONE)
        a("v_mov_b32 v%d, 0" % V_CS)
        for r in range(16): a("v_mov_b32 v%d, 0" % (ACC + r))
        a("s_mov_b32 s%d, 0" % S_STG)
        a("s_mov_b32 s%d, %d" % (S_RB_, 2 * BUF))
        def rd_ops(p):
            xf = XF + 32 * p; wf = xf + 16
            ops = []
            for kk in range(4):
                g = []
                if kk: g.append("v_xor_b32 v%d, %d, v%d" % (T0 + kk, kk << 5, V_XA))
                g.append("ds_read_b64_tr_b16 %s, v%d offset:%d" % (vr(wf + 4 * kk, 2), V_WA + (kk >> 1), (kk & 1) * 2560))
                g.append("ds_read_b64_tr_b16 %s, v%d offset:%d" % (vr(wf + 4 * kk + 2, 2), V_WA + (kk >> 1), (kk & 1) * 2560 + 640))
                g.append("ds_read_b128 %s, v%d" % (vr(xf + 4 * kk, 4), T0 + kk if kk else V_XA))
                ops.append(g)
            return ops
        def adv():
            a("s_add_u32 s%d, s%d, %d" % (S_RB_, S_RB_, BUF))
            a("s_cmp_eq_u32 s%d, %d" % (S_RB_, 4 * BUF))
            sel(a, S_DL, (-3 * BUF) & 0xffffffff, BUF)
            a("s_cselect_b32 s%d, 0, s%d" % (S_RB_, S_RB_))
            a("v_add_u32 v%d, s%d, v%d" % (V_XA, S_DL, V_XA))
            a("v_add_u32 v%d, s%d, v%d" % (V_WA, S_DL, V_WA))
            a("v_add_u32 v%d, s%d, v%d" % (V_WA + 1, S_DL, V_WA + 1))
        def mfq(p, kk):
            xf = XF + 32 * p; wf = xf + 16
            a("v_mfma_f32_32x32x16_bf16 %s, %s, %s, %s" % (vr(ACC, 16), vr(wf + 4 * kk, 4), vr(xf + 4 * kk, 4), vr(ACC, 16)))
        def dots(p):
            wf = XF + 32 * p + 16
            for r in range(8):
                a("v_dot2c_f32_bf16 v%d, v%d, v%d" % ((V_CS, V_CS2)[r & 1], V_ONE, wf + r))
        V_CS2 = 10
        a("v_mov_b32 v%d, 0" % V_CS2)
        a("s_waitcnt vmcnt(6)")
        a("s_barrier")
        if "a1st" in dbg: self.stamp(4)
        for g in rd_ops(0):
            for op in g: a(op)
        adv()
        a.label("A1_LOOP")
        for p in range(2):
            a("s_waitcnt lgkmcnt(0)")
            if p == 1:
                a("s_cmp_eq_u32 s%d, 9" % S_STG)
                a("s_cbranch_scc1 A1_LAST")
            a("s_cmp_ge_u32 s%d, 7" % S_STG)
            a("s_cbranch_scc1 A1_V%d" % p)
            a("s_waitcnt vmcnt(4)")
            a.label("A1_V%d" % p)
            a("s_cbranch_scc0 A1_X%d" % p)
            a("s_waitcnt vmcnt(0)")
            a.label("A1_X%d" % p)
            mfq(p, 0)
            a("s_barrier")
            if p == 0:
                a("s_cmp_eq_u32 s%d, 0" % S_KVF)
                a("s_cbranch_scc1 A1_NF")
                self.flag_store("s%d" % S_KVF)
                a("s_mov_b32 s%d, 0" % S_KVF)
                self.stamp(6)
                a.label("A1_NF")
            ops = rd_ops(1 - p)
            for op in ops[0] + ops[1]: a(op)
            mfq(p, 1)
            for op in ops[2] + ops[3]: a(op)
            mfq(p, 2)
            a("s_cmp_ge_u32 s%d, 6" % S_STG)
            a("s_cbranch_scc1 A1_U%d" % p)
            self.a1_dma("d%d" % p)
            a.label("A1_U%d" % p)
            mfq(p, 3)
            adv()
            a("s_add_u32 s%d, s%d, 1" % (S_STG, S_STG))
        a("s_branch A1_LOOP")
        a.label("A1_LAST")
        for kk in range(4): mfq(1, kk)
        self.stamp(1)
        if "a1st" in dbg: self.finish()
        self.poll([(F2_K, 64), (F2_K + 8192, 64), (F2_Q, 20)], T0, 16)
        self.stamp(2)
        for r in range(12): a("v_mov_b32 v%d, v%d" % (56 + r, ACC + r))
        ACC = 56
        CSV = 24
        a("v_lshrrev_b32 v%d, 5, v%d" % (T1, V_LANE))
        a("v_lshlrev_b32 v%d, 5, v%d" % (T1, T1))
        a("v_mov_b32 v%d, 0" % T2)
        a("s_mul_i32 s%d, s%d, 80" % (S_T, S_HEAD))
        a("s_add_u32 s%d, s%d, 0x%x" % (S_T, S_T, WS_CQ))
        for hf, rg in enumerate((CSV, 72)):
            a("buffer_load_dwordx4 %s, v%d, %s, s%d offen offset:%d %s" % (vr(rg, 4), T1, sr(SWS), S_T, hf * 2560, SC))
            a("buffer_load_dwordx4 %s, v%d, %s, s%d offen offset:%d %s" % (vr(rg + 4, 4), T1, sr(SWS), S_T, hf * 2560 + 16, SC))
            a("buffer_load_dwordx4 %s, v%d, %s, s%d offen offset:%d %s" % (vr(rg + 8, 4), T2, sr(SWS), S_T, hf * 2560 + 64, SC))
        V_KA, V_K1A, V_V0A, V_V1A, V_IDX = 8, 9, 10, 11, 12
        Q0, Q1 = 16, 20
        K0, K1 = 40, 44
        V0, V1 = 48, 52
        SAa, SBb = 72, 88
        O = 104
        S_SRC, S_DST, S_C, S_DK, S_CUR = S_R + 2, S_R + 3, S_R + 4, S_R + 5, S_R + 6
        ST = 36
        a("v_and_b32 v%d, 31, v%d" % (T0, V_LANE))
        a("v_lshrrev_b32 v%d, 5, v%d" % (T1, V_LANE))
        a("s_lshl_b32 s%d, s%d, 1" % (S_T, S_RB32))
        a("s_add_u32 s%d, s%d, s%d" % (S_T, S_T, S_TI))
        a("s_lshl_b32 s%d, s%d, 8" % (S_T, S_T))
        a("s_add_u32 s%d, s%d, 0x%x" % (S_T, S_T, WS_ST))
        a("v_lshlrev_b32 v%d, 3, v%d" % (V_K1A, T0))
        a("buffer_load_dwordx2 %s, v%d, %s, s%d offen %s" % (vr(ST, 2), V_K1A, sr(SWS), S_T, SC))
        a("s_mov_b32 s%d, 0x%x" % (S_T, WS_KN))
        a("buffer_load_dwordx4 %s, v%d, %s, s%d offen %s" % (vr(84, 4), V_L16, sr(SWS), S_T, SC))
        a("s_lshl_b32 s%d, s%d, 10" % (S_DST, S_W))
        a("s_add_u32 s%d, s%d, 0x%x" % (S_SRC, S_DST, WS_KV))
        def dma_chunk(tag):
            for m in range(3):
                if m == 2:
                    a("s_cmp_ge_u32 s%d, 4" % S_W)
                    a("s_cbranch_scc1 A2_DS%s" % tag)
                a("s_add_u32 m0, s%d, %d" % (S_DST, m * 8192))
                a("s_add_u32 s%d, s%d, %d" % (S_T, S_SRC, m * 8192))
                a("buffer_load_dwordx4 v%d, %s, s%d offen %s lds" % (V_L16, sr(SWS), S_T, SC))
            a.label("A2_DS%s" % tag)
            a("s_add_u32 s%d, s%d, %d" % (S_SRC, S_SRC, CHUNK))
            a("s_add_u32 s%d, s%d, %d" % (S_DST, S_DST, CHUNK))
            a("s_cmp_ge_u32 s%d, %d" % (S_DST, 3 * CHUNK))
            a("s_cbranch_scc0 A2_DW%s" % tag)
            a("s_sub_u32 s%d, s%d, %d" % (S_DST, S_DST, 3 * CHUNK))
            a.label("A2_DW%s" % tag)
        dma_chunk("a")
        dma_chunk("b")
        a("v_mov_b32 v%d, v%d" % (V_KA, V_L16))
        a("v_mul_u32_u24 v%d, 320, v%d" % (V_V0A, T1))
        a("v_lshl_add_u32 v%d, v%d, 4, v%d" % (V_V0A, T0, V_V0A))
        a("v_mov_b32 v%d, v%d" % (V_V1A, V_V0A))
        a("v_mov_b32 v%d, 0xdddddddd" % V_IDX)
        a("v_mov_b32 v%d, 0x3f803f80" % (K1 + 2))
        a("v_mov_b32 v%d, 0x00003f80" % (K1 + 3))
        for r in range(8): a("v_mov_b32 v%d, 0" % (V0 + r))
        a("s_mov_b32 exec_lo, 0x11000000")
        a("s_mov_b32 exec_hi, 0x11000000")
        for r in range(8): a("v_mov_b32 v%d, 0x3f803f80" % (V0 + r))
        a("s_mov_b64 exec, -1")
        for r in range(16): a("v_mov_b32 v%d, 0" % (O + r))
        for r in range(8, 16): a("v_mov_b32 v%d, 0" % (SBb + r))
        a("v_mov_b32 v%d, 0" % (Q1 + 2))
        a("v_mov_b32 v%d, 0" % (Q1 + 3))
        a("s_waitcnt vmcnt(4) lgkmcnt(0)")
        a("v_mul_f32 v%d, 0x%x, v%d" % (ST + 1, f32bits(LOG2E * 20 ** -0.5), ST + 1))
        for r in range(12): a("v_add_f32 v%d, v%d, v%d" % (CSV + r, CSV + r, 72 + r))
        a("v_add_f32 v%d, v84, v85" % (ST + 2))
        a("v_add_f32 v%d, v%d, v86" % (ST + 2, ST + 2))
        for r in range(12): a("v_fmac_f32 v%d, v%d, v%d" % (ACC + r, ST, CSV + r))
        for r in range(12): a("v_mul_f32 v%d, v%d, v%d" % (ACC + r, ST + 1, ACC + r))
        for r in range(6): a("v_cvt_pk_bf16_f32 v%d, v%d, v%d" % (Q0 + r, ACC + 2 * r, ACC + 2 * r + 1))
        a("s_mov_b32 exec_lo, 0")
        a("v_mov_b32 v%d, 0" % Q1)
        a("v_mov_b32 v%d, 0" % (Q1 + 1))
        for r in range(8, 12): a("v_mov_b32 v%d, 0" % (ACC + r))
        a("s_mov_b64 exec, -1")
        a("v_mul_f32 v%d, v%d, v%d" % (T2, ACC, ACC))
        for r in range(1, 12): a("v_fmac_f32 v%d, v%d, v%d" % (T2, ACC + r, ACC + r))
        KN = ST + 2
        for dpp in ("quad_perm:[1,0,3,2]", "quad_perm:[2,3,0,1]", "row_half_mirror", "row_mirror"):
            a("s_nop 1")
            a("v_max_f32_dpp v%d, v%d, v%d %s row_mask:0xf bank_mask:0xf" % (KN, KN, KN, dpp))
        a("v_mov_b32 v%d, v%d" % (T3, T2))
        a("s_nop 1")
        a("v_permlane32_swap_b32 v%d, v%d" % (T3, T2))
        for q in range(4): a("v_readlane_b32 s%d, v%d, %d" % (S_T + q, KN, 16 * q))
        a("v_add_f32 v%d, v%d, v%d" % (T2, T2, T3))
        a("s_nop 2")
        a("s_max_u32 s%d, s%d, s%d" % (S_T, S_T, S_T + 1))
        a("s_max_u32 s%d, s%d, s%d" % (S_T + 2, S_T + 2, S_T + 3))
        a("s_max_u32 s%d, s%d, s%d" % (S_T, S_T, S_T + 2))
        a("v_mul_f32 v%d, s%d, v%d" % (T2, S_T, T2))
        a("v_sqrt_f32 v%d, v%d" % (T2, T2))
        a("s_nop 0")
        a("v_mul_f32 v%d, 0x%x, v%d" % (T2, f32bits(1.02), T2))
        a("v_mov_b32 v%d, 0x%x" % (T3, f32bits(72.0)))
        a("v_cmp_nle_f32 vcc, v%d, v%d" % (T2, T3))
        a("v_add_f32 v%d, 0x%x, v%d" % (T2, f32bits(-48.0), T2))
        a("s_nop 0")
        if "forcefb" in dbg: a("s_branch A2_FB")
        a("s_cbranch_vccnz A2_FB")
        a.label("A2_SETM")
        a("v_sub_f32 v%d, 0, v%d" % (T2, T2))
        a("v_and_b32 v%d, 0xffff0000, v%d" % (T3, T2))
        a("v_sub_f32 v%d, v%d, v%d" % (T2, T2, T3))
        a("v_and_b32 v%d, 0xffff0000, v%d" % (T0, T2))
        a("v_sub_f32 v%d, v%d, v%d" % (T2, T2, T0))
        a("v_lshrrev_b32 v%d, 16, v%d" % (T3, T3))
        a("s_mov_b32 exec_hi, 0")
        a("v_or_b32 v%d, v%d, v%d" % (Q1 + 2, T3, T0))
        a("v_lshrrev_b32 v%d, 16, v%d" % (Q1 + 3, T2))
        a("s_mov_b64 exec, -1")
        a("s_waitcnt vmcnt(2)")
        a("s_barrier")
        a("s_setprio %d" % self.prio_a)
        self.stamp(3)
        def rdK0(off): a("ds_read_b128 %s, v%d offset:%d" % (vr(K0, 4), V_KA, off))
        def rdK1(off): a("ds_read_b64 %s, v%d offset:%d" % (vr(K1, 2), V_K1A, off + 1024))
        def rdV(reg, addr, off):
            a("s_mov_b64 exec, s[%d:%d]" % (S_VM, S_VM + 1))
            a("ds_read_b128 %s, v%d offset:%d" % (vr(reg, 4), addr, off))
            a("s_mov_b64 exec, -1")
        def qk0(S): a("v_mfma_f32_32x32x16_bf16 %s, %s, %s, 0" % (vr(S, 16), vr(K0, 4), vr(Q0, 4)))
        def qk1(S): a("v_mfma_f32_32x32x16_bf16 %s, %s, %s, %s" % (vr(S, 16), vr(K1, 4), vr(Q1, 4), vr(S, 16)))
        def pv(Vf, P): a("v_smfmac_f32_32x32x32_bf16 %s, %s, %s, v%d" % (vr(O, 16), vr(Vf, 4), vr(P, 8), V_IDX))
        def ex(S, lo, hi):
            for r in range(lo, hi): a("v_exp_f32 v%d, v%d" % (S + r, S + r))
        rdK0(0); rdK1(0)
        a("s_waitcnt lgkmcnt(0)")
        qk0(SAa); qk1(SAa)
        rdK0(TILE); rdK1(TILE); rdV(V0, V_V0A, 1280)
        a("s_mov_b32 s%d, 0" % S_C)
        a("s_mov_b32 s%d, 0" % S_CUR)
        a("s_nop 7")
        a.label("A2_LOOP")
        a("s_add_u32 s%d, s%d, %d" % (S_CUR, S_CUR, CHUNK))
        a("s_cmp_eq_u32 s%d, %d" % (S_CUR, 3 * CHUNK))
        sel(a, S_DK, (-2 * CHUNK) & 0xffffffff, CHUNK)
        a("s_cselect_b32 s%d, 0, s%d" % (S_CUR, S_CUR))
        for j in range(8):
            Sc, Sn = (SAa, SBb) if j % 2 == 0 else (SBb, SAa)
            if j == 6:
                a("s_waitcnt vmcnt(0)")
                a("s_barrier")
                a("s_cmp_ge_u32 s%d, 6" % S_C)
                a("s_cbranch_scc1 A2_NODMA")
                dma_chunk("c")
                a.label("A2_NODMA")
                a("v_add_u32 v%d, s%d, v%d" % (V_KA, S_DK, V_KA))
                a("v_add_u32 v%d, s%d, v%d" % (V_K1A, S_DK, V_K1A))
            if j == 7:
                a("v_add_u32 v%d, s%d, v%d" % (V_V0A, S_DK, V_V0A))
            a("s_waitcnt lgkmcnt(3)")
            pv(V1, Sn + 8)
            rdV(V1, V_V1A, j * TILE + 1920)
            ex(Sc, 0, 4)
            a("s_waitcnt lgkmcnt(3)")
            qk0(Sn)
            rdK0(((j + 2) % 8) * TILE)
            ex(Sc, 4, 8)
            a("s_waitcnt lgkmcnt(3)")
            qk1(Sn)
            rdK1(((j + 2) % 8) * TILE)
            ex(Sc, 8, 12)
            a("s_waitcnt lgkmcnt(3)")
            pv(V0, Sc)
            rdV(V0, V_V0A, ((j + 1) % 8) * TILE + 1280)
            ex(Sc, 12, 16)
            if j == 7: a("v_add_u32 v%d, s%d, v%d" % (V_V1A, S_DK, V_V1A))
            else: a("s_nop 0")
        a("s_add_u32 s%d, s%d, 1" % (S_C, S_C))
        a("s_cmp_lt_u32 s%d, 8" % S_C)
        a("s_cbranch_scc1 A2_LOOP")
        a("s_waitcnt lgkmcnt(0)")
        pv(V1, SBb + 8)
        self.stamp(4)
        a("v_lshrrev_b32 v%d, 5, v%d" % (T1, V_LANE))
        a("s_mul_i32 s%d, s%d, 20" % (S_T, S_HEAD))
        a("v_lshl_add_u32 v%d, v%d, 2, s%d" % (T1, T1, S_T))
        a("v_and_b32 v%d, 15, v%d" % (T0, V_LANE))
        a("v_lshlrev_b32 v%d, 4, v%d" % (T0, T0))
        a("v_bfe_u32 v%d, v%d, 4, 1" % (T2, V_LANE))
        a("v_lshl_add_u32 v%d, v%d, 10, v%d" % (T0, T2, T0))
        a("s_mul_i32 s%d, s%d, 74" % (S_T, S_RB32))
        a("s_add_u32 s%d, s%d, 54" % (S_T, S_T))
        a("s_lshl_b32 s%d, s%d, 12" % (S_T, S_T))
        a("s_lshl_b32 s%d, s%d, 11" % (S_T + 1, S_TI))
        a("s_add_u32 s%d, s%d, s%d" % (S_T, S_T, S_T + 1))
        a("s_add_u32 s%d, s%d, 0x%x" % (S_T, S_T, WS_HO))
        AD = SAa
        for j in range(3):
            a("v_add_u32 v%d, %d, v%d" % (T2, 8 * j, T1))
            a("v_lshrrev_b32 v%d, 5, v%d" % (T3, T2))
            a("v_lshl_add_u32 v%d, v%d, 12, v%d" % (AD + j, T3, T0))
            a("v_bfe_u32 v%d, v%d, 3, 2" % (T3, T2))
            a("v_lshl_add_u32 v%d, v%d, 8, v%d" % (AD + j, T3, AD + j))
            a("v_and_b32 v%d, 7, v%d" % (T3, T2))
            a("v_lshl_add_u32 v%d, v%d, 1, v%d" % (AD + j, T3, AD + j))
        a("v_rcp_f32 v%d, v%d" % (T3, O + 12))
        a("s_nop 0")
        for r in range(12): a("v_mul_f32 v%d, v%d, v%d" % (O + r, T3, O + r))
        PK = SBb
        for r in range(6): a("v_cvt_pk_bf16_f32 v%d, v%d, v%d" % (PK + r, O + 2 * r, O + 2 * r + 1))
        a("buffer_store_dwordx2 %s, v%d, %s, s%d offen %s" % (vr(PK, 2), AD, sr(SWS), S_T, SC))
        a("buffer_store_dwordx2 %s, v%d, %s, s%d offen %s" % (vr(PK + 2, 2), AD + 1, sr(SWS), S_T, SC))
        a("s_mov_b32 exec_hi, 0")
        a("buffer_store_dwordx2 %s, v%d, %s, s%d offen %s" % (vr(PK + 4, 2), AD + 2, sr(SWS), S_T, SC))
        a("s_mov_b64 exec, -1")
        a("s_lshl_b32 s%d, s%d, 10" % (S_T, S_RB32))
        a("s_lshl_b32 s%d, s%d, 7" % (S_T + 1, S_HI))
        a("s_add_u32 s%d, s%d, s%d" % (S_T, S_T, S_T + 1))
        a("s_add_u32 s%d, s%d, 0x%x" % (S_T, S_T, F2_O))
        self.set_flag("s%d" % S_T, True)
        self.finish()
        a.label("A2_FB")
        a("v_mov_b32 v%d, 0xff800000" % T2)
        a("s_mov_b32 s%d, 0x%x" % (S_T, WS_KV))
        a.label("A2_FBL")
        a("buffer_load_dwordx4 %s, v%d, %s, s%d offen %s" % (vr(K0, 4), V_KA, sr(SWS), S_T, SC))
        a("buffer_load_dwordx2 %s, v%d, %s, s%d offen offset:1024 %s" % (vr(K1, 2), V_K1A, sr(SWS), S_T, SC))
        a("s_waitcnt vmcnt(0)")
        qk0(SAa); qk1(SAa)
        a("s_nop 15")
        for r in range(0, 16, 2): a("v_max3_f32 v%d, v%d, v%d, v%d" % (T2, T2, SAa + r, SAa + r + 1))
        a("s_add_u32 s%d, s%d, %d" % (S_T, S_T, TILE))
        a("s_cmp_lt_u32 s%d, 0x%x" % (S_T, WS_KV + 64 * TILE))
        a("s_cbranch_scc1 A2_FBL")
        a("v_mov_b32 v%d, v%d" % (T3, T2))
        a("s_nop 1")
        a("v_permlane32_swap_b32 v%d, v%d" % (T3, T2))
        a("s_nop 1")
        a("v_max_f32 v%d, v%d, v%d" % (T2, T2, T3))
        a("s_branch A2_SETM")

    def role_kv(self):
        a = self.a
        V_PI, V_WA, V_ONE, V_J = 8, 9, 10, 11
        V_ST = 12
        XF = 16
        WF = 36
        AC = 56
        R = 72
        S_TE, S_MAT, S_TILE = S_R + 2, S_R + 3, S_R + 4
        WO = 40960
        PST, PCS = 32768, 34816
        a.label("KV_JOB")
        a("s_and_b32 s%d, s%d, 1" % (S_TE, S_HI))
        a("s_lshr_b32 s%d, s%d, 1" % (S_MAT, S_HI))
        a("s_cmp_eq_u32 s%d, 0" % S_MAT)
        a("s_cselect_b32 s%d, s%d, s%d" % (SB, P_WK, P_WV))
        a("s_cselect_b32 s%d, s%d, s%d" % (SB + 1, P_WK + 1, P_WV + 1))
        a("s_mov_b32 s%d, 25600" % (SB + 2))
        a("s_mov_b32 s%d, 0x20000" % (SB + 3))
        a("s_lshl_b32 s%d, s%d, 1" % (S_TILE, S_RB32))
        a("s_add_u32 s%d, s%d, s%d" % (S_TILE, S_TILE, S_TE))
        a("s_mul_i32 s%d, s%d, 40960" % (S_T, S_TILE))
        a("s_lshl_b32 s%d, s%d, 10" % (S_T + 1, S_W))
        for m in range(5):
            a("v_add_u32 v%d, %d, v0" % (T0, 512 * m))
            a("v_mul_u32_u24 v%d, 3277, v%d" % (T1, T0))
            a("v_lshrrev_b32 v%d, 18, v%d" % (T1, T1))
            a("v_mul_u32_u24 v%d, 80, v%d" % (T2, T1))
            a("v_sub_u32 v%d, v%d, v%d" % (T0, T0, T2))
            a("v_and_b32 v%d, 15, v%d" % (T2, T1))
            a("v_xor_b32 v%d, v%d, v%d" % (T0, T0, T2))
            a("v_and_b32 v%d, 19, v%d" % (T2, T1))
            a("v_bfe_u32 v%d, v%d, 2, 1" % (T3, T1))
            a("v_lshl_add_u32 v%d, v%d, 3, v%d" % (T2, T3, T2))
            a("v_bfe_u32 v%d, v%d, 3, 1" % (T3, T1))
            a("v_lshl_add_u32 v%d, v%d, 2, v%d" % (T2, T3, T2))
            a("v_mul_u32_u24 v%d, 1280, v%d" % (T2, T2))
            a("s_add_u32 m0, s%d, %d" % (S_T + 1, m * 8192))
            a("v_lshl_add_u32 v%d, v%d, 4, v%d" % (T0, T0, T2))
            a("buffer_load_dwordx4 v%d, %s, s%d offen lds" % (T0, sr(SX), S_T))
        for m in range(4):
            if m == 3:
                a("s_cmp_lg_u32 s%d, 0" % S_W)
                a("s_cbranch_scc1 KV_D")
            a("s_add_u32 m0, s%d, %d" % (S_T + 1, WO + m * 8192))
            a("s_add_u32 s%d, s%d, %d" % (S_T + 2, S_T + 1, m * 8192))
            a("buffer_load_dwordx4 v%d, %s, s%d offen lds" % (V_L16, sr(SB), S_T + 2))
        a.label("KV_D")
        self.a1_setup()
        a("v_and_b32 v%d, 31, v%d" % (V_J, V_LANE))
        a("v_and_b32 v%d, 19, v%d" % (T0, V_LANE))
        a("v_bfe_u32 v%d, v%d, 2, 1" % (T1, V_LANE))
        a("v_lshl_add_u32 v%d, v%d, 3, v%d" % (T0, T1, T0))
        a("v_bfe_u32 v%d, v%d, 3, 1" % (T1, V_LANE))
        a("v_lshl_add_u32 v%d, v%d, 2, v%d" % (V_PI, T1, T0))
        a("v_lshrrev_b32 v%d, 5, v%d" % (T1, V_LANE))
        a("v_bfe_u32 v%d, v%d, 2, 2" % (T2, V_LANE))
        a("v_lshl_add_u32 v%d, v%d, 3, v%d" % (T2, T1, T2))
        a("v_mul_u32_u24 v%d, 40, v%d" % (T2, T2))
        a("v_bfe_u32 v%d, v%d, 4, 1" % (T3, V_LANE))
        a("v_lshl_add_u32 v%d, v%d, 5, v%d" % (T2, T3, T2))
        a("s_mul_i32 s%d, s%d, 3200" % (S_T, S_W))
        a("s_add_u32 s%d, s%d, %d" % (S_T, S_T, WO))
        a("s_sub_u32 s%d, 4, s%d" % (S_T + 1, S_MAT))
        a("s_add_u32 s%d, s%d, 3" % (S_T + 2, S_MAT))
        a("v_and_b32 v%d, 1, v%d" % (T3, V_LANE))
        a("v_lshlrev_b32 v%d, s%d, v%d" % (T3, S_T + 1, T3))
        a("v_add3_u32 v%d, v%d, v%d, s%d" % (T2, T2, T3, S_T))
        a("v_bfe_u32 v%d, v%d, 1, 1" % (T3, V_LANE))
        a("v_lshlrev_b32 v%d, s%d, v%d" % (T3, S_T + 2, T3))
        a("v_add_u32 v%d, v%d, v%d" % (V_WA, T2, T3))
        a("v_and_b32 v%d, 15, v%d" % (T2, V_LANE))
        a("v_xor_b32 v%d, v%d, v%d" % (T2, T2, T1))
        a("v_mul_u32_u24 v%d, 1280, v%d" % (T3, V_J))
        a("s_mul_i32 s%d, s%d, 10" % (S_T, S_W))
        for s_ in range(5):
            a("v_xor_b32 v%d, s%d, v%d" % (T0, S_T, T2))
            a("s_add_u32 s%d, s%d, 2" % (S_T, S_T))
            a("v_lshl_add_u32 v%d, v%d, 4, v%d" % (R + s_, T0, T3))
        a("v_mov_b32 v%d, 0x3f803f80" % V_ONE)
        for r in range(3): a("v_mov_b32 v%d, 0" % (V_ST + r))
        a("s_waitcnt vmcnt(0)")
        a("s_barrier")
        self.stamp(5)
        for s_ in range(5):
            a("ds_read_b128 %s, v%d" % (vr(XF + 4 * s_, 4), R + s_))
            a("ds_read_b64_tr_b16 %s, v%d offset:%d" % (vr(WF + 4 * s_, 2), V_WA, s_ * 640))
            a("ds_read_b64_tr_b16 %s, v%d offset:%d" % (vr(WF + 4 * s_ + 2, 2), V_WA, s_ * 640 + 160))
        a("s_waitcnt lgkmcnt(0)")
        a("s_barrier")
        self.a1_dma("k0"); self.a1_dma("k1")
        a("s_cmp_eq_u32 s%d, 0" % S_MAT)
        a("s_cbranch_scc0 KV_MV")
        for s_ in range(5):
            a("v_mfma_f32_32x32x16_bf16 %s, %s, %s, %s" % (vr(AC, 16), vr(WF + 4 * s_, 4), vr(XF + 4 * s_, 4), "0" if s_ == 0 else vr(AC, 16)))
        a("s_branch KV_MD")
        a.label("KV_MV")
        for s_ in range(5):
            a("v_mfma_f32_32x32x16_bf16 %s, %s, %s, %s" % (vr(AC, 16), vr(XF + 4 * s_, 4), vr(WF + 4 * s_, 4), "0" if s_ == 0 else vr(AC, 16)))
        a.label("KV_MD")
        for r in range(20):
            a("v_dot2c_f32_bf16 v%d, v%d, v%d" % (V_ST, V_ONE, XF + r))
            a("v_dot2c_f32_bf16 v%d, v%d, v%d" % (V_ST + 1, XF + r, XF + r))
            a("v_dot2c_f32_bf16 v%d, v%d, v%d" % (V_ST + 2, V_ONE, WF + r))
        a("s_lshl_b32 s%d, s%d, 12" % (S_T, S_W))
        a("v_add_u32 v%d, s%d, v%d" % (T0, S_T, V_L16))
        for q in range(4): a("ds_write_b128 v%d, %s offset:%d" % (T0, vr(AC + 4 * q, 4), q * 1024))
        self.halfsum([V_ST, V_ST + 1, V_ST + 2], R)
        a("s_lshl_b32 s%d, s%d, 8" % (S_T, S_W))
        a("v_lshl_add_u32 v%d, v%d, 3, s%d" % (T0, V_J, S_T))
        a("ds_write_b64 v%d, %s offset:%d" % (T0, vr(V_ST, 2), PST))
        a("s_lshl_b32 s%d, s%d, 7" % (S_T, S_W))
        a("v_lshl_add_u32 v%d, v%d, 2, s%d" % (T0, V_J, S_T))
        a("ds_write_b32 v%d, v%d offset:%d" % (T0, V_ST + 2, PCS))
        a("s_waitcnt lgkmcnt(0)")
        a("s_barrier")
        a("s_cmp_ge_u32 s%d, 4" % S_W)
        a("s_cbranch_scc1 KV_DONE")
        a("s_lshl_b32 s%d, s%d, 10" % (S_T, S_W))
        a("v_add_u32 v%d, s%d, v%d" % (T0, S_T, V_L16))
        for p in range(8): a("ds_read_b128 %s, v%d offset:%d" % (vr(XF + 4 * p, 4), T0, p * 4096))
        a("s_mul_i32 s%d, s%d, 2560" % (S_T + 3, S_TILE))
        a("s_add_u32 s%d, s%d, 0x%x" % (S_T + 3, S_T + 3, WS_KV))
        def tree(base, stride, n, width):
            step = 1
            while step < n:
                for p in range(0, n, 2 * step):
                    for r in range(width):
                        a("v_add_f32 v%d, v%d, v%d" % (base + p * stride + r, base + p * stride + r, base + (p + step) * stride + r))
                step *= 2
        a("s_cmp_eq_u32 s%d, 0" % S_MAT)
        a("s_cbranch_scc0 KV_V")
        a("v_lshlrev_b32 v%d, 3, v%d" % (T0, V_J))
        a("s_waitcnt lgkmcnt(4)")
        for p in range(8): a("ds_read_b64 %s, v%d offset:%d" % (vr(R + 2 * p, 2), T0, PST + p * 256))
        a("s_lshl_b32 s%d, s%d, 5" % (S_T, S_W))
        a("v_lshl_add_u32 v%d, v%d, 4, s%d" % (T0, T1, S_T))
        a("s_waitcnt lgkmcnt(4)")
        for p in range(8): a("ds_read_b128 %s, v%d offset:%d" % (vr(R + 16 + 4 * p, 4), T0, PCS + p * 128))
        tree(XF, 4, 8, 4)
        a("s_waitcnt lgkmcnt(8)")
        tree(R, 2, 8, 2)
        self.meanrstd(V_ST, R)
        a("v_lshlrev_b32 v%d, 3, v%d" % (T2, V_PI))
        a("s_cmp_eq_u32 s%d, 3" % S_W)
        a("s_cbranch_scc0 KV_K1")
        a("s_lshl_b32 s%d, s%d, 8" % (S_T, S_TILE))
        a("s_add_u32 s%d, s%d, 0x%x" % (S_T, S_T, WS_ST))
        a("s_mov_b32 exec_hi, 0")
        a("buffer_store_dwordx2 %s, v%d, %s, s%d offen %s" % (vr(V_ST, 2), T2, sr(SWS), S_T, SC))
        a("s_mov_b64 exec, -1")
        a("s_branch KV_DONE")
        a.label("KV_K1")
        a("s_waitcnt lgkmcnt(0)")
        tree(R + 16, 4, 8, 4)
        for r in range(4): a("v_fmac_f32 v%d, v%d, v%d" % (XF + r, V_ST, R + 16 + r))
        for r in range(4): a("v_mul_f32 v%d, v%d, v%d" % (XF + r, V_ST + 1, XF + r))
        for r in range(2): a("v_cvt_pk_bf16_f32 v%d, v%d, v%d" % (AC + r, XF + 2 * r, XF + 2 * r + 1))
        a("v_mov_b32 v%d, 0" % T3)
        a("s_cmp_eq_u32 s%d, 2" % S_W)
        a("s_cbranch_scc1 KV_K2")
        a("v_lshlrev_b32 v%d, 9, v%d" % (T0, T1))
        a("v_lshl_add_u32 v%d, v%d, 4, v%d" % (T2, V_PI, T0))
        a("s_lshl_b32 s%d, s%d, 3" % (S_T, S_W))
        a("s_add_u32 s%d, s%d, s%d" % (S_T + 3, S_T + 3, S_T))
        a("s_branch KV_K3")
        a.label("KV_K2")
        a("s_add_u32 s%d, s%d, 1024" % (S_T + 3, S_T + 3))
        a("s_mov_b32 exec_hi, 0")
        a.label("KV_K3")
        a("buffer_store_dwordx2 %s, v%d, %s, s%d offen %s" % (vr(AC, 2), T2, sr(SWS), S_T + 3, SC))
        for r in range(4): a("v_fmac_f32 v%d, v%d, v%d" % (T3, XF + r, XF + r))
        a("s_mov_b64 exec, -1")
        self.halfsum([T3], R)
        for dpp in ("quad_perm:[1,0,3,2]", "quad_perm:[2,3,0,1]", "row_half_mirror", "row_mirror"):
            a("s_nop 1")
            a("v_max_f32_dpp v%d, v%d, v%d %s row_mask:0xf bank_mask:0xf" % (T3, T3, T3, dpp))
        a("s_nop 1")
        a("v_readlane_b32 s%d, v%d, 0" % (S_T, T3))
        a("v_readlane_b32 s%d, v%d, 16" % (S_T + 1, T3))
        a("s_nop 3")
        a("s_max_u32 s%d, s%d, s%d" % (S_T, S_T, S_T + 1))
        a("v_mov_b32 v%d, s%d" % (T3, S_T))
        a("s_lshl_b32 s%d, s%d, 2" % (S_T + 2, S_TILE))
        a("s_add_u32 s%d, s%d, s%d" % (S_T + 2, S_T + 2, S_W))
        a("s_lshl_b32 s%d, s%d, 2" % (S_T + 2, S_T + 2))
        a("s_add_u32 s%d, s%d, 0x%x" % (S_T + 2, S_T + 2, WS_KN))
        a("v_mov_b32 v%d, 0" % T0)
        a("s_mov_b64 exec, 1")
        a("buffer_store_dword v%d, v%d, %s, s%d offen %s" % (T3, T0, sr(SWS), S_T + 2, SC))
        a("s_mov_b64 exec, -1")
        a("s_branch KV_DONE")
        a.label("KV_V")
        a("s_lshl_b32 s%d, s%d, 6" % (S_T, S_W))
        a("v_lshl_add_u32 v%d, v%d, 5, s%d" % (T0, T1, S_T))
        a("s_waitcnt lgkmcnt(0)")
        tree(XF, 4, 8, 4)
        SP = 20
        for p in range(6):
            a("ds_read_b128 %s, v%d offset:%d" % (vr(SP + 8 * p, 4), T0, PST + p * 256))
            a("ds_read_b128 %s, v%d offset:%d" % (vr(SP + 8 * p + 4, 4), T0, PST + p * 256 + 16))
        a("v_lshlrev_b32 v%d, 2, v%d" % (T2, V_J))
        a("s_waitcnt lgkmcnt(2)")
        for p in range(6, 8):
            a("ds_read_b128 %s, v%d offset:%d" % (vr(SP + 8 * p, 4), T0, PST + p * 256))
            a("ds_read_b128 %s, v%d offset:%d" % (vr(SP + 8 * p + 4, 4), T0, PST + p * 256 + 16))
        CP = 88
        for p in range(8): a("ds_read_b32 v%d, v%d offset:%d" % (CP + p, T2, PCS + p * 128))
        a("s_waitcnt lgkmcnt(0)")
        tree(SP, 8, 8, 8)
        tree(CP, 1, 8, 1)
        for r in range(4): self.meanrstd(SP + 8 + 2 * r, SP + 2 * r)
        for r in range(4): a("v_fmac_f32 v%d, v%d, v%d" % (XF + r, CP, SP + 8 + 2 * r))
        for r in range(4): a("v_mul_f32 v%d, v%d, v%d" % (XF + r, SP + 9 + 2 * r, XF + r))
        for r in range(2): a("v_cvt_pk_bf16_f32 v%d, v%d, v%d" % (CP + 2 + r, XF + 2 * r, XF + 2 * r + 1))
        a("v_mul_u32_u24 v%d, 320, v%d" % (T0, T1))
        a("v_lshl_add_u32 v%d, v%d, 4, v%d" % (T0, V_J, T0))
        a("s_lshr_b32 s%d, s%d, 1" % (S_T, S_W))
        a("s_mul_i32 s%d, s%d, 640" % (S_T, S_T))
        a("s_add_u32 s%d, s%d, s%d" % (S_T + 3, S_T + 3, S_T))
        a("s_and_b32 s%d, s%d, 1" % (S_T, S_W))
        a("s_lshl_b32 s%d, s%d, 3" % (S_T, S_T))
        a("s_add_u32 s%d, s%d, s%d" % (S_T + 3, S_T + 3, S_T))
        a("s_mov_b64 exec, s[%d:%d]" % (S_VM, S_VM + 1))
        a("buffer_store_dwordx2 %s, v%d, %s, s%d offen offset:1280 %s" % (vr(CP + 2, 2), T0, sr(SWS), S_T + 3, SC))
        a("s_mov_b64 exec, -1")
        a.label("KV_DONE")
        a("s_lshl_b32 s%d, s%d, 2" % (S_T, S_RB32))
        a("s_add_u32 s%d, s%d, s%d" % (S_T, S_T, S_HI))
        a("s_lshl_b32 s%d, s%d, 7" % (S_T, S_T))
        a("s_add_u32 s%d, s%d, 0x%x" % (S_T, S_T, F2_K))
        if "noA" in self.dbg:
            self.set_flag("s%d" % S_T, False)
        else:
            a("s_cmp_eq_u32 s%d, 0" % S_W)
            a("s_cselect_b32 s%d, s%d, 0" % (S_R + 11, S_T))
            a("v_mov_b32 v%d, 0" % T3)
            a("buffer_load_dword v%d, v%d, %s, 0 offen %s" % (V_NONCE, T3, sr(SDBG), SC))
            a("s_barrier")
        a("s_branch A1_GO")

    def role_f1(self):
        a = self.a; dbg = self.dbg
        V_VX, V_VG, V_VU = 8, 9, 10
        V_XA = 12
        V_WA = 14
        V_SX = 16
        F = [24, 40]
        ACC = 56
        S_RB, S_CB, S_TH, S_CG, S_OX, S_OW, S_BX, S_BW, S_STG, S_ACT = [S_R + i for i in range(10)]
        WREG = 32768
        a.label("ROLE_F")
        a("s_setprio %d" % self.prio_f)
        a("s_cmp_ge_u32 s%d, 28" % S_IDX)
        a("s_cbranch_scc1 ROLE_SP")
        if "noF" in dbg: self.finish()
        a("s_and_b32 s%d, s%d, 3" % (S_T, S_XCD))
        a("s_mul_i32 s%d, s%d, 28" % (S_T, S_T))
        a("s_add_u32 s%d, s%d, s%d" % (S_T, S_T, S_IDX))
        a("s_lshr_b32 s%d, s%d, 3" % (S_CB, S_T))
        a("s_and_b32 s%d, s%d, 7" % (S_T, S_T))
        a("s_and_b32 s%d, s%d, 4" % (S_RB, S_XCD))
        a("s_lshl_b32 s%d, s%d, 1" % (S_RB, S_RB))
        a("s_add_u32 s%d, s%d, s%d" % (S_RB, S_RB, S_T))
        a("s_and_b32 s%d, s%d, 1" % (S_TH, S_W))
        a("s_lshr_b32 s%d, s%d, 1" % (S_CG, S_W))
        a("s_lshl_b32 s%d, s%d, 2" % (S_T, S_CB))
        a("s_add_u32 s%d, s%d, s%d" % (S_T, S_T, S_CG))
        a("s_cmp_lt_u32 s%d, 54" % S_T)
        a("s_cselect_b32 s%d, 1, 0" % S_ACT)
        srd(a, SA, P_WG, P_WG + 1, 2211840)
        srd(a, SB, P_WU, P_WU + 1, 2211840)
        a("v_lshrrev_b32 v%d, 4, v%d" % (T0, V_LANE))
        a("s_lshl_b32 s%d, s%d, 2" % (S_T, S_TH))
        a("v_add_u32 v%d, s%d, v%d" % (T1, S_T, T0))
        a("v_and_b32 v%d, 7, v%d" % (T2, V_LANE))
        a("v_xor_b32 v%d, v%d, v%d" % (T1, T1, T2))
        a("v_lshrrev_b32 v%d, 3, v%d" % (T2, V_LANE))
        a("v_mul_u32_u24 v%d, 1280, v%d" % (T2, T2))
        a("v_lshl_add_u32 v%d, v%d, 4, v%d" % (V_VX, T1, T2))
        a("s_lshl_b32 s%d, s%d, 4" % (S_T, S_RB))
        a("s_add_u32 s%d, s%d, s%d" % (S_T, S_T, S_W))
        a("s_mul_i32 s%d, s%d, 10240" % (S_OX, S_T))
        a("v_bfe_u32 v%d, v%d, 2, 2" % (T1, V_LANE))
        a("v_mul_u32_u24 v%d, 3456, v%d" % (T2, T1))
        a("v_lshl_add_u32 v%d, v%d, 6, v%d" % (T2, T0, T2))
        a("v_and_b32 v%d, 3, v%d" % (T3, V_LANE))
        a("v_lshl_add_u32 v%d, v%d, 4, v%d" % (V_VG, T3, T2))
        a("v_xor_b32 v%d, 32, v%d" % (V_VU, V_VG))
        a("s_cmp_eq_u32 s%d, 13" % S_CB)
        a("s_cbranch_scc0 F1_FULL")
        a("s_mov_b32 exec_lo, 0")
        a("v_mov_b32 v%d, 0x40000000" % V_VG)
        a("v_mov_b32 v%d, 0x40000000" % V_VU)
        a("s_mov_b64 exec, -1")
        a.label("F1_FULL")
        a("s_mul_i32 s%d, s%d, %d" % (S_OW, S_W, 4 * 3456))
        a("s_lshl_b32 s%d, s%d, 8" % (S_T, S_CB))
        a("s_add_u32 s%d, s%d, s%d" % (S_OW, S_OW, S_T))
        a("s_lshl_b32 s%d, s%d, 10" % (S_BW, S_W))
        a("s_mov_b32 s%d, s%d" % (S_BX, S_BW))
        def dmaX():
            return [
              ["s_mov_b32 m0, s%d" % S_BX, "s_add_u32 s%d, s%d, 81920" % (S_T, S_OX),
               "buffer_load_dwordx4 v%d, %s, s%d offen lds" % (V_VX, sr(SX), S_OX)],
              ["s_add_u32 m0, s%d, 8192" % S_BX, "s_add_u32 s%d, s%d, 128" % (S_OX, S_OX),
               "buffer_load_dwordx4 v%d, %s, s%d offen lds" % (V_VX, sr(SX), S_T), "s_xor_b32 s%d, s%d, 16384" % (S_BX, S_BX)],
            ]
        def dmaW(b):
            return [
              ["s_add_u32 m0, s%d, %d" % (S_BW, WREG + b * 16384), "s_nop 0",
               "buffer_load_dwordx4 v%d, %s, s%d offen lds" % (V_VG, sr(SA), S_OW)],
              ["s_add_u32 m0, s%d, %d" % (S_BW, WREG + b * 16384 + 8192), "s_nop 0",
               "buffer_load_dwordx4 v%d, %s, s%d offen lds" % (V_VU, sr(SB), S_OW), "s_add_u32 s%d, s%d, %d" % (S_OW, S_OW, 32 * 3456)],
            ]
        for g in dmaX() + dmaW(0) + dmaW(1) + dmaX() + dmaW(2):
            for op in g: a(op)
        a("v_and_b32 v%d, 31, v%d" % (T0, V_LANE))
        a("v_lshrrev_b32 v%d, 5, v%d" % (T2, V_LANE))
        a("v_bfe_u32 v%d, v%d, 1, 3" % (T3, V_LANE))
        a("v_xor_b32 v%d, v%d, v%d" % (T3, T3, T2))
        a("v_lshlrev_b32 v%d, 4, v%d" % (T3, T3))
        a("v_lshl_add_u32 v%d, v%d, 7, v%d" % (T3, T0, T3))
        a("s_lshl_b32 s%d, s%d, 13" % (S_T, S_TH))
        a("v_add_u32 v%d, s%d, v%d" % (V_XA, S_T, T3))
        a("v_xor_b32 v%d, 32, v%d" % (V_XA + 1, V_XA))
        a("v_and_b32 v%d, 1, v%d" % (T0, V_LANE))
        a("v_lshlrev_b32 v%d, 4, v%d" % (T0, T0))
        a("v_bfe_u32 v%d, v%d, 1, 1" % (T3, V_LANE))
        a("v_lshl_add_u32 v%d, v%d, 3, v%d" % (T0, T3, T0))
        a("v_lshl_add_u32 v%d, v%d, 6, v%d" % (T0, T1, T0))
        a("v_lshl_add_u32 v%d, v%d, 11, v%d" % (T0, T2, T0))
        a("v_bfe_u32 v%d, v%d, 4, 1" % (T3, V_LANE))
        a("v_mul_u32_u24 v%d, 8224, v%d" % (T3, T3))
        a("s_lshl_b32 s%d, s%d, 8" % (S_T, S_CG))
        a("s_add_u32 s%d, s%d, %d" % (S_T, S_T, WREG))
        a("v_add3_u32 v%d, v%d, v%d, s%d" % (V_WA, T0, T3, S_T))
        a("v_xor_b32 v%d, 32, v%d" % (V_WA + 1, V_WA))
        for r in range(64): a("v_mov_b32 v%d, 0" % (ACC + r))
        def rops(p, b, kk):
            f = F[p]
            ops = ["ds_read_b128 %s, v%d" % (vr(f, 4), V_XA + kk)]
            for ct in range(2):
                for j in range(2):
                    ops.append("ds_read_b64_tr_b16 %s, v%d offset:%d" % (vr(f + 8 + 4 * ct + 2 * j, 2), V_WA + ct, b * 16384 + kk * 4096 + j * 1024))
            ops.append("ds_read_b128 %s, v%d offset:4096" % (vr(f + 4, 4), V_XA + kk))
            if "f1nord" in dbg: return []
            return ops
        def mf(p, q):
            if "f1nomf" in dbg: return
            ti, ct = [(0, 0), (0, 1), (1, 0), (1, 1)][q]
            f = F[p]; d = ACC + (ti * 2 + ct) * 16
            a("v_mfma_f32_32x32x16_bf16 %s, %s, %s, %s" % (vr(d, 16), vr(f + 8 + 4 * ct, 4), vr(f + 4 * ti, 4), vr(d, 16)))
        a("s_mov_b32 s%d, 0" % S_STG)
        a("s_waitcnt vmcnt(6)")
        a("s_barrier")
        self.stamp(1)
        if "f1clk" in dbg: a("s_memtime s[%d:%d]" % (STAMP0 + 8, STAMP0 + 9))
        a("s_cmp_eq_u32 s%d, 0" % S_ACT)
        a("s_cbranch_scc1 F1_IDLE")
        for op in rops(0, 0, 0): a(op)
        a.label("F1_LOOP")
        for u in range(6):
            b = u % 3; odd = u & 1
            a("s_waitcnt lgkmcnt(0)")
            mf(0, 0)
            for op in rops(1, b, 1): a(op)
            mf(0, 1)
            dl = 64 | (16384 if odd else 0)
            a("v_xor_b32 v%d, 0x%x, v%d" % (V_XA, dl, V_XA))
            a("v_xor_b32 v%d, 0x%x, v%d" % (V_XA + 1, dl, V_XA + 1))
            mf(0, 2)
            if u == 1:
                a("s_cmp_eq_u32 s%d, 19" % S_STG)
                a("s_cbranch_scc1 F1_LAST")
            if u in (5, 0):
                a("s_cmp_ge_u32 s%d, 17" % S_STG)
                a("s_cbranch_scc1 F1_T%d" % u)
            a("s_waitcnt vmcnt(%d) lgkmcnt(0)" % (2 if odd else 4))
            mf(0, 3)
            a("s_barrier")
            mf(1, 0)
            for op in rops(0, (b + 1) % 3, 0): a(op)
            ops = dmaW(b) + (dmaX() if odd else [])
            if "f1nodma" in dbg: ops = [[], []]
            mf(1, 1)
            for op in ops[0] + ops[1]: a(op)
            mf(1, 2)
            for g in ops[2:]:
                for op in g: a(op)
            mf(1, 3)
            if u in (5, 0):
                a("s_branch F1_N%d" % u)
                a.label("F1_T%d" % u)
                a("s_waitcnt vmcnt(0) lgkmcnt(0)")
                mf(0, 3)
                a("s_barrier")
                mf(1, 0)
                for op in rops(0, (b + 1) % 3, 0): a(op)
                for q in (1, 2, 3): mf(1, q)
                a.label("F1_N%d" % u)
            a("s_add_u32 s%d, s%d, 1" % (S_STG, S_STG))
        a("s_branch F1_LOOP")
        a.label("F1_IDLE")
        for u in range(6):
            b = u % 3; odd = u & 1
            if u == 1:
                a("s_cmp_eq_u32 s%d, 19" % S_STG)
                a("s_cbranch_scc1 F1_EPI")
            a("s_cmp_ge_u32 s%d, 17" % S_STG)
            a("s_cbranch_scc1 F1_IT%d" % u)
            a("s_waitcnt vmcnt(%d)" % (2 if odd else 4))
            a("s_barrier")
            for g in dmaW(b) + (dmaX() if odd else []):
                for op in g: a(op)
            a("s_branch F1_IN%d" % u)
            a.label("F1_IT%d" % u)
            a("s_waitcnt vmcnt(0)")
            a("s_barrier")
            a.label("F1_IN%d" % u)
            a("s_add_u32 s%d, s%d, 1" % (S_STG, S_STG))
        a("s_branch F1_IDLE")
        a.label("F1_LAST")
        mf(0, 3)
        a("s_waitcnt lgkmcnt(0)")
        for q in range(4): mf(1, q)
        a.label("F1_EPI")
        self.stamp(2)
        if "f1clk" in dbg:
            a("s_memtime s[%d:%d]" % (STAMP0 + 10, STAMP0 + 11))
            a("s_waitcnt lgkmcnt(0)")
            a("s_sub_u32 s%d, s%d, s%d" % (STAMP0 + 10, STAMP0 + 10, STAMP0 + 8))
            a("s_add_u32 s%d, s%d, s%d" % (STAMP0 + 10, STAMP0 + 10, STAMP0))
            a("s_addc_u32 s%d, s%d, 0" % (STAMP0 + 11, STAMP0 + 1))
            a("s_mov_b64 s[%d:%d], 0" % (STAMP0 + 8, STAMP0 + 9))
            self.finish()
        a("s_lshl_b32 s%d, s%d, 10" % (S_T + 8, S_RB))
        a("s_add_u32 s%d, s%d, 0x%x" % (S_T + 8, S_T + 8, F2_K))
        a("s_lshl_b32 s%d, s%d, 8" % (S_T + 9, S_CB))
        a("s_add_u32 s%d, s%d, 0x%x" % (S_T + 9, S_T + 9, F2_C))
        self.poll([("s%d" % (S_T + 8), 8), ("s%d" % (S_T + 9), 2)], T0, T1)
        a("s_cmp_eq_u32 s%d, 0" % S_ACT)
        a("s_cbranch_scc1 F1_PUB")
        a("v_and_b32 v%d, 31, v%d" % (T0, V_LANE))
        a("v_lshlrev_b32 v%d, 3, v%d" % (T0, T0))
        a("s_lshl_b32 s%d, s%d, 1" % (S_T, S_RB))
        a("s_add_u32 s%d, s%d, s%d" % (S_T, S_T, S_TH))
        a("s_lshl_b32 s%d, s%d, 9" % (S_T + 1, S_T))
        a("s_add_u32 s%d, s%d, 0x%x" % (S_T + 1, S_T + 1, WS_ST))
        a("buffer_load_dwordx2 %s, v%d, %s, s%d offen %s" % (vr(V_SX, 2), T0, sr(SWS), S_T + 1, SC))
        a("buffer_load_dwordx2 %s, v%d, %s, s%d offen offset:256 %s" % (vr(V_SX + 2, 2), T0, sr(SWS), S_T + 1, SC))
        CSV = F[0]
        a("v_lshrrev_b32 v%d, 5, v%d" % (T2, V_LANE))
        a("v_lshlrev_b32 v%d, 5, v%d" % (T1, T2))
        a("s_lshl_b32 s%d, s%d, 2" % (S_T + 2, S_CB))
        a("s_add_u32 s%d, s%d, s%d" % (S_T + 2, S_T + 2, S_CG))
        a("s_lshl_b32 s%d, s%d, 7" % (S_T + 1, S_T + 2))
        a("s_add_u32 s%d, s%d, 0x%x" % (S_T + 1, S_T + 1, WS_CS))
        a("s_add_u32 s%d, s%d, 7168" % (S_T + 3, S_T + 1))
        for ct in range(2):
            for mat in range(2):
                for q in range(2):
                    a("buffer_load_dwordx4 %s, v%d, %s, s%d offen offset:%d %s" % (vr(CSV + ct * 16 + mat * 8 + q * 4, 4), T1, sr(SWS), S_T + 1 + 2 * mat, ct * 64 + q * 16, SC))
        a("v_and_b32 v%d, 15, v%d" % (T0, V_LANE))
        a("v_lshlrev_b32 v%d, 4, v%d" % (T0, T0))
        a("v_lshl_add_u32 v%d, v%d, 8, v%d" % (T0, T2, T0))
        a("v_bfe_u32 v%d, v%d, 4, 1" % (T1, V_LANE))
        a("v_lshl_add_u32 v%d, v%d, 10, v%d" % (T0, T1, T0))
        a("s_mul_i32 s%d, s%d, 74" % (S_T, S_T))
        a("s_add_u32 s%d, s%d, s%d" % (S_T, S_T, S_T + 2))
        a("s_lshl_b32 s%d, s%d, 12" % (S_T, S_T))
        a("s_add_u32 s%d, s%d, 0x%x" % (S_T, S_T, WS_HO))
        a("s_waitcnt vmcnt(0)")
        for ti in range(2):
            for ct in range(2):
                d = ACC + (ti * 2 + ct) * 16
                for r in range(16):
                    a("v_fmac_f32 v%d, v%d, v%d" % (d + r, V_SX + 2 * ti, CSV + ct * 16 + r))
        TE = CSV + 16
        for ti in range(2):
            a("v_mul_f32 v%d, 0x%x, v%d" % (T1, f32bits(-LOG2E), V_SX + 2 * ti + 1))
            a("v_mul_f32 v%d, v%d, v%d" % (T3, V_SX + 2 * ti + 1, V_SX + 2 * ti + 1))
            for ct in range(2):
                d = ACC + (ti * 2 + ct) * 16
                for r in range(8): a("v_mul_f32 v%d, v%d, v%d" % (TE + r, T1, d + r))
                for r in range(8): a("v_exp_f32 v%d, v%d" % (TE + r, TE + r))
                for r in range(8): a("v_mul_f32 v%d, v%d, v%d" % (d + r, d + r, d + 8 + r))
                for r in range(8): a("v_add_f32 v%d, 1.0, v%d" % (TE + r, TE + r))
                for r in range(8): a("v_rcp_f32 v%d, v%d" % (TE + r, TE + r))
                for r in range(8): a("v_mul_f32 v%d, v%d, v%d" % (d + r, T3, d + r))
                for r in range(8): a("v_mul_f32 v%d, v%d, v%d" % (d + r, TE + r, d + r))
                o = CSV + (ti * 2 + ct) * 4
                for r in range(4): a("v_cvt_pk_bf16_f32 v%d, v%d, v%d" % (o + r, d + 2 * r, d + 2 * r + 1))
                a("buffer_store_dwordx4 %s, v%d, %s, s%d offen offset:%d %s" % (vr(o, 4), T0, sr(SWS), S_T, ti * 2048 + ct * 512, SC))
        a.label("F1_PUB")
        a("s_lshl_b32 s%d, s%d, 11" % (S_T, S_RB))
        a("s_lshl_b32 s%d, s%d, 7" % (S_T + 1, S_CB))
        a("s_add_u32 s%d, s%d, s%d" % (S_T, S_T, S_T + 1))
        a("s_add_u32 s%d, s%d, 0x%x" % (S_T, S_T, F2_H))
        self.set_flag("s%d" % S_T, True)
        self.stamp(3)

    def role_sp(self):
        a = self.a
        S_J, S_G, S_LB = S_R, S_R + 1, S_R + 2
        S_D = S_R + 4
        LD = 16; AC = 8
        a.label("ROLE_SP")
        a("s_sub_u32 s%d, s%d, 28" % (S_J, S_IDX))
        a("s_lshl_b32 s%d, s%d, 3" % (S_J, S_J))
        a("s_add_u32 s%d, s%d, s%d" % (S_J, S_J, S_XCD))
        def colsum(tag, lpr, stride, nload, out_sgpr, flag_sgpr):
            sh = {16: 4, 8: 3}[lpr]; ncol = lpr * 8; csh = sh + 3; ng = 512 // ncol
            a("v_lshrrev_b32 v%d, %d, v%d" % (T0, sh, V_LANE))
            a("v_mul_u32_u24 v%d, %d, v%d" % (T0, stride, T0))
            a("v_and_b32 v%d, %d, v%d" % (T1, lpr - 1, V_LANE))
            a("v_lshl_add_u32 v%d, v%d, 4, v%d" % (T0, T1, T0))
            for i in range(nload):
                a("buffer_load_dwordx4 %s, v%d, %s, s%d offen" % (vr(LD + 4 * i, 4), T0, sr(SA), S_T))
                a("s_add_u32 s%d, s%d, %d" % (S_T, S_T, (64 // lpr) * stride))
            for r in range(8): a("v_mov_b32 v%d, 0" % (AC + r))
            for i in range(nload):
                a("s_waitcnt vmcnt(%d)" % (nload - 1 - i))
                for q in range(4):
                    a("v_lshlrev_b32 v%d, 16, v%d" % (T2, LD + 4 * i + q))
                    a("v_and_b32 v%d, 0xffff0000, v%d" % (T3, LD + 4 * i + q))
                    a("v_add_f32 v%d, v%d, v%d" % (AC + 2 * q, AC + 2 * q, T2))
                    a("v_add_f32 v%d, v%d, v%d" % (AC + 2 * q + 1, AC + 2 * q + 1, T3))
            a("v_lshlrev_b32 v%d, 5, v0" % T0)
            a("ds_write_b128 v%d, %s" % (T0, vr(AC, 4)))
            a("ds_write_b128 v%d, %s offset:16" % (T0, vr(AC + 4, 4)))
            a("v_lshrrev_b32 v%d, %d, v0" % (T1, csh))
            a("v_and_b32 v%d, %d, v0" % (T2, ncol - 1))
            a("v_lshlrev_b32 v%d, 2, v%d" % (T2, T2))
            a("v_lshl_add_u32 v%d, v%d, %d, v%d" % (T1, T1, csh + 5, T2))
            a("s_waitcnt lgkmcnt(0)")
            a("s_barrier")
            for p in range(8): a("ds_read_b32 v%d, v%d offset:%d" % (LD + p, T1, p * ncol * 4))
            a("v_lshlrev_b32 v%d, 2, v0" % T0)
            a("s_waitcnt lgkmcnt(0)")
            for st_ in (1, 2, 4):
                for p in range(0, 8, 2 * st_): a("v_add_f32 v%d, v%d, v%d" % (LD + p, LD + p, LD + p + st_))
            a("ds_write_b32 v%d, v%d offset:16384" % (T0, LD))
            a("s_waitcnt lgkmcnt(0)")
            a("s_barrier")
            a("s_cmp_ge_u32 s%d, %d" % (S_W, ncol // 64))
            a("s_cbranch_scc1 SP_%s" % tag)
            for p in range(ng): a("ds_read_b32 v%d, v%d offset:%d" % (LD + p, T0, 16384 + p * ncol * 4))
            a("s_waitcnt lgkmcnt(0)")
            st_ = 1
            while st_ < ng:
                for p in range(0, ng, 2 * st_): a("v_add_f32 v%d, v%d, v%d" % (LD + p, LD + p, LD + p + st_))
                st_ *= 2
            a("buffer_store_dword v%d, v%d, %s, s%d offen %s" % (LD, T0, sr(SWS), out_sgpr, SC))
            a.label("SP_%s" % tag)
            self.set_flag("s%d" % flag_sgpr, False)
        S_O, S_F = S_R + 12, S_R + 13
        a("s_cmp_ge_u32 s%d, 20" % S_J)
        a("s_cbranch_scc1 SP_CS")
        a("s_setprio 3")
        srd(a, SA, P_WQ, P_WQ + 1, 819200)
        a("s_and_b32 s%d, s%d, 1" % (S_T + 2, S_J))
        a("s_lshr_b32 s%d, s%d, 1" % (S_T + 1, S_J))
        a("s_lshl_b32 s%d, s%d, 3" % (S_T, S_T + 2))
        a("s_add_u32 s%d, s%d, s%d" % (S_T, S_T, S_W))
        a("s_mul_i32 s%d, s%d, %d" % (S_T, S_T, 40 * 1280))
        a("s_lshl_b32 s%d, s%d, 7" % (S_T + 3, S_T + 1))
        a("s_add_u32 s%d, s%d, s%d" % (S_T, S_T, S_T + 3))
        a("s_mul_i32 s%d, s%d, 2560" % (S_O, S_T + 2))
        a("s_lshl_b32 s%d, s%d, 8" % (S_T + 3, S_T + 1))
        a("s_add_u32 s%d, s%d, s%d" % (S_O, S_O, S_T + 3))
        a("s_add_u32 s%d, s%d, 0x%x" % (S_O, S_O, WS_CQ))
        a("s_lshl_b32 s%d, s%d, 7" % (S_F, S_J))
        a("s_add_u32 s%d, s%d, 0x%x" % (S_F, S_F, F2_Q))
        colsum("QD", 8, 1280, 5, S_O, S_F)
        a("s_setprio %d" % self.prio_f)
        self.stamp(1)
        a.label("SP_CS")
        a("s_sub_u32 s%d, 31, s%d" % (S_G, S_J))
        a("s_cmp_ge_u32 s%d, 28" % S_G)
        a("s_cbranch_scc1 SP_RL")
        a("s_bitcmp1_b32 s%d, 0" % S_G)
        a("s_cselect_b32 s%d, s%d, s%d" % (SA, P_WU, P_WG))
        a("s_cselect_b32 s%d, s%d, s%d" % (SA + 1, P_WU + 1, P_WG + 1))
        a("s_cselect_b32 s%d, 7168, 0" % S_O)
        a("s_mov_b32 s%d, 2211840" % (SA + 2))
        a("s_mov_b32 s%d, 0x20000" % (SA + 3))
        a("s_mul_i32 s%d, s%d, %d" % (S_T, S_W, 80 * 3456))
        a("s_lshr_b32 s%d, s%d, 1" % (S_T + 1, S_G))
        a("s_lshl_b32 s%d, s%d, 8" % (S_T + 1, S_T + 1))
        a("s_add_u32 s%d, s%d, s%d" % (S_T, S_T, S_T + 1))
        a("s_lshl_b32 s%d, s%d, 1" % (S_T + 1, S_T + 1))
        a("s_add_u32 s%d, s%d, s%d" % (S_O, S_O, S_T + 1))
        a("s_add_u32 s%d, s%d, 0x%x" % (S_O, S_O, WS_CS))
        a("s_lshl_b32 s%d, s%d, 7" % (S_F, S_G))
        a("s_add_u32 s%d, s%d, 0x%x" % (S_F, S_F, F2_C))
        colsum("CD", 16, 3456, 20, S_O, S_F)
        self.stamp(2)
        a.label("SP_RL")
        V_VD, V_TA = 8, 9
        a("v_lshrrev_b32 v%d, 3, v%d" % (T0, V_LANE))
        a("v_mul_u32_u24 v%d, 1280, v%d" % (T0, T0))
        a("v_and_b32 v%d, 7, v%d" % (T1, V_LANE))
        a("v_lshl_add_u32 v%d, v%d, 4, v%d" % (V_VD, T1, T0))
        a("s_lshl_b32 s%d, s%d, 13" % (S_LB, S_W))
        a("v_lshrrev_b32 v%d, 4, v%d" % (T0, V_LANE))
        a("v_bfe_u32 v%d, v%d, 2, 2" % (T1, V_LANE))
        a("v_lshl_add_u32 v%d, v%d, 3, v%d" % (T0, T0, T1))
        a("v_lshlrev_b32 v%d, 7, v%d" % (T0, T0))
        a("v_and_b32 v%d, 3, v%d" % (T1, V_LANE))
        a("v_lshl_add_u32 v%d, v%d, 3, v%d" % (T0, T1, T0))
        a("v_add_u32 v%d, s%d, v%d" % (V_TA, S_LB, T0))
        a("s_lshl_b32 s%d, s%d, 3" % (S_G, S_J))
        a("s_add_u32 s%d, s%d, s%d" % (S_G, S_G, S_W))
        a("s_mov_b32 s%d, 0x20000" % (SA + 3))
        def issue(slot):
            a("s_mul_hi_u32 s%d, s%d, 0x%x" % (S_T + 1, S_G, (1 << 32) // 10 + 1))
            a("s_mul_i32 s%d, s%d, 10" % (S_T + 2, S_T + 1))
            a("s_sub_u32 s%d, s%d, s%d" % (S_T + 2, S_G, S_T + 2))
            for i in range(4):
                a("s_lshl_b32 s%d, s%d, 2" % (S_T + 3, S_T + 2))
                a("s_add_u32 s%d, s%d, %d" % (S_T + 3, S_T + 3, i))
                a("s_mul_hi_u32 s%d, s%d, 0x%x" % (S_T + 4, S_T + 3, (1 << 32) // 5 + 1))
                a("s_mul_i32 s%d, s%d, 365" % (S_T + 4, S_T + 4))
                a("s_add_u32 s%d, s%d, s%d" % (S_T + 4, S_T + 4, S_T + 3))
                a("s_mul_i32 s%d, s%d, 5" % (S_T + 3, S_T + 1))
                a("s_add_u32 s%d, s%d, s%d" % (S_T + 4, S_T + 4, S_T + 3))
                a("s_lshl_b32 s%d, s%d, 10" % (S_T + 4, S_T + 4))
                a("s_add_u32 s%d, s%d, 0x%x" % (S_D + slot * 4 + i, S_T + 4, WS_WF2))
            a("s_sub_u32 s%d, s%d, 54" % (S_T + 4, S_T + 1))
            a("s_cmp_lt_u32 s%d, 54" % (S_T + 1))
            a("s_cselect_b32 s%d, s%d, s%d" % (S_T + 1, S_T + 1, S_T + 4))
            a("s_cselect_b32 s%d, s%d, s%d" % (SA, P_WD, P_WO))
            a("s_cselect_b32 s%d, s%d, s%d" % (SA + 1, P_WD + 1, P_WO + 1))
            sel(a, SA + 2, 2211840, 819200)
            a("s_mul_i32 s%d, s%d, 40960" % (S_T + 1, S_T + 1))
            a("s_lshl_b32 s%d, s%d, 7" % (S_T + 2, S_T + 2))
            a("s_add_u32 s%d, s%d, s%d" % (S_T + 1, S_T + 1, S_T + 2))
            for i in range(4):
                a("s_add_u32 m0, s%d, %d" % (S_LB, slot * 4096 + i * 1024))
                a("s_nop 0")
                a("buffer_load_dwordx4 v%d, %s, s%d offen lds" % (V_VD, sr(SA), S_T + 1))
                a("s_add_u32 s%d, s%d, 10240" % (S_T + 1, S_T + 1))
            a("s_add_u32 s%d, s%d, 256" % (S_G, S_G))
        def drain(slot, reg):
            for i in range(4):
                a("ds_read_b64_tr_b16 %s, v%d offset:%d" % (vr(reg + 4 * i, 2), V_TA, slot * 4096 + i * 32))
                a("ds_read_b64_tr_b16 %s, v%d offset:%d" % (vr(reg + 4 * i + 2, 2), V_TA, slot * 4096 + i * 32 + 512))
            a("s_waitcnt lgkmcnt(0)")
            for i in range(4):
                a("buffer_store_dwordx4 %s, v%d, %s, s%d offen %s" % (vr(reg + 4 * i, 4), V_L16, sr(SWS), S_D + slot * 4 + i, SC))
        issue(0); issue(1)
        a("s_waitcnt vmcnt(4)")
        drain(0, 16)
        a("s_cmp_ge_u32 s%d, 740" % S_G)
        a("s_cbranch_scc1 SP_R2")
        issue(0)
        a("s_waitcnt vmcnt(8)")
        drain(1, 32)
        a("s_waitcnt vmcnt(4)")
        drain(0, 48)
        a("s_branch SP_R3")
        a.label("SP_R2")
        a("s_waitcnt vmcnt(4)")
        drain(1, 32)
        a.label("SP_R3")
        a("s_lshl_b32 s%d, s%d, 7" % (S_T, S_J))
        a("s_add_u32 s%d, s%d, 0x%x" % (S_T, S_T, F2_W))
        self.set_flag("s%d" % S_T, False)
        self.stamp(3)
        if "f1clk" in self.dbg or "noF" in self.dbg: self.finish()
        a("s_branch F2_GO")

    def role_f23(self):
        a = self.a
        V_VW, V_TA = T0, T1
        WT = 8
        HF = [16, 32]
        ACC = 48
        S_H, S_WO, S_N, S_GB, S_LB, S_GS, S_NW = [S_R + i for i in range(7)]
        a.label("F2_GO")
        srd(a, SB, P_OUT, P_OUT + 1, 2621440)
        a("s_mul_i32 s%d, s%d, 81920" % (S_GB, S_RB32))
        a("s_mul_i32 s%d, s%d, 160" % (S_T + 1, S_HI))
        a("s_add_u32 s%d, s%d, s%d" % (S_GB, S_GB, S_T + 1))
        a("s_mul_i32 s%d, s%d, 10240" % (S_LB, S_W))
        a("s_mul_i32 s%d, s%d, 10240" % (S_GS, S_ID))
        a("s_add_u32 s%d, s%d, 0x%x" % (S_GS, S_GS, WS_GS))
        def addr_setup():
            a("v_add_u32 v%d, s%d, v%d" % (V_TA, S_LB, V_L16))
        def setup(ksg):
            a("s_mul_i32 s%d, s%d, 74" % (S_H, S_RB32))
            a("s_add_u32 s%d, s%d, s%d" % (S_H, S_H, ksg))
            a("s_lshl_b32 s%d, s%d, 12" % (S_H, S_H))
            a("s_add_u32 s%d, s%d, 0x%x" % (S_H, S_H, WS_HO))
            a("s_mul_i32 s%d, s%d, 74" % (S_WO, S_HI))
            a("s_add_u32 s%d, s%d, s%d" % (S_WO, S_WO, ksg))
            a("s_mul_i32 s%d, s%d, 5120" % (S_WO, S_WO))
            a("s_add_u32 s%d, s%d, 0x%x" % (S_WO, S_WO, WS_WF2))
        def loadW(p):
            a("s_add_u32 m0, s%d, %d" % (S_LB, p * 5120))
            a("s_nop 0")
            for n in range(4):
                a("buffer_load_dwordx4 v%d, %s, s%d offen offset:%d %s lds" % (V_L16, sr(SWS), S_WO, n * 1024, SC))
            a("s_add_u32 m0, s%d, %d" % (S_LB, p * 5120 + 4096))
            a("s_add_u32 s%d, s%d, 4096" % (S_WO, S_WO))
            a("buffer_load_dwordx4 v%d, %s, s%d offen %s lds" % (V_L16, sr(SWS), S_WO, SC))
            a("s_add_u32 s%d, s%d, 1024" % (S_WO, S_WO))
        def loadH(p):
            for tt in range(4):
                a("buffer_load_dwordx4 %s, v%d, %s, s%d offen offset:%d %s" % (vr(HF[p] + tt * 4, 4), V_L16, sr(SWS), S_H, tt * 1024, SC))
            a("s_add_u32 s%d, s%d, 4096" % (S_H, S_H))
        def trd(p, c):
            a("ds_read_b128 %s, v%d offset:%d" % (vr(WT + 4 * (c & 1), 4), V_TA, p * 5120 + c * 1024))
        def comp(p):
            trd(p, 0); trd(p, 1)
            for c in range(5):
                a("s_waitcnt lgkmcnt(%d)" % (1 if c < 4 else 0))
                for tt in range(4):
                    d = ACC + (tt * 5 + c) * 4
                    a("v_mfma_f32_16x16x32_bf16 %s, %s, %s, %s" % (vr(d, 4), vr(WT + 4 * (c & 1), 4), vr(HF[p] + tt * 4, 4), vr(d, 4)))
                if c + 2 < 5: trd(p, c + 2)
        def gemm(tag):
            loadH(0); loadH(1)
            for r in range(80): a("v_mov_b32 v%d, 0" % (ACC + r))
            a("s_waitcnt vmcnt(4)")
            a.label("%s_L" % tag)
            comp(0)
            a("s_cmp_le_u32 s%d, 2" % S_N)
            a("s_cbranch_scc1 %s_E1" % tag)
            loadW(0); loadH(0)
            a("s_waitcnt vmcnt(9)")
            comp(1)
            a("s_cmp_le_u32 s%d, 3" % S_N)
            a("s_cbranch_scc1 %s_E0" % tag)
            loadW(1); loadH(1)
            a("s_sub_u32 s%d, s%d, 2" % (S_N, S_N))
            a("s_waitcnt vmcnt(9)")
            a("s_branch %s_L" % tag)
            a.label("%s_E1" % tag)
            a("s_waitcnt vmcnt(0)")
            comp(1)
            a("s_branch %s_X" % tag)
            a.label("%s_E0" % tag)
            a("s_waitcnt vmcnt(0)")
            comp(0)
            a.label("%s_X" % tag)
        GA, LA = 8, 10
        def reduce(tag):
            a("s_and_b32 s%d, s%d, 3" % (S_T, S_W))
            a("s_mul_i32 s%d, s%d, 20480" % (S_T, S_T))
            a("v_add_u32 v%d, s%d, v%d" % (T0, S_T, V_L16))
            for it in range(2):
                a("v_add_u32 v%d, %d, v0" % (T2, it * 512))
                a("v_mul_u32_u24 v%d, 6554, v%d" % (T1, T2))
                a("v_lshrrev_b32 v%d, 16, v%d" % (T1, T1))
                a("v_mul_u32_u24 v%d, 1120, v%d" % (T1, T1))
                a("v_lshl_add_u32 v%d, v%d, 4, v%d" % (GA + it, T2, T1))
                a("v_lshlrev_b32 v%d, 5, v%d" % (LA + it, T2))
            a("s_barrier")
            a("s_cmp_lt_u32 s%d, 4" % S_W)
            a("s_cbranch_scc1 %s_R1" % tag)
            for q in range(20): a("ds_write_b128 v%d, %s offset:%d" % (T0, vr(ACC + 4 * q, 4), q * 1024))
            a("s_waitcnt lgkmcnt(0)")
            a("s_barrier")
            a("s_barrier")
            a("s_branch %s_R2" % tag)
            a.label("%s_R1" % tag)
            a("s_barrier")
            for half in range(3):
                n = (8, 8, 4)[half]
                for q in range(n): a("ds_read_b128 %s, v%d offset:%d" % (vr(16 + 4 * q, 4), T0, (half * 8 + q) * 1024))
                a("s_waitcnt lgkmcnt(0)")
                for r in range(4 * n): a("v_add_f32 v%d, v%d, v%d" % (ACC + half * 32 + r, ACC + half * 32 + r, 16 + r))
            a("v_and_b32 v%d, 15, v%d" % (T0, V_LANE))
            a("v_mul_u32_u24 v%d, 320, v%d" % (T0, T0))
            a("v_lshrrev_b32 v%d, 4, v%d" % (T1, V_LANE))
            a("v_lshl_add_u32 v%d, v%d, 4, v%d" % (T0, T1, T0))
            a("v_add_u32 v%d, s%d, v%d" % (T0, S_T, T0))
            for tt in range(4):
                for c in range(5):
                    a("ds_write_b128 v%d, %s offset:%d" % (T0, vr(ACC + (tt * 5 + c) * 4, 4), tt * 5120 + c * 64))
            a("s_waitcnt lgkmcnt(0)")
            a("s_barrier")
            a.label("%s_R2" % tag)
        def reduce_read(it, R):
            for q in range(4):
                a("ds_read_b128 %s, v%d offset:%d" % (vr(R + q * 8, 4), LA + it, q * 20480))
                a("ds_read_b128 %s, v%d offset:%d" % (vr(R + q * 8 + 4, 4), LA + it, q * 20480 + 16))
            a("s_waitcnt lgkmcnt(0)")
            for r in range(8):
                a("v_add_f32 v%d, v%d, v%d" % (R + r, R + r, R + 8 + r))
                a("v_add_f32 v%d, v%d, v%d" % (R + 16 + r, R + 16 + r, R + 24 + r))
            for r in range(8): a("v_add_f32 v%d, v%d, v%d" % (R + r, R + r, R + 16 + r))
        self.poll([(F2_W, 32)], 8, 9, sleep=8)
        a("s_mul_i32 s%d, s%d, 7" % (S_T, S_W))
        a("s_mul_i32 s%d, s%d, 6" % (S_T + 1, S_W))
        a("s_add_u32 s%d, s%d, 6" % (S_T + 1, S_T + 1))
        a("s_cmp_lt_u32 s%d, 6" % S_W)
        a("s_cselect_b32 s%d, s%d, s%d" % (S_T, S_T, S_T + 1))
        a("s_cselect_b32 s%d, 7, 6" % S_N)
        setup(S_T)
        addr_setup()
        loadW(0); loadW(1)
        a("s_lshr_b32 s%d, s%d, 1" % (S_T + 8, S_RB32))
        a("s_lshl_b32 s%d, s%d, 11" % (S_T + 8, S_T + 8))
        a("s_add_u32 s%d, s%d, 0x%x" % (S_T + 8, S_T + 8, F2_H))
        self.poll([("s%d" % (S_T + 8), 14)], 8, 9, sleep=8)
        self.stamp(4)
        gemm("F2")
        reduce("F2")
        R = ACC
        a("v_lshlrev_b32 v%d, 4, v0" % T2)
        for it in range(2):
            if it == 1:
                a("s_cmp_ge_u32 s%d, 2" % S_W)
                a("s_cbranch_scc1 F2_RD")
                a("v_add_u32 v%d, 8192, v%d" % (T2, T2))
            reduce_read(it, R)
            g = 16 + 8 * it
            for r in range(8): a("v_mul_f32 v%d, 0x%x, v%d" % (g + r, f32bits(-LOG2E), R + r))
            for r in range(8): a("v_exp_f32 v%d, v%d" % (g + r, g + r))
            a("s_nop 0")
            for r in range(8): a("v_add_f32 v%d, 1.0, v%d" % (g + r, g + r))
            for r in range(8): a("v_rcp_f32 v%d, v%d" % (g + r, g + r))
            a("s_nop 0")
            for r in range(8): a("v_mul_f32 v%d, v%d, v%d" % (g + r, g + r, R + r))
            for q in range(4): a("v_cvt_pk_bf16_f32 v%d, v%d, v%d" % (32 + 4 * it + q, g + 2 * q, g + 2 * q + 1))
            a("buffer_store_dwordx4 %s, v%d, %s, s%d offen" % (vr(32 + 4 * it, 4), T2, sr(SWS), S_GS))
        a.label("F2_RD")
        self.stamp(5)
        if "noA" in self.dbg: self.finish()
        a("s_mul_i32 s%d, s%d, 3" % (S_T, S_W))
        a("s_lshl_b32 s%d, s%d, 1" % (S_T + 1, S_W))
        a("s_add_u32 s%d, s%d, 4" % (S_T + 1, S_T + 1))
        a("s_cmp_lt_u32 s%d, 4" % S_W)
        a("s_cselect_b32 s%d, s%d, s%d" % (S_T, S_T, S_T + 1))
        a("s_cselect_b32 s%d, 3, 2" % S_N)
        a("s_add_u32 s%d, s%d, 54" % (S_T + 1, S_T))
        setup(S_T + 1)
        addr_setup()
        a("s_barrier")
        loadW(0); loadW(1)
        a("s_lshl_b32 s%d, s%d, 10" % (S_T + 8, S_RB32))
        a("s_add_u32 s%d, s%d, 0x%x" % (S_T + 8, S_T + 8, F2_O))
        self.poll([("s%d" % (S_T + 8), 8)], 8, 9, sleep=4)
        self.stamp(6)
        gemm("F3")
        reduce("F3")
        XR = 16; GR = 24
        a("v_lshlrev_b32 v%d, 4, v0" % T2)
        a("buffer_load_dwordx4 %s, v%d, %s, s%d offen" % (vr(XR, 4), GA, sr(SX), S_GB))
        a("buffer_load_dwordx4 %s, v%d, %s, s%d offen" % (vr(GR, 4), T2, sr(SWS), S_GS))
        a("s_cmp_ge_u32 s%d, 2" % S_W)
        a("s_cbranch_scc1 F3_NX")
        a("v_add_u32 v%d, 8192, v%d" % (T2, T2))
        a("buffer_load_dwordx4 %s, v%d, %s, s%d offen" % (vr(XR + 4, 4), GA + 1, sr(SX), S_GB))
        a("buffer_load_dwordx4 %s, v%d, %s, s%d offen" % (vr(GR + 4, 4), T2, sr(SWS), S_GS))
        a.label("F3_NX")
        for it in range(2):
            if it == 1:
                a("s_cmp_ge_u32 s%d, 2" % S_W)
                a("s_cbranch_scc1 F3_FIN")
            reduce_read(it, R)
            if it == 0: a("s_waitcnt vmcnt(0)")
            U = R + 8; G = R + 16
            for q in range(4):
                a("v_lshlrev_b32 v%d, 16, v%d" % (U + 2 * q, XR + it * 4 + q))
                a("v_and_b32 v%d, 0xffff0000, v%d" % (U + 2 * q + 1, XR + it * 4 + q))
                a("v_lshlrev_b32 v%d, 16, v%d" % (G + 2 * q, GR + it * 4 + q))
                a("v_and_b32 v%d, 0xffff0000, v%d" % (G + 2 * q + 1, GR + it * 4 + q))
            for r in range(8): a("v_fmac_f32 v%d, v%d, v%d" % (U + r, R + r, G + r))
            PK = 32 + it * 4
            for q in range(4): a("v_cvt_pk_bf16_f32 v%d, v%d, v%d" % (PK + q, U + 2 * q, U + 2 * q + 1))
            a("buffer_store_dwordx4 %s, v%d, %s, s%d offen" % (vr(PK, 4), GA + it, sr(SB), S_GB))
        a.label("F3_FIN")
        self.finish()

    def build(self):
        name = NAME + "_kernel"
        self.prologue(name)
        self.role_a()
        self.role_f1()
        self.role_f23()
        self.role_kv()
        self.role_sp()
        self.a.end_kernel(name, NVGPR)
        txt = self.a.text(HEADER + "; @launch grid=(512,1,1) block=(512,1,1) lds=%d\n" % LDS_BYTES)
        return txt

if __name__ == "__main__":
    dbg = sys.argv[2] if len(sys.argv) > 2 else ""
    m = Mega(stamps="st" in dbg.split(","), dbg=dbg)
    open(sys.argv[1], "w").write(m.build())
```

```python
from common import *

LDS_BYTES = 81920
NVGPR = 128
S_W = 3
SWS, SX, SA, SB, SDBG = 8, 12, 16, 20, 24
S_ID, S_RB32, S_HI, S_XCD, S_IDX = 28, 29, 30, 31, 32
S_VM = 34
P_X, P_WQ, P_WK, P_WV, P_WO, P_WG, P_WU, P_WD, P_OUT, P_DBG, P_WS = 36, 38, 40, 42, 44, 48, 50, 52, 54, 56, 58
SC_ = 4
S_T = 60
S_R = 70
STAMP0 = 86
V_LANE, V_L16, V_NONCE = 1, 2, 3
T0, T1, T2, T3 = 4, 5, 6, 7
SC = "sc1"
VMASK = 0x000FFFFF
TILE = 2560
CHUNK = 8 * TILE
SPIN_MAX = 1 << 14
DPPS = ("quad_perm:[1,0,3,2]", "quad_perm:[2,3,0,1]", "row_half_mirror", "row_mirror")

class Mega:
    def __init__(self, stamps=False, dbg="", code_bytes=0x4000):
        self.a = Asm()
        self.stamps = stamps
        self.code_bytes = code_bytes
        self.dbg = d = dbg.split(",")
        def opt(name, default):
            for x in d:
                if x.startswith(name + "="): return int(x.split("=")[1])
            return default
        self.prio_a = opt("pa", 1)
        self.prio_f1 = opt("pf1", 0)
        self.prio_fe = opt("pfe", 2)
        self.prio_f2 = opt("pf2", 0)
        self.prio_fr = opt("pfr", 2)
        self.f1sw = opt("f1sw", 0)
        self.prio_f1b = opt("pf1b", 0)
        self.asw = opt("asw", 99)
        self.prio_ab = opt("pab", 1)

    def stamp(self, i, tag=""):
        if tag == "f23" and "f1st" in self.dbg: return
        if self.stamps:
            self.a("s_memrealtime s[%d:%d]" % (STAMP0 + 2 * i, STAMP0 + 2 * i + 1))

    def finish(self, i_end=7):
        a = self.a
        if self.stamps:
            a("s_waitcnt vmcnt(0)")
            self.stamp(i_end)
            a("s_waitcnt lgkmcnt(0)")
            lab = a.newlabel("LST")
            a("s_cmp_lg_u32 s%d, 0" % S_W)
            a("s_cbranch_scc1 %s" % lab)
            a("s_xor_b32 s%d, s2, %d" % (S_T, 256 if "ffirst" in self.dbg else 0))
            a("s_lshl_b32 s%d, s%d, 6" % (S_T, S_T))
            a("s_add_u32 s%d, s%d, 0x%x" % (S_T, S_T, STAMP_OFF))
            a("s_add_u32 s%d, s%d, s%d" % (S_T + 2, P_WS, S_T))
            a("s_addc_u32 s%d, s%d, 0" % (S_T + 3, P_WS + 1))
            for r in range(16):
                a("v_mov_b32 v%d, s%d" % (8 + r, STAMP0 + r))
            a("v_mov_b32 v%d, 0" % T0)
            a("s_mov_b64 exec, 1")
            for q in range(4):
                a("global_store_dwordx4 v%d, %s, s[%d:%d] offset:%d" % (T0, vr(8 + 4 * q, 4), S_T + 2, S_T + 3, q * 16))
            a.label(lab)
        a("s_endpgm")

    def load_nonce(self, vz):
        self.a("v_mov_b32 v%d, 0" % vz)
        self.a("buffer_load_dword v%d, v%d, %s, 0 offen %s" % (V_NONCE, vz, sr(SDBG), SC))

    def poll(self, loads, vz, sleep=2, wave0=True):
        a = self.a
        done = a.newlabel("PD"); loop = a.newlabel("PL")
        if wave0:
            a("s_cmp_lg_u32 s%d, 0" % S_W)
            a("s_cbranch_scc1 %s" % done)
        a("s_mov_b32 s%d, %d" % (S_T, SPIN_MAX))
        a.label(loop)
        self.load_nonce(vz)
        for d, n, ad, so in loads:
            op = {1: "dword", 2: "dwordx2", 4: "dwordx4"}[n]
            a("buffer_load_%s %s, v%d, %s, %s offen %s" % (op, "v%d" % d if n == 1 else vr(d, n), ad, sr(SWS), so, SC))
        a("s_waitcnt vmcnt(0)")
        a("v_cmp_eq_u32 vcc, 0, v%d" % V_NONCE)
        for d, n, ad, so in loads:
            for r in range(n):
                a("v_cmp_ne_u32 s[%d:%d], v%d, v%d" % (S_T + 4, S_T + 5, V_NONCE, d + r))
                a("s_or_b64 vcc, vcc, s[%d:%d]" % (S_T + 4, S_T + 5))
        a("s_cbranch_scc0 %s" % done)
        a("s_sleep %d" % sleep)
        a("s_sub_u32 s%d, s%d, 1" % (S_T, S_T))
        a("s_cmp_lg_u32 s%d, 0" % S_T)
        a("s_cbranch_scc1 %s" % loop)
        a.label(done)
        if wave0: a("s_barrier")

    def wave_flag(self, soff, vz, first_wait=0):
        a = self.a
        loop = a.newlabel("GL"); ok = a.newlabel("GK")
        a("s_mov_b32 s%d, %d" % (S_T + 6, SPIN_MAX))
        a("v_mov_b32 v%d, 0" % vz)
        if first_wait:
            ent = a.newlabel("GE")
            a("s_waitcnt vmcnt(%d)" % first_wait)
            a("s_branch %s" % ent)
        a.label(loop)
        a("s_waitcnt vmcnt(0)")
        if first_wait: a.label(ent)
        a("v_cmp_ne_u32 vcc, 0, v%d" % V_NONCE)
        a("s_nop 0")
        a("s_cbranch_vccnz %s" % ok)
        a("buffer_load_dword v%d, v%d, %s, 0 offen %s" % (V_NONCE, vz, sr(SDBG), SC))
        a("s_sub_u32 s%d, s%d, 1" % (S_T + 6, S_T + 6))
        a("s_cmp_lg_u32 s%d, 0" % (S_T + 6))
        a("s_cbranch_scc1 %s" % loop)
        a.label(ok)
        a("s_mov_b64 exec, 1")
        a("buffer_store_dword v%d, v%d, %s, %s offen %s" % (V_NONCE, vz, sr(SWS), soff, SC))
        a("s_mov_b64 exec, -1")

    def wg_flag(self, soff):
        a = self.a
        done = a.newlabel("FD")
        self.load_nonce(T3)
        a("s_waitcnt vmcnt(0)")
        a("s_barrier")
        a("s_cmp_lg_u32 s%d, 0" % S_W)
        a("s_cbranch_scc1 %s" % done)
        self.wave_flag(soff, T3)
        a.label(done)

    def meanrstd(self, dst, s0):
        a = self.a
        a("v_mul_f32 v%d, 0x%x, v%d" % (dst, f32bits(-1.0 / 640), s0))
        a("v_mul_f32 v%d, 0x%x, v%d" % (s0 + 1, f32bits(1.0 / 640), s0 + 1))
        a("v_fma_f32 v%d, -v%d, v%d, v%d" % (s0 + 1, dst, dst, s0 + 1))
        a("v_max_f32 v%d, 0, v%d" % (s0 + 1, s0 + 1))
        a("v_add_f32 v%d, 0x%x, v%d" % (s0 + 1, f32bits(1e-5), s0 + 1))
        a("v_rsq_f32 v%d, v%d" % (dst + 1, s0 + 1))
        a("s_nop 0")

    def halfsum(self, regs, tmp):
        a = self.a
        for n, r in enumerate(regs): a("v_mov_b32 v%d, v%d" % (tmp + n, r))
        a("s_nop 1")
        for n, r in enumerate(regs): a("v_permlane32_swap_b32 v%d, v%d" % (tmp + n, r))
        a("s_nop 1")
        for n, r in enumerate(regs): a("v_add_f32 v%d, v%d, v%d" % (r, tmp + n, r))

    def tree(self, base, stride, n, width):
        step = 1
        while step < n:
            for p in range(0, n, 2 * step):
                for r in range(width):
                    self.a("v_add_f32 v%d, v%d, v%d" % (base + p * stride + r, base + p * stride + r, base + (p + step) * stride + r))
            step *= 2

    def prologue(self, name):
        a = self.a
        a.begin_kernel(name)
        if self.stamps:
            for i in range(1, 8): a("s_mov_b64 s[%d:%d], 0" % (STAMP0 + 2 * i, STAMP0 + 2 * i + 1))
        self.stamp(0)
        a("s_cmp_ge_u32 s2, 512")
        a("s_cbranch_scc0 M_GO")
        a("s_endpgm")
        a.label("M_GO")
        a("s_load_dwordx4 s[36:39], s[0:1], 0")
        a("s_load_dwordx4 s[40:43], s[0:1], 16")
        a("s_load_dwordx2 s[44:45], s[0:1], 32")
        a("s_load_dwordx4 s[48:51], s[0:1], 48")
        a("s_load_dwordx4 s[52:55], s[0:1], 64")
        a("s_load_dwordx4 s[56:59], s[0:1], 80")
        a("s_memrealtime s[%d:%d]" % (S_T + 8, S_T + 9))
        a("v_lshrrev_b32 v%d, 6, v0" % T0)
        a("v_and_b32 v%d, 63, v0" % V_LANE)
        a("v_readfirstlane_b32 s%d, v%d" % (S_W, T0))
        a("v_lshlrev_b32 v%d, 4, v%d" % (V_L16, V_LANE))
        if "pf" in self.dbg:
            a("s_getpc_b64 s[%d:%d]" % (S_T + 4, S_T + 5))
            a("v_lshlrev_b32 v%d, 7, v0" % T1)
            a("v_cmp_gt_u32 vcc, 0x%x, v%d" % (self.code_bytes, T1))
            a("s_and_saveexec_b64 s[%d:%d], vcc" % (S_T + 6, S_T + 7))
            a("s_cbranch_execz M_NPF")
            a("global_load_dword v19, v%d, s[%d:%d]" % (T1, S_T + 4, S_T + 5))
            a.label("M_NPF")
            a("s_mov_b64 exec, -1")
        a("v_mov_b32 v%d, 0" % V_NONCE)
        a("s_and_b32 s%d, s2, 255" % S_ID)
        a("s_and_b32 s%d, s2, 7" % S_XCD)
        a("s_lshr_b32 s%d, s%d, 3" % (S_IDX, S_ID))
        a("s_lshl_b32 s%d, s%d, 2" % (S_RB32, S_XCD))
        a("s_and_b32 s%d, s%d, 3" % (S_T + 2, S_IDX))
        a("s_add_u32 s%d, s%d, s%d" % (S_RB32, S_RB32, S_T + 2))
        a("s_lshr_b32 s%d, s%d, 5" % (S_HI, S_ID))
        a("s_mov_b32 s%d, 0x%x" % (S_VM, VMASK))
        a("s_mov_b32 s%d, 0x%x" % (S_VM + 1, VMASK))
        a("v_lshrrev_b32 v%d, 4, v%d" % (T0, V_LANE))
        a("s_and_b32 s%d, s%d, 1" % (S_T, S_W))
        a("s_lshl_b32 s%d, s%d, 2" % (S_T, S_T))
        a("v_add_u32 v%d, s%d, v%d" % (T0, S_T, T0))
        a("v_and_b32 v%d, 7, v%d" % (T1, V_LANE))
        a("v_xor_b32 v%d, v%d, v%d" % (T0, T0, T1))
        a("v_lshrrev_b32 v%d, 3, v%d" % (T1, V_LANE))
        a("v_mul_u32_u24 v%d, 1280, v%d" % (T1, T1))
        a("v_lshl_add_u32 v8, v%d, 4, v%d" % (T0, T1))
        a("s_cmp_lt_u32 s2, 256" if "ffirst" in self.dbg else "s_cmp_ge_u32 s2, 256")
        a("s_waitcnt lgkmcnt(0)")
        srd(a, SWS, P_WS, P_WS + 1, WS_USED)
        srd(a, SX, P_X, P_X + 1, 2621440)
        srd(a, SDBG, P_DBG, P_DBG + 1, 256)
        a("s_cbranch_scc1 ROLE_F")

    def role_a(self):
        a = self.a; dbg = self.dbg
        S_TI, S_HEAD, S_OX, S_OW, S_BUF, S_STG, S_DL, S_RB_ = [S_R + i for i in range(8)]
        V_VX = 8; V_VW = 9
        V_XA, V_WA = 11, 12
        XF = 16
        ACC = 80
        BUF = 18432
        a("s_setprio 3")
        a("s_mov_b32 s%d, 0" % (S_R + 14))
        a("s_cmp_lt_u32 s%d, 4" % S_HI)
        a("s_cbranch_scc0 A1_SETUP")
        self.kv_issue()
        a.label("A1_SETUP")
        srd(a, SA, P_WQ, P_WQ + 1, 819200)
        if "tq" in dbg:
            a("s_cmp_ge_u32 s%d, 4" % S_W)
            a("s_cbranch_scc1 A1_NT")
            a("s_mul_i32 s%d, s%d, 25600" % (S_T, S_IDX))
            a("v_min_u32 v%d, 199, v0" % T0)
            a("v_lshlrev_b32 v%d, 7, v%d" % (T0, T0))
            a("buffer_load_dword v19, v%d, %s, s%d offen" % (T0, sr(SA), S_T))
            a.label("A1_NT")
        for m in range(2):
            a("v_add_u32 v%d, %d, v0" % (T0, 512 * m))
            a("v_mul_u32_u24 v%d, 6554, v%d" % (T1, T0))
            a("v_lshrrev_b32 v%d, 16, v%d" % (T1, T1))
            a("v_mul_u32_u24 v%d, 1120, v%d" % (T1, T1))
            a("v_lshl_add_u32 v%d, v%d, 4, v%d" % (V_VW + m, T0, T1))
        a("s_lshl_b32 s%d, s%d, 3" % (S_T, S_RB32))
        a("s_add_u32 s%d, s%d, s%d" % (S_T, S_T, S_W))
        a("s_mul_i32 s%d, s%d, 10240" % (S_OX, S_T))
        a("s_mul_i32 s%d, s%d, 160" % (S_OW, S_HI))
        a("s_lshl_b32 s%d, s%d, 10" % (S_BUF, S_W))
        a("s_add_u32 s%d, s%d, %d" % (S_BUF, S_BUF, 2 * BUF))
        def dma(tag):
            a("s_mov_b32 m0, s%d" % S_BUF)
            a("s_nop 0")
            a("buffer_load_dwordx4 v%d, %s, s%d offen lds" % (V_VX, sr(SX), S_OX))
            a("s_add_u32 m0, s%d, 8192" % S_BUF)
            a("s_add_u32 s%d, s%d, 128" % (S_OX, S_OX))
            a("buffer_load_dwordx4 v%d, %s, s%d offen lds" % (V_VW, sr(SA), S_OW))
            a("s_cmp_ge_u32 s%d, 2" % S_W)
            a("s_cbranch_scc1 A1_D%s" % tag)
            a("s_add_u32 m0, s%d, 16384" % S_BUF)
            a("s_nop 0")
            a("buffer_load_dwordx4 v%d, %s, s%d offen lds" % (V_VW + 1, sr(SA), S_OW))
            a.label("A1_D%s" % tag)
            a("s_add_u32 s%d, s%d, 81920" % (S_OW, S_OW))
            a("s_add_u32 s%d, s%d, %d" % (S_BUF, S_BUF, BUF))
            a("s_cmp_ge_u32 s%d, %d" % (S_BUF, 4 * BUF))
            a("s_cbranch_scc0 A1_E%s" % tag)
            a("s_sub_u32 s%d, s%d, %d" % (S_BUF, S_BUF, 4 * BUF))
            a.label("A1_E%s" % tag)
        a("s_or_b32 s%d, s%d, s%d" % (S_T + 2, S_ID, S_W))
        a("s_cmp_lg_u32 s%d, 0" % (S_T + 2))
        a("s_cbranch_scc1 M_NT")
        a("s_or_b32 s%d, s%d, 1" % (S_T + 8, S_T + 8))
        a("v_mov_b32 v%d, s%d" % (T0, S_T + 8))
        a("v_mov_b32 v%d, 0" % T1)
        a("s_mov_b64 exec, 1")
        a("buffer_store_dword v%d, v%d, %s, 0 offen %s" % (T0, T1, sr(SDBG), SC))
        a("s_mov_b64 exec, -1")
        a.label("M_NT")
        self.a1_dma = dma
        a("s_cmp_lt_u32 s%d, 4" % S_HI)
        a("s_cbranch_scc1 A1_ND0")
        if "noA" in dbg: self.finish()
        for t in "abce": dma(t)
        a.label("A1_ND0")
        a("s_and_b32 s%d, s%d, 1" % (S_TI, S_W))
        a("s_lshr_b32 s%d, s%d, 1" % (S_T + 2, S_W))
        a("s_lshl_b32 s%d, s%d, 2" % (S_HEAD, S_HI))
        a("s_add_u32 s%d, s%d, s%d" % (S_HEAD, S_HEAD, S_T + 2))
        a("v_and_b32 v%d, 31, v%d" % (T0, V_LANE))
        a("v_lshrrev_b32 v%d, 5, v%d" % (T1, V_LANE))
        a("v_bfe_u32 v%d, v%d, 1, 3" % (T2, V_LANE))
        a("v_xor_b32 v%d, v%d, v%d" % (T2, T2, T1))
        a("v_lshlrev_b32 v%d, 4, v%d" % (T2, T2))
        a("v_lshl_add_u32 v%d, v%d, 7, v%d" % (T2, T0, T2))
        a("s_lshl_b32 s%d, s%d, 12" % (S_T, S_TI))
        a("s_add_u32 s%d, s%d, %d" % (S_T, S_T, 2 * BUF))
        a("v_add_u32 v%d, s%d, v%d" % (V_XA, S_T, T2))
        a("v_bfe_u32 v%d, v%d, 2, 2" % (T2, V_LANE))
        a("v_lshl_add_u32 v%d, v%d, 3, v%d" % (T2, T1, T2))
        a("v_mul_u32_u24 v%d, 160, v%d" % (T2, T2))
        a("v_and_b32 v%d, 1, v%d" % (T3, V_LANE))
        a("v_lshl_add_u32 v%d, v%d, 4, v%d" % (T2, T3, T2))
        a("v_bfe_u32 v%d, v%d, 1, 1" % (T3, V_LANE))
        a("v_lshl_add_u32 v%d, v%d, 3, v%d" % (T2, T3, T2))
        a("v_bfe_u32 v%d, v%d, 4, 1" % (T3, V_LANE))
        a("v_lshl_add_u32 v%d, v%d, 5, v%d" % (T2, T3, T2))
        a("s_mul_i32 s%d, s%d, 40" % (S_T, S_T + 2))
        a("s_add_u32 s%d, s%d, %d" % (S_T, S_T, 8192 + 2 * BUF))
        a("v_add_u32 v%d, s%d, v%d" % (V_WA, S_T, T2))
        V_KA, V_K1A, V_V0A, V_V1A, V_IDX = 120, 121, 122, 123, 124
        AD = 125
        O = 96
        V0, V1 = 112, 116
        Q0, Q1 = 8, 12
        K0, K1 = 16, 20
        SAa, SBb = 24, 40
        S_SRC, S_DST, S_C, S_DK, S_CUR, S_OO, S_FO = S_R + 2, S_R + 3, S_R + 4, S_R + 5, S_R + 6, S_R + 8, S_R + 9
        a("v_mov_b32 v%d, v%d" % (V_KA, V_L16))
        a("v_lshlrev_b32 v%d, 3, v%d" % (V_K1A, T0))
        a("v_mul_u32_u24 v%d, 320, v%d" % (V_V0A, T1))
        a("v_lshl_add_u32 v%d, v%d, 4, v%d" % (V_V0A, T0, V_V0A))
        a("v_mov_b32 v%d, v%d" % (V_V1A, V_V0A))
        a("v_mov_b32 v%d, 0xdddddddd" % V_IDX)
        a("s_mul_i32 s%d, s%d, 20" % (S_T, S_HEAD))
        a("v_lshl_add_u32 v%d, v%d, 2, s%d" % (T1, T1, S_T))
        a("v_and_b32 v%d, 15, v%d" % (T0, V_LANE))
        a("v_lshlrev_b32 v%d, 4, v%d" % (T0, T0))
        a("v_bfe_u32 v%d, v%d, 4, 1" % (T2, V_LANE))
        a("v_lshl_add_u32 v%d, v%d, 10, v%d" % (T0, T2, T0))
        for j in range(3):
            a("v_add_u32 v%d, %d, v%d" % (T2, 8 * j, T1))
            a("v_lshrrev_b32 v%d, 5, v%d" % (T3, T2))
            a("v_lshl_add_u32 v%d, v%d, 12, v%d" % (AD + j, T3, T0))
            a("v_bfe_u32 v%d, v%d, 3, 2" % (T3, T2))
            a("v_lshl_add_u32 v%d, v%d, 8, v%d" % (AD + j, T3, AD + j))
            a("v_and_b32 v%d, 7, v%d" % (T3, T2))
            a("v_lshl_add_u32 v%d, v%d, 1, v%d" % (AD + j, T3, AD + j))
        a("s_mul_i32 s%d, s%d, 74" % (S_OO, S_RB32))
        a("s_add_u32 s%d, s%d, 54" % (S_OO, S_OO))
        a("s_lshl_b32 s%d, s%d, 12" % (S_OO, S_OO))
        a("s_lshl_b32 s%d, s%d, 11" % (S_T + 1, S_TI))
        a("s_add_u32 s%d, s%d, s%d" % (S_OO, S_OO, S_T + 1))
        a("s_add_u32 s%d, s%d, 0x%x" % (S_OO, S_OO, WS_HO))
        a("s_lshl_b32 s%d, s%d, 10" % (S_FO, S_RB32))
        a("s_lshl_b32 s%d, s%d, 7" % (S_T + 1, S_HI))
        a("s_add_u32 s%d, s%d, s%d" % (S_FO, S_FO, S_T + 1))
        a("s_lshl_b32 s%d, s%d, 2" % (S_T + 1, S_W))
        a("s_add_u32 s%d, s%d, s%d" % (S_FO, S_FO, S_T + 1))
        a("s_add_u32 s%d, s%d, 0x%x" % (S_FO, S_FO, F2_O))
        a("s_mov_b32 s%d, 0" % S_STG)
        a("s_mov_b32 s%d, %d" % (S_RB_, 2 * BUF))
        a("s_cmp_lt_u32 s%d, 4" % S_HI)
        a("s_cbranch_scc0 A1_GO")
        self.kv_body()
        if "noA" in dbg: self.finish()
        dma("c2"); dma("e2")
        a.label("A1_GO")
        a("s_setprio 2")
        for r in range(16): a("v_mov_b32 v%d, 0" % (ACC + r))
        for r in range(8): a("v_mov_b32 v%d, 0" % (V0 + r))
        a("s_mov_b32 exec_lo, 0x11000000")
        a("s_mov_b32 exec_hi, 0x11000000")
        for r in range(8): a("v_mov_b32 v%d, 0x3f803f80" % (V0 + r))
        a("s_mov_b64 exec, -1")
        def rd_ops(p):
            xf = XF + 32 * p; wf = xf + 16
            ops = []
            for kk in range(4):
                g = []
                if kk: g.append("v_xor_b32 v%d, %d, v%d" % (T0 + kk, kk << 5, V_XA))
                g.append("ds_read_b64_tr_b16 %s, v%d offset:%d" % (vr(wf + 4 * kk, 2), V_WA, kk * 2560))
                g.append("ds_read_b64_tr_b16 %s, v%d offset:%d" % (vr(wf + 4 * kk + 2, 2), V_WA, kk * 2560 + 640))
                g.append("ds_read_b128 %s, v%d" % (vr(xf + 4 * kk, 4), T0 + kk if kk else V_XA))
                ops.append(g)
            return ops
        def adv():
            a("s_add_u32 s%d, s%d, %d" % (S_RB_, S_RB_, BUF))
            a("s_cmp_eq_u32 s%d, %d" % (S_RB_, 4 * BUF))
            sel(a, S_DL, (-3 * BUF) & 0xffffffff, BUF)
            a("s_cselect_b32 s%d, 0, s%d" % (S_RB_, S_RB_))
            a("v_add_u32 v%d, s%d, v%d" % (V_XA, S_DL, V_XA))
            a("v_add_u32 v%d, s%d, v%d" % (V_WA, S_DL, V_WA))
        def mfq(p, kk):
            xf = XF + 32 * p; wf = xf + 16
            a("v_mfma_f32_32x32x16_bf16 %s, %s, %s, %s" % (vr(ACC, 16), vr(wf + 4 * kk, 4), vr(xf + 4 * kk, 4), vr(ACC, 16)))
        a("s_waitcnt vmcnt(6)")
        a("s_barrier")
        for g in rd_ops(0):
            for op in g: a(op)
        adv()
        a("s_cmp_eq_u32 s%d, 0" % (S_R + 14))
        a("s_cbranch_scc1 A1_NF")
        self.wave_flag("s%d" % (S_R + 14), T0, first_wait=4)
        self.stamp(6)
        a.label("A1_NF")
        def stage(p, wait, pre=None, mid=None, post=None, last=False):
            a("s_waitcnt lgkmcnt(0)" + ("" if wait is None else " vmcnt(%d)" % wait))
            if pre: pre()
            mfq(p, 0)
            a("s_barrier")
            ops = rd_ops(1 - p)
            for op in ops[0] + ops[1]: a(op)
            mfq(p, 1)
            for op in ops[2] + ops[3]: a(op)
            mfq(p, 2)
            if mid: mid()
            mfq(p, 3)
            if post: post()
            if not last: adv()
        a.label("A1_LOOP")
        stage(0, 4, mid=lambda: dma("d0"))
        stage(1, 4, mid=lambda: dma("d1"))
        a("s_add_u32 s%d, s%d, 1" % (S_STG, S_STG))
        a("s_cmp_lt_u32 s%d, 3" % S_STG)
        a("s_cbranch_scc1 A1_LOOP")
        FG = O
        S_OK = S_R + 13
        SCR = 4 * BUF
        floads = [(FG, 4, 13, "s%d" % (S_T + 1)), (FG + 4, 4, 13, "s%d" % (S_T + 2)), (FG + 8, 1, 14, "s%d" % (S_T + 3))]
        def flag_setup():
            a("v_lshlrev_b32 v13, 7, v%d" % V_LANE)
            a("v_min_u32 v14, %d, v13" % (19 * 128))
            a("s_mov_b32 s%d, 0x%x" % (S_T + 1, F2_K))
            a("s_mov_b32 s%d, 0x%x" % (S_T + 2, F2_K + 8192))
            a("s_mov_b32 s%d, 0x%x" % (S_T + 3, F2_Q))
        def try_issue():
            self.load_nonce(15)
            a("s_cmp_lg_u32 s%d, 0" % S_W)
            a("s_cbranch_scc1 A1_TI")
            flag_setup()
            for d, n, ad, so in floads:
                a("buffer_load_%s %s, v%d, %s, %s offen %s" % ("dword" if n == 1 else "dwordx4", "v%d" % d if n == 1 else vr(d, n), ad, sr(SWS), so, SC))
            a.label("A1_TI")
        def try_eval():
            a("s_cmp_lg_u32 s%d, 0" % S_W)
            a("s_cbranch_scc1 A1_TE")
            a("v_cmp_eq_u32 vcc, 0, v%d" % V_NONCE)
            for r in range(9):
                a("v_cmp_ne_u32 s[%d:%d], v%d, v%d" % (S_T + 4, S_T + 5, V_NONCE, FG + r))
                a("s_or_b64 vcc, vcc, s[%d:%d]" % (S_T + 4, S_T + 5))
            a("s_cselect_b32 s%d, 0, 1" % S_OK)
            a("v_mov_b32 v14, s%d" % S_OK)
            a("v_mov_b32 v13, %d" % SCR)
            a("ds_write_b32 v13, v14")
            a("s_waitcnt lgkmcnt(0)")
            a.label("A1_TE")
        def ok_read():
            a("v_mov_b32 v13, %d" % SCR)
            a("ds_read_b32 v14, v13")
        def ok_get():
            a("v_readfirstlane_b32 s%d, v14" % S_OK)
        CSV, CS2, ST, KN = 24, 36, 20, 16
        def dma_chunk(tag):
            for m in range(3):
                if m == 2:
                    a("s_cmp_ge_u32 s%d, 4" % S_W)
                    a("s_cbranch_scc1 A2_DS%s" % tag)
                a("s_add_u32 m0, s%d, %d" % (S_DST, m * 8192))
                a("s_add_u32 s%d, s%d, %d" % (S_T, S_SRC, m * 8192))
                a("buffer_load_dwordx4 v%d, %s, s%d offen %s lds" % (V_L16, sr(SWS), S_T, SC))
            a.label("A2_DS%s" % tag)
            a("s_add_u32 s%d, s%d, %d" % (S_SRC, S_SRC, CHUNK))
            a("s_add_u32 s%d, s%d, %d" % (S_DST, S_DST, CHUNK))
            a("s_cmp_ge_u32 s%d, %d" % (S_DST, 3 * CHUNK))
            a("s_cbranch_scc0 A2_DW%s" % tag)
            a("s_sub_u32 s%d, s%d, %d" % (S_DST, S_DST, 3 * CHUNK))
            a.label("A2_DW%s" % tag)
        def dep_loads(tag):
            a("v_lshrrev_b32 v13, 5, v%d" % V_LANE)
            a("v_lshlrev_b32 v13, 5, v13")
            a("v_mov_b32 v15, 0")
            a("s_mul_i32 s%d, s%d, 80" % (S_T, S_HEAD))
            a("s_add_u32 s%d, s%d, 0x%x" % (S_T, S_T, WS_CQ))
            for hf, rg in enumerate((CSV, CS2)):
                a("buffer_load_dwordx4 %s, v13, %s, s%d offen offset:%d %s" % (vr(rg, 4), sr(SWS), S_T, hf * 2560, SC))
                a("buffer_load_dwordx4 %s, v13, %s, s%d offen offset:%d %s" % (vr(rg + 4, 4), sr(SWS), S_T, hf * 2560 + 16, SC))
                a("buffer_load_dwordx4 %s, v15, %s, s%d offen offset:%d %s" % (vr(rg + 8, 4), sr(SWS), S_T, hf * 2560 + 64, SC))
            a("s_lshl_b32 s%d, s%d, 1" % (S_T, S_RB32))
            a("s_add_u32 s%d, s%d, s%d" % (S_T, S_T, S_TI))
            a("s_lshl_b32 s%d, s%d, 8" % (S_T, S_T))
            a("s_add_u32 s%d, s%d, 0x%x" % (S_T, S_T, WS_ST))
            a("buffer_load_dwordx2 %s, v%d, %s, s%d offen %s" % (vr(ST, 2), V_K1A, sr(SWS), S_T, SC))
            a("s_mov_b32 s%d, 0x%x" % (S_T, WS_KN))
            a("buffer_load_dwordx4 %s, v%d, %s, s%d offen %s" % (vr(KN, 4), V_L16, sr(SWS), S_T, SC))
            a("s_lshl_b32 s%d, s%d, 10" % (S_DST, S_W))
            a("s_add_u32 s%d, s%d, 0x%x" % (S_SRC, S_DST, WS_KV))
            dma_chunk(tag)
        def early_loads():
            a("s_cmp_eq_u32 s%d, 0" % S_OK)
            a("s_cbranch_scc1 A1_NE")
            dep_loads("a")
            a.label("A1_NE")
        stage(0, 4, mid=try_issue)
        stage(1, 0, pre=try_eval, mid=ok_read)
        stage(0, None, pre=ok_get, post=early_loads, last=True)
        a("s_waitcnt lgkmcnt(0)")
        for kk in range(4): mfq(1, kk)
        self.stamp(1)
        a("s_cmp_lg_u32 s%d, 0" % S_OK)
        a("s_cbranch_scc1 A1_OK")
        flag_setup()
        self.poll(floads, 15, sleep=4)
        dep_loads("a2")
        a.label("A1_OK")
        self.stamp(2)
        for r in range(16): a("v_mov_b32 v%d, 0" % (O + r))
        for r in range(8, 16): a("v_mov_b32 v%d, 0" % (SBb + r))
        a("v_mov_b32 v%d, 0x3f803f80" % (K1 + 2))
        a("v_mov_b32 v%d, 0x00003f80" % (K1 + 3))
        a("s_waitcnt vmcnt(2)")
        a("v_mul_f32 v%d, 0x%x, v%d" % (ST + 1, f32bits(LOG2E * 20 ** -0.5), ST + 1))
        for r in range(12): a("v_add_f32 v%d, v%d, v%d" % (CSV + r, CSV + r, CS2 + r))
        for r in range(12): a("v_fmac_f32 v%d, v%d, v%d" % (ACC + r, ST, CSV + r))
        for r in range(12): a("v_mul_f32 v%d, v%d, v%d" % (ACC + r, ST + 1, ACC + r))
        a("s_mov_b32 exec_lo, 0")
        for r in range(8, 12): a("v_mov_b32 v%d, 0" % (ACC + r))
        a("s_mov_b64 exec, -1")
        for r in range(6): a("v_cvt_pk_bf16_f32 v%d, v%d, v%d" % (Q0 + r, ACC + 2 * r, ACC + 2 * r + 1))
        a("v_mov_b32 v%d, 0" % (Q1 + 2))
        a("v_mov_b32 v%d, 0" % (Q1 + 3))
        a("v_mul_f32 v%d, v%d, v%d" % (T2, ACC, ACC))
        for r in range(1, 12): a("v_fmac_f32 v%d, v%d, v%d" % (T2, ACC + r, ACC + r))
        self.halfsum([T2], ACC)
        a("v_add_f32 v%d, v%d, v%d" % (KN, KN, KN + 1))
        a("v_add_f32 v%d, v%d, v%d" % (KN, KN, KN + 2))
        for dpp in DPPS:
            a("s_nop 1")
            a("v_max_f32_dpp v%d, v%d, v%d %s row_mask:0xf bank_mask:0xf" % (KN, KN, KN, dpp))
        a("s_nop 0")
        for q in range(4): a("v_readlane_b32 s%d, v%d, %d" % (S_T + q, KN, 16 * q))
        a("s_nop 3")
        a("s_max_u32 s%d, s%d, s%d" % (S_T, S_T, S_T + 1))
        a("s_max_u32 s%d, s%d, s%d" % (S_T + 2, S_T + 2, S_T + 3))
        a("s_max_u32 s%d, s%d, s%d" % (S_T, S_T, S_T + 2))
        a("v_mul_f32 v%d, s%d, v%d" % (T2, S_T, T2))
        a("v_sqrt_f32 v%d, v%d" % (T2, T2))
        a("v_mov_b32 v%d, 0x%x" % (T3, f32bits(72.0)))
        a("v_mul_f32 v%d, 0x%x, v%d" % (T2, f32bits(1.02), T2))
        a("v_cmp_nle_f32 vcc, v%d, v%d" % (T2, T3))
        a("v_add_f32 v%d, 0x%x, v%d" % (T2, f32bits(-48.0), T2))
        a("s_nop 0")
        if "forcefb" in dbg: a("s_branch A2_FB")
        a("s_cbranch_vccnz A2_FB")
        a.label("A2_SETM")
        a("v_sub_f32 v%d, 0, v%d" % (T2, T2))
        a("v_and_b32 v%d, 0xffff0000, v%d" % (T3, T2))
        a("v_sub_f32 v%d, v%d, v%d" % (T2, T2, T3))
        a("v_and_b32 v%d, 0xffff0000, v%d" % (T0, T2))
        a("v_sub_f32 v%d, v%d, v%d" % (T2, T2, T0))
        a("v_lshrrev_b32 v%d, 16, v%d" % (T3, T3))
        a("s_mov_b32 exec_hi, 0")
        a("v_or_b32 v%d, v%d, v%d" % (Q1 + 2, T3, T0))
        a("v_lshrrev_b32 v%d, 16, v%d" % (Q1 + 3, T2))
        a("s_mov_b64 exec, -1")
        a("s_waitcnt vmcnt(0)")
        a("s_barrier")
        dma_chunk("b")
        a("s_setprio %d" % self.prio_a)
        self.stamp(3)
        def rdK0(off): a("ds_read_b128 %s, v%d offset:%d" % (vr(K0, 4), V_KA, off))
        def rdK1(off): a("ds_read_b64 %s, v%d offset:%d" % (vr(K1, 2), V_K1A, off + 1024))
        def rdV(reg, addr, off):
            a("s_mov_b64 exec, s[%d:%d]" % (S_VM, S_VM + 1))
            a("ds_read_b128 %s, v%d offset:%d" % (vr(reg, 4), addr, off))
            a("s_mov_b64 exec, -1")
        def qk0(S): a("v_mfma_f32_32x32x16_bf16 %s, %s, %s, 0" % (vr(S, 16), vr(K0, 4), vr(Q0, 4)))
        def qk1(S): a("v_mfma_f32_32x32x16_bf16 %s, %s, %s, %s" % (vr(S, 16), vr(K1, 4), vr(Q1, 4), vr(S, 16)))
        def pv(Vf, P): a("v_smfmac_f32_32x32x32_bf16 %s, %s, %s, v%d" % (vr(O, 16), vr(Vf, 4), vr(P, 8), V_IDX))
        def ex(S, lo, hi):
            for r in range(lo, hi): a("v_exp_f32 v%d, v%d" % (S + r, S + r))
        rdK0(0); rdK1(0)
        a("s_waitcnt lgkmcnt(0)")
        qk0(SAa); qk1(SAa)
        rdK0(TILE); rdK1(TILE); rdV(V0, V_V0A, 1280)
        a("s_mov_b32 s%d, 0" % S_C)
        a("s_mov_b32 s%d, 0" % S_CUR)
        a("s_nop 7")
        a.label("A2_LOOP")
        a("s_add_u32 s%d, s%d, %d" % (S_CUR, S_CUR, CHUNK))
        a("s_cmp_eq_u32 s%d, %d" % (S_CUR, 3 * CHUNK))
        sel(a, S_DK, (-2 * CHUNK) & 0xffffffff, CHUNK)
        a("s_cselect_b32 s%d, 0, s%d" % (S_CUR, S_CUR))
        for j in range(8):
            Sc, Sn = (SAa, SBb) if j % 2 == 0 else (SBb, SAa)
            if j == 6:
                a("s_waitcnt vmcnt(0)")
                a("s_barrier")
                a("s_cmp_ge_u32 s%d, 6" % S_C)
                a("s_cbranch_scc1 A2_NODMA")
                a("s_setprio 3")
                dma_chunk("c")
                a("s_setprio %d" % self.prio_a)
                a.label("A2_NODMA")
                a("v_add_u32 v%d, s%d, v%d" % (V_KA, S_DK, V_KA))
                a("v_add_u32 v%d, s%d, v%d" % (V_K1A, S_DK, V_K1A))
            if j == 7:
                a("v_add_u32 v%d, s%d, v%d" % (V_V0A, S_DK, V_V0A))
            a("s_waitcnt lgkmcnt(3)")
            pv(V1, Sn + 8)
            rdV(V1, V_V1A, j * TILE + 1920)
            ex(Sc, 0, 4)
            a("s_waitcnt lgkmcnt(3)")
            qk0(Sn)
            rdK0(((j + 2) % 8) * TILE)
            ex(Sc, 4, 8)
            a("s_waitcnt lgkmcnt(3)")
            qk1(Sn)
            rdK1(((j + 2) % 8) * TILE)
            ex(Sc, 8, 12)
            a("s_waitcnt lgkmcnt(3)")
            pv(V0, Sc)
            rdV(V0, V_V0A, ((j + 1) % 8) * TILE + 1280)
            ex(Sc, 12, 16)
            if j == 7: a("v_add_u32 v%d, s%d, v%d" % (V_V1A, S_DK, V_V1A))
            else: a("s_nop 0")
        a("s_add_u32 s%d, s%d, 1" % (S_C, S_C))
        if "atst" in dbg:
            for c_, sl in ((1, 1), (2, 2), (4, 5), (6, 6)):
                a("s_cmp_lg_u32 s%d, %d" % (S_C, c_))
                a("s_cbranch_scc1 A2_S%d" % c_)
                self.stamp(sl)
                a.label("A2_S%d" % c_)
        a("s_cmp_lt_u32 s%d, 8" % S_C)
        a("s_cbranch_scc1 A2_LOOP")
        a("s_setprio 3")
        a("s_waitcnt lgkmcnt(0)")
        pv(V1, SBb + 8)
        self.stamp(4)
        a("s_nop 11")
        a("v_rcp_f32 v%d, v%d" % (T3, O + 12))
        a("s_nop 0")
        for r in range(12): a("v_mul_f32 v%d, v%d, v%d" % (O + r, T3, O + r))
        PK = SAa
        for r in range(6): a("v_cvt_pk_bf16_f32 v%d, v%d, v%d" % (PK + r, O + 2 * r, O + 2 * r + 1))
        a("buffer_store_dwordx2 %s, v%d, %s, s%d offen %s" % (vr(PK, 2), AD, sr(SWS), S_OO, SC))
        a("buffer_store_dwordx2 %s, v%d, %s, s%d offen %s" % (vr(PK + 2, 2), AD + 1, sr(SWS), S_OO, SC))
        a("s_mov_b32 exec_hi, 0")
        a("buffer_store_dwordx2 %s, v%d, %s, s%d offen %s" % (vr(PK + 4, 2), AD + 2, sr(SWS), S_OO, SC))
        a("s_mov_b64 exec, -1")
        self.wave_flag("s%d" % S_FO, T0)
        self.finish()
        a.label("A2_FB")
        a("v_mov_b32 v%d, 0xff800000" % T2)
        a("s_mov_b32 s%d, 0x%x" % (S_T, WS_KV))
        a.label("A2_FBL")
        a("buffer_load_dwordx4 %s, v%d, %s, s%d offen %s" % (vr(K0, 4), V_KA, sr(SWS), S_T, SC))
        a("buffer_load_dwordx2 %s, v%d, %s, s%d offen offset:1024 %s" % (vr(K1, 2), V_K1A, sr(SWS), S_T, SC))
        a("s_waitcnt vmcnt(0)")
        qk0(SAa); qk1(SAa)
        a("s_nop 15")
        for r in range(0, 16, 2): a("v_max3_f32 v%d, v%d, v%d, v%d" % (T2, T2, SAa + r, SAa + r + 1))
        a("s_add_u32 s%d, s%d, %d" % (S_T, S_T, TILE))
        a("s_cmp_lt_u32 s%d, 0x%x" % (S_T, WS_KV + 64 * TILE))
        a("s_cbranch_scc1 A2_FBL")
        a("v_mov_b32 v%d, v%d" % (T3, T2))
        a("s_nop 1")
        a("v_permlane32_swap_b32 v%d, v%d" % (T3, T2))
        a("s_nop 1")
        a("v_max_f32 v%d, v%d, v%d" % (T2, T2, T3))
        a("s_branch A2_SETM")

    def role_f1(self):
        a = self.a; dbg = self.dbg
        V_VX, V_VG, V_VU = 8, 9, 10
        V_XA = 12
        V_WA = 14
        V_SX = 16
        F = [24, 40]
        ACC = 56
        S_RB, S_CB, S_TH, S_CG, S_OX, S_OW, S_BX, S_BW, S_STG, S_ACT = [S_R + i for i in range(10)]
        WREG = 32768
        a.label("ROLE_F")
        a("s_cmp_ge_u32 s%d, 28" % S_IDX)
        a("s_cbranch_scc1 ROLE_SP")
        if "noF" in dbg: self.finish()
        a("s_and_b32 s%d, s%d, 3" % (S_T, S_XCD))
        a("s_mul_i32 s%d, s%d, 28" % (S_T, S_T))
        a("s_add_u32 s%d, s%d, s%d" % (S_T, S_T, S_IDX))
        a("s_lshr_b32 s%d, s%d, 3" % (S_CB, S_T))
        a("s_and_b32 s%d, s%d, 7" % (S_T, S_T))
        a("s_and_b32 s%d, s%d, 4" % (S_RB, S_XCD))
        a("s_lshl_b32 s%d, s%d, 1" % (S_RB, S_RB))
        a("s_add_u32 s%d, s%d, s%d" % (S_RB, S_RB, S_T))
        a("s_and_b32 s%d, s%d, 1" % (S_TH, S_W))
        a("s_lshr_b32 s%d, s%d, 1" % (S_CG, S_W))
        a("s_lshl_b32 s%d, s%d, 2" % (S_T, S_CB))
        a("s_add_u32 s%d, s%d, s%d" % (S_T, S_T, S_CG))
        a("s_cmp_lt_u32 s%d, 54" % S_T)
        a("s_cselect_b32 s%d, 1, 0" % S_ACT)
        srd(a, SA, P_WG, P_WG + 1, 2211840)
        srd(a, SB, P_WU, P_WU + 1, 2211840)
        a("s_lshl_b32 s%d, s%d, 4" % (S_T, S_RB))
        a("s_add_u32 s%d, s%d, s%d" % (S_T, S_T, S_W))
        a("s_mul_i32 s%d, s%d, 10240" % (S_OX, S_T))
        a("v_lshrrev_b32 v%d, 4, v%d" % (T0, V_LANE))
        a("v_bfe_u32 v%d, v%d, 2, 2" % (T1, V_LANE))
        a("v_mul_u32_u24 v%d, 3456, v%d" % (T2, T1))
        a("v_lshl_add_u32 v%d, v%d, 6, v%d" % (T2, T0, T2))
        a("v_and_b32 v%d, 3, v%d" % (T3, V_LANE))
        a("v_lshl_add_u32 v%d, v%d, 4, v%d" % (V_VG, T3, T2))
        a("v_xor_b32 v%d, 32, v%d" % (V_VU, V_VG))
        a("s_cmp_eq_u32 s%d, 13" % S_CB)
        a("s_cbranch_scc0 F1_FULL")
        a("s_mov_b32 exec_lo, 0")
        a("v_mov_b32 v%d, 0x40000000" % V_VG)
        a("v_mov_b32 v%d, 0x40000000" % V_VU)
        a("s_mov_b64 exec, -1")
        a.label("F1_FULL")
        a("s_mul_i32 s%d, s%d, %d" % (S_OW, S_W, 4 * 3456))
        a("s_lshl_b32 s%d, s%d, 8" % (S_T, S_CB))
        a("s_add_u32 s%d, s%d, s%d" % (S_OW, S_OW, S_T))
        a("s_lshl_b32 s%d, s%d, 10" % (S_BW, S_W))
        a("s_mov_b32 s%d, s%d" % (S_BX, S_BW))
        def dmaX():
            return [
              ["s_mov_b32 m0, s%d" % S_BX, "s_add_u32 s%d, s%d, 81920" % (S_T, S_OX),
               "buffer_load_dwordx4 v%d, %s, s%d offen lds" % (V_VX, sr(SX), S_OX)],
              ["s_add_u32 m0, s%d, 8192" % S_BX, "s_add_u32 s%d, s%d, 128" % (S_OX, S_OX),
               "buffer_load_dwordx4 v%d, %s, s%d offen lds" % (V_VX, sr(SX), S_T), "s_xor_b32 s%d, s%d, 16384" % (S_BX, S_BX)],
            ]
        def dmaW(b):
            return [
              ["s_add_u32 m0, s%d, %d" % (S_BW, WREG + b * 16384), "s_nop 0",
               "buffer_load_dwordx4 v%d, %s, s%d offen lds" % (V_VG, sr(SA), S_OW)],
              ["s_add_u32 m0, s%d, %d" % (S_BW, WREG + b * 16384 + 8192), "s_nop 0",
               "buffer_load_dwordx4 v%d, %s, s%d offen lds" % (V_VU, sr(SB), S_OW), "s_add_u32 s%d, s%d, %d" % (S_OW, S_OW, 32 * 3456)],
            ]
        def emit(groups):
            for g in groups:
                for op in g: a(op)
        self.f1_first = lambda: emit(dmaX() + dmaW(0))
        def rd_setup():
            a("v_bfe_u32 v%d, v%d, 2, 2" % (T1, V_LANE))
            a("v_and_b32 v%d, 31, v%d" % (T0, V_LANE))
            a("v_lshrrev_b32 v%d, 5, v%d" % (T2, V_LANE))
            a("v_bfe_u32 v%d, v%d, 1, 3" % (T3, V_LANE))
            a("v_xor_b32 v%d, v%d, v%d" % (T3, T3, T2))
            a("v_lshlrev_b32 v%d, 4, v%d" % (T3, T3))
            a("v_lshl_add_u32 v%d, v%d, 7, v%d" % (T3, T0, T3))
            a("s_lshl_b32 s%d, s%d, 13" % (S_T, S_TH))
            a("v_add_u32 v%d, s%d, v%d" % (V_XA, S_T, T3))
            a("v_xor_b32 v%d, 32, v%d" % (V_XA + 1, V_XA))
            a("v_and_b32 v%d, 1, v%d" % (T0, V_LANE))
            a("v_lshlrev_b32 v%d, 4, v%d" % (T0, T0))
            a("v_bfe_u32 v%d, v%d, 1, 1" % (T3, V_LANE))
            a("v_lshl_add_u32 v%d, v%d, 3, v%d" % (T0, T3, T0))
            a("v_lshl_add_u32 v%d, v%d, 6, v%d" % (T0, T1, T0))
            a("v_lshl_add_u32 v%d, v%d, 11, v%d" % (T0, T2, T0))
            a("v_bfe_u32 v%d, v%d, 4, 1" % (T3, V_LANE))
            a("v_mul_u32_u24 v%d, 8224, v%d" % (T3, T3))
            a("s_lshl_b32 s%d, s%d, 8" % (S_T, S_CG))
            a("s_add_u32 s%d, s%d, %d" % (S_T, S_T, WREG))
            a("v_add3_u32 v%d, v%d, v%d, s%d" % (V_WA, T0, T3, S_T))
            a("v_xor_b32 v%d, 32, v%d" % (V_WA + 1, V_WA))
        emit(dmaX() + dmaW(0) + dmaW(1) + dmaX() + dmaW(2))
        if "tf" in dbg:
            a("s_and_b32 s%d, s%d, 7" % (S_T, S_RB))
            a("s_mul_i32 s%d, s%d, %d" % (S_T, S_T, 80 * 3456))
            a("s_lshl_b32 s%d, s%d, 8" % (S_T + 1, S_CB))
            a("s_add_u32 s%d, s%d, s%d" % (S_T, S_T, S_T + 1))
            a("v_and_b32 v%d, 255, v0" % T0)
            a("v_min_u32 v%d, 159, v%d" % (T0, T0))
            a("v_lshrrev_b32 v%d, 1, v%d" % (T1, T0))
            a("v_mul_u32_u24 v%d, 3456, v%d" % (T1, T1))
            a("v_and_b32 v%d, 1, v%d" % (T0, T0))
            a("v_lshl_add_u32 v%d, v%d, 7, v%d" % (T0, T0, T1))
            a("s_cmp_ge_u32 s%d, 4" % S_W)
            a("s_cbranch_scc1 F1_TU")
            a("buffer_load_dword v19, v%d, %s, s%d offen" % (T0, sr(SA), S_T))
            a("s_branch F1_TX")
            a.label("F1_TU")
            a("buffer_load_dword v19, v%d, %s, s%d offen" % (T0, sr(SB), S_T))
            a.label("F1_TX")
            a("s_mul_i32 s%d, s%d, 163840" % (S_T, S_RB))
            a("s_and_b32 s%d, s%d, 3" % (S_T + 1, S_CB))
            a("s_mul_i32 s%d, s%d, 40960" % (S_T + 1, S_T + 1))
            a("s_add_u32 s%d, s%d, s%d" % (S_T, S_T, S_T + 1))
            a("v_min_u32 v%d, 319, v0" % T0)
            a("v_lshlrev_b32 v%d, 7, v%d" % (T0, T0))
            a("buffer_load_dword v18, v%d, %s, s%d offen" % (T0, sr(SX), S_T))
        a("s_setprio %d" % self.prio_f1)
        rd_setup()
        for r in range(64): a("v_mov_b32 v%d, 0" % (ACC + r))
        def rops(p, b, kk):
            f = F[p]
            ops = ["ds_read_b128 %s, v%d" % (vr(f, 4), V_XA + kk)]
            for ct in range(2):
                for j in range(2):
                    ops.append("ds_read_b64_tr_b16 %s, v%d offset:%d" % (vr(f + 8 + 4 * ct + 2 * j, 2), V_WA + ct, b * 16384 + kk * 4096 + j * 1024))
            ops.append("ds_read_b128 %s, v%d offset:4096" % (vr(f + 4, 4), V_XA + kk))
            return ops
        def mf(p, q):
            ti, ct = [(0, 0), (0, 1), (1, 0), (1, 1)][q]
            f = F[p]; d = ACC + (ti * 2 + ct) * 16
            a("v_mfma_f32_32x32x16_bf16 %s, %s, %s, %s" % (vr(d, 16), vr(f + 8 + 4 * ct, 4), vr(f + 4 * ti, 4), vr(d, 16)))
        a("s_mov_b32 s%d, 0" % S_STG)
        if "gate" in dbg:
            a("s_lshl_b32 s%d, s%d, 10" % (S_T + 1, S_RB))
            a("s_add_u32 s%d, s%d, 0x%x" % (S_T + 1, S_T + 1, F2_K + 12))
            a("v_mov_b32 v%d, 0" % T0)
            a("s_waitcnt vmcnt(6)")
            self.poll([(T1, 1, T0, "s%d" % (S_T + 1))], T3, sleep=8)
        else:
            a("s_waitcnt vmcnt(%d)" % (8 if "tf" in dbg else 6))
            a("s_barrier")
        self.stamp(1)
        a("s_cmp_eq_u32 s%d, 0" % S_ACT)
        a("s_cbranch_scc1 F1_IDLE")
        for op in rops(0, 0, 0): a(op)
        a.label("F1_LOOP")
        if self.f1sw:
            a("s_cmp_lg_u32 s%d, %d" % (S_STG, self.f1sw))
            a("s_cbranch_scc1 F1_SW")
            a("s_setprio %d" % self.prio_f1b)
            a.label("F1_SW")
        if "f1st" in dbg:
            for c_, sl in ((6, 4), (12, 5), (18, 6)):
                a("s_cmp_lg_u32 s%d, %d" % (S_STG, c_))
                a("s_cbranch_scc1 F1_S%d" % c_)
                self.stamp(sl)
                a.label("F1_S%d" % c_)
        for u in range(6):
            b = u % 3; odd = u & 1
            a("s_waitcnt lgkmcnt(0)")
            mf(0, 0)
            for op in rops(1, b, 1): a(op)
            mf(0, 1)
            dl = 64 | (16384 if odd else 0)
            a("v_xor_b32 v%d, 0x%x, v%d" % (V_XA, dl, V_XA))
            a("v_xor_b32 v%d, 0x%x, v%d" % (V_XA + 1, dl, V_XA + 1))
            mf(0, 2)
            if u == 1:
                a("s_cmp_eq_u32 s%d, 19" % S_STG)
                a("s_cbranch_scc1 F1_LAST")
            if u in (5, 0):
                a("s_cmp_ge_u32 s%d, 17" % S_STG)
                a("s_cbranch_scc1 F1_T%d" % u)
            a("s_waitcnt vmcnt(%d) lgkmcnt(0)" % (2 if odd else 4))
            mf(0, 3)
            a("s_barrier")
            mf(1, 0)
            for op in rops(0, (b + 1) % 3, 0): a(op)
            ops = dmaW(b) + (dmaX() if odd else [])
            mf(1, 1)
            emit(ops[:2])
            mf(1, 2)
            emit(ops[2:])
            mf(1, 3)
            if u in (5, 0):
                a("s_branch F1_N%d" % u)
                a.label("F1_T%d" % u)
                a("s_waitcnt vmcnt(0) lgkmcnt(0)")
                mf(0, 3)
                a("s_barrier")
                mf(1, 0)
                for op in rops(0, (b + 1) % 3, 0): a(op)
                for q in (1, 2, 3): mf(1, q)
                a.label("F1_N%d" % u)
            a("s_add_u32 s%d, s%d, 1" % (S_STG, S_STG))
        a("s_branch F1_LOOP")
        a.label("F1_IDLE")
        for u in range(6):
            b = u % 3; odd = u & 1
            if u == 1:
                a("s_cmp_eq_u32 s%d, 19" % S_STG)
                a("s_cbranch_scc1 F1_PUB")
            a("s_cmp_ge_u32 s%d, 17" % S_STG)
            a("s_cbranch_scc1 F1_IT%d" % u)
            a("s_waitcnt vmcnt(%d)" % (2 if odd else 4))
            a("s_barrier")
            emit(dmaW(b) + (dmaX() if odd else []))
            a("s_branch F1_IN%d" % u)
            a.label("F1_IT%d" % u)
            a("s_waitcnt vmcnt(0)")
            a("s_barrier")
            a.label("F1_IN%d" % u)
            a("s_add_u32 s%d, s%d, 1" % (S_STG, S_STG))
        a("s_branch F1_IDLE")
        a.label("F1_LAST")
        mf(0, 3)
        a("s_waitcnt lgkmcnt(0)")
        for q in range(4): mf(1, q)
        a("s_setprio %d" % self.prio_fe)
        self.stamp(2)
        a("s_lshl_b32 s%d, s%d, 1" % (S_T + 8, S_RB))
        a("s_add_u32 s%d, s%d, s%d" % (S_T + 8, S_T + 8, S_TH))
        a("s_lshl_b32 s%d, s%d, 9" % (S_T + 1, S_T + 8))
        a("s_add_u32 s%d, s%d, 0x%x" % (S_T + 1, S_T + 1, F2_K + 12))
        a("s_lshl_b32 s%d, s%d, 8" % (S_T + 2, S_CB))
        a("s_add_u32 s%d, s%d, 0x%x" % (S_T + 2, S_T + 2, F2_C))
        a("v_and_b32 v%d, 1, v%d" % (T1, V_LANE))
        a("v_lshlrev_b32 v%d, 7, v%d" % (T1, T1))
        a("v_add_u32 v%d, s%d, v%d" % (T0, S_T + 1, T1))
        a("s_mov_b32 exec_lo, 0")
        a("v_add_u32 v%d, s%d, v%d" % (T0, S_T + 2, T1))
        a("s_mov_b64 exec, -1")
        self.poll([(T1, 1, T0, "0")], T3, wave0=False)
        a("v_and_b32 v%d, 31, v%d" % (T0, V_LANE))
        a("v_lshlrev_b32 v%d, 3, v%d" % (T0, T0))
        a("s_lshl_b32 s%d, s%d, 9" % (S_T + 1, S_T + 8))
        a("s_add_u32 s%d, s%d, 0x%x" % (S_T + 1, S_T + 1, WS_ST))
        a("buffer_load_dwordx2 %s, v%d, %s, s%d offen %s" % (vr(V_SX, 2), T0, sr(SWS), S_T + 1, SC))
        a("buffer_load_dwordx2 %s, v%d, %s, s%d offen offset:256 %s" % (vr(V_SX + 2, 2), T0, sr(SWS), S_T + 1, SC))
        CSV = F[0]
        a("v_lshrrev_b32 v%d, 5, v%d" % (T2, V_LANE))
        a("v_lshlrev_b32 v%d, 5, v%d" % (T1, T2))
        a("s_lshl_b32 s%d, s%d, 2" % (S_T + 2, S_CB))
        a("s_add_u32 s%d, s%d, s%d" % (S_T + 2, S_T + 2, S_CG))
        a("s_lshl_b32 s%d, s%d, 7" % (S_T + 1, S_T + 2))
        a("s_add_u32 s%d, s%d, 0x%x" % (S_T + 1, S_T + 1, WS_CS))
        a("s_add_u32 s%d, s%d, 7168" % (S_T + 3, S_T + 1))
        for ct in range(2):
            for mat in range(2):
                for q in range(2):
                    a("buffer_load_dwordx4 %s, v%d, %s, s%d offen offset:%d %s" % (vr(CSV + ct * 16 + mat * 8 + q * 4, 4), T1, sr(SWS), S_T + 1 + 2 * mat, ct * 64 + q * 16, SC))
        a("v_and_b32 v%d, 15, v%d" % (T0, V_LANE))
        a("v_lshlrev_b32 v%d, 4, v%d" % (T0, T0))
        a("v_lshl_add_u32 v%d, v%d, 8, v%d" % (T0, T2, T0))
        a("v_bfe_u32 v%d, v%d, 4, 1" % (T1, V_LANE))
        a("v_lshl_add_u32 v%d, v%d, 10, v%d" % (T0, T1, T0))
        a("s_mul_i32 s%d, s%d, 74" % (S_T, S_T + 8))
        a("s_add_u32 s%d, s%d, s%d" % (S_T, S_T, S_T + 2))
        a("s_lshl_b32 s%d, s%d, 12" % (S_T, S_T))
        a("s_add_u32 s%d, s%d, 0x%x" % (S_T, S_T, WS_HO))
        a("s_waitcnt vmcnt(0)")
        for ti in range(2):
            for ct in range(2):
                d = ACC + (ti * 2 + ct) * 16
                for r in range(16):
                    a("v_fmac_f32 v%d, v%d, v%d" % (d + r, V_SX + 2 * ti, CSV + ct * 16 + r))
        TE = CSV + 16
        for ti in range(2):
            a("v_mul_f32 v%d, 0x%x, v%d" % (T1, f32bits(-LOG2E), V_SX + 2 * ti + 1))
            for ct in range(2):
                d = ACC + (ti * 2 + ct) * 16
                for r in range(8): a("v_mul_f32 v%d, v%d, v%d" % (TE + r, T1, d + r))
                for r in range(8): a("v_exp_f32 v%d, v%d" % (TE + r, TE + r))
                for r in range(8): a("v_mul_f32 v%d, v%d, v%d" % (d + r, d + r, d + 8 + r))
                for r in range(8): a("v_add_f32 v%d, 1.0, v%d" % (TE + r, TE + r))
                for r in range(8): a("v_rcp_f32 v%d, v%d" % (TE + r, TE + r))
                a("s_nop 0")
                for r in range(8): a("v_mul_f32 v%d, v%d, v%d" % (d + r, TE + r, d + r))
                o = CSV + (ti * 2 + ct) * 4
                for r in range(4): a("v_cvt_pk_bf16_f32 v%d, v%d, v%d" % (o + r, d + 2 * r, d + 2 * r + 1))
                a("buffer_store_dwordx4 %s, v%d, %s, s%d offen offset:%d %s" % (vr(o, 4), T0, sr(SWS), S_T, ti * 2048 + ct * 512, SC))
        a.label("F1_PUB")
        a("s_lshl_b32 s%d, s%d, 11" % (S_T, S_RB))
        a("s_lshl_b32 s%d, s%d, 7" % (S_T + 1, S_CB))
        a("s_add_u32 s%d, s%d, s%d" % (S_T, S_T, S_T + 1))
        a("s_lshl_b32 s%d, s%d, 2" % (S_T + 1, S_W))
        a("s_add_u32 s%d, s%d, s%d" % (S_T, S_T, S_T + 1))
        a("s_add_u32 s%d, s%d, 0x%x" % (S_T, S_T, F2_H))
        self.wave_flag("s%d" % S_T, T3)
        self.stamp(3)

    def kv_issue(self):
        a = self.a
        V_PI, V_WA, V_ONE, V_J, V_H = 13, 14, 15, 16, 17
        V_ST = 20
        XF = 24
        WF = 44
        AC = 64
        R = 80
        S_MAT, S_TILE, S_JOB = S_R + 10, S_R + 11, S_R + 12
        WO = 40960
        PB, PST, PCS = 0, 32768, 34816
        a("s_lshr_b32 s%d, s%d, 3" % (S_MAT, S_IDX))
        a("s_cmp_eq_u32 s%d, 0" % S_MAT)
        a("s_cselect_b32 s%d, s%d, s%d" % (SC_, P_WK, P_WV))
        a("s_cselect_b32 s%d, s%d, s%d" % (SC_ + 1, P_WK + 1, P_WV + 1))
        a("s_mov_b32 s%d, 25600" % (SC_ + 2))
        a("s_mov_b32 s%d, 0x20000" % (SC_ + 3))
        a("s_bfe_u32 s%d, s%d, 0x10002" % (S_T, S_IDX))
        a("s_lshl_b32 s%d, s%d, 1" % (S_TILE, S_RB32))
        a("s_add_u32 s%d, s%d, s%d" % (S_TILE, S_TILE, S_T))
        a("s_mul_i32 s%d, s%d, 40960" % (S_T, S_TILE))
        a("s_lshl_b32 s%d, s%d, 10" % (S_T + 1, S_W))
        for m in range(5):
            a("v_add_u32 v%d, %d, v0" % (T0, 512 * m))
            a("v_mul_u32_u24 v%d, 3277, v%d" % (T1, T0))
            a("v_lshrrev_b32 v%d, 18, v%d" % (T1, T1))
            a("v_mul_u32_u24 v%d, 80, v%d" % (T2, T1))
            a("v_sub_u32 v%d, v%d, v%d" % (T0, T0, T2))
            a("v_and_b32 v%d, 15, v%d" % (T2, T1))
            a("v_xor_b32 v%d, v%d, v%d" % (T0, T0, T2))
            a("v_and_b32 v%d, 19, v%d" % (T2, T1))
            a("v_bfe_u32 v%d, v%d, 2, 1" % (T3, T1))
            a("v_lshl_add_u32 v%d, v%d, 3, v%d" % (T2, T3, T2))
            a("v_bfe_u32 v%d, v%d, 3, 1" % (T3, T1))
            a("v_lshl_add_u32 v%d, v%d, 2, v%d" % (T2, T3, T2))
            a("v_mul_u32_u24 v%d, 1280, v%d" % (T2, T2))
            a("s_add_u32 m0, s%d, %d" % (S_T + 1, m * 8192))
            a("v_lshl_add_u32 v%d, v%d, 4, v%d" % (T0, T0, T2))
            a("buffer_load_dwordx4 v%d, %s, s%d offen lds" % (T0, sr(SX), S_T))
        for m in range(4):
            if m == 3:
                a("s_cmp_lg_u32 s%d, 0" % S_W)
                a("s_cbranch_scc1 A1_SETUP")
            a("s_add_u32 m0, s%d, %d" % (S_T + 1, WO + m * 8192))
            a("s_add_u32 s%d, s%d, %d" % (S_T + 2, S_T + 1, m * 8192))
            a("buffer_load_dwordx4 v%d, %s, s%d offen lds" % (V_L16, sr(SC_), S_T + 2))

    def kv_body(self):
        a = self.a
        V_PI, V_WA, V_ONE, V_J, V_H = 13, 14, 15, 16, 17
        V_ST = 20
        XF = 24
        WF = 44
        AC = 64
        R = 80
        S_MAT, S_TILE, S_JOB = S_R + 10, S_R + 11, S_R + 12
        WO = 40960
        PB, PST, PCS = 0, 32768, 34816
        a("s_lshr_b32 s%d, s%d, 2" % (S_T, S_IDX))
        a("s_lshl_b32 s%d, s%d, 2" % (S_JOB, S_RB32))
        a("s_add_u32 s%d, s%d, s%d" % (S_JOB, S_JOB, S_T))
        a("s_lshl_b32 s%d, s%d, 5" % (S_JOB, S_JOB))
        a("s_add_u32 s%d, s%d, s%d" % (S_JOB, S_JOB, S_W))
        a("s_lshl_b32 s%d, s%d, 2" % (S_JOB, S_JOB))
        a("s_add_u32 s%d, s%d, 0x%x" % (S_JOB, S_JOB, F2_K))
        a("v_and_b32 v%d, 31, v%d" % (V_J, V_LANE))
        a("v_and_b32 v%d, 19, v%d" % (T0, V_LANE))
        a("v_bfe_u32 v%d, v%d, 2, 1" % (T1, V_LANE))
        a("v_lshl_add_u32 v%d, v%d, 3, v%d" % (T0, T1, T0))
        a("v_bfe_u32 v%d, v%d, 3, 1" % (T1, V_LANE))
        a("v_lshl_add_u32 v%d, v%d, 2, v%d" % (V_PI, T1, T0))
        a("v_lshrrev_b32 v%d, 5, v%d" % (V_H, V_LANE))
        a("v_bfe_u32 v%d, v%d, 2, 2" % (T2, V_LANE))
        a("v_lshl_add_u32 v%d, v%d, 3, v%d" % (T2, V_H, T2))
        a("v_mul_u32_u24 v%d, 40, v%d" % (T2, T2))
        a("v_bfe_u32 v%d, v%d, 4, 1" % (T3, V_LANE))
        a("v_lshl_add_u32 v%d, v%d, 5, v%d" % (T2, T3, T2))
        a("s_mul_i32 s%d, s%d, 3200" % (S_T, S_W))
        a("s_add_u32 s%d, s%d, %d" % (S_T, S_T, WO))
        a("s_sub_u32 s%d, 4, s%d" % (S_T + 1, S_MAT))
        a("s_add_u32 s%d, s%d, 3" % (S_T + 2, S_MAT))
        a("v_and_b32 v%d, 1, v%d" % (T3, V_LANE))
        a("v_lshlrev_b32 v%d, s%d, v%d" % (T3, S_T + 1, T3))
        a("v_add3_u32 v%d, v%d, v%d, s%d" % (T2, T2, T3, S_T))
        a("v_bfe_u32 v%d, v%d, 1, 1" % (T3, V_LANE))
        a("v_lshlrev_b32 v%d, s%d, v%d" % (T3, S_T + 2, T3))
        a("v_add_u32 v%d, v%d, v%d" % (V_WA, T2, T3))
        a("v_and_b32 v%d, 15, v%d" % (T2, V_LANE))
        a("v_xor_b32 v%d, v%d, v%d" % (T2, T2, V_H))
        a("v_mul_u32_u24 v%d, 1280, v%d" % (T3, V_J))
        a("s_mul_i32 s%d, s%d, 10" % (S_T, S_W))
        for s_ in range(5):
            a("v_xor_b32 v%d, s%d, v%d" % (T0, S_T, T2))
            a("s_add_u32 s%d, s%d, 2" % (S_T, S_T))
            a("v_lshl_add_u32 v%d, v%d, 4, v%d" % (R + s_, T0, T3))
        a("v_mov_b32 v%d, 0x3f803f80" % V_ONE)
        for r in range(6): a("v_mov_b32 v%d, 0" % (R + 8 + r))
        a("s_waitcnt vmcnt(0)")
        a("s_barrier")
        self.stamp(5)
        for s_ in range(5):
            a("ds_read_b128 %s, v%d" % (vr(XF + 4 * s_, 4), R + s_))
            a("ds_read_b64_tr_b16 %s, v%d offset:%d" % (vr(WF + 4 * s_, 2), V_WA, s_ * 640))
            a("ds_read_b64_tr_b16 %s, v%d offset:%d" % (vr(WF + 4 * s_ + 2, 2), V_WA, s_ * 640 + 160))
        self.load_nonce(T3)
        a("s_waitcnt lgkmcnt(0)")
        D = R + 8
        for r in range(20):
            o = 3 * (r & 1)
            a("v_dot2c_f32_bf16 v%d, v%d, v%d" % (D + o, V_ONE, XF + r))
            a("v_dot2c_f32_bf16 v%d, v%d, v%d" % (D + o + 1, XF + r, XF + r))
            a("v_dot2c_f32_bf16 v%d, v%d, v%d" % (D + o + 2, V_ONE, WF + r))
        a("s_cmp_eq_u32 s%d, 0" % S_MAT)
        a("s_cbranch_scc0 KV_MV")
        for s_ in range(5):
            a("v_mfma_f32_32x32x16_bf16 %s, %s, %s, %s" % (vr(AC, 16), vr(WF + 4 * s_, 4), vr(XF + 4 * s_, 4), "0" if s_ == 0 else vr(AC, 16)))
        a("s_branch KV_MD")
        a.label("KV_MV")
        for s_ in range(5):
            a("v_mfma_f32_32x32x16_bf16 %s, %s, %s, %s" % (vr(AC, 16), vr(XF + 4 * s_, 4), vr(WF + 4 * s_, 4), "0" if s_ == 0 else vr(AC, 16)))
        a.label("KV_MD")
        a("s_barrier")
        self.a1_dma("k0"); self.a1_dma("k1")
        for r in range(3): a("v_add_f32 v%d, v%d, v%d" % (V_ST + r, D + r, D + 3 + r))
        self.halfsum([V_ST, V_ST + 1, V_ST + 2], R)
        a("s_lshl_b32 s%d, s%d, 8" % (S_T, S_W))
        a("v_lshl_add_u32 v%d, v%d, 3, s%d" % (T0, V_J, S_T))
        a("ds_write_b64 v%d, %s offset:%d" % (T0, vr(V_ST, 2), PST))
        a("s_lshl_b32 s%d, s%d, 7" % (S_T, S_W))
        a("v_lshl_add_u32 v%d, v%d, 2, s%d" % (T0, V_J, S_T))
        a("ds_write_b32 v%d, v%d offset:%d" % (T0, V_ST + 2, PCS))
        a("s_lshl_b32 s%d, s%d, 12" % (S_T, S_W))
        a("v_add_u32 v%d, s%d, v%d" % (T0, S_T, V_L16))
        for q in range(4): a("ds_write_b128 v%d, %s offset:%d" % (T0, vr(AC + 4 * q, 4), q * 1024))
        a("s_waitcnt lgkmcnt(0)")
        a("s_barrier")
        a("s_cmp_ge_u32 s%d, 4" % S_W)
        a("s_cbranch_scc1 KV_DONE")
        a("s_lshl_b32 s%d, s%d, 10" % (S_T, S_W))
        a("v_add_u32 v%d, s%d, v%d" % (T0, S_T, V_L16))
        for p in range(8): a("ds_read_b128 %s, v%d offset:%d" % (vr(XF + 4 * p, 4), T0, p * 4096))
        a("s_mul_i32 s%d, s%d, 2560" % (S_T + 3, S_TILE))
        a("s_add_u32 s%d, s%d, 0x%x" % (S_T + 3, S_T + 3, WS_KV))
        a("s_cmp_eq_u32 s%d, 0" % S_MAT)
        a("s_cbranch_scc0 KV_V")
        SP = 56; CP = 72
        a("v_lshlrev_b32 v%d, 3, v%d" % (T0, V_J))
        a("s_waitcnt lgkmcnt(4)")
        for p in range(8): a("ds_read_b64 %s, v%d offset:%d" % (vr(SP + 2 * p, 2), T0, PST + p * 256))
        a("s_lshl_b32 s%d, s%d, 5" % (S_T, S_W))
        a("v_lshl_add_u32 v%d, v%d, 4, s%d" % (T0, V_H, S_T))
        a("s_waitcnt lgkmcnt(4)")
        for p in range(8): a("ds_read_b128 %s, v%d offset:%d" % (vr(CP + 4 * p, 4), T0, PCS + p * 128))
        self.tree(XF, 4, 8, 4)
        a("s_waitcnt lgkmcnt(8)")
        self.tree(SP, 2, 8, 2)
        self.meanrstd(V_ST, SP)
        a("v_lshlrev_b32 v%d, 3, v%d" % (T2, V_PI))
        a("s_cmp_eq_u32 s%d, 3" % S_W)
        a("s_cbranch_scc0 KV_K1")
        a("s_lshl_b32 s%d, s%d, 8" % (S_T, S_TILE))
        a("s_add_u32 s%d, s%d, 0x%x" % (S_T, S_T, WS_ST))
        a("s_mov_b32 exec_hi, 0")
        a("buffer_store_dwordx2 %s, v%d, %s, s%d offen %s" % (vr(V_ST, 2), T2, sr(SWS), S_T, SC))
        a("s_mov_b64 exec, -1")
        a("s_branch KV_FLAG")
        a.label("KV_K1")
        a("s_waitcnt lgkmcnt(0)")
        self.tree(CP, 4, 8, 4)
        for r in range(4): a("v_fmac_f32 v%d, v%d, v%d" % (XF + r, V_ST, CP + r))
        for r in range(4): a("v_mul_f32 v%d, v%d, v%d" % (XF + r, V_ST + 1, XF + r))
        for r in range(2): a("v_cvt_pk_bf16_f32 v%d, v%d, v%d" % (SP + r, XF + 2 * r, XF + 2 * r + 1))
        a("v_mov_b32 v%d, 0" % T3)
        a("s_cmp_eq_u32 s%d, 2" % S_W)
        a("s_cbranch_scc1 KV_K2")
        a("v_lshlrev_b32 v%d, 9, v%d" % (T0, V_H))
        a("v_lshl_add_u32 v%d, v%d, 4, v%d" % (T2, V_PI, T0))
        a("s_lshl_b32 s%d, s%d, 3" % (S_T, S_W))
        a("s_add_u32 s%d, s%d, s%d" % (S_T + 3, S_T + 3, S_T))
        a("s_branch KV_K3")
        a.label("KV_K2")
        a("s_add_u32 s%d, s%d, 1024" % (S_T + 3, S_T + 3))
        a("s_mov_b32 exec_hi, 0")
        a.label("KV_K3")
        a("buffer_store_dwordx2 %s, v%d, %s, s%d offen %s" % (vr(SP, 2), T2, sr(SWS), S_T + 3, SC))
        for r in range(4): a("v_fmac_f32 v%d, v%d, v%d" % (T3, XF + r, XF + r))
        a("s_mov_b64 exec, -1")
        self.halfsum([T3], CP)
        for dpp in DPPS:
            a("s_nop 1")
            a("v_max_f32_dpp v%d, v%d, v%d %s row_mask:0xf bank_mask:0xf" % (T3, T3, T3, dpp))
        a("s_nop 1")
        a("v_readlane_b32 s%d, v%d, 0" % (S_T, T3))
        a("v_readlane_b32 s%d, v%d, 16" % (S_T + 1, T3))
        a("s_lshl_b32 s%d, s%d, 2" % (S_T + 2, S_TILE))
        a("s_add_u32 s%d, s%d, s%d" % (S_T + 2, S_T + 2, S_W))
        a("s_lshl_b32 s%d, s%d, 2" % (S_T + 2, S_T + 2))
        a("s_add_u32 s%d, s%d, 0x%x" % (S_T + 2, S_T + 2, WS_KN))
        a("s_max_u32 s%d, s%d, s%d" % (S_T, S_T, S_T + 1))
        a("v_mov_b32 v%d, s%d" % (T3, S_T))
        a("v_mov_b32 v%d, 0" % T0)
        a("s_mov_b64 exec, 1")
        a("buffer_store_dword v%d, v%d, %s, s%d offen %s" % (T3, T0, sr(SWS), S_T + 2, SC))
        a("s_mov_b64 exec, -1")
        a("s_branch KV_FLAG")
        a.label("KV_V")
        SP = 56
        CP = 28
        a("s_lshl_b32 s%d, s%d, 6" % (S_T, S_W))
        a("v_lshl_add_u32 v%d, v%d, 5, s%d" % (T0, V_H, S_T))
        a("s_waitcnt lgkmcnt(4)")
        for p in range(5):
            a("ds_read_b128 %s, v%d offset:%d" % (vr(SP + 8 * p, 4), T0, PST + p * 256))
            a("ds_read_b128 %s, v%d offset:%d" % (vr(SP + 8 * p + 4, 4), T0, PST + p * 256 + 16))
        a("v_lshlrev_b32 v%d, 2, v%d" % (T2, V_J))
        a("s_waitcnt lgkmcnt(8)")
        for p in range(5, 8):
            a("ds_read_b128 %s, v%d offset:%d" % (vr(SP + 8 * p, 4), T0, PST + p * 256))
            a("ds_read_b128 %s, v%d offset:%d" % (vr(SP + 8 * p + 4, 4), T0, PST + p * 256 + 16))
        self.tree(XF, 4, 8, 4)
        a("s_waitcnt lgkmcnt(6)")
        for p in range(8): a("ds_read_b32 v%d, v%d offset:%d" % (CP + p, T2, PCS + p * 128))
        a("s_waitcnt lgkmcnt(8)")
        self.tree(SP, 8, 8, 8)
        for r in range(4): self.meanrstd(SP + 8 + 2 * r, SP + 2 * r)
        a("s_waitcnt lgkmcnt(0)")
        self.tree(CP, 1, 8, 1)
        for r in range(4): a("v_fmac_f32 v%d, v%d, v%d" % (XF + r, CP, SP + 8 + 2 * r))
        for r in range(4): a("v_mul_f32 v%d, v%d, v%d" % (XF + r, SP + 9 + 2 * r, XF + r))
        for r in range(2): a("v_cvt_pk_bf16_f32 v%d, v%d, v%d" % (CP + 2 + r, XF + 2 * r, XF + 2 * r + 1))
        a("v_mul_u32_u24 v%d, 320, v%d" % (T0, V_H))
        a("v_lshl_add_u32 v%d, v%d, 4, v%d" % (T0, V_J, T0))
        a("s_lshr_b32 s%d, s%d, 1" % (S_T, S_W))
        a("s_mul_i32 s%d, s%d, 640" % (S_T, S_T))
        a("s_add_u32 s%d, s%d, s%d" % (S_T + 3, S_T + 3, S_T))
        a("s_and_b32 s%d, s%d, 1" % (S_T, S_W))
        a("s_lshl_b32 s%d, s%d, 3" % (S_T, S_T))
        a("s_add_u32 s%d, s%d, s%d" % (S_T + 3, S_T + 3, S_T))
        a("s_mov_b64 exec, s[%d:%d]" % (S_VM, S_VM + 1))
        a("buffer_store_dwordx2 %s, v%d, %s, s%d offen offset:1280 %s" % (vr(CP + 2, 2), T0, sr(SWS), S_T + 3, SC))
        a("s_mov_b64 exec, -1")
        a.label("KV_FLAG")
        if "noA" in self.dbg:
            self.wave_flag("s%d" % S_JOB, T0)
        a("s_mov_b32 s%d, s%d" % (S_R + 14, S_JOB))
        a.label("KV_DONE")
        a("s_waitcnt lgkmcnt(0)")
        a("s_barrier")

    def role_sp(self):
        a = self.a
        S_J, S_G, S_LB = S_R, S_R + 1, S_R + 2
        S_D = S_R + 4
        S_O, S_F = S_R + 12, S_R + 13
        LD = 16; AC = 8
        a.label("ROLE_SP")
        a("s_sub_u32 s%d, s%d, 28" % (S_J, S_IDX))
        a("s_lshl_b32 s%d, s%d, 3" % (S_J, S_J))
        a("s_add_u32 s%d, s%d, s%d" % (S_J, S_J, S_XCD))
        def colsum(tag, lpr, stride, nload):
            sh = {16: 4, 8: 3}[lpr]; ncol = lpr * 8; csh = sh + 3; ng = 512 // ncol
            a("v_lshrrev_b32 v%d, %d, v%d" % (T0, sh, V_LANE))
            a("v_mul_u32_u24 v%d, %d, v%d" % (T0, stride, T0))
            a("v_and_b32 v%d, %d, v%d" % (T1, lpr - 1, V_LANE))
            a("v_lshl_add_u32 v%d, v%d, 4, v%d" % (T0, T1, T0))
            for i in range(nload):
                a("buffer_load_dwordx4 %s, v%d, %s, s%d offen" % (vr(LD + 4 * i, 4), T0, sr(SA), S_T))
                a("s_add_u32 s%d, s%d, %d" % (S_T, S_T, (64 // lpr) * stride))
            for r in range(8): a("v_mov_b32 v%d, 0" % (AC + r))
            for i in range(nload):
                a("s_waitcnt vmcnt(%d)" % (nload - 1 - i))
                for q in range(4):
                    a("v_lshlrev_b32 v%d, 16, v%d" % (T2, LD + 4 * i + q))
                    a("v_and_b32 v%d, 0xffff0000, v%d" % (T3, LD + 4 * i + q))
                    a("v_add_f32 v%d, v%d, v%d" % (AC + 2 * q, AC + 2 * q, T2))
                    a("v_add_f32 v%d, v%d, v%d" % (AC + 2 * q + 1, AC + 2 * q + 1, T3))
            self.load_nonce(T3)
            a("v_lshlrev_b32 v%d, 5, v0" % T0)
            a("ds_write_b128 v%d, %s" % (T0, vr(AC, 4)))
            a("ds_write_b128 v%d, %s offset:16" % (T0, vr(AC + 4, 4)))
            a("v_lshrrev_b32 v%d, %d, v0" % (T1, csh))
            a("v_and_b32 v%d, %d, v0" % (T2, ncol - 1))
            a("v_lshlrev_b32 v%d, 2, v%d" % (T2, T2))
            a("v_lshl_add_u32 v%d, v%d, %d, v%d" % (T1, T1, csh + 5, T2))
            a("s_waitcnt lgkmcnt(0)")
            a("s_barrier")
            for p in range(8): a("ds_read_b32 v%d, v%d offset:%d" % (LD + p, T1, p * ncol * 4))
            a("v_lshlrev_b32 v%d, 2, v0" % T0)
            a("s_waitcnt lgkmcnt(0)")
            self.tree(LD, 1, 8, 1)
            a("ds_write_b32 v%d, v%d offset:16384" % (T0, LD))
            a("s_waitcnt lgkmcnt(0)")
            a("s_barrier")
            a("s_cmp_lg_u32 s%d, 0" % S_W)
            a("s_cbranch_scc1 SP_%s" % tag)
            nw = ncol // 64
            for h in range(nw):
                for p in range(ng): a("ds_read_b32 v%d, v%d offset:%d" % (LD + h * ng + p, T0, 16384 + p * ncol * 4 + h * 256))
            a("s_waitcnt lgkmcnt(0)")
            for h in range(nw):
                self.tree(LD + h * ng, 1, ng, 1)
                a("buffer_store_dword v%d, v%d, %s, s%d offen offset:%d %s" % (LD + h * ng, T0, sr(SWS), S_O, h * 256, SC))
            self.wave_flag("s%d" % S_F, T3)
            a.label("SP_%s" % tag)
        a("s_cmp_ge_u32 s%d, 20" % S_J)
        a("s_cbranch_scc1 SP_CS")
        a("s_setprio 3")
        srd(a, SA, P_WQ, P_WQ + 1, 819200)
        a("s_and_b32 s%d, s%d, 1" % (S_T + 2, S_J))
        a("s_lshr_b32 s%d, s%d, 1" % (S_T + 1, S_J))
        a("s_lshl_b32 s%d, s%d, 3" % (S_T, S_T + 2))
        a("s_add_u32 s%d, s%d, s%d" % (S_T, S_T, S_W))
        a("s_mul_i32 s%d, s%d, %d" % (S_T, S_T, 40 * 1280))
        a("s_lshl_b32 s%d, s%d, 7" % (S_T + 3, S_T + 1))
        a("s_add_u32 s%d, s%d, s%d" % (S_T, S_T, S_T + 3))
        a("s_mul_i32 s%d, s%d, 2560" % (S_O, S_T + 2))
        a("s_lshl_b32 s%d, s%d, 8" % (S_T + 3, S_T + 1))
        a("s_add_u32 s%d, s%d, s%d" % (S_O, S_O, S_T + 3))
        a("s_add_u32 s%d, s%d, 0x%x" % (S_O, S_O, WS_CQ))
        a("s_lshl_b32 s%d, s%d, 7" % (S_F, S_J))
        a("s_add_u32 s%d, s%d, 0x%x" % (S_F, S_F, F2_Q))
        colsum("QD", 8, 1280, 5)
        self.stamp(1)
        a.label("SP_CS")
        a("s_setprio 2")
        a("s_sub_u32 s%d, 31, s%d" % (S_G, S_J))
        a("s_cmp_ge_u32 s%d, 28" % S_G)
        a("s_cbranch_scc1 SP_RL")
        a("s_bitcmp1_b32 s%d, 0" % S_G)
        a("s_cselect_b32 s%d, s%d, s%d" % (SA, P_WU, P_WG))
        a("s_cselect_b32 s%d, s%d, s%d" % (SA + 1, P_WU + 1, P_WG + 1))
        a("s_cselect_b32 s%d, 7168, 0" % S_O)
        a("s_mov_b32 s%d, 2211840" % (SA + 2))
        a("s_mov_b32 s%d, 0x20000" % (SA + 3))
        a("s_mul_i32 s%d, s%d, %d" % (S_T, S_W, 80 * 3456))
        a("s_lshr_b32 s%d, s%d, 1" % (S_T + 1, S_G))
        a("s_lshl_b32 s%d, s%d, 8" % (S_T + 1, S_T + 1))
        a("s_add_u32 s%d, s%d, s%d" % (S_T, S_T, S_T + 1))
        a("s_lshl_b32 s%d, s%d, 1" % (S_T + 1, S_T + 1))
        a("s_add_u32 s%d, s%d, s%d" % (S_O, S_O, S_T + 1))
        a("s_add_u32 s%d, s%d, 0x%x" % (S_O, S_O, WS_CS))
        a("s_lshl_b32 s%d, s%d, 7" % (S_F, S_G))
        a("s_add_u32 s%d, s%d, 0x%x" % (S_F, S_F, F2_C))
        colsum("CD", 16, 3456, 20)
        self.stamp(2)
        a.label("SP_RL")
        a("s_barrier")
        V_VD, V_TA = 8, 9
        a("v_lshrrev_b32 v%d, 3, v%d" % (T0, V_LANE))
        a("v_mul_u32_u24 v%d, 1280, v%d" % (T0, T0))
        a("v_and_b32 v%d, 7, v%d" % (T1, V_LANE))
        a("v_lshl_add_u32 v%d, v%d, 4, v%d" % (V_VD, T1, T0))
        a("s_lshl_b32 s%d, s%d, 13" % (S_LB, S_W))
        a("v_lshrrev_b32 v%d, 4, v%d" % (T0, V_LANE))
        a("v_bfe_u32 v%d, v%d, 2, 2" % (T1, V_LANE))
        a("v_lshl_add_u32 v%d, v%d, 3, v%d" % (T0, T0, T1))
        a("v_lshlrev_b32 v%d, 7, v%d" % (T0, T0))
        a("v_and_b32 v%d, 3, v%d" % (T1, V_LANE))
        a("v_lshl_add_u32 v%d, v%d, 3, v%d" % (T0, T1, T0))
        a("v_add_u32 v%d, s%d, v%d" % (V_TA, S_LB, T0))
        a("s_lshl_b32 s%d, s%d, 3" % (S_G, S_J))
        a("s_add_u32 s%d, s%d, s%d" % (S_G, S_G, S_W))
        a("s_mov_b32 s%d, 0x20000" % (SA + 3))
        def issue(slot):
            a("s_mul_hi_u32 s%d, s%d, 0x%x" % (S_T + 1, S_G, (1 << 32) // 10 + 1))
            a("s_mul_i32 s%d, s%d, 10" % (S_T + 2, S_T + 1))
            a("s_sub_u32 s%d, s%d, s%d" % (S_T + 2, S_G, S_T + 2))
            for i in range(4):
                a("s_lshl_b32 s%d, s%d, 2" % (S_T + 3, S_T + 2))
                a("s_add_u32 s%d, s%d, %d" % (S_T + 3, S_T + 3, i))
                a("s_mul_hi_u32 s%d, s%d, 0x%x" % (S_T + 4, S_T + 3, (1 << 32) // 5 + 1))
                a("s_mul_i32 s%d, s%d, 365" % (S_T + 4, S_T + 4))
                a("s_add_u32 s%d, s%d, s%d" % (S_T + 4, S_T + 4, S_T + 3))
                a("s_mul_i32 s%d, s%d, 5" % (S_T + 3, S_T + 1))
                a("s_add_u32 s%d, s%d, s%d" % (S_T + 4, S_T + 4, S_T + 3))
                a("s_lshl_b32 s%d, s%d, 10" % (S_T + 4, S_T + 4))
                a("s_add_u32 s%d, s%d, 0x%x" % (S_D + slot * 4 + i, S_T + 4, WS_WF2))
            a("s_sub_u32 s%d, s%d, 54" % (S_T + 4, S_T + 1))
            a("s_cmp_lt_u32 s%d, 54" % (S_T + 1))
            a("s_cselect_b32 s%d, s%d, s%d" % (S_T + 1, S_T + 1, S_T + 4))
            a("s_cselect_b32 s%d, s%d, s%d" % (SA, P_WD, P_WO))
            a("s_cselect_b32 s%d, s%d, s%d" % (SA + 1, P_WD + 1, P_WO + 1))
            sel(a, SA + 2, 2211840, 819200)
            a("s_mul_i32 s%d, s%d, 40960" % (S_T + 1, S_T + 1))
            a("s_lshl_b32 s%d, s%d, 7" % (S_T + 2, S_T + 2))
            a("s_add_u32 s%d, s%d, s%d" % (S_T + 1, S_T + 1, S_T + 2))
            for i in range(4):
                a("s_add_u32 m0, s%d, %d" % (S_LB, slot * 4096 + i * 1024))
                a("s_nop 0")
                a("buffer_load_dwordx4 v%d, %s, s%d offen lds" % (V_VD, sr(SA), S_T + 1))
                a("s_add_u32 s%d, s%d, 10240" % (S_T + 1, S_T + 1))
            a("s_add_u32 s%d, s%d, 256" % (S_G, S_G))
        def drain(slot, reg):
            for i in range(4):
                a("ds_read_b64_tr_b16 %s, v%d offset:%d" % (vr(reg + 4 * i, 2), V_TA, slot * 4096 + i * 32))
                a("ds_read_b64_tr_b16 %s, v%d offset:%d" % (vr(reg + 4 * i + 2, 2), V_TA, slot * 4096 + i * 32 + 512))
            a("s_waitcnt lgkmcnt(0)")
            for i in range(4):
                a("buffer_store_dwordx4 %s, v%d, %s, s%d offen %s" % (vr(reg + 4 * i, 4), V_L16, sr(SWS), S_D + slot * 4 + i, SC))
        issue(0); issue(1)
        a("s_waitcnt vmcnt(4)")
        drain(0, 16)
        a("s_cmp_ge_u32 s%d, 740" % S_G)
        a("s_cbranch_scc1 SP_R2")
        issue(0)
        a("s_waitcnt vmcnt(8)")
        drain(1, 32)
        a("s_waitcnt vmcnt(4)")
        drain(0, 48)
        a("s_branch SP_R3")
        a.label("SP_R2")
        a("s_waitcnt vmcnt(4)")
        drain(1, 32)
        a.label("SP_R3")
        a("s_lshl_b32 s%d, s%d, 7" % (S_T, S_J))
        a("s_add_u32 s%d, s%d, 0x%x" % (S_T, S_T, F2_W))
        self.wg_flag("s%d" % S_T)
        self.stamp(3)
        if "noF" in self.dbg: self.finish()
        a("s_branch F2_GO")

    def role_f23(self):
        a = self.a
        V_TA = T1
        WT = 8
        HF = [16, 32]
        ACC = 48
        S_H, S_WO, S_N, S_GB, S_LB, S_TH, S_KQ = [S_R + i for i in range(7)]
        a.label("F2_GO")
        a("s_setprio %d" % self.prio_f2)
        srd(a, SB, P_OUT, P_OUT + 1, 2621440)
        a("s_mul_i32 s%d, s%d, 81920" % (S_GB, S_RB32))
        a("s_mul_i32 s%d, s%d, 160" % (S_T + 1, S_HI))
        a("s_add_u32 s%d, s%d, s%d" % (S_GB, S_GB, S_T + 1))
        a("s_mul_i32 s%d, s%d, 10240" % (S_LB, S_W))
        def setup(ksg):
            a("s_mul_i32 s%d, s%d, 74" % (S_H, S_RB32))
            a("s_add_u32 s%d, s%d, s%d" % (S_H, S_H, ksg))
            a("s_lshl_b32 s%d, s%d, 12" % (S_H, S_H))
            a("s_add_u32 s%d, s%d, 0x%x" % (S_H, S_H, WS_HO))
            a("s_mul_i32 s%d, s%d, 74" % (S_WO, S_HI))
            a("s_add_u32 s%d, s%d, s%d" % (S_WO, S_WO, ksg))
            a("s_mul_i32 s%d, s%d, 5120" % (S_WO, S_WO))
            a("s_add_u32 s%d, s%d, 0x%x" % (S_WO, S_WO, WS_WF2))
        def loadW(p):
            a("s_add_u32 m0, s%d, %d" % (S_LB, p * 5120))
            a("s_nop 0")
            for n in range(4):
                a("buffer_load_dwordx4 v%d, %s, s%d offen offset:%d %s lds" % (V_L16, sr(SWS), S_WO, n * 1024, SC))
            a("s_add_u32 m0, s%d, %d" % (S_LB, p * 5120 + 4096))
            a("s_add_u32 s%d, s%d, 4096" % (S_WO, S_WO))
            a("buffer_load_dwordx4 v%d, %s, s%d offen %s lds" % (V_L16, sr(SWS), S_WO, SC))
            a("s_add_u32 s%d, s%d, 1024" % (S_WO, S_WO))
        def loadH(p):
            for tt in range(4):
                a("buffer_load_dwordx4 %s, v%d, %s, s%d offen offset:%d %s" % (vr(HF[p] + tt * 4, 4), V_L16, sr(SWS), S_H, tt * 1024, SC))
            a("s_add_u32 s%d, s%d, 4096" % (S_H, S_H))
        def trd(p, c):
            a("ds_read_b128 %s, v%d offset:%d" % (vr(WT + 4 * (c & 1), 4), V_TA, p * 5120 + c * 1024))
        def comp(p, first=False):
            trd(p, 0); trd(p, 1)
            for c in range(5):
                a("s_waitcnt lgkmcnt(%d)" % (1 if c < 4 else 0))
                for tt in range(4):
                    d = ACC + (tt * 5 + c) * 4
                    a("v_mfma_f32_16x16x32_bf16 %s, %s, %s, %s" % (vr(d, 4), vr(WT + 4 * (c & 1), 4), vr(HF[p] + tt * 4, 4), "0" if first else vr(d, 4)))
                if c + 2 < 5: trd(p, c + 2)
        a("v_min_u32 v%d, 31, v%d" % (T0, V_LANE))
        a("v_lshlrev_b32 v%d, 7, v%d" % (T0, T0))
        a("s_mov_b32 s%d, 0x%x" % (S_T + 1, F2_W))
        self.poll([(8, 1, T0, "s%d" % (S_T + 1))], T3, sleep=8)
        a("s_mul_i32 s%d, s%d, 7" % (S_T, S_W))
        a("s_mul_i32 s%d, s%d, 6" % (S_T + 1, S_W))
        a("s_add_u32 s%d, s%d, 6" % (S_T + 1, S_T + 1))
        a("s_cmp_lt_u32 s%d, 6" % S_W)
        a("s_cselect_b32 s%d, s%d, s%d" % (S_T, S_T, S_T + 1))
        a("s_cselect_b32 s%d, 7, 6" % S_N)
        a("s_mov_b32 s%d, s%d" % (S_T + 7, S_T))
        setup(S_T)
        a("v_add_u32 v%d, s%d, v%d" % (V_TA, S_LB, V_L16))
        loadW(0); loadW(1)
        a("s_sub_u32 s%d, s%d, 1" % (S_T + 1, S_N))
        a("v_min_u32 v%d, s%d, v%d" % (T0, S_T + 1, V_LANE))
        a("v_add_u32 v%d, s%d, v%d" % (T0, S_T + 7, T0))
        a("v_lshrrev_b32 v%d, 2, v%d" % (T2, T0))
        a("v_and_b32 v%d, 3, v%d" % (T0, T0))
        a("v_lshlrev_b32 v%d, 3, v%d" % (T0, T0))
        a("v_lshl_add_u32 v%d, v%d, 7, v%d" % (T0, T2, T0))
        a("s_lshr_b32 s%d, s%d, 1" % (S_T + 1, S_RB32))
        a("s_lshl_b32 s%d, s%d, 11" % (S_T + 1, S_T + 1))
        a("s_and_b32 s%d, s%d, 1" % (S_T + 2, S_RB32))
        a("s_lshl_b32 s%d, s%d, 2" % (S_T + 2, S_T + 2))
        a("s_add_u32 s%d, s%d, s%d" % (S_T + 1, S_T + 1, S_T + 2))
        a("s_add_u32 s%d, s%d, 0x%x" % (S_T + 1, S_T + 1, F2_H))
        self.poll([(8, 1, T0, "s%d" % (S_T + 1))], T3, sleep=16, wave0=False)
        self.stamp(4, "f23")
        loadH(0); loadH(1)
        a("s_waitcnt vmcnt(4)")
        comp(0, True)
        a("s_branch F2_M")
        a.label("F2_L")
        comp(0)
        a("s_cmp_le_u32 s%d, 2" % S_N)
        a("s_cbranch_scc1 F2_E1")
        a.label("F2_M")
        loadW(0); loadH(0)
        a("s_waitcnt vmcnt(9)")
        comp(1)
        a("s_cmp_le_u32 s%d, 3" % S_N)
        a("s_cbranch_scc1 F2_E0")
        loadW(1); loadH(1)
        a("s_sub_u32 s%d, s%d, 2" % (S_N, S_N))
        a("s_waitcnt vmcnt(9)")
        a("s_branch F2_L")
        a.label("F2_E1")
        a("s_waitcnt vmcnt(0)")
        comp(1)
        a("s_branch F2_X")
        a.label("F2_E0")
        a("s_waitcnt vmcnt(0)")
        comp(0)
        a.label("F2_X")
        a("s_setprio %d" % self.prio_fr)
        GA = 8
        RS = 11
        XR = 14
        a("v_and_b32 v%d, 15, v%d" % (T2, V_LANE))
        a("v_mul_u32_u24 v%d, 1280, v%d" % (T0, T2))
        a("v_lshrrev_b32 v%d, 4, v%d" % (T3, V_LANE))
        a("v_lshl_add_u32 v%d, v%d, 3, v%d" % (T0, T3, T0))
        a("v_lshlrev_b32 v%d, 3, v%d" % (T2, T2))
        a("s_lshl_b32 s%d, s%d, 9" % (S_T + 4, S_RB32))
        a("s_add_u32 s%d, s%d, 0x%x" % (S_T + 4, S_T + 4, WS_ST + 4))
        for i in range(3):
            a("s_add_u32 s%d, s%d, %d" % (S_T, S_W, 8 * i))
            a("s_min_u32 s%d, s%d, 19" % (S_T, S_T))
            a("s_mul_hi_u32 s%d, s%d, 0x%x" % (S_T + 1, S_T, (1 << 32) // 5 + 1))
            a("s_mul_i32 s%d, s%d, 5" % (S_T + 2, S_T + 1))
            a("s_sub_u32 s%d, s%d, s%d" % (S_T + 2, S_T, S_T + 2))
            a("s_mul_i32 s%d, s%d, 20480" % (S_T + 3, S_T + 1))
            a("s_lshl_b32 s%d, s%d, 5" % (S_T + 2, S_T + 2))
            a("s_add_u32 s%d, s%d, s%d" % (S_T + 3, S_T + 3, S_T + 2))
            a("v_add_u32 v%d, s%d, v%d" % (GA + i, S_T + 3, T0))
            a("s_lshl_b32 s%d, s%d, 7" % (S_T + 1, S_T + 1))
            a("s_add_u32 s%d, s%d, s%d" % (S_T + 1, S_T + 1, S_T + 4))
            a("buffer_load_dword v%d, v%d, %s, s%d offen %s" % (RS + i, T2, sr(SWS), S_T + 1, SC))
        a("s_and_b32 s%d, s%d, 3" % (S_T, S_W))
        a("s_mul_i32 s%d, s%d, 20480" % (S_T, S_T))
        a("v_add_u32 v%d, s%d, v%d" % (T0, S_T, V_L16))
        a("s_barrier")
        a("s_cmp_lt_u32 s%d, 4" % S_W)
        a("s_cbranch_scc1 F2_R1")
        for q in range(20): a("ds_write_b128 v%d, %s offset:%d" % (T0, vr(ACC + 4 * q, 4), q * 1024))
        a("s_waitcnt lgkmcnt(0)")
        a("s_barrier")
        a("s_branch F2_R2")
        a.label("F2_R1")
        a("s_barrier")
        for part in range(5):
            if part == 0:
                for q in range(4): a("ds_read_b128 %s, v%d offset:%d" % (vr(16 + 4 * q, 4), T0, q * 1024))
            if part < 4:
                for q in range(4): a("ds_read_b128 %s, v%d offset:%d" % (vr(16 + 16 * ((part + 1) & 1) + 4 * q, 4), T0, ((part + 1) * 4 + q) * 1024))
            a("s_waitcnt lgkmcnt(%d)" % (4 if part < 4 else 0))
            for r in range(16): a("v_add_f32 v%d, v%d, v%d" % (ACC + part * 16 + r, ACC + part * 16 + r, 16 + 16 * (part & 1) + r))
        for q in range(20): a("ds_write_b128 v%d, %s offset:%d" % (T0, vr(ACC + 4 * q, 4), q * 1024))
        a("s_waitcnt lgkmcnt(0)")
        a.label("F2_R2")
        a("s_barrier")
        a("s_lshl_b32 s%d, s%d, 10" % (S_T, S_W))
        a("v_add_u32 v%d, s%d, v%d" % (T0, S_T, V_L16))
        a("v_add_u32 v%d, 16384, v%d" % (T2, T0))
        R = ACC
        def own_read(after=None):
            for i in range(3):
                for q in range(4):
                    if i < 2: a("ds_read_b128 %s, v%d offset:%d" % (vr(R + i * 16 + q * 4, 4), T0, q * 20480 + i * 8192) if q * 20480 + i * 8192 < 65536 else
                                "ds_read_b128 %s, v%d offset:%d" % (vr(R + i * 16 + q * 4, 4), T2, q * 20480 + i * 8192 - 16384))
                    else: a("ds_read_b128 %s, v%d offset:%d" % (vr(R + i * 16 + q * 4, 4), T2, q * 20480))
            a("s_waitcnt lgkmcnt(0)")
            if after: after()
            for i in range(3): self.tree(R + i * 16, 4, 4, 4)
        XR = 96
        WR = 28
        OF = 48
        A3 = 88
        a("s_and_b32 s%d, s%d, 1" % (S_TH, S_W))
        a("s_lshr_b32 s%d, s%d, 1" % (S_KQ, S_W))
        a("s_mul_i32 s%d, s%d, 5" % (S_T + 1, S_KQ))
        a("s_add_u32 s%d, s%d, 54" % (S_T + 1, S_T + 1))
        setup(S_T + 1)
        a("s_lshl_b32 s%d, s%d, 11" % (S_T, S_TH))
        a("s_add_u32 s%d, s%d, s%d" % (S_H, S_H, S_T))
        a("v_add_u32 v%d, 4096, v%d" % (T3, V_L16))
        for c in range(4):
            a("buffer_load_dwordx4 %s, v%d, %s, s%d offen offset:%d %s" % (vr(WR + 4 * c, 4), V_L16, sr(SWS), S_WO, c * 1024, SC))
        a("buffer_load_dwordx4 %s, v%d, %s, s%d offen %s" % (vr(WR + 16, 4), T3, sr(SWS), S_WO, SC))
        for i in range(3):
            a("buffer_load_dwordx2 %s, v%d, %s, s%d offen" % (vr(XR + 2 * i, 2), GA + i, sr(SX), S_GB))
        a("s_mul_i32 s%d, s%d, 10240" % (S_T, S_TH))
        a("s_add_u32 s%d, s%d, s%d" % (S_WO, S_WO, S_T))
        a("s_add_u32 s%d, s%d, 5120" % (S_WO, S_WO))
        own_read(lambda: (a("s_barrier"), loadW(0), loadW(1)))
        G = 14
        a("s_waitcnt vmcnt(18)")
        for i in range(3): a("v_mul_f32 v%d, v%d, v%d" % (RS + i, RS + i, RS + i))
        idx = [(i, r) for i in range(3) for r in range(4)]
        for i, r in idx: a("v_mul_f32 v%d, v%d, v%d" % (R + i * 16 + r, RS + i, R + i * 16 + r))
        for i, r in idx: a("v_mul_f32 v%d, 0x%x, v%d" % (G + 4 * i + r, f32bits(-LOG2E), R + i * 16 + r))
        for i, r in idx: a("v_exp_f32 v%d, v%d" % (G + 4 * i + r, G + 4 * i + r))
        a("s_nop 0")
        for i, r in idx: a("v_add_f32 v%d, 1.0, v%d" % (G + 4 * i + r, G + 4 * i + r))
        for i, r in idx: a("v_rcp_f32 v%d, v%d" % (G + 4 * i + r, G + 4 * i + r))
        a("s_nop 0")
        for i, r in idx: a("v_mul_f32 v%d, v%d, v%d" % (G + 4 * i + r, G + 4 * i + r, R + i * 16 + r))
        GP = 14
        for q in range(6): a("v_cvt_pk_bf16_f32 v%d, v%d, v%d" % (GP + q, G + 2 * q, G + 2 * q + 1))
        a("s_waitcnt vmcnt(10)")
        for q in range(6): a("v_mov_b32 v%d, v%d" % (20 + q, XR + q))
        XR = 20
        self.stamp(5, "f23")
        if "noA" in self.dbg: self.finish()
        a("s_mul_i32 s%d, s%d, 20480" % (S_T, S_KQ))
        a("v_add_u32 v%d, s%d, v%d" % (V_TA, S_T, V_L16))
        a("v_bfe_u32 v%d, v%d, 2, 1" % (T3, V_LANE))
        a("v_and_b32 v%d, 3, v%d" % (11, V_LANE))
        a("v_lshlrev_b32 v%d, 3, v%d" % (11, 11))
        a("v_lshl_add_u32 v%d, v%d, 7, v%d" % (11, T3, 11))
        a("s_lshl_b32 s%d, s%d, 10" % (S_T + 1, S_RB32))
        a("s_lshl_b32 s%d, s%d, 8" % (S_T + 2, S_KQ))
        a("s_add_u32 s%d, s%d, s%d" % (S_T + 1, S_T + 1, S_T + 2))
        a("s_lshl_b32 s%d, s%d, 2" % (S_T + 2, S_TH))
        a("s_add_u32 s%d, s%d, s%d" % (S_T + 1, S_T + 1, S_T + 2))
        a("s_add_u32 s%d, s%d, 0x%x" % (S_T + 1, S_T + 1, F2_O))
        a("s_waitcnt vmcnt(0)")
        a("s_barrier")
        a("s_setprio %d" % self.prio_f2)
        self.poll([(12, 1, 11, "s%d" % (S_T + 1))], T3, sleep=3, wave0=False)
        a("s_setprio 3")
        self.stamp(6, "f23")
        for s_ in range(5):
            for tt in range(2):
                a("buffer_load_dwordx4 %s, v%d, %s, s%d offen offset:%d %s" % (vr(OF + s_ * 8 + tt * 4, 4), V_L16, sr(SWS), S_H, tt * 1024, SC))
            a("s_add_u32 s%d, s%d, 4096" % (S_H, S_H))
        for s_ in range(5):
            a("s_waitcnt vmcnt(%d)" % (8 - 2 * s_))
            for c in range(5):
                if s_ > 0: a("s_waitcnt lgkmcnt(%d)" % (4 if s_ < 4 else 4 - c))
                for tt in range(2):
                    d = A3 + (tt * 5 + c) * 4
                    a("v_mfma_f32_16x16x32_bf16 %s, %s, %s, %s" % (vr(d, 4), vr(WR + 4 * c, 4), vr(OF + s_ * 8 + tt * 4, 4), "0" if s_ == 0 else vr(d, 4)))
                if s_ < 4: a("ds_read_b128 %s, v%d offset:%d" % (vr(WR + 4 * c, 4), V_TA, s_ * 5120 + c * 1024))
        a("v_add_u32 v%d, s%d, v%d" % (T3, S_LB, V_L16))
        a("s_barrier")
        a("s_nop 4")
        for q in range(10): a("ds_write_b128 v%d, %s offset:%d" % (T3, vr(A3 + 4 * q, 4), q * 1024))
        U = 28; GF = 96
        for q in range(6):
            a("v_lshlrev_b32 v%d, 16, v%d" % (U + 2 * q, XR + q))
            a("v_and_b32 v%d, 0xffff0000, v%d" % (U + 2 * q + 1, XR + q))
        a("s_waitcnt lgkmcnt(0)")
        a("s_barrier")
        for q in range(6):
            a("v_lshlrev_b32 v%d, 16, v%d" % (GF + 2 * q, GP + q))
            a("v_and_b32 v%d, 0xffff0000, v%d" % (GF + 2 * q + 1, GP + q))
        own_read()
        for i, r in idx: a("v_fmac_f32 v%d, v%d, v%d" % (U + 4 * i + r, R + i * 16 + r, GF + 4 * i + r))
        for q in range(6): a("v_cvt_pk_bf16_f32 v%d, v%d, v%d" % (XR + q, U + 2 * q, U + 2 * q + 1))
        for i in range(3):
            if i == 2:
                a("s_cmp_ge_u32 s%d, 4" % S_W)
                a("s_cbranch_scc1 F3_FIN")
            a("buffer_store_dwordx2 %s, v%d, %s, s%d offen" % (vr(XR + 2 * i, 2), GA + i, sr(SB), S_GB))
        a.label("F3_FIN")
        self.finish()

    def build(self):
        name = NAME + "_kernel"
        self.prologue(name)
        self.role_a()
        self.role_f1()
        self.role_f23()
        self.role_sp()
        self.a.end_kernel(name, NVGPR)
        return self.a.text(HEADER + "; @launch grid=(512,1,1) block=(512,1,1) lds=%d\n" % LDS_BYTES)

if __name__ == "__main__":
    dbg = sys.argv[2] if len(sys.argv) > 2 else ""
    import subprocess, re
    cb = 0x4000
    for it in range(2):
        m = Mega(stamps="st" in dbg.split(","), dbg=dbg, code_bytes=cb)
        open(sys.argv[1], "w").write(m.build())
        subprocess.run(["clang", "-x", "assembler", "-target", "amdgcn-amd-amdhsa", "-mcpu=gfx950", "-c", sys.argv[1], "-o", "_m.o"], check=True)
        o = subprocess.run(["llvm-objdump", "-h", "_m.o"], capture_output=True, text=True).stdout
        size = int(re.search(r"\.text\s+([0-9a-f]+)", o).group(1), 16)
        cb = (size - 256) & ~127
    print(sys.argv[1], "text bytes", size)
```

```python
from common import *

LDS_BYTES = 81920
NVGPR = 128
S_W = 3
SWS, SX, SA, SB, SDBG = 8, 12, 16, 20, 24
S_ID, S_RB32, S_HI, S_XCD, S_IDX = 28, 29, 30, 31, 32
S_VM = 34
P_X, P_WQ, P_WK, P_WV, P_WO, P_WG, P_WU, P_WD, P_OUT, P_DBG, P_WS = 36, 38, 40, 42, 44, 48, 50, 52, 54, 56, 58
SC_ = 4
S_T = 60
S_R = 70
STAMP0 = 86
V_LANE, V_L16, V_NONCE = 1, 2, 3
T0, T1, T2, T3 = 4, 5, 6, 7
SC = "sc1"
VMASK = 0x000FFFFF
TILE = 2560
CHUNK = 8 * TILE
SPIN_MAX = 1 << 14
DPPS = ("quad_perm:[1,0,3,2]", "quad_perm:[2,3,0,1]", "row_half_mirror", "row_mirror")

class Mega:
    def __init__(self, stamps=False, dbg="", code_bytes=0x4000):
        self.a = Asm()
        self.stamps = stamps
        self.code_bytes = code_bytes
        self.dbg = d = dbg.split(",")
        def opt(name, default):
            for x in d:
                if x.startswith(name + "="): return int(x.split("=")[1])
            return default
        self.prio_a = opt("pa", 1)
        self.prio_f1 = opt("pf1", 0)
        self.prio_fe = opt("pfe", 2)
        self.prio_f2 = opt("pf2", 0)
        self.prio_fr = opt("pfr", 2)
        self.hint_j = opt("hj", 3)
        self.prio_q = opt("pq", 2)
        self.prio_kv = opt("pkv", 3)
        self.f1sw = opt("f1sw", 0)
        self.prio_f1b = opt("pf1b", 0)
        self.asw = opt("asw", 99)
        self.prio_ab = opt("pab", 1)

    def stamp(self, i, tag=""):
        if tag == "f23" and "f1st" in self.dbg: return
        if self.stamps:
            self.a("s_memrealtime s[%d:%d]" % (STAMP0 + 2 * i, STAMP0 + 2 * i + 1))

    def finish(self, i_end=7):
        a = self.a
        if self.stamps:
            a("s_waitcnt vmcnt(0)")
            self.stamp(i_end)
            a("s_waitcnt lgkmcnt(0)")
            lab = a.newlabel("LST")
            a("s_cmp_lg_u32 s%d, 0" % S_W)
            a("s_cbranch_scc1 %s" % lab)
            a("s_xor_b32 s%d, s2, %d" % (S_T, 256 if "ffirst" in self.dbg else 0))
            a("s_lshl_b32 s%d, s%d, 6" % (S_T, S_T))
            a("s_add_u32 s%d, s%d, 0x%x" % (S_T, S_T, STAMP_OFF))
            a("s_add_u32 s%d, s%d, s%d" % (S_T + 2, P_WS, S_T))
            a("s_addc_u32 s%d, s%d, 0" % (S_T + 3, P_WS + 1))
            for r in range(16):
                a("v_mov_b32 v%d, s%d" % (8 + r, STAMP0 + r))
            a("v_mov_b32 v%d, 0" % T0)
            a("s_mov_b64 exec, 1")
            for q in range(4):
                a("global_store_dwordx4 v%d, %s, s[%d:%d] offset:%d" % (T0, vr(8 + 4 * q, 4), S_T + 2, S_T + 3, q * 16))
            a.label(lab)
        a("s_endpgm")

    def load_nonce(self, vz):
        self.a("v_mov_b32 v%d, 0" % vz)
        self.a("buffer_load_dword v%d, v%d, %s, 0 offen %s" % (V_NONCE, vz, sr(SDBG), SC))

    def poll(self, loads, vz, sleep=2, wave0=True):
        a = self.a
        done = a.newlabel("PD"); loop = a.newlabel("PL")
        if wave0:
            a("s_cmp_lg_u32 s%d, 0" % S_W)
            a("s_cbranch_scc1 %s" % done)
        a("s_mov_b32 s%d, %d" % (S_T, SPIN_MAX))
        a.label(loop)
        self.load_nonce(vz)
        for d, n, ad, so in loads:
            op = {1: "dword", 2: "dwordx2", 4: "dwordx4"}[n]
            a("buffer_load_%s %s, v%d, %s, %s offen %s" % (op, "v%d" % d if n == 1 else vr(d, n), ad, sr(SWS), so, SC))
        a("s_waitcnt vmcnt(0)")
        a("v_cmp_eq_u32 vcc, 0, v%d" % V_NONCE)
        for d, n, ad, so in loads:
            for r in range(n):
                a("v_cmp_ne_u32 s[%d:%d], v%d, v%d" % (S_T + 4, S_T + 5, V_NONCE, d + r))
                a("s_or_b64 vcc, vcc, s[%d:%d]" % (S_T + 4, S_T + 5))
        a("s_cbranch_scc0 %s" % done)
        a("s_sleep %d" % sleep)
        a("s_sub_u32 s%d, s%d, 1" % (S_T, S_T))
        a("s_cmp_lg_u32 s%d, 0" % S_T)
        a("s_cbranch_scc1 %s" % loop)
        a.label(done)
        if wave0: a("s_barrier")

    def wave_flag(self, soff, vz, first_wait=0):
        a = self.a
        loop = a.newlabel("GL"); ok = a.newlabel("GK")
        a("s_mov_b32 s%d, %d" % (S_T + 6, SPIN_MAX))
        a("v_mov_b32 v%d, 0" % vz)
        if first_wait:
            ent = a.newlabel("GE")
            a("s_waitcnt vmcnt(%d)" % first_wait)
            a("s_branch %s" % ent)
        a.label(loop)
        a("s_waitcnt vmcnt(0)")
        if first_wait: a.label(ent)
        a("v_cmp_ne_u32 vcc, 0, v%d" % V_NONCE)
        a("s_nop 0")
        a("s_cbranch_vccnz %s" % ok)
        a("buffer_load_dword v%d, v%d, %s, 0 offen %s" % (V_NONCE, vz, sr(SDBG), SC))
        a("s_sub_u32 s%d, s%d, 1" % (S_T + 6, S_T + 6))
        a("s_cmp_lg_u32 s%d, 0" % (S_T + 6))
        a("s_cbranch_scc1 %s" % loop)
        a.label(ok)
        a("s_mov_b64 exec, 1")
        a("buffer_store_dword v%d, v%d, %s, %s offen %s" % (V_NONCE, vz, sr(SWS), soff, SC))
        a("s_mov_b64 exec, -1")

    def wg_flag(self, soff):
        a = self.a
        done = a.newlabel("FD")
        self.load_nonce(T3)
        a("s_waitcnt vmcnt(0)")
        a("s_barrier")
        a("s_cmp_lg_u32 s%d, 0" % S_W)
        a("s_cbranch_scc1 %s" % done)
        self.wave_flag(soff, T3)
        a.label(done)

    def meanrstd(self, dst, s0):
        a = self.a
        a("v_mul_f32 v%d, 0x%x, v%d" % (dst, f32bits(-1.0 / 640), s0))
        a("v_mul_f32 v%d, 0x%x, v%d" % (s0 + 1, f32bits(1.0 / 640), s0 + 1))
        a("v_fma_f32 v%d, -v%d, v%d, v%d" % (s0 + 1, dst, dst, s0 + 1))
        a("v_max_f32 v%d, 0, v%d" % (s0 + 1, s0 + 1))
        a("v_add_f32 v%d, 0x%x, v%d" % (s0 + 1, f32bits(1e-5), s0 + 1))
        a("v_rsq_f32 v%d, v%d" % (dst + 1, s0 + 1))
        a("s_nop 0")

    def halfsum(self, regs, tmp):
        a = self.a
        for n, r in enumerate(regs): a("v_mov_b32 v%d, v%d" % (tmp + n, r))
        a("s_nop 1")
        for n, r in enumerate(regs): a("v_permlane32_swap_b32 v%d, v%d" % (tmp + n, r))
        a("s_nop 1")
        for n, r in enumerate(regs): a("v_add_f32 v%d, v%d, v%d" % (r, tmp + n, r))

    def tree(self, base, stride, n, width):
        step = 1
        while step < n:
            for p in range(0, n, 2 * step):
                for r in range(width):
                    self.a("v_add_f32 v%d, v%d, v%d" % (base + p * stride + r, base + p * stride + r, base + (p + step) * stride + r))
            step *= 2

    def prologue(self, name):
        a = self.a
        a.begin_kernel(name)
        if self.stamps:
            for i in range(1, 8): a("s_mov_b64 s[%d:%d], 0" % (STAMP0 + 2 * i, STAMP0 + 2 * i + 1))
        self.stamp(0)
        a("s_cmp_ge_u32 s2, 512")
        a("s_cbranch_scc0 M_GO")
        a("s_endpgm")
        a.label("M_GO")
        a("s_load_dwordx4 s[36:39], s[0:1], 0")
        a("s_load_dwordx4 s[40:43], s[0:1], 16")
        a("s_load_dwordx2 s[44:45], s[0:1], 32")
        a("s_load_dwordx4 s[48:51], s[0:1], 48")
        a("s_load_dwordx4 s[52:55], s[0:1], 64")
        a("s_load_dwordx4 s[56:59], s[0:1], 80")
        a("s_memrealtime s[%d:%d]" % (S_T + 8, S_T + 9))
        a("v_lshrrev_b32 v%d, 6, v0" % T0)
        a("v_and_b32 v%d, 63, v0" % V_LANE)
        a("v_readfirstlane_b32 s%d, v%d" % (S_W, T0))
        a("v_lshlrev_b32 v%d, 4, v%d" % (V_L16, V_LANE))
        if "pf" in self.dbg:
            a("s_getpc_b64 s[%d:%d]" % (S_T + 4, S_T + 5))
            a("v_lshlrev_b32 v%d, 7, v0" % T1)
            a("v_cmp_gt_u32 vcc, 0x%x, v%d" % (self.code_bytes, T1))
            a("s_and_saveexec_b64 s[%d:%d], vcc" % (S_T + 6, S_T + 7))
            a("s_cbranch_execz M_NPF")
            a("global_load_dword v19, v%d, s[%d:%d]" % (T1, S_T + 4, S_T + 5))
            a.label("M_NPF")
            a("s_mov_b64 exec, -1")
        a("v_mov_b32 v%d, 0" % V_NONCE)
        a("s_and_b32 s%d, s2, 255" % S_ID)
        a("s_and_b32 s%d, s2, 7" % S_XCD)
        a("s_lshr_b32 s%d, s%d, 3" % (S_IDX, S_ID))
        a("s_lshl_b32 s%d, s%d, 2" % (S_RB32, S_XCD))
        a("s_and_b32 s%d, s%d, 3" % (S_T + 2, S_IDX))
        a("s_add_u32 s%d, s%d, s%d" % (S_RB32, S_RB32, S_T + 2))
        a("s_lshr_b32 s%d, s%d, 5" % (S_HI, S_ID))
        a("s_mov_b32 s%d, 0x%x" % (S_VM, VMASK))
        a("s_mov_b32 s%d, 0x%x" % (S_VM + 1, VMASK))
        a("v_lshrrev_b32 v%d, 4, v%d" % (T0, V_LANE))
        a("s_and_b32 s%d, s%d, 1" % (S_T, S_W))
        a("s_lshl_b32 s%d, s%d, 2" % (S_T, S_T))
        a("v_add_u32 v%d, s%d, v%d" % (T0, S_T, T0))
        a("v_and_b32 v%d, 7, v%d" % (T1, V_LANE))
        a("v_xor_b32 v%d, v%d, v%d" % (T0, T0, T1))
        a("v_lshrrev_b32 v%d, 3, v%d" % (T1, V_LANE))
        a("v_mul_u32_u24 v%d, 1280, v%d" % (T1, T1))
        a("v_lshl_add_u32 v8, v%d, 4, v%d" % (T0, T1))
        a("s_cmp_lt_u32 s2, 256" if "ffirst" in self.dbg else "s_cmp_ge_u32 s2, 256")
        a("s_waitcnt lgkmcnt(0)")
        srd(a, SWS, P_WS, P_WS + 1, WS_USED)
        srd(a, SX, P_X, P_X + 1, 2621440)
        srd(a, SDBG, P_DBG, P_DBG + 1, 256)
        a("s_cbranch_scc1 ROLE_F")

    def role_a(self):
        a = self.a; dbg = self.dbg
        S_TI, S_HEAD, S_OX, S_OW, S_BUF, S_STG, S_DL, S_RB_ = [S_R + i for i in range(8)]
        V_VX = 8; V_VW = 9
        V_XA, V_WA = 11, 12
        XF = 16
        ACC = 80
        BUF = 18432
        a("s_setprio %d" % self.prio_kv)
        a("s_mov_b32 s%d, 0" % (S_R + 14))
        a("s_cmp_lt_u32 s%d, 4" % S_HI)
        a("s_cbranch_scc0 A1_SETUP")
        self.kv_issue()
        a.label("A1_SETUP")
        srd(a, SA, P_WQ, P_WQ + 1, 819200)
        if "tq" in dbg:
            a("s_cmp_ge_u32 s%d, 4" % S_W)
            a("s_cbranch_scc1 A1_NT")
            a("s_mul_i32 s%d, s%d, 25600" % (S_T, S_IDX))
            a("v_min_u32 v%d, 199, v0" % T0)
            a("v_lshlrev_b32 v%d, 7, v%d" % (T0, T0))
            a("buffer_load_dword v19, v%d, %s, s%d offen" % (T0, sr(SA), S_T))
            a.label("A1_NT")
        for m in range(2):
            a("v_add_u32 v%d, %d, v0" % (T0, 512 * m))
            a("v_mul_u32_u24 v%d, 6554, v%d" % (T1, T0))
            a("v_lshrrev_b32 v%d, 16, v%d" % (T1, T1))
            a("v_mul_u32_u24 v%d, 1120, v%d" % (T1, T1))
            a("v_lshl_add_u32 v%d, v%d, 4, v%d" % (V_VW + m, T0, T1))
        a("s_lshl_b32 s%d, s%d, 3" % (S_T, S_RB32))
        a("s_add_u32 s%d, s%d, s%d" % (S_T, S_T, S_W))
        a("s_mul_i32 s%d, s%d, 10240" % (S_OX, S_T))
        a("s_mul_i32 s%d, s%d, 160" % (S_OW, S_HI))
        a("s_lshl_b32 s%d, s%d, 10" % (S_BUF, S_W))
        a("s_add_u32 s%d, s%d, %d" % (S_BUF, S_BUF, 2 * BUF))
        def dma(tag):
            a("s_mov_b32 m0, s%d" % S_BUF)
            a("s_nop 0")
            a("buffer_load_dwordx4 v%d, %s, s%d offen lds" % (V_VX, sr(SX), S_OX))
            a("s_add_u32 m0, s%d, 8192" % S_BUF)
            a("s_add_u32 s%d, s%d, 128" % (S_OX, S_OX))
            a("buffer_load_dwordx4 v%d, %s, s%d offen lds" % (V_VW, sr(SA), S_OW))
            a("s_cmp_ge_u32 s%d, 2" % S_W)
            a("s_cbranch_scc1 A1_D%s" % tag)
            a("s_add_u32 m0, s%d, 16384" % S_BUF)
            a("s_nop 0")
            a("buffer_load_dwordx4 v%d, %s, s%d offen lds" % (V_VW + 1, sr(SA), S_OW))
            a.label("A1_D%s" % tag)
            a("s_add_u32 s%d, s%d, 81920" % (S_OW, S_OW))
            a("s_add_u32 s%d, s%d, %d" % (S_BUF, S_BUF, BUF))
            a("s_cmp_ge_u32 s%d, %d" % (S_BUF, 4 * BUF))
            a("s_cbranch_scc0 A1_E%s" % tag)
            a("s_sub_u32 s%d, s%d, %d" % (S_BUF, S_BUF, 4 * BUF))
            a.label("A1_E%s" % tag)
        a("s_or_b32 s%d, s%d, s%d" % (S_T + 2, S_ID, S_W))
        a("s_cmp_lg_u32 s%d, 0" % (S_T + 2))
        a("s_cbranch_scc1 M_NT")
        a("s_or_b32 s%d, s%d, 1" % (S_T + 8, S_T + 8))
        a("v_mov_b32 v%d, s%d" % (T0, S_T + 8))
        a("v_mov_b32 v%d, 0" % T1)
        a("s_mov_b64 exec, 1")
        a("buffer_store_dword v%d, v%d, %s, 0 offen %s" % (T0, T1, sr(SDBG), SC))
        a("s_mov_b64 exec, -1")
        a.label("M_NT")
        self.a1_dma = dma
        a("s_cmp_lt_u32 s%d, 4" % S_HI)
        a("s_cbranch_scc1 A1_ND0")
        if "noA" in dbg: self.finish()
        for t in "abce": dma(t)
        a.label("A1_ND0")
        a("s_and_b32 s%d, s%d, 1" % (S_TI, S_W))
        a("s_lshr_b32 s%d, s%d, 1" % (S_T + 2, S_W))
        a("s_lshl_b32 s%d, s%d, 2" % (S_HEAD, S_HI))
        a("s_add_u32 s%d, s%d, s%d" % (S_HEAD, S_HEAD, S_T + 2))
        a("v_and_b32 v%d, 31, v%d" % (T0, V_LANE))
        a("v_lshrrev_b32 v%d, 5, v%d" % (T1, V_LANE))
        a("v_bfe_u32 v%d, v%d, 1, 3" % (T2, V_LANE))
        a("v_xor_b32 v%d, v%d, v%d" % (T2, T2, T1))
        a("v_lshlrev_b32 v%d, 4, v%d" % (T2, T2))
        a("v_lshl_add_u32 v%d, v%d, 7, v%d" % (T2, T0, T2))
        a("s_lshl_b32 s%d, s%d, 12" % (S_T, S_TI))
        a("s_add_u32 s%d, s%d, %d" % (S_T, S_T, 2 * BUF))
        a("v_add_u32 v%d, s%d, v%d" % (V_XA, S_T, T2))
        a("v_bfe_u32 v%d, v%d, 2, 2" % (T2, V_LANE))
        a("v_lshl_add_u32 v%d, v%d, 3, v%d" % (T2, T1, T2))
        a("v_mul_u32_u24 v%d, 160, v%d" % (T2, T2))
        a("v_and_b32 v%d, 1, v%d" % (T3, V_LANE))
        a("v_lshl_add_u32 v%d, v%d, 4, v%d" % (T2, T3, T2))
        a("v_bfe_u32 v%d, v%d, 1, 1" % (T3, V_LANE))
        a("v_lshl_add_u32 v%d, v%d, 3, v%d" % (T2, T3, T2))
        a("v_bfe_u32 v%d, v%d, 4, 1" % (T3, V_LANE))
        a("v_lshl_add_u32 v%d, v%d, 5, v%d" % (T2, T3, T2))
        a("s_mul_i32 s%d, s%d, 40" % (S_T, S_T + 2))
        a("s_add_u32 s%d, s%d, %d" % (S_T, S_T, 8192 + 2 * BUF))
        a("v_add_u32 v%d, s%d, v%d" % (V_WA, S_T, T2))
        V_KA, V_K1A, V_V0A, V_V1A, V_IDX = 120, 121, 122, 123, 124
        AD = 125
        O = 96
        V0, V1 = 112, 116
        Q0, Q1 = 8, 12
        K0, K1 = 16, 20
        SAa, SBb = 24, 40
        S_SRC, S_DST, S_C, S_DK, S_CUR, S_OO, S_FO = S_R + 2, S_R + 3, S_R + 4, S_R + 5, S_R + 6, S_R + 8, S_R + 9
        a("v_mov_b32 v%d, v%d" % (V_KA, V_L16))
        a("v_lshlrev_b32 v%d, 3, v%d" % (V_K1A, T0))
        a("v_mul_u32_u24 v%d, 320, v%d" % (V_V0A, T1))
        a("v_lshl_add_u32 v%d, v%d, 4, v%d" % (V_V0A, T0, V_V0A))
        a("v_mov_b32 v%d, v%d" % (V_V1A, V_V0A))
        a("v_mov_b32 v%d, 0xdddddddd" % V_IDX)
        a("s_mul_i32 s%d, s%d, 20" % (S_T, S_HEAD))
        a("v_lshl_add_u32 v%d, v%d, 2, s%d" % (T1, T1, S_T))
        a("v_and_b32 v%d, 15, v%d" % (T0, V_LANE))
        a("v_lshlrev_b32 v%d, 4, v%d" % (T0, T0))
        a("v_bfe_u32 v%d, v%d, 4, 1" % (T2, V_LANE))
        a("v_lshl_add_u32 v%d, v%d, 10, v%d" % (T0, T2, T0))
        for j in range(3):
            a("v_add_u32 v%d, %d, v%d" % (T2, 8 * j, T1))
            a("v_lshrrev_b32 v%d, 5, v%d" % (T3, T2))
            a("v_lshl_add_u32 v%d, v%d, 12, v%d" % (AD + j, T3, T0))
            a("v_bfe_u32 v%d, v%d, 3, 2" % (T3, T2))
            a("v_lshl_add_u32 v%d, v%d, 8, v%d" % (AD + j, T3, AD + j))
            a("v_and_b32 v%d, 7, v%d" % (T3, T2))
            a("v_lshl_add_u32 v%d, v%d, 1, v%d" % (AD + j, T3, AD + j))
        a("s_mul_i32 s%d, s%d, 74" % (S_OO, S_RB32))
        a("s_add_u32 s%d, s%d, 54" % (S_OO, S_OO))
        a("s_lshl_b32 s%d, s%d, 12" % (S_OO, S_OO))
        a("s_lshl_b32 s%d, s%d, 11" % (S_T + 1, S_TI))
        a("s_add_u32 s%d, s%d, s%d" % (S_OO, S_OO, S_T + 1))
        a("s_add_u32 s%d, s%d, 0x%x" % (S_OO, S_OO, WS_HO))
        a("s_lshl_b32 s%d, s%d, 10" % (S_FO, S_RB32))
        a("s_lshl_b32 s%d, s%d, 7" % (S_T + 1, S_HI))
        a("s_add_u32 s%d, s%d, s%d" % (S_FO, S_FO, S_T + 1))
        a("s_lshl_b32 s%d, s%d, 2" % (S_T + 1, S_W))
        a("s_add_u32 s%d, s%d, s%d" % (S_FO, S_FO, S_T + 1))
        a("s_add_u32 s%d, s%d, 0x%x" % (S_FO, S_FO, F2_O))
        a("s_mov_b32 s%d, 0" % S_STG)
        a("s_mov_b32 s%d, %d" % (S_RB_, 2 * BUF))
        a("s_cmp_lt_u32 s%d, 4" % S_HI)
        a("s_cbranch_scc0 A1_GO")
        self.kv_body()
        if "noA" in dbg: self.finish()
        dma("c2"); dma("e2")
        a.label("A1_GO")
        a("s_setprio %d" % self.prio_q)
        for r in range(16): a("v_mov_b32 v%d, 0" % (ACC + r))
        for r in range(8): a("v_mov_b32 v%d, 0" % (V0 + r))
        a("s_mov_b32 exec_lo, 0x11000000")
        a("s_mov_b32 exec_hi, 0x11000000")
        for r in range(8): a("v_mov_b32 v%d, 0x3f803f80" % (V0 + r))
        a("s_mov_b64 exec, -1")
        def rd_ops(p):
            xf = XF + 32 * p; wf = xf + 16
            ops = []
            for kk in range(4):
                g = []
                if kk: g.append("v_xor_b32 v%d, %d, v%d" % (T0 + kk, kk << 5, V_XA))
                g.append("ds_read_b64_tr_b16 %s, v%d offset:%d" % (vr(wf + 4 * kk, 2), V_WA, kk * 2560))
                g.append("ds_read_b64_tr_b16 %s, v%d offset:%d" % (vr(wf + 4 * kk + 2, 2), V_WA, kk * 2560 + 640))
                g.append("ds_read_b128 %s, v%d" % (vr(xf + 4 * kk, 4), T0 + kk if kk else V_XA))
                ops.append(g)
            return ops
        def adv():
            a("s_add_u32 s%d, s%d, %d" % (S_RB_, S_RB_, BUF))
            a("s_cmp_eq_u32 s%d, %d" % (S_RB_, 4 * BUF))
            sel(a, S_DL, (-3 * BUF) & 0xffffffff, BUF)
            a("s_cselect_b32 s%d, 0, s%d" % (S_RB_, S_RB_))
            a("v_add_u32 v%d, s%d, v%d" % (V_XA, S_DL, V_XA))
            a("v_add_u32 v%d, s%d, v%d" % (V_WA, S_DL, V_WA))
        def mfq(p, kk):
            xf = XF + 32 * p; wf = xf + 16
            a("v_mfma_f32_32x32x16_bf16 %s, %s, %s, %s" % (vr(ACC, 16), vr(wf + 4 * kk, 4), vr(xf + 4 * kk, 4), vr(ACC, 16)))
        a("s_waitcnt vmcnt(6)")
        a("s_barrier")
        for g in rd_ops(0):
            for op in g: a(op)
        adv()
        a("s_cmp_eq_u32 s%d, 0" % (S_R + 14))
        a("s_cbranch_scc1 A1_NF")
        self.wave_flag("s%d" % (S_R + 14), T0, first_wait=4)
        self.stamp(6)
        a.label("A1_NF")
        def stage(p, wait, pre=None, mid=None, post=None, last=False):
            a("s_waitcnt lgkmcnt(0)" + ("" if wait is None else " vmcnt(%d)" % wait))
            if pre: pre()
            mfq(p, 0)
            a("s_barrier")
            ops = rd_ops(1 - p)
            for op in ops[0] + ops[1]: a(op)
            mfq(p, 1)
            for op in ops[2] + ops[3]: a(op)
            mfq(p, 2)
            if mid: mid()
            mfq(p, 3)
            if post: post()
            if not last: adv()
        a.label("A1_LOOP")
        stage(0, 4, mid=lambda: dma("d0"))
        stage(1, 4, mid=lambda: dma("d1"))
        a("s_add_u32 s%d, s%d, 1" % (S_STG, S_STG))
        a("s_cmp_lt_u32 s%d, 3" % S_STG)
        a("s_cbranch_scc1 A1_LOOP")
        FG = O
        S_OK = S_R + 13
        SCR = 4 * BUF
        floads = [(FG, 4, 13, "s%d" % (S_T + 1)), (FG + 4, 4, 13, "s%d" % (S_T + 2)), (FG + 8, 1, 14, "s%d" % (S_T + 3))]
        def flag_setup():
            a("v_lshlrev_b32 v13, 7, v%d" % V_LANE)
            a("v_min_u32 v14, %d, v13" % (19 * 128))
            a("s_mov_b32 s%d, 0x%x" % (S_T + 1, F2_K))
            a("s_mov_b32 s%d, 0x%x" % (S_T + 2, F2_K + 8192))
            a("s_mov_b32 s%d, 0x%x" % (S_T + 3, F2_Q))
        def try_issue():
            self.load_nonce(15)
            a("s_cmp_lg_u32 s%d, 0" % S_W)
            a("s_cbranch_scc1 A1_TI")
            flag_setup()
            for d, n, ad, so in floads:
                a("buffer_load_%s %s, v%d, %s, %s offen %s" % ("dword" if n == 1 else "dwordx4", "v%d" % d if n == 1 else vr(d, n), ad, sr(SWS), so, SC))
            a.label("A1_TI")
        def try_eval():
            a("s_cmp_lg_u32 s%d, 0" % S_W)
            a("s_cbranch_scc1 A1_TE")
            a("v_cmp_eq_u32 vcc, 0, v%d" % V_NONCE)
            for r in range(9):
                a("v_cmp_ne_u32 s[%d:%d], v%d, v%d" % (S_T + 4, S_T + 5, V_NONCE, FG + r))
                a("s_or_b64 vcc, vcc, s[%d:%d]" % (S_T + 4, S_T + 5))
            a("s_cselect_b32 s%d, 0, 1" % S_OK)
            a("v_mov_b32 v14, s%d" % S_OK)
            a("v_mov_b32 v13, %d" % SCR)
            a("ds_write_b32 v13, v14")
            a("s_waitcnt lgkmcnt(0)")
            a.label("A1_TE")
        def ok_read():
            a("v_mov_b32 v13, %d" % SCR)
            a("ds_read_b32 v14, v13")
        def ok_get():
            a("v_readfirstlane_b32 s%d, v14" % S_OK)
        CSV, CS2, ST, KN = 24, 36, 20, 16
        def dma_chunk(tag):
            for m in range(3):
                if m == 2:
                    a("s_cmp_ge_u32 s%d, 4" % S_W)
                    a("s_cbranch_scc1 A2_DS%s" % tag)
                a("s_add_u32 m0, s%d, %d" % (S_DST, m * 8192))
                a("s_add_u32 s%d, s%d, %d" % (S_T, S_SRC, m * 8192))
                a("buffer_load_dwordx4 v%d, %s, s%d offen %s lds" % (V_L16, sr(SWS), S_T, SC))
            a.label("A2_DS%s" % tag)
            a("s_add_u32 s%d, s%d, %d" % (S_SRC, S_SRC, CHUNK))
            a("s_add_u32 s%d, s%d, %d" % (S_DST, S_DST, CHUNK))
            a("s_cmp_ge_u32 s%d, %d" % (S_DST, 3 * CHUNK))
            a("s_cbranch_scc0 A2_DW%s" % tag)
            a("s_sub_u32 s%d, s%d, %d" % (S_DST, S_DST, 3 * CHUNK))
            a.label("A2_DW%s" % tag)
        def dep_loads(tag):
            a("v_lshrrev_b32 v13, 5, v%d" % V_LANE)
            a("v_lshlrev_b32 v13, 5, v13")
            a("v_mov_b32 v15, 0")
            a("s_mul_i32 s%d, s%d, 80" % (S_T, S_HEAD))
            a("s_add_u32 s%d, s%d, 0x%x" % (S_T, S_T, WS_CQ))
            for hf, rg in enumerate((CSV, CS2)):
                a("buffer_load_dwordx4 %s, v13, %s, s%d offen offset:%d %s" % (vr(rg, 4), sr(SWS), S_T, hf * 2560, SC))
                a("buffer_load_dwordx4 %s, v13, %s, s%d offen offset:%d %s" % (vr(rg + 4, 4), sr(SWS), S_T, hf * 2560 + 16, SC))
                a("buffer_load_dwordx4 %s, v15, %s, s%d offen offset:%d %s" % (vr(rg + 8, 4), sr(SWS), S_T, hf * 2560 + 64, SC))
            a("s_lshl_b32 s%d, s%d, 1" % (S_T, S_RB32))
            a("s_add_u32 s%d, s%d, s%d" % (S_T, S_T, S_TI))
            a("s_lshl_b32 s%d, s%d, 8" % (S_T, S_T))
            a("s_add_u32 s%d, s%d, 0x%x" % (S_T, S_T, WS_ST))
            a("buffer_load_dwordx2 %s, v%d, %s, s%d offen %s" % (vr(ST, 2), V_K1A, sr(SWS), S_T, SC))
            a("s_mov_b32 s%d, 0x%x" % (S_T, WS_KN))
            a("buffer_load_dwordx4 %s, v%d, %s, s%d offen %s" % (vr(KN, 4), V_L16, sr(SWS), S_T, SC))
            a("s_lshl_b32 s%d, s%d, 10" % (S_DST, S_W))
            a("s_add_u32 s%d, s%d, 0x%x" % (S_SRC, S_DST, WS_KV))
            dma_chunk(tag)
        def early_loads():
            a("s_cmp_eq_u32 s%d, 0" % S_OK)
            a("s_cbranch_scc1 A1_NE")
            dep_loads("a")
            a.label("A1_NE")
        stage(0, 4, mid=try_issue)
        stage(1, 0, pre=try_eval, mid=ok_read)
        stage(0, None, pre=ok_get, post=early_loads, last=True)
        a("s_waitcnt lgkmcnt(0)")
        for kk in range(4): mfq(1, kk)
        self.stamp(1)
        a("s_cmp_lg_u32 s%d, 0" % S_OK)
        a("s_cbranch_scc1 A1_OK")
        flag_setup()
        self.poll(floads, 15, sleep=4)
        dep_loads("a2")
        a.label("A1_OK")
        self.stamp(2)
        for r in range(16): a("v_mov_b32 v%d, 0" % (O + r))
        for r in range(8, 16): a("v_mov_b32 v%d, 0" % (SBb + r))
        a("v_mov_b32 v%d, 0x3f803f80" % (K1 + 2))
        a("v_mov_b32 v%d, 0x00003f80" % (K1 + 3))
        a("s_waitcnt vmcnt(2)")
        a("v_mul_f32 v%d, 0x%x, v%d" % (ST + 1, f32bits(LOG2E * 20 ** -0.5), ST + 1))
        for r in range(12): a("v_add_f32 v%d, v%d, v%d" % (CSV + r, CSV + r, CS2 + r))
        for r in range(12): a("v_fmac_f32 v%d, v%d, v%d" % (ACC + r, ST, CSV + r))
        for r in range(12): a("v_mul_f32 v%d, v%d, v%d" % (ACC + r, ST + 1, ACC + r))
        a("s_mov_b32 exec_lo, 0")
        for r in range(8, 12): a("v_mov_b32 v%d, 0" % (ACC + r))
        a("s_mov_b64 exec, -1")
        for r in range(6): a("v_cvt_pk_bf16_f32 v%d, v%d, v%d" % (Q0 + r, ACC + 2 * r, ACC + 2 * r + 1))
        a("v_mov_b32 v%d, 0" % (Q1 + 2))
        a("v_mov_b32 v%d, 0" % (Q1 + 3))
        a("v_mul_f32 v%d, v%d, v%d" % (T2, ACC, ACC))
        for r in range(1, 12): a("v_fmac_f32 v%d, v%d, v%d" % (T2, ACC + r, ACC + r))
        self.halfsum([T2], ACC)
        a("v_add_f32 v%d, v%d, v%d" % (KN, KN, KN + 1))
        a("v_add_f32 v%d, v%d, v%d" % (KN, KN, KN + 2))
        for dpp in DPPS:
            a("s_nop 1")
            a("v_max_f32_dpp v%d, v%d, v%d %s row_mask:0xf bank_mask:0xf" % (KN, KN, KN, dpp))
        a("s_nop 0")
        for q in range(4): a("v_readlane_b32 s%d, v%d, %d" % (S_T + q, KN, 16 * q))
        a("s_nop 3")
        a("s_max_u32 s%d, s%d, s%d" % (S_T, S_T, S_T + 1))
        a("s_max_u32 s%d, s%d, s%d" % (S_T + 2, S_T + 2, S_T + 3))
        a("s_max_u32 s%d, s%d, s%d" % (S_T, S_T, S_T + 2))
        a("v_mul_f32 v%d, s%d, v%d" % (T2, S_T, T2))
        a("v_sqrt_f32 v%d, v%d" % (T2, T2))
        a("v_mov_b32 v%d, 0x%x" % (T3, f32bits(72.0)))
        a("v_mul_f32 v%d, 0x%x, v%d" % (T2, f32bits(1.02), T2))
        a("v_cmp_nle_f32 vcc, v%d, v%d" % (T2, T3))
        a("v_add_f32 v%d, 0x%x, v%d" % (T2, f32bits(-48.0), T2))
        a("s_nop 0")
        if "forcefb" in dbg: a("s_branch A2_FB")
        a("s_cbranch_vccnz A2_FB")
        a.label("A2_SETM")
        a("v_sub_f32 v%d, 0, v%d" % (T2, T2))
        a("v_and_b32 v%d, 0xffff0000, v%d" % (T3, T2))
        a("v_sub_f32 v%d, v%d, v%d" % (T2, T2, T3))
        a("v_and_b32 v%d, 0xffff0000, v%d" % (T0, T2))
        a("v_sub_f32 v%d, v%d, v%d" % (T2, T2, T0))
        a("v_lshrrev_b32 v%d, 16, v%d" % (T3, T3))
        a("s_mov_b32 exec_hi, 0")
        a("v_or_b32 v%d, v%d, v%d" % (Q1 + 2, T3, T0))
        a("v_lshrrev_b32 v%d, 16, v%d" % (Q1 + 3, T2))
        a("s_mov_b64 exec, -1")
        a("s_waitcnt vmcnt(0)")
        a("s_barrier")
        dma_chunk("b")
        a("s_setprio %d" % self.prio_a)
        self.stamp(3)
        def rdK0(off): a("ds_read_b128 %s, v%d offset:%d" % (vr(K0, 4), V_KA, off))
        def rdK1(off): a("ds_read_b64 %s, v%d offset:%d" % (vr(K1, 2), V_K1A, off + 1024))
        def rdV(reg, addr, off):
            a("s_mov_b64 exec, s[%d:%d]" % (S_VM, S_VM + 1))
            a("ds_read_b128 %s, v%d offset:%d" % (vr(reg, 4), addr, off))
            a("s_mov_b64 exec, -1")
        def qk0(S): a("v_mfma_f32_32x32x16_bf16 %s, %s, %s, 0" % (vr(S, 16), vr(K0, 4), vr(Q0, 4)))
        def qk1(S): a("v_mfma_f32_32x32x16_bf16 %s, %s, %s, %s" % (vr(S, 16), vr(K1, 4), vr(Q1, 4), vr(S, 16)))
        def pv(Vf, P): a("v_smfmac_f32_32x32x32_bf16 %s, %s, %s, v%d" % (vr(O, 16), vr(Vf, 4), vr(P, 8), V_IDX))
        def ex(S, lo, hi):
            for r in range(lo, hi): a("v_exp_f32 v%d, v%d" % (S + r, S + r))
        rdK0(0); rdK1(0)
        a("s_waitcnt lgkmcnt(0)")
        qk0(SAa); qk1(SAa)
        rdK0(TILE); rdK1(TILE); rdV(V0, V_V0A, 1280)
        a("s_mov_b32 s%d, 0" % S_C)
        a("s_mov_b32 s%d, 0" % S_CUR)
        a("s_nop 7")
        a.label("A2_LOOP")
        a("s_add_u32 s%d, s%d, %d" % (S_CUR, S_CUR, CHUNK))
        a("s_cmp_eq_u32 s%d, %d" % (S_CUR, 3 * CHUNK))
        sel(a, S_DK, (-2 * CHUNK) & 0xffffffff, CHUNK)
        a("s_cselect_b32 s%d, 0, s%d" % (S_CUR, S_CUR))
        for j in range(8):
            Sc, Sn = (SAa, SBb) if j % 2 == 0 else (SBb, SAa)
            if j == self.hint_j:
                a("s_cmp_lg_u32 s%d, 7" % S_C)
                a("s_cbranch_scc1 A2_NH")
                self.wave_flag("s%d" % S_FO, T0)
                a.label("A2_NH")
            if j == 6:
                a("s_cmp_eq_u32 s%d, 7" % S_C)
                a("s_cbranch_scc1 A2_NODMA")
                a("s_waitcnt vmcnt(0)")
                a("s_barrier")
                a("s_cmp_ge_u32 s%d, 6" % S_C)
                a("s_cbranch_scc1 A2_NODMA")
                a("s_setprio 3")
                dma_chunk("c")
                a("s_setprio %d" % self.prio_a)
                a.label("A2_NODMA")
                a("v_add_u32 v%d, s%d, v%d" % (V_KA, S_DK, V_KA))
                a("v_add_u32 v%d, s%d, v%d" % (V_K1A, S_DK, V_K1A))
            if j == 7:
                a("v_add_u32 v%d, s%d, v%d" % (V_V0A, S_DK, V_V0A))
            a("s_waitcnt lgkmcnt(3)")
            pv(V1, Sn + 8)
            rdV(V1, V_V1A, j * TILE + 1920)
            ex(Sc, 0, 4)
            a("s_waitcnt lgkmcnt(3)")
            qk0(Sn)
            rdK0(((j + 2) % 8) * TILE)
            ex(Sc, 4, 8)
            a("s_waitcnt lgkmcnt(3)")
            qk1(Sn)
            rdK1(((j + 2) % 8) * TILE)
            ex(Sc, 8, 12)
            a("s_waitcnt lgkmcnt(3)")
            pv(V0, Sc)
            rdV(V0, V_V0A, ((j + 1) % 8) * TILE + 1280)
            ex(Sc, 12, 16)
            if j == 7: a("v_add_u32 v%d, s%d, v%d" % (V_V1A, S_DK, V_V1A))
            else: a("s_nop 0")
        a("s_add_u32 s%d, s%d, 1" % (S_C, S_C))
        if "atst" in dbg:
            for c_, sl in ((1, 1), (2, 2), (4, 5), (6, 6)):
                a("s_cmp_lg_u32 s%d, %d" % (S_C, c_))
                a("s_cbranch_scc1 A2_S%d" % c_)
                self.stamp(sl)
                a.label("A2_S%d" % c_)
        a("s_cmp_lt_u32 s%d, 8" % S_C)
        a("s_cbranch_scc1 A2_LOOP")
        a("s_setprio 3")
        a("s_waitcnt lgkmcnt(0)")
        pv(V1, SBb + 8)
        self.stamp(4)
        a("s_nop 11")
        a("v_rcp_f32 v%d, v%d" % (T3, O + 12))
        a("s_nop 0")
        for r in range(12): a("v_mul_f32 v%d, v%d, v%d" % (O + r, T3, O + r))
        PK = SAa
        for r in range(6): a("v_cvt_pk_bf16_f32 v%d, v%d, v%d" % (PK + r, O + 2 * r, O + 2 * r + 1))
        a("buffer_store_dwordx2 %s, v%d, %s, s%d offen %s" % (vr(PK, 2), AD, sr(SWS), S_OO, SC))
        a("buffer_store_dwordx2 %s, v%d, %s, s%d offen %s" % (vr(PK + 2, 2), AD + 1, sr(SWS), S_OO, SC))
        a("s_mov_b32 exec_hi, 0")
        a("buffer_store_dwordx2 %s, v%d, %s, s%d offen %s" % (vr(PK + 4, 2), AD + 2, sr(SWS), S_OO, SC))
        a("s_mov_b64 exec, -1")
        self.finish()
        a.label("A2_FB")
        a("v_mov_b32 v%d, 0xff800000" % T2)
        a("s_mov_b32 s%d, 0x%x" % (S_T, WS_KV))
        a.label("A2_FBL")
        a("buffer_load_dwordx4 %s, v%d, %s, s%d offen %s" % (vr(K0, 4), V_KA, sr(SWS), S_T, SC))
        a("buffer_load_dwordx2 %s, v%d, %s, s%d offen offset:1024 %s" % (vr(K1, 2), V_K1A, sr(SWS), S_T, SC))
        a("s_waitcnt vmcnt(0)")
        qk0(SAa); qk1(SAa)
        a("s_nop 15")
        for r in range(0, 16, 2): a("v_max3_f32 v%d, v%d, v%d, v%d" % (T2, T2, SAa + r, SAa + r + 1))
        a("s_add_u32 s%d, s%d, %d" % (S_T, S_T, TILE))
        a("s_cmp_lt_u32 s%d, 0x%x" % (S_T, WS_KV + 64 * TILE))
        a("s_cbranch_scc1 A2_FBL")
        a("v_mov_b32 v%d, v%d" % (T3, T2))
        a("s_nop 1")
        a("v_permlane32_swap_b32 v%d, v%d" % (T3, T2))
        a("s_nop 1")
        a("v_max_f32 v%d, v%d, v%d" % (T2, T2, T3))
        a("s_branch A2_SETM")

    def role_f1(self):
        a = self.a; dbg = self.dbg
        V_VX, V_VG, V_VU = 8, 9, 10
        V_XA = 12
        V_WA = 14
        V_SX = 16
        F = [24, 40]
        ACC = 56
        S_RB, S_CB, S_TH, S_CG, S_OX, S_OW, S_BX, S_BW, S_STG, S_ACT = [S_R + i for i in range(10)]
        WREG = 32768
        a.label("ROLE_F")
        a("s_cmp_ge_u32 s%d, 28" % S_IDX)
        a("s_cbranch_scc1 ROLE_SP")
        if "noF" in dbg: self.finish()
        a("s_and_b32 s%d, s%d, 3" % (S_T, S_XCD))
        a("s_mul_i32 s%d, s%d, 28" % (S_T, S_T))
        a("s_add_u32 s%d, s%d, s%d" % (S_T, S_T, S_IDX))
        a("s_lshr_b32 s%d, s%d, 3" % (S_CB, S_T))
        a("s_and_b32 s%d, s%d, 7" % (S_T, S_T))
        a("s_and_b32 s%d, s%d, 4" % (S_RB, S_XCD))
        a("s_lshl_b32 s%d, s%d, 1" % (S_RB, S_RB))
        a("s_add_u32 s%d, s%d, s%d" % (S_RB, S_RB, S_T))
        a("s_and_b32 s%d, s%d, 1" % (S_TH, S_W))
        a("s_lshr_b32 s%d, s%d, 1" % (S_CG, S_W))
        a("s_lshl_b32 s%d, s%d, 2" % (S_T, S_CB))
        a("s_add_u32 s%d, s%d, s%d" % (S_T, S_T, S_CG))
        a("s_cmp_lt_u32 s%d, 54" % S_T)
        a("s_cselect_b32 s%d, 1, 0" % S_ACT)
        srd(a, SA, P_WG, P_WG + 1, 2211840)
        srd(a, SB, P_WU, P_WU + 1, 2211840)
        a("s_lshl_b32 s%d, s%d, 4" % (S_T, S_RB))
        a("s_add_u32 s%d, s%d, s%d" % (S_T, S_T, S_W))
        a("s_mul_i32 s%d, s%d, 10240" % (S_OX, S_T))
        a("v_lshrrev_b32 v%d, 4, v%d" % (T0, V_LANE))
        a("v_bfe_u32 v%d, v%d, 2, 2" % (T1, V_LANE))
        a("v_mul_u32_u24 v%d, 3456, v%d" % (T2, T1))
        a("v_lshl_add_u32 v%d, v%d, 6, v%d" % (T2, T0, T2))
        a("v_and_b32 v%d, 3, v%d" % (T3, V_LANE))
        a("v_lshl_add_u32 v%d, v%d, 4, v%d" % (V_VG, T3, T2))
        a("v_xor_b32 v%d, 32, v%d" % (V_VU, V_VG))
        a("s_cmp_eq_u32 s%d, 13" % S_CB)
        a("s_cbranch_scc0 F1_FULL")
        a("s_mov_b32 exec_lo, 0")
        a("v_mov_b32 v%d, 0x40000000" % V_VG)
        a("v_mov_b32 v%d, 0x40000000" % V_VU)
        a("s_mov_b64 exec, -1")
        a.label("F1_FULL")
        a("s_mul_i32 s%d, s%d, %d" % (S_OW, S_W, 4 * 3456))
        a("s_lshl_b32 s%d, s%d, 8" % (S_T, S_CB))
        a("s_add_u32 s%d, s%d, s%d" % (S_OW, S_OW, S_T))
        a("s_lshl_b32 s%d, s%d, 10" % (S_BW, S_W))
        a("s_mov_b32 s%d, s%d" % (S_BX, S_BW))
        def dmaX():
            return [
              ["s_mov_b32 m0, s%d" % S_BX, "s_add_u32 s%d, s%d, 81920" % (S_T, S_OX),
               "buffer_load_dwordx4 v%d, %s, s%d offen lds" % (V_VX, sr(SX), S_OX)],
              ["s_add_u32 m0, s%d, 8192" % S_BX, "s_add_u32 s%d, s%d, 128" % (S_OX, S_OX),
               "buffer_load_dwordx4 v%d, %s, s%d offen lds" % (V_VX, sr(SX), S_T), "s_xor_b32 s%d, s%d, 16384" % (S_BX, S_BX)],
            ]
        def dmaW(b):
            return [
              ["s_add_u32 m0, s%d, %d" % (S_BW, WREG + b * 16384), "s_nop 0",
               "buffer_load_dwordx4 v%d, %s, s%d offen lds" % (V_VG, sr(SA), S_OW)],
              ["s_add_u32 m0, s%d, %d" % (S_BW, WREG + b * 16384 + 8192), "s_nop 0",
               "buffer_load_dwordx4 v%d, %s, s%d offen lds" % (V_VU, sr(SB), S_OW), "s_add_u32 s%d, s%d, %d" % (S_OW, S_OW, 32 * 3456)],
            ]
        def emit(groups):
            for g in groups:
                for op in g: a(op)
        self.f1_first = lambda: emit(dmaX() + dmaW(0))
        def rd_setup():
            a("v_bfe_u32 v%d, v%d, 2, 2" % (T1, V_LANE))
            a("v_and_b32 v%d, 31, v%d" % (T0, V_LANE))
            a("v_lshrrev_b32 v%d, 5, v%d" % (T2, V_LANE))
            a("v_bfe_u32 v%d, v%d, 1, 3" % (T3, V_LANE))
            a("v_xor_b32 v%d, v%d, v%d" % (T3, T3, T2))
            a("v_lshlrev_b32 v%d, 4, v%d" % (T3, T3))
            a("v_lshl_add_u32 v%d, v%d, 7, v%d" % (T3, T0, T3))
            a("s_lshl_b32 s%d, s%d, 13" % (S_T, S_TH))
            a("v_add_u32 v%d, s%d, v%d" % (V_XA, S_T, T3))
            a("v_xor_b32 v%d, 32, v%d" % (V_XA + 1, V_XA))
            a("v_and_b32 v%d, 1, v%d" % (T0, V_LANE))
            a("v_lshlrev_b32 v%d, 4, v%d" % (T0, T0))
            a("v_bfe_u32 v%d, v%d, 1, 1" % (T3, V_LANE))
            a("v_lshl_add_u32 v%d, v%d, 3, v%d" % (T0, T3, T0))
            a("v_lshl_add_u32 v%d, v%d, 6, v%d" % (T0, T1, T0))
            a("v_lshl_add_u32 v%d, v%d, 11, v%d" % (T0, T2, T0))
            a("v_bfe_u32 v%d, v%d, 4, 1" % (T3, V_LANE))
            a("v_mul_u32_u24 v%d, 8224, v%d" % (T3, T3))
            a("s_lshl_b32 s%d, s%d, 8" % (S_T, S_CG))
            a("s_add_u32 s%d, s%d, %d" % (S_T, S_T, WREG))
            a("v_add3_u32 v%d, v%d, v%d, s%d" % (V_WA, T0, T3, S_T))
            a("v_xor_b32 v%d, 32, v%d" % (V_WA + 1, V_WA))
        emit(dmaX() + dmaW(0) + dmaW(1) + dmaX() + dmaW(2))
        if "tf" in dbg:
            a("s_and_b32 s%d, s%d, 7" % (S_T, S_RB))
            a("s_mul_i32 s%d, s%d, %d" % (S_T, S_T, 80 * 3456))
            a("s_lshl_b32 s%d, s%d, 8" % (S_T + 1, S_CB))
            a("s_add_u32 s%d, s%d, s%d" % (S_T, S_T, S_T + 1))
            a("v_and_b32 v%d, 255, v0" % T0)
            a("v_min_u32 v%d, 159, v%d" % (T0, T0))
            a("v_lshrrev_b32 v%d, 1, v%d" % (T1, T0))
            a("v_mul_u32_u24 v%d, 3456, v%d" % (T1, T1))
            a("v_and_b32 v%d, 1, v%d" % (T0, T0))
            a("v_lshl_add_u32 v%d, v%d, 7, v%d" % (T0, T0, T1))
            a("s_cmp_ge_u32 s%d, 4" % S_W)
            a("s_cbranch_scc1 F1_TU")
            a("buffer_load_dword v19, v%d, %s, s%d offen" % (T0, sr(SA), S_T))
            a("s_branch F1_TX")
            a.label("F1_TU")
            a("buffer_load_dword v19, v%d, %s, s%d offen" % (T0, sr(SB), S_T))
            a.label("F1_TX")
            a("s_mul_i32 s%d, s%d, 163840" % (S_T, S_RB))
            a("s_and_b32 s%d, s%d, 3" % (S_T + 1, S_CB))
            a("s_mul_i32 s%d, s%d, 40960" % (S_T + 1, S_T + 1))
            a("s_add_u32 s%d, s%d, s%d" % (S_T, S_T, S_T + 1))
            a("v_min_u32 v%d, 319, v0" % T0)
            a("v_lshlrev_b32 v%d, 7, v%d" % (T0, T0))
            a("buffer_load_dword v18, v%d, %s, s%d offen" % (T0, sr(SX), S_T))
        a("s_setprio %d" % self.prio_f1)
        rd_setup()
        for r in range(64): a("v_mov_b32 v%d, 0" % (ACC + r))
        def rops(p, b, kk):
            f = F[p]
            ops = ["ds_read_b128 %s, v%d" % (vr(f, 4), V_XA + kk)]
            for ct in range(2):
                for j in range(2):
                    ops.append("ds_read_b64_tr_b16 %s, v%d offset:%d" % (vr(f + 8 + 4 * ct + 2 * j, 2), V_WA + ct, b * 16384 + kk * 4096 + j * 1024))
            ops.append("ds_read_b128 %s, v%d offset:4096" % (vr(f + 4, 4), V_XA + kk))
            return ops
        def mf(p, q):
            ti, ct = [(0, 0), (0, 1), (1, 0), (1, 1)][q]
            f = F[p]; d = ACC + (ti * 2 + ct) * 16
            a("v_mfma_f32_32x32x16_bf16 %s, %s, %s, %s" % (vr(d, 16), vr(f + 8 + 4 * ct, 4), vr(f + 4 * ti, 4), vr(d, 16)))
        a("s_mov_b32 s%d, 0" % S_STG)
        if "gate" in dbg:
            a("s_lshl_b32 s%d, s%d, 10" % (S_T + 1, S_RB))
            a("s_add_u32 s%d, s%d, 0x%x" % (S_T + 1, S_T + 1, F2_K + 12))
            a("v_mov_b32 v%d, 0" % T0)
            a("s_waitcnt vmcnt(6)")
            self.poll([(T1, 1, T0, "s%d" % (S_T + 1))], T3, sleep=8)
        else:
            a("s_waitcnt vmcnt(%d)" % (8 if "tf" in dbg else 6))
            a("s_barrier")
        self.stamp(1)
        a("s_cmp_eq_u32 s%d, 0" % S_ACT)
        a("s_cbranch_scc1 F1_IDLE")
        for op in rops(0, 0, 0): a(op)
        a.label("F1_LOOP")
        if self.f1sw:
            a("s_cmp_lg_u32 s%d, %d" % (S_STG, self.f1sw))
            a("s_cbranch_scc1 F1_SW")
            a("s_setprio %d" % self.prio_f1b)
            a.label("F1_SW")
        if "f1st" in dbg:
            for c_, sl in ((6, 4), (12, 5), (18, 6)):
                a("s_cmp_lg_u32 s%d, %d" % (S_STG, c_))
                a("s_cbranch_scc1 F1_S%d" % c_)
                self.stamp(sl)
                a.label("F1_S%d" % c_)
        for u in range(6):
            b = u % 3; odd = u & 1
            a("s_waitcnt lgkmcnt(0)")
            mf(0, 0)
            for op in rops(1, b, 1): a(op)
            mf(0, 1)
            dl = 64 | (16384 if odd else 0)
            a("v_xor_b32 v%d, 0x%x, v%d" % (V_XA, dl, V_XA))
            a("v_xor_b32 v%d, 0x%x, v%d" % (V_XA + 1, dl, V_XA + 1))
            mf(0, 2)
            if u == 1:
                a("s_cmp_eq_u32 s%d, 19" % S_STG)
                a("s_cbranch_scc1 F1_LAST")
            if u in (5, 0):
                a("s_cmp_ge_u32 s%d, 17" % S_STG)
                a("s_cbranch_scc1 F1_T%d" % u)
            a("s_waitcnt vmcnt(%d) lgkmcnt(0)" % (2 if odd else 4))
            mf(0, 3)
            a("s_barrier")
            mf(1, 0)
            for op in rops(0, (b + 1) % 3, 0): a(op)
            ops = dmaW(b) + (dmaX() if odd else [])
            mf(1, 1)
            emit(ops[:2])
            mf(1, 2)
            emit(ops[2:])
            mf(1, 3)
            if u in (5, 0):
                a("s_branch F1_N%d" % u)
                a.label("F1_T%d" % u)
                a("s_waitcnt vmcnt(0) lgkmcnt(0)")
                mf(0, 3)
                a("s_barrier")
                mf(1, 0)
                for op in rops(0, (b + 1) % 3, 0): a(op)
                for q in (1, 2, 3): mf(1, q)
                a.label("F1_N%d" % u)
            a("s_add_u32 s%d, s%d, 1" % (S_STG, S_STG))
        a("s_branch F1_LOOP")
        a.label("F1_IDLE")
        for u in range(6):
            b = u % 3; odd = u & 1
            if u == 1:
                a("s_cmp_eq_u32 s%d, 19" % S_STG)
                a("s_cbranch_scc1 F1_PUB")
            a("s_cmp_ge_u32 s%d, 17" % S_STG)
            a("s_cbranch_scc1 F1_IT%d" % u)
            a("s_waitcnt vmcnt(%d)" % (2 if odd else 4))
            a("s_barrier")
            emit(dmaW(b) + (dmaX() if odd else []))
            a("s_branch F1_IN%d" % u)
            a.label("F1_IT%d" % u)
            a("s_waitcnt vmcnt(0)")
            a("s_barrier")
            a.label("F1_IN%d" % u)
            a("s_add_u32 s%d, s%d, 1" % (S_STG, S_STG))
        a("s_branch F1_IDLE")
        a.label("F1_LAST")
        mf(0, 3)
        a("s_waitcnt lgkmcnt(0)")
        for q in range(4): mf(1, q)
        a("s_setprio %d" % self.prio_fe)
        self.stamp(2)
        a("s_lshl_b32 s%d, s%d, 1" % (S_T + 8, S_RB))
        a("s_add_u32 s%d, s%d, s%d" % (S_T + 8, S_T + 8, S_TH))
        a("s_lshl_b32 s%d, s%d, 9" % (S_T + 1, S_T + 8))
        a("s_add_u32 s%d, s%d, 0x%x" % (S_T + 1, S_T + 1, F2_K + 12))
        a("s_lshl_b32 s%d, s%d, 8" % (S_T + 2, S_CB))
        a("s_add_u32 s%d, s%d, 0x%x" % (S_T + 2, S_T + 2, F2_C))
        a("v_and_b32 v%d, 1, v%d" % (T1, V_LANE))
        a("v_lshlrev_b32 v%d, 7, v%d" % (T1, T1))
        a("v_add_u32 v%d, s%d, v%d" % (T0, S_T + 1, T1))
        a("s_mov_b32 exec_lo, 0")
        a("v_add_u32 v%d, s%d, v%d" % (T0, S_T + 2, T1))
        a("s_mov_b64 exec, -1")
        self.poll([(T1, 1, T0, "0")], T3, wave0=False)
        a("v_and_b32 v%d, 31, v%d" % (T0, V_LANE))
        a("v_lshlrev_b32 v%d, 3, v%d" % (T0, T0))
        a("s_lshl_b32 s%d, s%d, 9" % (S_T + 1, S_T + 8))
        a("s_add_u32 s%d, s%d, 0x%x" % (S_T + 1, S_T + 1, WS_ST))
        a("buffer_load_dwordx2 %s, v%d, %s, s%d offen %s" % (vr(V_SX, 2), T0, sr(SWS), S_T + 1, SC))
        a("buffer_load_dwordx2 %s, v%d, %s, s%d offen offset:256 %s" % (vr(V_SX + 2, 2), T0, sr(SWS), S_T + 1, SC))
        CSV = F[0]
        a("v_lshrrev_b32 v%d, 5, v%d" % (T2, V_LANE))
        a("v_lshlrev_b32 v%d, 5, v%d" % (T1, T2))
        a("s_lshl_b32 s%d, s%d, 2" % (S_T + 2, S_CB))
        a("s_add_u32 s%d, s%d, s%d" % (S_T + 2, S_T + 2, S_CG))
        a("s_lshl_b32 s%d, s%d, 7" % (S_T + 1, S_T + 2))
        a("s_add_u32 s%d, s%d, 0x%x" % (S_T + 1, S_T + 1, WS_CS))
        a("s_add_u32 s%d, s%d, 7168" % (S_T + 3, S_T + 1))
        for ct in range(2):
            for mat in range(2):
                for q in range(2):
                    a("buffer_load_dwordx4 %s, v%d, %s, s%d offen offset:%d %s" % (vr(CSV + ct * 16 + mat * 8 + q * 4, 4), T1, sr(SWS), S_T + 1 + 2 * mat, ct * 64 + q * 16, SC))
        a("v_and_b32 v%d, 15, v%d" % (T0, V_LANE))
        a("v_lshlrev_b32 v%d, 4, v%d" % (T0, T0))
        a("v_lshl_add_u32 v%d, v%d, 8, v%d" % (T0, T2, T0))
        a("v_bfe_u32 v%d, v%d, 4, 1" % (T1, V_LANE))
        a("v_lshl_add_u32 v%d, v%d, 10, v%d" % (T0, T1, T0))
        a("s_mul_i32 s%d, s%d, 74" % (S_T, S_T + 8))
        a("s_add_u32 s%d, s%d, s%d" % (S_T, S_T, S_T + 2))
        a("s_lshl_b32 s%d, s%d, 12" % (S_T, S_T))
        a("s_add_u32 s%d, s%d, 0x%x" % (S_T, S_T, WS_HO))
        a("s_waitcnt vmcnt(0)")
        for ti in range(2):
            for ct in range(2):
                d = ACC + (ti * 2 + ct) * 16
                for r in range(16):
                    a("v_fmac_f32 v%d, v%d, v%d" % (d + r, V_SX + 2 * ti, CSV + ct * 16 + r))
        TE = CSV + 16
        for ti in range(2):
            a("v_mul_f32 v%d, 0x%x, v%d" % (T1, f32bits(-LOG2E), V_SX + 2 * ti + 1))
            for ct in range(2):
                d = ACC + (ti * 2 + ct) * 16
                for r in range(8): a("v_mul_f32 v%d, v%d, v%d" % (TE + r, T1, d + r))
                for r in range(8): a("v_exp_f32 v%d, v%d" % (TE + r, TE + r))
                for r in range(8): a("v_mul_f32 v%d, v%d, v%d" % (d + r, d + r, d + 8 + r))
                for r in range(8): a("v_add_f32 v%d, 1.0, v%d" % (TE + r, TE + r))
                for r in range(8): a("v_rcp_f32 v%d, v%d" % (TE + r, TE + r))
                a("s_nop 0")
                for r in range(8): a("v_mul_f32 v%d, v%d, v%d" % (d + r, TE + r, d + r))
                o = CSV + (ti * 2 + ct) * 4
                for r in range(4): a("v_cvt_pk_bf16_f32 v%d, v%d, v%d" % (o + r, d + 2 * r, d + 2 * r + 1))
                a("buffer_store_dwordx4 %s, v%d, %s, s%d offen offset:%d %s" % (vr(o, 4), T0, sr(SWS), S_T, ti * 2048 + ct * 512, SC))
        a.label("F1_PUB")
        a("s_lshl_b32 s%d, s%d, 11" % (S_T, S_RB))
        a("s_lshl_b32 s%d, s%d, 7" % (S_T + 1, S_CB))
        a("s_add_u32 s%d, s%d, s%d" % (S_T, S_T, S_T + 1))
        a("s_lshl_b32 s%d, s%d, 2" % (S_T + 1, S_W))
        a("s_add_u32 s%d, s%d, s%d" % (S_T, S_T, S_T + 1))
        a("s_add_u32 s%d, s%d, 0x%x" % (S_T, S_T, F2_H))
        self.wave_flag("s%d" % S_T, T3)
        self.stamp(3)

    def kv_issue(self):
        a = self.a
        V_PI, V_WA, V_ONE, V_J, V_H = 13, 14, 15, 16, 17
        V_ST = 20
        XF = 24
        WF = 44
        AC = 64
        R = 80
        S_MAT, S_TILE, S_JOB = S_R + 10, S_R + 11, S_R + 12
        WO = 40960
        PB, PST, PCS = 0, 32768, 34816
        a("s_lshr_b32 s%d, s%d, 3" % (S_MAT, S_IDX))
        a("s_cmp_eq_u32 s%d, 0" % S_MAT)
        a("s_cselect_b32 s%d, s%d, s%d" % (SC_, P_WK, P_WV))
        a("s_cselect_b32 s%d, s%d, s%d" % (SC_ + 1, P_WK + 1, P_WV + 1))
        a("s_mov_b32 s%d, 25600" % (SC_ + 2))
        a("s_mov_b32 s%d, 0x20000" % (SC_ + 3))
        a("s_bfe_u32 s%d, s%d, 0x10002" % (S_T, S_IDX))
        a("s_lshl_b32 s%d, s%d, 1" % (S_TILE, S_RB32))
        a("s_add_u32 s%d, s%d, s%d" % (S_TILE, S_TILE, S_T))
        a("s_mul_i32 s%d, s%d, 40960" % (S_T, S_TILE))
        a("s_lshl_b32 s%d, s%d, 10" % (S_T + 1, S_W))
        for m in range(5):
            a("v_add_u32 v%d, %d, v0" % (T0, 512 * m))
            a("v_mul_u32_u24 v%d, 3277, v%d" % (T1, T0))
            a("v_lshrrev_b32 v%d, 18, v%d" % (T1, T1))
            a("v_mul_u32_u24 v%d, 80, v%d" % (T2, T1))
            a("v_sub_u32 v%d, v%d, v%d" % (T0, T0, T2))
            a("v_and_b32 v%d, 15, v%d" % (T2, T1))
            a("v_xor_b32 v%d, v%d, v%d" % (T0, T0, T2))
            a("v_and_b32 v%d, 19, v%d" % (T2, T1))
            a("v_bfe_u32 v%d, v%d, 2, 1" % (T3, T1))
            a("v_lshl_add_u32 v%d, v%d, 3, v%d" % (T2, T3, T2))
            a("v_bfe_u32 v%d, v%d, 3, 1" % (T3, T1))
            a("v_lshl_add_u32 v%d, v%d, 2, v%d" % (T2, T3, T2))
            a("v_mul_u32_u24 v%d, 1280, v%d" % (T2, T2))
            a("s_add_u32 m0, s%d, %d" % (S_T + 1, m * 8192))
            a("v_lshl_add_u32 v%d, v%d, 4, v%d" % (T0, T0, T2))
            a("buffer_load_dwordx4 v%d, %s, s%d offen lds" % (T0, sr(SX), S_T))
        for m in range(4):
            if m == 3:
                a("s_cmp_lg_u32 s%d, 0" % S_W)
                a("s_cbranch_scc1 A1_SETUP")
            a("s_add_u32 m0, s%d, %d" % (S_T + 1, WO + m * 8192))
            a("s_add_u32 s%d, s%d, %d" % (S_T + 2, S_T + 1, m * 8192))
            a("buffer_load_dwordx4 v%d, %s, s%d offen lds" % (V_L16, sr(SC_), S_T + 2))

    def kv_body(self):
        a = self.a
        a("s_cmp_ge_u32 s%d, 4" % S_W)
        a("s_cbranch_scc1 KV_NP")
        a("s_mul_i32 s%d, s%d, 74" % (S_T, S_RB32))
        a("s_add_u32 s%d, s%d, 54" % (S_T, S_T))
        a("s_lshl_b32 s%d, s%d, 12" % (S_T, S_T))
        a("s_lshl_b32 s%d, s%d, 2" % (S_T + 1, S_HI))
        a("s_add_u32 s%d, s%d, s%d" % (S_T + 1, S_T + 1, S_W))
        a("s_mul_i32 s%d, s%d, 5120" % (S_T + 1, S_T + 1))
        a("s_add_u32 s%d, s%d, s%d" % (S_T, S_T, S_T + 1))
        a("s_add_u32 s%d, s%d, 0x%x" % (S_T, S_T, WS_HO))
        for r in range(4): a("v_mov_b32 v%d, -1" % (112 + r))
        for n in range(4):
            a("buffer_store_dwordx4 v[112:115], v%d, %s, s%d offen offset:%d %s" % (V_L16, sr(SWS), S_T, n * 1024, SC))
        a("s_add_u32 s%d, s%d, 4096" % (S_T, S_T))
        a("buffer_store_dwordx4 v[112:115], v%d, %s, s%d offen %s" % (V_L16, sr(SWS), S_T, SC))
        a.label("KV_NP")
        V_PI, V_WA, V_ONE, V_J, V_H = 13, 14, 15, 16, 17
        V_ST = 20
        XF = 24
        WF = 44
        AC = 64
        R = 80
        S_MAT, S_TILE, S_JOB = S_R + 10, S_R + 11, S_R + 12
        WO = 40960
        PB, PST, PCS = 0, 32768, 34816
        a("s_lshr_b32 s%d, s%d, 2" % (S_T, S_IDX))
        a("s_lshl_b32 s%d, s%d, 2" % (S_JOB, S_RB32))
        a("s_add_u32 s%d, s%d, s%d" % (S_JOB, S_JOB, S_T))
        a("s_lshl_b32 s%d, s%d, 5" % (S_JOB, S_JOB))
        a("s_add_u32 s%d, s%d, s%d" % (S_JOB, S_JOB, S_W))
        a("s_lshl_b32 s%d, s%d, 2" % (S_JOB, S_JOB))
        a("s_add_u32 s%d, s%d, 0x%x" % (S_JOB, S_JOB, F2_K))
        a("v_and_b32 v%d, 31, v%d" % (V_J, V_LANE))
        a("v_and_b32 v%d, 19, v%d" % (T0, V_LANE))
        a("v_bfe_u32 v%d, v%d, 2, 1" % (T1, V_LANE))
        a("v_lshl_add_u32 v%d, v%d, 3, v%d" % (T0, T1, T0))
        a("v_bfe_u32 v%d, v%d, 3, 1" % (T1, V_LANE))
        a("v_lshl_add_u32 v%d, v%d, 2, v%d" % (V_PI, T1, T0))
        a("v_lshrrev_b32 v%d, 5, v%d" % (V_H, V_LANE))
        a("v_bfe_u32 v%d, v%d, 2, 2" % (T2, V_LANE))
        a("v_lshl_add_u32 v%d, v%d, 3, v%d" % (T2, V_H, T2))
        a("v_mul_u32_u24 v%d, 40, v%d" % (T2, T2))
        a("v_bfe_u32 v%d, v%d, 4, 1" % (T3, V_LANE))
        a("v_lshl_add_u32 v%d, v%d, 5, v%d" % (T2, T3, T2))
        a("s_mul_i32 s%d, s%d, 3200" % (S_T, S_W))
        a("s_add_u32 s%d, s%d, %d" % (S_T, S_T, WO))
        a("s_sub_u32 s%d, 4, s%d" % (S_T + 1, S_MAT))
        a("s_add_u32 s%d, s%d, 3" % (S_T + 2, S_MAT))
        a("v_and_b32 v%d, 1, v%d" % (T3, V_LANE))
        a("v_lshlrev_b32 v%d, s%d, v%d" % (T3, S_T + 1, T3))
        a("v_add3_u32 v%d, v%d, v%d, s%d" % (T2, T2, T3, S_T))
        a("v_bfe_u32 v%d, v%d, 1, 1" % (T3, V_LANE))
        a("v_lshlrev_b32 v%d, s%d, v%d" % (T3, S_T + 2, T3))
        a("v_add_u32 v%d, v%d, v%d" % (V_WA, T2, T3))
        a("v_and_b32 v%d, 15, v%d" % (T2, V_LANE))
        a("v_xor_b32 v%d, v%d, v%d" % (T2, T2, V_H))
        a("v_mul_u32_u24 v%d, 1280, v%d" % (T3, V_J))
        a("s_mul_i32 s%d, s%d, 10" % (S_T, S_W))
        for s_ in range(5):
            a("v_xor_b32 v%d, s%d, v%d" % (T0, S_T, T2))
            a("s_add_u32 s%d, s%d, 2" % (S_T, S_T))
            a("v_lshl_add_u32 v%d, v%d, 4, v%d" % (R + s_, T0, T3))
        a("v_mov_b32 v%d, 0x3f803f80" % V_ONE)
        for r in range(6): a("v_mov_b32 v%d, 0" % (R + 8 + r))
        a("s_waitcnt vmcnt(5)")
        a("s_cmp_lt_u32 s%d, 4" % S_W)
        a("s_cbranch_scc1 KV_W")
        a("s_waitcnt vmcnt(0)")
        a.label("KV_W")
        a("s_barrier")
        self.stamp(5)
        for s_ in range(5):
            a("ds_read_b128 %s, v%d" % (vr(XF + 4 * s_, 4), R + s_))
            a("ds_read_b64_tr_b16 %s, v%d offset:%d" % (vr(WF + 4 * s_, 2), V_WA, s_ * 640))
            a("ds_read_b64_tr_b16 %s, v%d offset:%d" % (vr(WF + 4 * s_ + 2, 2), V_WA, s_ * 640 + 160))
        self.load_nonce(T3)
        a("s_waitcnt lgkmcnt(0)")
        D = R + 8
        for r in range(20):
            o = 3 * (r & 1)
            a("v_dot2c_f32_bf16 v%d, v%d, v%d" % (D + o, V_ONE, XF + r))
            a("v_dot2c_f32_bf16 v%d, v%d, v%d" % (D + o + 1, XF + r, XF + r))
            a("v_dot2c_f32_bf16 v%d, v%d, v%d" % (D + o + 2, V_ONE, WF + r))
        a("s_cmp_eq_u32 s%d, 0" % S_MAT)
        a("s_cbranch_scc0 KV_MV")
        for s_ in range(5):
            a("v_mfma_f32_32x32x16_bf16 %s, %s, %s, %s" % (vr(AC, 16), vr(WF + 4 * s_, 4), vr(XF + 4 * s_, 4), "0" if s_ == 0 else vr(AC, 16)))
        a("s_branch KV_MD")
        a.label("KV_MV")
        for s_ in range(5):
            a("v_mfma_f32_32x32x16_bf16 %s, %s, %s, %s" % (vr(AC, 16), vr(XF + 4 * s_, 4), vr(WF + 4 * s_, 4), "0" if s_ == 0 else vr(AC, 16)))
        a.label("KV_MD")
        a("s_barrier")
        self.a1_dma("k0"); self.a1_dma("k1")
        for r in range(3): a("v_add_f32 v%d, v%d, v%d" % (V_ST + r, D + r, D + 3 + r))
        self.halfsum([V_ST, V_ST + 1, V_ST + 2], R)
        a("s_lshl_b32 s%d, s%d, 8" % (S_T, S_W))
        a("v_lshl_add_u32 v%d, v%d, 3, s%d" % (T0, V_J, S_T))
        a("ds_write_b64 v%d, %s offset:%d" % (T0, vr(V_ST, 2), PST))
        a("s_lshl_b32 s%d, s%d, 7" % (S_T, S_W))
        a("v_lshl_add_u32 v%d, v%d, 2, s%d" % (T0, V_J, S_T))
        a("ds_write_b32 v%d, v%d offset:%d" % (T0, V_ST + 2, PCS))
        a("s_lshl_b32 s%d, s%d, 12" % (S_T, S_W))
        a("v_add_u32 v%d, s%d, v%d" % (T0, S_T, V_L16))
        for q in range(4): a("ds_write_b128 v%d, %s offset:%d" % (T0, vr(AC + 4 * q, 4), q * 1024))
        a("s_waitcnt lgkmcnt(0)")
        a("s_barrier")
        a("s_cmp_ge_u32 s%d, 4" % S_W)
        a("s_cbranch_scc1 KV_DONE")
        a("s_lshl_b32 s%d, s%d, 10" % (S_T, S_W))
        a("v_add_u32 v%d, s%d, v%d" % (T0, S_T, V_L16))
        for p in range(8): a("ds_read_b128 %s, v%d offset:%d" % (vr(XF + 4 * p, 4), T0, p * 4096))
        a("s_mul_i32 s%d, s%d, 2560" % (S_T + 3, S_TILE))
        a("s_add_u32 s%d, s%d, 0x%x" % (S_T + 3, S_T + 3, WS_KV))
        a("s_cmp_eq_u32 s%d, 0" % S_MAT)
        a("s_cbranch_scc0 KV_V")
        SP = 56; CP = 72
        a("v_lshlrev_b32 v%d, 3, v%d" % (T0, V_J))
        a("s_waitcnt lgkmcnt(4)")
        for p in range(8): a("ds_read_b64 %s, v%d offset:%d" % (vr(SP + 2 * p, 2), T0, PST + p * 256))
        a("s_lshl_b32 s%d, s%d, 5" % (S_T, S_W))
        a("v_lshl_add_u32 v%d, v%d, 4, s%d" % (T0, V_H, S_T))
        a("s_waitcnt lgkmcnt(4)")
        for p in range(8): a("ds_read_b128 %s, v%d offset:%d" % (vr(CP + 4 * p, 4), T0, PCS + p * 128))
        self.tree(XF, 4, 8, 4)
        a("s_waitcnt lgkmcnt(8)")
        self.tree(SP, 2, 8, 2)
        self.meanrstd(V_ST, SP)
        a("v_lshlrev_b32 v%d, 3, v%d" % (T2, V_PI))
        a("s_cmp_eq_u32 s%d, 3" % S_W)
        a("s_cbranch_scc0 KV_K1")
        a("s_lshl_b32 s%d, s%d, 8" % (S_T, S_TILE))
        a("s_add_u32 s%d, s%d, 0x%x" % (S_T, S_T, WS_ST))
        a("s_mov_b32 exec_hi, 0")
        a("buffer_store_dwordx2 %s, v%d, %s, s%d offen %s" % (vr(V_ST, 2), T2, sr(SWS), S_T, SC))
        a("s_mov_b64 exec, -1")
        a("s_branch KV_FLAG")
        a.label("KV_K1")
        a("s_waitcnt lgkmcnt(0)")
        self.tree(CP, 4, 8, 4)
        for r in range(4): a("v_fmac_f32 v%d, v%d, v%d" % (XF + r, V_ST, CP + r))
        for r in range(4): a("v_mul_f32 v%d, v%d, v%d" % (XF + r, V_ST + 1, XF + r))
        for r in range(2): a("v_cvt_pk_bf16_f32 v%d, v%d, v%d" % (SP + r, XF + 2 * r, XF + 2 * r + 1))
        a("v_mov_b32 v%d, 0" % T3)
        a("s_cmp_eq_u32 s%d, 2" % S_W)
        a("s_cbranch_scc1 KV_K2")
        a("v_lshlrev_b32 v%d, 9, v%d" % (T0, V_H))
        a("v_lshl_add_u32 v%d, v%d, 4, v%d" % (T2, V_PI, T0))
        a("s_lshl_b32 s%d, s%d, 3" % (S_T, S_W))
        a("s_add_u32 s%d, s%d, s%d" % (S_T + 3, S_T + 3, S_T))
        a("s_branch KV_K3")
        a.label("KV_K2")
        a("s_add_u32 s%d, s%d, 1024" % (S_T + 3, S_T + 3))
        a("s_mov_b32 exec_hi, 0")
        a.label("KV_K3")
        a("buffer_store_dwordx2 %s, v%d, %s, s%d offen %s" % (vr(SP, 2), T2, sr(SWS), S_T + 3, SC))
        for r in range(4): a("v_fmac_f32 v%d, v%d, v%d" % (T3, XF + r, XF + r))
        a("s_mov_b64 exec, -1")
        self.halfsum([T3], CP)
        for dpp in DPPS:
            a("s_nop 1")
            a("v_max_f32_dpp v%d, v%d, v%d %s row_mask:0xf bank_mask:0xf" % (T3, T3, T3, dpp))
        a("s_nop 1")
        a("v_readlane_b32 s%d, v%d, 0" % (S_T, T3))
        a("v_readlane_b32 s%d, v%d, 16" % (S_T + 1, T3))
        a("s_lshl_b32 s%d, s%d, 2" % (S_T + 2, S_TILE))
        a("s_add_u32 s%d, s%d, s%d" % (S_T + 2, S_T + 2, S_W))
        a("s_lshl_b32 s%d, s%d, 2" % (S_T + 2, S_T + 2))
        a("s_add_u32 s%d, s%d, 0x%x" % (S_T + 2, S_T + 2, WS_KN))
        a("s_max_u32 s%d, s%d, s%d" % (S_T, S_T, S_T + 1))
        a("v_mov_b32 v%d, s%d" % (T3, S_T))
        a("v_mov_b32 v%d, 0" % T0)
        a("s_mov_b64 exec, 1")
        a("buffer_store_dword v%d, v%d, %s, s%d offen %s" % (T3, T0, sr(SWS), S_T + 2, SC))
        a("s_mov_b64 exec, -1")
        a("s_branch KV_FLAG")
        a.label("KV_V")
        SP = 56
        CP = 28
        a("s_lshl_b32 s%d, s%d, 6" % (S_T, S_W))
        a("v_lshl_add_u32 v%d, v%d, 5, s%d" % (T0, V_H, S_T))
        a("s_waitcnt lgkmcnt(4)")
        for p in range(5):
            a("ds_read_b128 %s, v%d offset:%d" % (vr(SP + 8 * p, 4), T0, PST + p * 256))
            a("ds_read_b128 %s, v%d offset:%d" % (vr(SP + 8 * p + 4, 4), T0, PST + p * 256 + 16))
        a("v_lshlrev_b32 v%d, 2, v%d" % (T2, V_J))
        a("s_waitcnt lgkmcnt(8)")
        for p in range(5, 8):
            a("ds_read_b128 %s, v%d offset:%d" % (vr(SP + 8 * p, 4), T0, PST + p * 256))
            a("ds_read_b128 %s, v%d offset:%d" % (vr(SP + 8 * p + 4, 4), T0, PST + p * 256 + 16))
        self.tree(XF, 4, 8, 4)
        a("s_waitcnt lgkmcnt(6)")
        for p in range(8): a("ds_read_b32 v%d, v%d offset:%d" % (CP + p, T2, PCS + p * 128))
        a("s_waitcnt lgkmcnt(8)")
        self.tree(SP, 8, 8, 8)
        for r in range(4): self.meanrstd(SP + 8 + 2 * r, SP + 2 * r)
        a("s_waitcnt lgkmcnt(0)")
        self.tree(CP, 1, 8, 1)
        for r in range(4): a("v_fmac_f32 v%d, v%d, v%d" % (XF + r, CP, SP + 8 + 2 * r))
        for r in range(4): a("v_mul_f32 v%d, v%d, v%d" % (XF + r, SP + 9 + 2 * r, XF + r))
        for r in range(2): a("v_cvt_pk_bf16_f32 v%d, v%d, v%d" % (CP + 2 + r, XF + 2 * r, XF + 2 * r + 1))
        a("v_mul_u32_u24 v%d, 320, v%d" % (T0, V_H))
        a("v_lshl_add_u32 v%d, v%d, 4, v%d" % (T0, V_J, T0))
        a("s_lshr_b32 s%d, s%d, 1" % (S_T, S_W))
        a("s_mul_i32 s%d, s%d, 640" % (S_T, S_T))
        a("s_add_u32 s%d, s%d, s%d" % (S_T + 3, S_T + 3, S_T))
        a("s_and_b32 s%d, s%d, 1" % (S_T, S_W))
        a("s_lshl_b32 s%d, s%d, 3" % (S_T, S_T))
        a("s_add_u32 s%d, s%d, s%d" % (S_T + 3, S_T + 3, S_T))
        a("s_mov_b64 exec, s[%d:%d]" % (S_VM, S_VM + 1))
        a("buffer_store_dwordx2 %s, v%d, %s, s%d offen offset:1280 %s" % (vr(CP + 2, 2), T0, sr(SWS), S_T + 3, SC))
        a("s_mov_b64 exec, -1")
        a.label("KV_FLAG")
        if "noA" in self.dbg:
            self.wave_flag("s%d" % S_JOB, T0)
        a("s_mov_b32 s%d, s%d" % (S_R + 14, S_JOB))
        a.label("KV_DONE")
        a("s_waitcnt lgkmcnt(0)")
        a("s_barrier")

    def role_sp(self):
        a = self.a
        S_J, S_G, S_LB = S_R, S_R + 1, S_R + 2
        S_D = S_R + 4
        S_O, S_F = S_R + 12, S_R + 13
        LD = 16; AC = 8
        a.label("ROLE_SP")
        a("s_sub_u32 s%d, s%d, 28" % (S_J, S_IDX))
        a("s_lshl_b32 s%d, s%d, 3" % (S_J, S_J))
        a("s_add_u32 s%d, s%d, s%d" % (S_J, S_J, S_XCD))
        def colsum(tag, lpr, stride, nload):
            sh = {16: 4, 8: 3}[lpr]; ncol = lpr * 8; csh = sh + 3; ng = 512 // ncol
            a("v_lshrrev_b32 v%d, %d, v%d" % (T0, sh, V_LANE))
            a("v_mul_u32_u24 v%d, %d, v%d" % (T0, stride, T0))
            a("v_and_b32 v%d, %d, v%d" % (T1, lpr - 1, V_LANE))
            a("v_lshl_add_u32 v%d, v%d, 4, v%d" % (T0, T1, T0))
            for i in range(nload):
                a("buffer_load_dwordx4 %s, v%d, %s, s%d offen" % (vr(LD + 4 * i, 4), T0, sr(SA), S_T))
                a("s_add_u32 s%d, s%d, %d" % (S_T, S_T, (64 // lpr) * stride))
            for r in range(8): a("v_mov_b32 v%d, 0" % (AC + r))
            for i in range(nload):
                a("s_waitcnt vmcnt(%d)" % (nload - 1 - i))
                for q in range(4):
                    a("v_lshlrev_b32 v%d, 16, v%d" % (T2, LD + 4 * i + q))
                    a("v_and_b32 v%d, 0xffff0000, v%d" % (T3, LD + 4 * i + q))
                    a("v_add_f32 v%d, v%d, v%d" % (AC + 2 * q, AC + 2 * q, T2))
                    a("v_add_f32 v%d, v%d, v%d" % (AC + 2 * q + 1, AC + 2 * q + 1, T3))
            self.load_nonce(T3)
            a("v_lshlrev_b32 v%d, 5, v0" % T0)
            a("ds_write_b128 v%d, %s" % (T0, vr(AC, 4)))
            a("ds_write_b128 v%d, %s offset:16" % (T0, vr(AC + 4, 4)))
            a("v_lshrrev_b32 v%d, %d, v0" % (T1, csh))
            a("v_and_b32 v%d, %d, v0" % (T2, ncol - 1))
            a("v_lshlrev_b32 v%d, 2, v%d" % (T2, T2))
            a("v_lshl_add_u32 v%d, v%d, %d, v%d" % (T1, T1, csh + 5, T2))
            a("s_waitcnt lgkmcnt(0)")
            a("s_barrier")
            for p in range(8): a("ds_read_b32 v%d, v%d offset:%d" % (LD + p, T1, p * ncol * 4))
            a("v_lshlrev_b32 v%d, 2, v0" % T0)
            a("s_waitcnt lgkmcnt(0)")
            self.tree(LD, 1, 8, 1)
            a("ds_write_b32 v%d, v%d offset:16384" % (T0, LD))
            a("s_waitcnt lgkmcnt(0)")
            a("s_barrier")
            a("s_cmp_lg_u32 s%d, 0" % S_W)
            a("s_cbranch_scc1 SP_%s" % tag)
            nw = ncol // 64
            for h in range(nw):
                for p in range(ng): a("ds_read_b32 v%d, v%d offset:%d" % (LD + h * ng + p, T0, 16384 + p * ncol * 4 + h * 256))
            a("s_waitcnt lgkmcnt(0)")
            for h in range(nw):
                self.tree(LD + h * ng, 1, ng, 1)
                a("buffer_store_dword v%d, v%d, %s, s%d offen offset:%d %s" % (LD + h * ng, T0, sr(SWS), S_O, h * 256, SC))
            self.wave_flag("s%d" % S_F, T3)
            a.label("SP_%s" % tag)
        a("s_cmp_ge_u32 s%d, 20" % S_J)
        a("s_cbranch_scc1 SP_CS")
        a("s_setprio 3")
        srd(a, SA, P_WQ, P_WQ + 1, 819200)
        a("s_and_b32 s%d, s%d, 1" % (S_T + 2, S_J))
        a("s_lshr_b32 s%d, s%d, 1" % (S_T + 1, S_J))
        a("s_lshl_b32 s%d, s%d, 3" % (S_T, S_T + 2))
        a("s_add_u32 s%d, s%d, s%d" % (S_T, S_T, S_W))
        a("s_mul_i32 s%d, s%d, %d" % (S_T, S_T, 40 * 1280))
        a("s_lshl_b32 s%d, s%d, 7" % (S_T + 3, S_T + 1))
        a("s_add_u32 s%d, s%d, s%d" % (S_T, S_T, S_T + 3))
        a("s_mul_i32 s%d, s%d, 2560" % (S_O, S_T + 2))
        a("s_lshl_b32 s%d, s%d, 8" % (S_T + 3, S_T + 1))
        a("s_add_u32 s%d, s%d, s%d" % (S_O, S_O, S_T + 3))
        a("s_add_u32 s%d, s%d, 0x%x" % (S_O, S_O, WS_CQ))
        a("s_lshl_b32 s%d, s%d, 7" % (S_F, S_J))
        a("s_add_u32 s%d, s%d, 0x%x" % (S_F, S_F, F2_Q))
        colsum("QD", 8, 1280, 5)
        self.stamp(1)
        a.label("SP_CS")
        a("s_setprio 2")
        a("s_sub_u32 s%d, 31, s%d" % (S_G, S_J))
        a("s_cmp_ge_u32 s%d, 28" % S_G)
        a("s_cbranch_scc1 SP_RL")
        a("s_bitcmp1_b32 s%d, 0" % S_G)
        a("s_cselect_b32 s%d, s%d, s%d" % (SA, P_WU, P_WG))
        a("s_cselect_b32 s%d, s%d, s%d" % (SA + 1, P_WU + 1, P_WG + 1))
        a("s_cselect_b32 s%d, 7168, 0" % S_O)
        a("s_mov_b32 s%d, 2211840" % (SA + 2))
        a("s_mov_b32 s%d, 0x20000" % (SA + 3))
        a("s_mul_i32 s%d, s%d, %d" % (S_T, S_W, 80 * 3456))
        a("s_lshr_b32 s%d, s%d, 1" % (S_T + 1, S_G))
        a("s_lshl_b32 s%d, s%d, 8" % (S_T + 1, S_T + 1))
        a("s_add_u32 s%d, s%d, s%d" % (S_T, S_T, S_T + 1))
        a("s_lshl_b32 s%d, s%d, 1" % (S_T + 1, S_T + 1))
        a("s_add_u32 s%d, s%d, s%d" % (S_O, S_O, S_T + 1))
        a("s_add_u32 s%d, s%d, 0x%x" % (S_O, S_O, WS_CS))
        a("s_lshl_b32 s%d, s%d, 7" % (S_F, S_G))
        a("s_add_u32 s%d, s%d, 0x%x" % (S_F, S_F, F2_C))
        colsum("CD", 16, 3456, 20)
        self.stamp(2)
        a.label("SP_RL")
        a("s_barrier")
        V_VD, V_TA = 8, 9
        a("v_lshrrev_b32 v%d, 3, v%d" % (T0, V_LANE))
        a("v_mul_u32_u24 v%d, 1280, v%d" % (T0, T0))
        a("v_and_b32 v%d, 7, v%d" % (T1, V_LANE))
        a("v_lshl_add_u32 v%d, v%d, 4, v%d" % (V_VD, T1, T0))
        a("s_lshl_b32 s%d, s%d, 13" % (S_LB, S_W))
        a("v_lshrrev_b32 v%d, 4, v%d" % (T0, V_LANE))
        a("v_bfe_u32 v%d, v%d, 2, 2" % (T1, V_LANE))
        a("v_lshl_add_u32 v%d, v%d, 3, v%d" % (T0, T0, T1))
        a("v_lshlrev_b32 v%d, 7, v%d" % (T0, T0))
        a("v_and_b32 v%d, 3, v%d" % (T1, V_LANE))
        a("v_lshl_add_u32 v%d, v%d, 3, v%d" % (T0, T1, T0))
        a("v_add_u32 v%d, s%d, v%d" % (V_TA, S_LB, T0))
        a("s_lshl_b32 s%d, s%d, 3" % (S_G, S_J))
        a("s_add_u32 s%d, s%d, s%d" % (S_G, S_G, S_W))
        a("s_mov_b32 s%d, 0x20000" % (SA + 3))
        def issue(slot):
            a("s_mul_hi_u32 s%d, s%d, 0x%x" % (S_T + 1, S_G, (1 << 32) // 10 + 1))
            a("s_mul_i32 s%d, s%d, 10" % (S_T + 2, S_T + 1))
            a("s_sub_u32 s%d, s%d, s%d" % (S_T + 2, S_G, S_T + 2))
            for i in range(4):
                a("s_lshl_b32 s%d, s%d, 2" % (S_T + 3, S_T + 2))
                a("s_add_u32 s%d, s%d, %d" % (S_T + 3, S_T + 3, i))
                a("s_mul_hi_u32 s%d, s%d, 0x%x" % (S_T + 4, S_T + 3, (1 << 32) // 5 + 1))
                a("s_mul_i32 s%d, s%d, 365" % (S_T + 4, S_T + 4))
                a("s_add_u32 s%d, s%d, s%d" % (S_T + 4, S_T + 4, S_T + 3))
                a("s_mul_i32 s%d, s%d, 5" % (S_T + 3, S_T + 1))
                a("s_add_u32 s%d, s%d, s%d" % (S_T + 4, S_T + 4, S_T + 3))
                a("s_lshl_b32 s%d, s%d, 10" % (S_T + 4, S_T + 4))
                a("s_add_u32 s%d, s%d, 0x%x" % (S_D + slot * 4 + i, S_T + 4, WS_WF2))
            a("s_sub_u32 s%d, s%d, 54" % (S_T + 4, S_T + 1))
            a("s_cmp_lt_u32 s%d, 54" % (S_T + 1))
            a("s_cselect_b32 s%d, s%d, s%d" % (S_T + 1, S_T + 1, S_T + 4))
            a("s_cselect_b32 s%d, s%d, s%d" % (SA, P_WD, P_WO))
            a("s_cselect_b32 s%d, s%d, s%d" % (SA + 1, P_WD + 1, P_WO + 1))
            sel(a, SA + 2, 2211840, 819200)
            a("s_mul_i32 s%d, s%d, 40960" % (S_T + 1, S_T + 1))
            a("s_lshl_b32 s%d, s%d, 7" % (S_T + 2, S_T + 2))
            a("s_add_u32 s%d, s%d, s%d" % (S_T + 1, S_T + 1, S_T + 2))
            for i in range(4):
                a("s_add_u32 m0, s%d, %d" % (S_LB, slot * 4096 + i * 1024))
                a("s_nop 0")
                a("buffer_load_dwordx4 v%d, %s, s%d offen lds" % (V_VD, sr(SA), S_T + 1))
                a("s_add_u32 s%d, s%d, 10240" % (S_T + 1, S_T + 1))
            a("s_add_u32 s%d, s%d, 256" % (S_G, S_G))
        def drain(slot, reg):
            for i in range(4):
                a("ds_read_b64_tr_b16 %s, v%d offset:%d" % (vr(reg + 4 * i, 2), V_TA, slot * 4096 + i * 32))
                a("ds_read_b64_tr_b16 %s, v%d offset:%d" % (vr(reg + 4 * i + 2, 2), V_TA, slot * 4096 + i * 32 + 512))
            a("s_waitcnt lgkmcnt(0)")
            for i in range(4):
                a("buffer_store_dwordx4 %s, v%d, %s, s%d offen %s" % (vr(reg + 4 * i, 4), V_L16, sr(SWS), S_D + slot * 4 + i, SC))
        issue(0); issue(1)
        a("s_waitcnt vmcnt(4)")
        drain(0, 16)
        a("s_cmp_ge_u32 s%d, 740" % S_G)
        a("s_cbranch_scc1 SP_R2")
        issue(0)
        a("s_waitcnt vmcnt(8)")
        drain(1, 32)
        a("s_waitcnt vmcnt(4)")
        drain(0, 48)
        a("s_branch SP_R3")
        a.label("SP_R2")
        a("s_waitcnt vmcnt(4)")
        drain(1, 32)
        a.label("SP_R3")
        a("s_lshl_b32 s%d, s%d, 7" % (S_T, S_J))
        a("s_add_u32 s%d, s%d, 0x%x" % (S_T, S_T, F2_W))
        self.wg_flag("s%d" % S_T)
        self.stamp(3)
        if "noF" in self.dbg: self.finish()
        a("s_branch F2_GO")

    def role_f23(self):
        a = self.a
        V_TA = T1
        SC2 = "" if "f2nosc" in self.dbg else SC
        HB = 16
        WS_ = [48, 68]
        ACC = 88
        S_H, S_WO, S_GB, S_LB, S_TH, S_KQ, S_W1K = [S_R + i for i in range(7)]
        a.label("F2_GO")
        a("s_setprio %d" % self.prio_fr)
        srd(a, SB, P_OUT, P_OUT + 1, 2621440)
        a("s_mul_i32 s%d, s%d, 81920" % (S_GB, S_RB32))
        a("s_mul_i32 s%d, s%d, 160" % (S_T + 1, S_HI))
        a("s_add_u32 s%d, s%d, s%d" % (S_GB, S_GB, S_T + 1))
        a("s_mul_i32 s%d, s%d, 10240" % (S_LB, S_W))
        a("s_lshl_b32 s%d, s%d, 10" % (S_W1K, S_W))
        a("s_and_b32 s%d, s%d, 1" % (S_TH, S_W))
        a("s_lshr_b32 s%d, s%d, 1" % (S_KQ, S_W))
        def set_h(ksg):
            a("s_mul_i32 s%d, s%d, 74" % (S_H, S_RB32))
            a("s_add_u32 s%d, s%d, s%d" % (S_H, S_H, ksg))
            a("s_lshl_b32 s%d, s%d, 1" % (S_H, S_H))
            a("s_add_u32 s%d, s%d, s%d" % (S_H, S_H, S_TH))
            a("s_lshl_b32 s%d, s%d, 11" % (S_H, S_H))
            a("s_add_u32 s%d, s%d, 0x%x" % (S_H, S_H, WS_HO))
        set_h(S_KQ)
        a("s_mul_i32 s%d, s%d, %d" % (S_WO, S_HI, 74 * 5120))
        a("s_add_u32 s%d, s%d, s%d" % (S_WO, S_WO, S_W1K))
        a("s_add_u32 s%d, s%d, 0x%x" % (S_WO, S_WO, WS_WF2))
        a("s_mul_i32 s%d, s%d, 5120" % (S_T + 1, S_KQ))
        a("v_add_u32 v%d, s%d, v%d" % (V_TA, S_T + 1, V_L16))
        a("v_add_u32 v%d, 40960, v%d" % (T2, V_TA))
        def dmaW(g):
            for m in range(3):
                if m == 2:
                    a("s_cmp_ge_u32 s%d, 4" % S_W)
                    a("s_cbranch_scc1 F2_D%d" % g)
                a("s_add_u32 m0, s%d, %d" % (S_W1K, (g % 4) * 20480 + m * 8192))
                a("s_add_u32 s%d, s%d, %d" % (S_T, S_WO, g * 20480 + m * 8192))
                a("buffer_load_dwordx4 v%d, %s, s%d offen %s lds" % (V_L16, sr(SWS), S_WO if "f2samew" in self.dbg else S_T, SC2))
            a.label("F2_D%d" % g)
        def loadH(g):
            for tt in range(2):
                a("buffer_load_dwordx4 %s, v%d, %s, s%d offen offset:%d %s" % (vr(HB + (g % 4) * 8 + tt * 4, 4), V_L16, sr(SWS), S_H, tt * 1024, SC2))
            if "f2sameh" not in self.dbg: a("s_add_u32 s%d, s%d, 16384" % (S_H, S_H))
        def rdW(g, c):
            sl = g % 4
            a("ds_read_b128 %s, v%d offset:%d" % (vr(WS_[g & 1] + 4 * c, 4), V_TA if sl < 2 else T2, (sl & 1) * 20480 + c * 1024))
        def mm(g, c):
            if "f2nomm" in self.dbg: return
            for tt in range(2):
                d = ACC + (tt * 5 + c) * 4
                a("v_mfma_f32_16x16x32_bf16 %s, %s, %s, %s" % (vr(d, 4), vr(WS_[g & 1] + 4 * c, 4), vr(HB + (g % 4) * 8 + tt * 4, 4), "0" if g == 0 else vr(d, 4)))
        a("v_min_u32 v%d, 31, v%d" % (T0, V_LANE))
        a("v_lshlrev_b32 v%d, 7, v%d" % (T0, T0))
        a("s_mov_b32 s%d, 0x%x" % (S_T + 1, F2_W))
        self.poll([(8, 1, T0, "s%d" % (S_T + 1))], T3, sleep=8)
        for g in range(4): dmaW(g)
        if "wpf" in self.dbg:
            a("s_cmp_lt_u32 s%d, 28" % S_IDX)
            a("s_cbranch_scc1 F2_NPF")
            a("s_sub_u32 s%d, s%d, 28" % (S_T + 1, S_IDX))
            a("s_lshl_b32 s%d, s%d, 16" % (S_T + 1, S_T + 1))
            a("s_add_u32 s%d, s%d, 0x%x" % (S_T + 1, S_T + 1, WS_WF2))
            a("v_lshlrev_b32 v%d, 7, v0" % T0)
            for n in range(12):
                a("buffer_load_dword v%d, v%d, %s, s%d offen %s" % (HB + n, T0, sr(SWS), S_T + 1, SC))
                a("s_add_u32 s%d, s%d, 0x40000" % (S_T + 1, S_T + 1))
            a.label("F2_NPF")
        a("v_min_u32 v%d, 13, v%d" % (T0, V_LANE))
        a("v_lshlrev_b32 v%d, 7, v%d" % (T0, T0))
        a("s_lshr_b32 s%d, s%d, 1" % (S_T + 1, S_RB32))
        a("s_lshl_b32 s%d, s%d, 11" % (S_T + 1, S_T + 1))
        a("s_and_b32 s%d, s%d, 1" % (S_T + 2, S_RB32))
        a("s_lshl_b32 s%d, s%d, 2" % (S_T + 2, S_T + 2))
        a("s_add_u32 s%d, s%d, s%d" % (S_T + 1, S_T + 1, S_T + 2))
        a("s_lshl_b32 s%d, s%d, 3" % (S_T + 2, S_KQ))
        a("s_add_u32 s%d, s%d, s%d" % (S_T + 1, S_T + 1, S_T + 2))
        a("s_add_u32 s%d, s%d, 0x%x" % (S_T + 1, S_T + 1, F2_H))
        self.poll([(8, 1, T0, "s%d" % (S_T + 1))], T3, sleep=16, wave0=False)
        self.stamp(4, "f23")
        a("s_setprio %d" % self.prio_f2)
        q = []
        for g in range(4):
            loadH(g); q += [("H", g)] * 2
        a("s_barrier")
        for c in range(5): rdW(0, c)
        NG = 14
        for g in range(NG):
            need = [("H", g), ("W", g + 1)]
            last = max([i for i, o in enumerate(q) if o in need] + [-1])
            a("s_waitcnt lgkmcnt(0) vmcnt(%d)" % (len(q) - 1 - last))
            q = q[last + 1:]
            if g == NG - 1:
                a("s_cmp_ge_u32 s%d, 2" % S_KQ)
                a("s_cbranch_scc1 F2_X")
                for c in range(5): mm(g, c)
                break
            mm(g, 0)
            a("s_barrier")
            for c in range(5): rdW(g + 1, c)
            mm(g, 1)
            if g + 4 < NG:
                dmaW(g + 4); q += [("W", g + 4)] * 2
            for c in (2, 3, 4): mm(g, c)
            if g + 4 < NG:
                loadH(g + 4); q += [("H", g + 4)] * 2
        a.label("F2_X")
        if "noA" in self.dbg: self.stamp(6)
        a("s_setprio %d" % self.prio_fr)
        GA = 8; RS = 11
        XR0 = 20
        WR = 28; OF = 48; A3 = 88; R = 48
        a("v_and_b32 v%d, 15, v%d" % (T2, V_LANE))
        a("v_mul_u32_u24 v%d, 1280, v%d" % (T0, T2))
        a("v_lshrrev_b32 v%d, 4, v%d" % (T3, V_LANE))
        a("v_lshl_add_u32 v%d, v%d, 3, v%d" % (T0, T3, T0))
        a("v_lshlrev_b32 v%d, 3, v%d" % (T2, T2))
        a("s_lshl_b32 s%d, s%d, 9" % (S_T + 4, S_RB32))
        a("s_add_u32 s%d, s%d, 0x%x" % (S_T + 4, S_T + 4, WS_ST + 4))
        for i in range(3):
            a("s_add_u32 s%d, s%d, %d" % (S_T, S_W, 8 * i))
            a("s_min_u32 s%d, s%d, 19" % (S_T, S_T))
            a("s_mul_hi_u32 s%d, s%d, 0x%x" % (S_T + 1, S_T, (1 << 32) // 5 + 1))
            a("s_mul_i32 s%d, s%d, 5" % (S_T + 2, S_T + 1))
            a("s_sub_u32 s%d, s%d, s%d" % (S_T + 2, S_T, S_T + 2))
            a("s_mul_i32 s%d, s%d, 20480" % (S_T + 3, S_T + 1))
            a("s_lshl_b32 s%d, s%d, 5" % (S_T + 2, S_T + 2))
            a("s_add_u32 s%d, s%d, s%d" % (S_T + 3, S_T + 3, S_T + 2))
            a("v_add_u32 v%d, s%d, v%d" % (GA + i, S_T + 3, T0))
            a("s_lshl_b32 s%d, s%d, 7" % (S_T + 1, S_T + 1))
            a("s_add_u32 s%d, s%d, s%d" % (S_T + 1, S_T + 1, S_T + 4))
            a("buffer_load_dword v%d, v%d, %s, s%d offen %s" % (RS + i, T2, sr(SWS), S_T + 1, SC))
        a("s_mul_i32 s%d, s%d, 5" % (S_T + 1, S_KQ))
        a("s_add_u32 s%d, s%d, 54" % (S_T + 1, S_T + 1))
        set_h(S_T + 1)
        a("s_mul_i32 s%d, s%d, 74" % (S_WO, S_HI))
        a("s_add_u32 s%d, s%d, s%d" % (S_WO, S_WO, S_T + 1))
        a("s_mul_i32 s%d, s%d, 5120" % (S_WO, S_WO))
        a("s_add_u32 s%d, s%d, 0x%x" % (S_WO, S_WO, WS_WF2))
        a("v_add_u32 v%d, 4096, v%d" % (T3, V_L16))
        for c in range(4):
            a("buffer_load_dwordx4 %s, v%d, %s, s%d offen offset:%d %s" % (vr(WR + 4 * c, 4), V_L16, sr(SWS), S_WO, c * 1024, SC))
        a("buffer_load_dwordx4 %s, v%d, %s, s%d offen %s" % (vr(WR + 16, 4), T3, sr(SWS), S_WO, SC))
        for i in range(3):
            a("buffer_load_dwordx2 %s, v%d, %s, s%d offen" % (vr(XR0 + 2 * i, 2), GA + i, sr(SX), S_GB))
        a("s_mul_i32 s%d, s%d, 10240" % (S_T, S_TH))
        a("s_add_u32 s%d, s%d, s%d" % (S_WO, S_WO, S_T))
        a("s_add_u32 s%d, s%d, 5120" % (S_WO, S_WO))
        a("v_add_u32 v%d, s%d, v%d" % (T0, S_W1K, V_L16))
        a("v_add_u32 v%d, 16384, v%d" % (T2, T0))
        def red_write(mid=None):
            a("v_add_u32 v%d, s%d, v%d" % (T3, S_LB, V_L16))
            a("s_barrier")
            a("s_nop 4")
            for k in range(10): a("ds_write_b128 v%d, %s offset:%d" % (T3, vr(A3 + 4 * k, 4), k * 1024))
            if mid: mid()
            a("s_waitcnt lgkmcnt(0)")
            a("s_barrier")
        def own_read(after=None):
            for i in range(3):
                for k in range(4):
                    off = k * 20480 + i * 8192
                    if i < 2 and off < 65536: a("ds_read_b128 %s, v%d offset:%d" % (vr(R + i * 16 + k * 4, 4), T0, off))
                    else: a("ds_read_b128 %s, v%d offset:%d" % (vr(R + i * 16 + k * 4, 4), T2, off - 16384))
            a("s_waitcnt lgkmcnt(0)")
            if after: after()
            for i in range(3): self.tree(R + i * 16, 4, 4, 4)
        def loadW3():
            a("s_barrier")
            for p in range(2):
                a("s_add_u32 m0, s%d, %d" % (S_LB, p * 5120))
                a("s_nop 0")
                for n in range(4):
                    a("buffer_load_dwordx4 v%d, %s, s%d offen offset:%d %s lds" % (V_L16, sr(SWS), S_WO, n * 1024, SC))
                a("s_add_u32 m0, s%d, %d" % (S_LB, p * 5120 + 4096))
                a("s_add_u32 s%d, s%d, 4096" % (S_WO, S_WO))
                a("buffer_load_dwordx4 v%d, %s, s%d offen %s lds" % (V_L16, sr(SWS), S_WO, SC))
                a("s_add_u32 s%d, s%d, 1024" % (S_WO, S_WO))
        red_write()
        own_read(loadW3)
        G = 96
        GP = 14
        a("s_waitcnt vmcnt(18)")
        for i in range(3): a("v_mul_f32 v%d, v%d, v%d" % (RS + i, RS + i, RS + i))
        idx = [(i, r) for i in range(3) for r in range(4)]
        for i, r in idx: a("v_mul_f32 v%d, v%d, v%d" % (R + i * 16 + r, RS + i, R + i * 16 + r))
        for i, r in idx: a("v_mul_f32 v%d, 0x%x, v%d" % (G + 4 * i + r, f32bits(-LOG2E), R + i * 16 + r))
        for i, r in idx: a("v_exp_f32 v%d, v%d" % (G + 4 * i + r, G + 4 * i + r))
        a("s_nop 0")
        for i, r in idx: a("v_add_f32 v%d, 1.0, v%d" % (G + 4 * i + r, G + 4 * i + r))
        for i, r in idx: a("v_rcp_f32 v%d, v%d" % (G + 4 * i + r, G + 4 * i + r))
        a("s_nop 0")
        for i, r in idx: a("v_mul_f32 v%d, v%d, v%d" % (G + 4 * i + r, G + 4 * i + r, R + i * 16 + r))
        for k in range(6): a("v_cvt_pk_bf16_f32 v%d, v%d, v%d" % (GP + k, G + 2 * k, G + 2 * k + 1))
        XR = XR0
        self.stamp(5, "f23")
        if "noA" in self.dbg: self.finish()
        a("s_mul_i32 s%d, s%d, 20480" % (S_T, S_KQ))
        a("v_add_u32 v%d, s%d, v%d" % (V_TA, S_T, V_L16))
        a("v_bfe_u32 v%d, v%d, 2, 1" % (T3, V_LANE))
        a("v_and_b32 v11, 3, v%d" % V_LANE)
        a("v_lshlrev_b32 v11, 3, v11")
        a("v_lshl_add_u32 v11, v%d, 7, v11" % T3)
        a("s_lshl_b32 s%d, s%d, 10" % (S_T + 1, S_RB32))
        a("s_lshl_b32 s%d, s%d, 8" % (S_T + 2, S_KQ))
        a("s_add_u32 s%d, s%d, s%d" % (S_T + 1, S_T + 1, S_T + 2))
        a("s_lshl_b32 s%d, s%d, 2" % (S_T + 2, S_TH))
        a("s_add_u32 s%d, s%d, s%d" % (S_T + 1, S_T + 1, S_T + 2))
        a("s_add_u32 s%d, s%d, 0x%x" % (S_T + 1, S_T + 1, F2_O))
        a("s_waitcnt vmcnt(0)")
        a("s_barrier")
        self.poll([(12, 1, 11, "s%d" % (S_T + 1))], T3, sleep=6, wave0=False)
        a("s_mov_b32 s%d, %d" % (S_T + 2, SPIN_MAX))
        a.label("F3_PL")
        a("s_mov_b32 s%d, s%d" % (S_T, S_H))
        for s_ in range(5):
            for tt in range(2):
                a("buffer_load_dwordx4 %s, v%d, %s, s%d offen offset:%d %s" % (vr(OF + s_ * 8 + tt * 4, 4), V_L16, sr(SWS), S_T, tt * 1024, SC))
            a("s_add_u32 s%d, s%d, 4096" % (S_T, S_T))
        for s_ in range(5):
            a("s_waitcnt vmcnt(%d)" % (8 - 2 * s_))
            b = OF + s_ * 8
            if s_ == 0: a("v_max_u32 v12, v%d, v%d" % (b, b + 1))
            else: a("v_max3_u32 v12, v12, v%d, v%d" % (b, b + 1))
            for k in (2, 4, 6): a("v_max3_u32 v12, v12, v%d, v%d" % (b + k, b + k + 1))
        a("v_cmp_eq_u32 vcc, -1, v12")
        a("s_sub_u32 s%d, s%d, 1" % (S_T + 2, S_T + 2))
        a("s_cbranch_scc1 F3_GO")
        a("s_cbranch_vccnz F3_PL")
        a.label("F3_GO")
        a("s_setprio 3")
        self.stamp(6, "f23")
        for s_ in range(5):
            for c in range(5):
                if s_ > 0: a("s_waitcnt lgkmcnt(%d)" % (4 if s_ < 4 else 4 - c))
                for tt in range(2):
                    d = A3 + (tt * 5 + c) * 4
                    a("v_mfma_f32_16x16x32_bf16 %s, %s, %s, %s" % (vr(d, 4), vr(WR + 4 * c, 4), vr(OF + s_ * 8 + tt * 4, 4), "0" if s_ == 0 else vr(d, 4)))
                if s_ < 4: a("ds_read_b128 %s, v%d offset:%d" % (vr(WR + 4 * c, 4), V_TA, s_ * 5120 + c * 1024))
        U = 28; GF = 96
        def unpack_x():
            for k in range(6):
                a("v_lshlrev_b32 v%d, 16, v%d" % (U + 2 * k, XR + k))
                a("v_and_b32 v%d, 0xffff0000, v%d" % (U + 2 * k + 1, XR + k))
        red_write(unpack_x)
        for k in range(6):
            a("v_lshlrev_b32 v%d, 16, v%d" % (GF + 2 * k, GP + k))
            a("v_and_b32 v%d, 0xffff0000, v%d" % (GF + 2 * k + 1, GP + k))
        own_read()
        for i, r in idx: a("v_fmac_f32 v%d, v%d, v%d" % (U + 4 * i + r, R + i * 16 + r, GF + 4 * i + r))
        for k in range(6): a("v_cvt_pk_bf16_f32 v%d, v%d, v%d" % (XR + k, U + 2 * k, U + 2 * k + 1))
        for i in range(3):
            if i == 2:
                a("s_cmp_ge_u32 s%d, 4" % S_W)
                a("s_cbranch_scc1 F3_FIN")
            a("buffer_store_dwordx2 %s, v%d, %s, s%d offen" % (vr(XR + 2 * i, 2), GA + i, sr(SB), S_GB))
        a.label("F3_FIN")
        self.finish()

    def build(self):
        name = NAME + "_kernel"
        self.prologue(name)
        self.role_a()
        self.role_f1()
        self.role_f23()
        self.role_sp()
        self.a.end_kernel(name, NVGPR)
        return self.a.text(HEADER + "; @launch grid=(512,1,1) block=(512,1,1) lds=%d\n" % LDS_BYTES)

if __name__ == "__main__":
    dbg = sys.argv[2] if len(sys.argv) > 2 else ""
    import subprocess, re
    cb = 0x4000
    for it in range(2):
        m = Mega(stamps="st" in dbg.split(","), dbg=dbg, code_bytes=cb)
        open(sys.argv[1], "w").write(m.build())
        subprocess.run(["clang", "-x", "assembler", "-target", "amdgcn-amd-amdhsa", "-mcpu=gfx950", "-c", sys.argv[1], "-o", "_m.o"], check=True)
        o = subprocess.run(["llvm-objdump", "-h", "_m.o"], capture_output=True, text=True).stdout
        size = int(re.search(r"\.text\s+([0-9a-f]+)", o).group(1), 16)
        cb = (size - 256) & ~127
    print(sys.argv[1], "text bytes", size)
```

```python
from common import *

LDS_BYTES = 81920
NVGPR = 128
S_W = 3
SWS, SX, SA, SB, SDBG = 8, 12, 16, 20, 24
S_ID, S_RB32, S_HI, S_XCD, S_IDX = 28, 29, 30, 31, 32
S_VM = 34
P_X, P_WQ, P_WK, P_WV, P_WO, P_WG, P_WU, P_WD, P_OUT, P_DBG, P_WS = 36, 38, 40, 42, 44, 48, 50, 52, 54, 56, 58
SC_ = 4
S_T = 60
S_R = 70
STAMP0 = 86
V_LANE, V_L16, V_NONCE = 1, 2, 3
T0, T1, T2, T3 = 4, 5, 6, 7
SC = "sc1"
VMASK = 0x000FFFFF
TILE = 2560
CHUNK = 8 * TILE
SPIN_MAX = 1 << 14
DPPS = ("quad_perm:[1,0,3,2]", "quad_perm:[2,3,0,1]", "row_half_mirror", "row_mirror")

class Mega:
    def __init__(self, stamps=False, dbg="", code_bytes=0x4000):
        self.a = Asm()
        self.stamps = stamps
        self.code_bytes = code_bytes
        self.dbg = d = dbg.split(",")
        def opt(name, default):
            for x in d:
                if x.startswith(name + "="): return int(x.split("=")[1])
            return default
        self.prio_a = opt("pa", 1)
        self.prio_f1 = opt("pf1", 0)
        self.prio_fe = opt("pfe", 2)
        self.prio_f2 = opt("pf2", 0)
        self.prio_fr = opt("pfr", 2)
        self.hint_j = opt("hj", 6)
        self.pad = opt("pad", 0)
        self.prio_q = opt("pq", 2)
        self.prio_kv = opt("pkv", 3)
        self.f1sw = opt("f1sw", 0)
        self.prio_f1b = opt("pf1b", 0)
        self.asw = opt("asw", 99)
        self.prio_ab = opt("pab", 1)

    def stamp(self, i, tag=""):
        if tag == "f23" and "f1st" in self.dbg: return
        if self.stamps:
            self.a("s_memrealtime s[%d:%d]" % (STAMP0 + 2 * i, STAMP0 + 2 * i + 1))

    def finish(self, i_end=7):
        a = self.a
        if self.stamps:
            a("s_waitcnt vmcnt(0)")
            self.stamp(i_end)
            a("s_waitcnt lgkmcnt(0)")
            lab = a.newlabel("LST")
            a("s_cmp_lg_u32 s%d, 0" % S_W)
            a("s_cbranch_scc1 %s" % lab)
            a("s_xor_b32 s%d, s2, %d" % (S_T, 256 if "ffirst" in self.dbg else 0))
            a("s_lshl_b32 s%d, s%d, 6" % (S_T, S_T))
            a("s_add_u32 s%d, s%d, 0x%x" % (S_T, S_T, STAMP_OFF))
            a("s_add_u32 s%d, s%d, s%d" % (S_T + 2, P_WS, S_T))
            a("s_addc_u32 s%d, s%d, 0" % (S_T + 3, P_WS + 1))
            for r in range(16):
                a("v_mov_b32 v%d, s%d" % (8 + r, STAMP0 + r))
            a("v_mov_b32 v%d, 0" % T0)
            a("s_mov_b64 exec, 1")
            for q in range(4):
                a("global_store_dwordx4 v%d, %s, s[%d:%d] offset:%d" % (T0, vr(8 + 4 * q, 4), S_T + 2, S_T + 3, q * 16))
            a.label(lab)
        a("s_endpgm")

    def load_nonce(self, vz):
        self.a("v_mov_b32 v%d, 0" % vz)
        self.a("buffer_load_dword v%d, v%d, %s, 0 offen %s" % (V_NONCE, vz, sr(SDBG), SC))

    def poll(self, loads, vz, sleep=2, wave0=True):
        a = self.a
        done = a.newlabel("PD"); loop = a.newlabel("PL")
        if wave0:
            a("s_cmp_lg_u32 s%d, 0" % S_W)
            a("s_cbranch_scc1 %s" % done)
        a("s_mov_b32 s%d, %d" % (S_T, SPIN_MAX))
        a.label(loop)
        self.load_nonce(vz)
        for d, n, ad, so in loads:
            op = {1: "dword", 2: "dwordx2", 4: "dwordx4"}[n]
            a("buffer_load_%s %s, v%d, %s, %s offen %s" % (op, "v%d" % d if n == 1 else vr(d, n), ad, sr(SWS), so, SC))
        a("s_waitcnt vmcnt(0)")
        a("v_cmp_eq_u32 vcc, 0, v%d" % V_NONCE)
        for d, n, ad, so in loads:
            for r in range(n):
                a("v_cmp_ne_u32 s[%d:%d], v%d, v%d" % (S_T + 4, S_T + 5, V_NONCE, d + r))
                a("s_or_b64 vcc, vcc, s[%d:%d]" % (S_T + 4, S_T + 5))
        a("s_cbranch_scc0 %s" % done)
        a("s_sleep %d" % sleep)
        a("s_sub_u32 s%d, s%d, 1" % (S_T, S_T))
        a("s_cmp_lg_u32 s%d, 0" % S_T)
        a("s_cbranch_scc1 %s" % loop)
        a.label(done)
        if wave0: a("s_barrier")

    def wave_flag(self, soff, vz, first_wait=0):
        a = self.a
        loop = a.newlabel("GL"); ok = a.newlabel("GK")
        a("s_mov_b32 s%d, %d" % (S_T + 6, SPIN_MAX))
        a("v_mov_b32 v%d, 0" % vz)
        if first_wait:
            ent = a.newlabel("GE")
            a("s_waitcnt vmcnt(%d)" % first_wait)
            a("s_branch %s" % ent)
        a.label(loop)
        a("s_waitcnt vmcnt(0)")
        if first_wait: a.label(ent)
        a("v_cmp_ne_u32 vcc, 0, v%d" % V_NONCE)
        a("s_nop 0")
        a("s_cbranch_vccnz %s" % ok)
        a("buffer_load_dword v%d, v%d, %s, 0 offen %s" % (V_NONCE, vz, sr(SDBG), SC))
        a("s_sub_u32 s%d, s%d, 1" % (S_T + 6, S_T + 6))
        a("s_cmp_lg_u32 s%d, 0" % (S_T + 6))
        a("s_cbranch_scc1 %s" % loop)
        a.label(ok)
        a("s_mov_b64 exec, 1")
        a("buffer_store_dword v%d, v%d, %s, %s offen %s" % (V_NONCE, vz, sr(SWS), soff, SC))
        a("s_mov_b64 exec, -1")

    def wg_flag(self, soff):
        a = self.a
        done = a.newlabel("FD")
        self.load_nonce(T3)
        a("s_waitcnt vmcnt(0)")
        a("s_barrier")
        a("s_cmp_lg_u32 s%d, 0" % S_W)
        a("s_cbranch_scc1 %s" % done)
        self.wave_flag(soff, T3)
        a.label(done)

    def meanrstd(self, dst, s0):
        a = self.a
        a("v_mul_f32 v%d, 0x%x, v%d" % (dst, f32bits(-1.0 / 640), s0))
        a("v_mul_f32 v%d, 0x%x, v%d" % (s0 + 1, f32bits(1.0 / 640), s0 + 1))
        a("v_fma_f32 v%d, -v%d, v%d, v%d" % (s0 + 1, dst, dst, s0 + 1))
        a("v_max_f32 v%d, 0, v%d" % (s0 + 1, s0 + 1))
        a("v_add_f32 v%d, 0x%x, v%d" % (s0 + 1, f32bits(1e-5), s0 + 1))
        a("v_rsq_f32 v%d, v%d" % (dst + 1, s0 + 1))
        a("s_nop 0")

    def halfsum(self, regs, tmp):
        a = self.a
        for n, r in enumerate(regs): a("v_mov_b32 v%d, v%d" % (tmp + n, r))
        a("s_nop 1")
        for n, r in enumerate(regs): a("v_permlane32_swap_b32 v%d, v%d" % (tmp + n, r))
        a("s_nop 1")
        for n, r in enumerate(regs): a("v_add_f32 v%d, v%d, v%d" % (r, tmp + n, r))

    def tree(self, base, stride, n, width):
        step = 1
        while step < n:
            for p in range(0, n, 2 * step):
                for r in range(width):
                    self.a("v_add_f32 v%d, v%d, v%d" % (base + p * stride + r, base + p * stride + r, base + (p + step) * stride + r))
            step *= 2

    def prologue(self, name):
        a = self.a
        a.begin_kernel(name)
        if self.stamps:
            for i in range(1, 8): a("s_mov_b64 s[%d:%d], 0" % (STAMP0 + 2 * i, STAMP0 + 2 * i + 1))
        self.stamp(0)
        a("s_cmp_ge_u32 s2, 512")
        a("s_cbranch_scc0 M_GO")
        a("s_endpgm")
        a.label("M_GO")
        a("s_load_dwordx4 s[36:39], s[0:1], 0")
        a("s_load_dwordx4 s[40:43], s[0:1], 16")
        a("s_load_dwordx2 s[44:45], s[0:1], 32")
        a("s_load_dwordx4 s[48:51], s[0:1], 48")
        a("s_load_dwordx4 s[52:55], s[0:1], 64")
        a("s_load_dwordx4 s[56:59], s[0:1], 80")
        a("s_memrealtime s[%d:%d]" % (S_T + 8, S_T + 9))
        if "padown" in self.dbg: a("s_memrealtime s[100:101]")
        a("v_lshrrev_b32 v%d, 6, v0" % T0)
        a("v_and_b32 v%d, 63, v0" % V_LANE)
        a("v_readfirstlane_b32 s%d, v%d" % (S_W, T0))
        a("v_lshlrev_b32 v%d, 4, v%d" % (V_L16, V_LANE))
        if "pf" in self.dbg:
            a("s_getpc_b64 s[%d:%d]" % (S_T + 4, S_T + 5))
            a("v_lshlrev_b32 v%d, 7, v0" % T1)
            a("v_cmp_gt_u32 vcc, 0x%x, v%d" % (self.code_bytes, T1))
            a("s_and_saveexec_b64 s[%d:%d], vcc" % (S_T + 6, S_T + 7))
            a("s_cbranch_execz M_NPF")
            a("global_load_dword v19, v%d, s[%d:%d]" % (T1, S_T + 4, S_T + 5))
            a.label("M_NPF")
            a("s_mov_b64 exec, -1")
        a("v_mov_b32 v%d, 0" % V_NONCE)
        a("s_and_b32 s%d, s2, 255" % S_ID)
        a("s_and_b32 s%d, s2, 7" % S_XCD)
        a("s_lshr_b32 s%d, s%d, 3" % (S_IDX, S_ID))
        a("s_lshl_b32 s%d, s%d, 2" % (S_RB32, S_XCD))
        a("s_and_b32 s%d, s%d, 3" % (S_T + 2, S_IDX))
        a("s_add_u32 s%d, s%d, s%d" % (S_RB32, S_RB32, S_T + 2))
        a("s_lshr_b32 s%d, s%d, 5" % (S_HI, S_ID))
        a("s_mov_b32 s%d, 0x%x" % (S_VM, VMASK))
        a("s_mov_b32 s%d, 0x%x" % (S_VM + 1, VMASK))
        a("v_lshrrev_b32 v%d, 4, v%d" % (T0, V_LANE))
        a("s_and_b32 s%d, s%d, 1" % (S_T, S_W))
        a("s_lshl_b32 s%d, s%d, 2" % (S_T, S_T))
        a("v_add_u32 v%d, s%d, v%d" % (T0, S_T, T0))
        a("v_and_b32 v%d, 7, v%d" % (T1, V_LANE))
        a("v_xor_b32 v%d, v%d, v%d" % (T0, T0, T1))
        a("v_lshrrev_b32 v%d, 3, v%d" % (T1, V_LANE))
        a("v_mul_u32_u24 v%d, 1280, v%d" % (T1, T1))
        a("v_lshl_add_u32 v8, v%d, 4, v%d" % (T0, T1))
        a("s_cmp_lt_u32 s2, 256" if "ffirst" in self.dbg else "s_cmp_ge_u32 s2, 256")
        a("s_waitcnt lgkmcnt(0)")
        srd(a, SWS, P_WS, P_WS + 1, WS_USED)
        srd(a, SX, P_X, P_X + 1, 2621440)
        srd(a, SDBG, P_DBG, P_DBG + 1, 256)
        a("s_cbranch_scc1 ROLE_F")

    def role_a(self):
        a = self.a; dbg = self.dbg
        S_TI, S_HEAD, S_OX, S_OW, S_BUF, S_STG, S_DL, S_RB_ = [S_R + i for i in range(8)]
        V_VX = 8; V_VW = 9
        V_XA, V_WA = 11, 12
        XF = 16
        ACC = 80
        BUF = 18432
        a("s_setprio %d" % self.prio_kv)
        a("s_mov_b32 s%d, 0" % (S_R + 14))
        a("s_cmp_lt_u32 s%d, 4" % S_HI)
        a("s_cbranch_scc0 A1_SETUP")
        self.kv_issue()
        a.label("A1_SETUP")
        srd(a, SA, P_WQ, P_WQ + 1, 819200)
        if "tq" in dbg:
            a("s_cmp_ge_u32 s%d, 4" % S_W)
            a("s_cbranch_scc1 A1_NT")
            a("s_mul_i32 s%d, s%d, 25600" % (S_T, S_IDX))
            a("v_min_u32 v%d, 199, v0" % T0)
            a("v_lshlrev_b32 v%d, 7, v%d" % (T0, T0))
            a("buffer_load_dword v19, v%d, %s, s%d offen" % (T0, sr(SA), S_T))
            a.label("A1_NT")
        for m in range(2):
            a("v_add_u32 v%d, %d, v0" % (T0, 512 * m))
            a("v_mul_u32_u24 v%d, 6554, v%d" % (T1, T0))
            a("v_lshrrev_b32 v%d, 16, v%d" % (T1, T1))
            a("v_mul_u32_u24 v%d, 1120, v%d" % (T1, T1))
            a("v_lshl_add_u32 v%d, v%d, 4, v%d" % (V_VW + m, T0, T1))
        a("s_lshl_b32 s%d, s%d, 3" % (S_T, S_RB32))
        a("s_add_u32 s%d, s%d, s%d" % (S_T, S_T, S_W))
        a("s_mul_i32 s%d, s%d, 10240" % (S_OX, S_T))
        a("s_mul_i32 s%d, s%d, 160" % (S_OW, S_HI))
        a("s_lshl_b32 s%d, s%d, 10" % (S_BUF, S_W))
        a("s_add_u32 s%d, s%d, %d" % (S_BUF, S_BUF, 2 * BUF))
        def dma(tag):
            a("s_mov_b32 m0, s%d" % S_BUF)
            a("s_nop 0")
            a("buffer_load_dwordx4 v%d, %s, s%d offen lds" % (V_VX, sr(SX), S_OX))
            a("s_add_u32 m0, s%d, 8192" % S_BUF)
            a("s_add_u32 s%d, s%d, 128" % (S_OX, S_OX))
            a("buffer_load_dwordx4 v%d, %s, s%d offen lds" % (V_VW, sr(SA), S_OW))
            a("s_cmp_ge_u32 s%d, 2" % S_W)
            a("s_cbranch_scc1 A1_D%s" % tag)
            a("s_add_u32 m0, s%d, 16384" % S_BUF)
            a("s_nop 0")
            a("buffer_load_dwordx4 v%d, %s, s%d offen lds" % (V_VW + 1, sr(SA), S_OW))
            a.label("A1_D%s" % tag)
            a("s_add_u32 s%d, s%d, 81920" % (S_OW, S_OW))
            a("s_add_u32 s%d, s%d, %d" % (S_BUF, S_BUF, BUF))
            a("s_cmp_ge_u32 s%d, %d" % (S_BUF, 4 * BUF))
            a("s_cbranch_scc0 A1_E%s" % tag)
            a("s_sub_u32 s%d, s%d, %d" % (S_BUF, S_BUF, 4 * BUF))
            a.label("A1_E%s" % tag)
        a("s_or_b32 s%d, s%d, s%d" % (S_T + 2, S_ID, S_W))
        a("s_cmp_lg_u32 s%d, 0" % (S_T + 2))
        a("s_cbranch_scc1 M_NT")
        a("s_or_b32 s%d, s%d, 1" % (S_T + 8, S_T + 8))
        a("v_mov_b32 v%d, s%d" % (T0, S_T + 8))
        a("v_mov_b32 v%d, 0" % T1)
        a("s_mov_b64 exec, 1")
        a("buffer_store_dword v%d, v%d, %s, 0 offen %s" % (T0, T1, sr(SDBG), SC))
        a("s_mov_b64 exec, -1")
        a.label("M_NT")
        self.a1_dma = dma
        a("s_cmp_lt_u32 s%d, 4" % S_HI)
        a("s_cbranch_scc1 A1_ND0")
        if "noA" in dbg: self.finish()
        for t in "abce": dma(t)
        a.label("A1_ND0")
        a("s_and_b32 s%d, s%d, 1" % (S_TI, S_W))
        a("s_lshr_b32 s%d, s%d, 1" % (S_T + 2, S_W))
        a("s_lshl_b32 s%d, s%d, 2" % (S_HEAD, S_HI))
        a("s_add_u32 s%d, s%d, s%d" % (S_HEAD, S_HEAD, S_T + 2))
        a("v_and_b32 v%d, 31, v%d" % (T0, V_LANE))
        a("v_lshrrev_b32 v%d, 5, v%d" % (T1, V_LANE))
        a("v_bfe_u32 v%d, v%d, 1, 3" % (T2, V_LANE))
        a("v_xor_b32 v%d, v%d, v%d" % (T2, T2, T1))
        a("v_lshlrev_b32 v%d, 4, v%d" % (T2, T2))
        a("v_lshl_add_u32 v%d, v%d, 7, v%d" % (T2, T0, T2))
        a("s_lshl_b32 s%d, s%d, 12" % (S_T, S_TI))
        a("s_add_u32 s%d, s%d, %d" % (S_T, S_T, 2 * BUF))
        a("v_add_u32 v%d, s%d, v%d" % (V_XA, S_T, T2))
        a("v_bfe_u32 v%d, v%d, 2, 2" % (T2, V_LANE))
        a("v_lshl_add_u32 v%d, v%d, 3, v%d" % (T2, T1, T2))
        a("v_mul_u32_u24 v%d, 160, v%d" % (T2, T2))
        a("v_and_b32 v%d, 1, v%d" % (T3, V_LANE))
        a("v_lshl_add_u32 v%d, v%d, 4, v%d" % (T2, T3, T2))
        a("v_bfe_u32 v%d, v%d, 1, 1" % (T3, V_LANE))
        a("v_lshl_add_u32 v%d, v%d, 3, v%d" % (T2, T3, T2))
        a("v_bfe_u32 v%d, v%d, 4, 1" % (T3, V_LANE))
        a("v_lshl_add_u32 v%d, v%d, 5, v%d" % (T2, T3, T2))
        a("s_mul_i32 s%d, s%d, 40" % (S_T, S_T + 2))
        a("s_add_u32 s%d, s%d, %d" % (S_T, S_T, 8192 + 2 * BUF))
        a("v_add_u32 v%d, s%d, v%d" % (V_WA, S_T, T2))
        V_KA, V_K1A, V_V0A, V_V1A, V_IDX = 120, 121, 122, 123, 124
        AD = 125
        O = 96
        V0, V1 = 112, 116
        Q0, Q1 = 8, 12
        K0, K1 = 16, 20
        SAa, SBb = 24, 40
        S_SRC, S_DST, S_C, S_DK, S_CUR, S_OO, S_FO = S_R + 2, S_R + 3, S_R + 4, S_R + 5, S_R + 6, S_R + 8, S_R + 9
        a("v_mov_b32 v%d, v%d" % (V_KA, V_L16))
        a("v_lshlrev_b32 v%d, 3, v%d" % (V_K1A, T0))
        a("v_mul_u32_u24 v%d, 320, v%d" % (V_V0A, T1))
        a("v_lshl_add_u32 v%d, v%d, 4, v%d" % (V_V0A, T0, V_V0A))
        a("v_mov_b32 v%d, v%d" % (V_V1A, V_V0A))
        a("v_mov_b32 v%d, 0xdddddddd" % V_IDX)
        a("s_mul_i32 s%d, s%d, 20" % (S_T, S_HEAD))
        a("v_lshl_add_u32 v%d, v%d, 2, s%d" % (T1, T1, S_T))
        a("v_and_b32 v%d, 15, v%d" % (T0, V_LANE))
        a("v_lshlrev_b32 v%d, 4, v%d" % (T0, T0))
        a("v_bfe_u32 v%d, v%d, 4, 1" % (T2, V_LANE))
        a("v_lshl_add_u32 v%d, v%d, 10, v%d" % (T0, T2, T0))
        for j in range(3):
            a("v_add_u32 v%d, %d, v%d" % (T2, 8 * j, T1))
            a("v_lshrrev_b32 v%d, 5, v%d" % (T3, T2))
            a("v_lshl_add_u32 v%d, v%d, 12, v%d" % (AD + j, T3, T0))
            a("v_bfe_u32 v%d, v%d, 3, 2" % (T3, T2))
            a("v_lshl_add_u32 v%d, v%d, 8, v%d" % (AD + j, T3, AD + j))
            a("v_and_b32 v%d, 7, v%d" % (T3, T2))
            a("v_lshl_add_u32 v%d, v%d, 1, v%d" % (AD + j, T3, AD + j))
        a("s_mul_i32 s%d, s%d, 74" % (S_OO, S_RB32))
        a("s_add_u32 s%d, s%d, 54" % (S_OO, S_OO))
        a("s_lshl_b32 s%d, s%d, 12" % (S_OO, S_OO))
        a("s_lshl_b32 s%d, s%d, 11" % (S_T + 1, S_TI))
        a("s_add_u32 s%d, s%d, s%d" % (S_OO, S_OO, S_T + 1))
        a("s_add_u32 s%d, s%d, 0x%x" % (S_OO, S_OO, WS_HO))
        a("s_lshl_b32 s%d, s%d, 10" % (S_FO, S_RB32))
        a("s_lshl_b32 s%d, s%d, 7" % (S_T + 1, S_HI))
        a("s_add_u32 s%d, s%d, s%d" % (S_FO, S_FO, S_T + 1))
        a("s_lshl_b32 s%d, s%d, 2" % (S_T + 1, S_W))
        a("s_add_u32 s%d, s%d, s%d" % (S_FO, S_FO, S_T + 1))
        a("s_add_u32 s%d, s%d, 0x%x" % (S_FO, S_FO, F2_O))
        a("s_mov_b32 s%d, 0" % S_STG)
        a("s_mov_b32 s%d, %d" % (S_RB_, 2 * BUF))
        a("s_cmp_lt_u32 s%d, 4" % S_HI)
        a("s_cbranch_scc0 A1_GO")
        self.kv_body()
        if "noA" in dbg: self.finish()
        dma("c2"); dma("e2")
        a.label("A1_GO")
        a("s_setprio %d" % self.prio_q)
        for r in range(16): a("v_mov_b32 v%d, 0" % (ACC + r))
        for r in range(8): a("v_mov_b32 v%d, 0" % (V0 + r))
        a("s_mov_b32 exec_lo, 0x11000000")
        a("s_mov_b32 exec_hi, 0x11000000")
        for r in range(8): a("v_mov_b32 v%d, 0x3f803f80" % (V0 + r))
        a("s_mov_b64 exec, -1")
        def rd_ops(p):
            xf = XF + 32 * p; wf = xf + 16
            ops = []
            for kk in range(4):
                g = []
                if kk: g.append("v_xor_b32 v%d, %d, v%d" % (T0 + kk, kk << 5, V_XA))
                g.append("ds_read_b64_tr_b16 %s, v%d offset:%d" % (vr(wf + 4 * kk, 2), V_WA, kk * 2560))
                g.append("ds_read_b64_tr_b16 %s, v%d offset:%d" % (vr(wf + 4 * kk + 2, 2), V_WA, kk * 2560 + 640))
                g.append("ds_read_b128 %s, v%d" % (vr(xf + 4 * kk, 4), T0 + kk if kk else V_XA))
                ops.append(g)
            return ops
        def adv():
            a("s_add_u32 s%d, s%d, %d" % (S_RB_, S_RB_, BUF))
            a("s_cmp_eq_u32 s%d, %d" % (S_RB_, 4 * BUF))
            sel(a, S_DL, (-3 * BUF) & 0xffffffff, BUF)
            a("s_cselect_b32 s%d, 0, s%d" % (S_RB_, S_RB_))
            a("v_add_u32 v%d, s%d, v%d" % (V_XA, S_DL, V_XA))
            a("v_add_u32 v%d, s%d, v%d" % (V_WA, S_DL, V_WA))
        def mfq(p, kk):
            xf = XF + 32 * p; wf = xf + 16
            a("v_mfma_f32_32x32x16_bf16 %s, %s, %s, %s" % (vr(ACC, 16), vr(wf + 4 * kk, 4), vr(xf + 4 * kk, 4), vr(ACC, 16)))
        a("s_waitcnt vmcnt(6)")
        a("s_barrier")
        for g in rd_ops(0):
            for op in g: a(op)
        adv()
        a("s_cmp_eq_u32 s%d, 0" % (S_R + 14))
        a("s_cbranch_scc1 A1_NF")
        self.wave_flag("s%d" % (S_R + 14), T0, first_wait=4)
        self.stamp(6)
        a.label("A1_NF")
        def stage(p, wait, pre=None, mid=None, post=None, last=False):
            a("s_waitcnt lgkmcnt(0)" + ("" if wait is None else " vmcnt(%d)" % wait))
            if pre: pre()
            mfq(p, 0)
            a("s_barrier")
            ops = rd_ops(1 - p)
            for op in ops[0] + ops[1]: a(op)
            mfq(p, 1)
            for op in ops[2] + ops[3]: a(op)
            mfq(p, 2)
            if mid: mid()
            mfq(p, 3)
            if post: post()
            if not last: adv()
        a.label("A1_LOOP")
        stage(0, 4, mid=lambda: dma("d0"))
        stage(1, 4, mid=lambda: dma("d1"))
        a("s_add_u32 s%d, s%d, 1" % (S_STG, S_STG))
        a("s_cmp_lt_u32 s%d, 3" % S_STG)
        a("s_cbranch_scc1 A1_LOOP")
        FG = O
        S_OK = S_R + 13
        SCR = 4 * BUF
        floads = [(FG, 4, 13, "s%d" % (S_T + 1)), (FG + 4, 4, 13, "s%d" % (S_T + 2)), (FG + 8, 1, 14, "s%d" % (S_T + 3))]
        def flag_setup():
            a("v_lshlrev_b32 v13, 7, v%d" % V_LANE)
            a("v_min_u32 v14, %d, v13" % (19 * 128))
            a("s_mov_b32 s%d, 0x%x" % (S_T + 1, F2_K))
            a("s_mov_b32 s%d, 0x%x" % (S_T + 2, F2_K + 8192))
            a("s_mov_b32 s%d, 0x%x" % (S_T + 3, F2_Q))
        def try_issue():
            self.load_nonce(15)
            a("s_cmp_lg_u32 s%d, 0" % S_W)
            a("s_cbranch_scc1 A1_TI")
            flag_setup()
            for d, n, ad, so in floads:
                a("buffer_load_%s %s, v%d, %s, %s offen %s" % ("dword" if n == 1 else "dwordx4", "v%d" % d if n == 1 else vr(d, n), ad, sr(SWS), so, SC))
            a.label("A1_TI")
        def try_eval():
            a("s_cmp_lg_u32 s%d, 0" % S_W)
            a("s_cbranch_scc1 A1_TE")
            a("v_cmp_eq_u32 vcc, 0, v%d" % V_NONCE)
            for r in range(9):
                a("v_cmp_ne_u32 s[%d:%d], v%d, v%d" % (S_T + 4, S_T + 5, V_NONCE, FG + r))
                a("s_or_b64 vcc, vcc, s[%d:%d]" % (S_T + 4, S_T + 5))
            a("s_cselect_b32 s%d, 0, 1" % S_OK)
            a("v_mov_b32 v14, s%d" % S_OK)
            a("v_mov_b32 v13, %d" % SCR)
            a("ds_write_b32 v13, v14")
            a("s_waitcnt lgkmcnt(0)")
            a.label("A1_TE")
        def ok_read():
            a("v_mov_b32 v13, %d" % SCR)
            a("ds_read_b32 v14, v13")
        def ok_get():
            a("v_readfirstlane_b32 s%d, v14" % S_OK)
        CSV, CS2, ST, KN = 24, 36, 20, 16
        def dma_chunk(tag):
            for m in range(3):
                if m == 2:
                    a("s_cmp_ge_u32 s%d, 4" % S_W)
                    a("s_cbranch_scc1 A2_DS%s" % tag)
                a("s_add_u32 m0, s%d, %d" % (S_DST, m * 8192))
                a("s_add_u32 s%d, s%d, %d" % (S_T, S_SRC, m * 8192))
                a("buffer_load_dwordx4 v%d, %s, s%d offen %s lds" % (V_L16, sr(SWS), S_T, SC))
            a.label("A2_DS%s" % tag)
            a("s_add_u32 s%d, s%d, %d" % (S_SRC, S_SRC, CHUNK))
            a("s_add_u32 s%d, s%d, %d" % (S_DST, S_DST, CHUNK))
            a("s_cmp_ge_u32 s%d, %d" % (S_DST, 3 * CHUNK))
            a("s_cbranch_scc0 A2_DW%s" % tag)
            a("s_sub_u32 s%d, s%d, %d" % (S_DST, S_DST, 3 * CHUNK))
            a.label("A2_DW%s" % tag)
        def dep_loads(tag):
            a("v_lshrrev_b32 v13, 5, v%d" % V_LANE)
            a("v_lshlrev_b32 v13, 5, v13")
            a("v_mov_b32 v15, 0")
            a("s_mul_i32 s%d, s%d, 80" % (S_T, S_HEAD))
            a("s_add_u32 s%d, s%d, 0x%x" % (S_T, S_T, WS_CQ))
            for hf, rg in enumerate((CSV, CS2)):
                a("buffer_load_dwordx4 %s, v13, %s, s%d offen offset:%d %s" % (vr(rg, 4), sr(SWS), S_T, hf * 2560, SC))
                a("buffer_load_dwordx4 %s, v13, %s, s%d offen offset:%d %s" % (vr(rg + 4, 4), sr(SWS), S_T, hf * 2560 + 16, SC))
                a("buffer_load_dwordx4 %s, v15, %s, s%d offen offset:%d %s" % (vr(rg + 8, 4), sr(SWS), S_T, hf * 2560 + 64, SC))
            a("s_lshl_b32 s%d, s%d, 1" % (S_T, S_RB32))
            a("s_add_u32 s%d, s%d, s%d" % (S_T, S_T, S_TI))
            a("s_lshl_b32 s%d, s%d, 8" % (S_T, S_T))
            a("s_add_u32 s%d, s%d, 0x%x" % (S_T, S_T, WS_ST))
            a("buffer_load_dwordx2 %s, v%d, %s, s%d offen %s" % (vr(ST, 2), V_K1A, sr(SWS), S_T, SC))
            a("s_mov_b32 s%d, 0x%x" % (S_T, WS_KN))
            a("buffer_load_dwordx4 %s, v%d, %s, s%d offen %s" % (vr(KN, 4), V_L16, sr(SWS), S_T, SC))
            a("s_lshl_b32 s%d, s%d, 10" % (S_DST, S_W))
            a("s_add_u32 s%d, s%d, 0x%x" % (S_SRC, S_DST, WS_KV))
            dma_chunk(tag)
        def early_loads():
            a("s_cmp_eq_u32 s%d, 0" % S_OK)
            a("s_cbranch_scc1 A1_NE")
            dep_loads("a")
            a.label("A1_NE")
        stage(0, 4, mid=try_issue)
        stage(1, 0, pre=try_eval, mid=ok_read)
        stage(0, None, pre=ok_get, post=early_loads, last=True)
        a("s_waitcnt lgkmcnt(0)")
        for kk in range(4): mfq(1, kk)
        self.stamp(1)
        a("s_cmp_lg_u32 s%d, 0" % S_OK)
        a("s_cbranch_scc1 A1_OK")
        flag_setup()
        self.poll(floads, 15, sleep=4)
        dep_loads("a2")
        a.label("A1_OK")
        self.stamp(2)
        for r in range(16): a("v_mov_b32 v%d, 0" % (O + r))
        for r in range(8, 16): a("v_mov_b32 v%d, 0" % (SBb + r))
        a("v_mov_b32 v%d, 0x3f803f80" % (K1 + 2))
        a("v_mov_b32 v%d, 0x00003f80" % (K1 + 3))
        a("s_waitcnt vmcnt(2)")
        a("v_mul_f32 v%d, 0x%x, v%d" % (ST + 1, f32bits(LOG2E * 20 ** -0.5), ST + 1))
        for r in range(12): a("v_add_f32 v%d, v%d, v%d" % (CSV + r, CSV + r, CS2 + r))
        for r in range(12): a("v_fmac_f32 v%d, v%d, v%d" % (ACC + r, ST, CSV + r))
        for r in range(12): a("v_mul_f32 v%d, v%d, v%d" % (ACC + r, ST + 1, ACC + r))
        a("s_mov_b32 exec_lo, 0")
        for r in range(8, 12): a("v_mov_b32 v%d, 0" % (ACC + r))
        a("s_mov_b64 exec, -1")
        for r in range(6): a("v_cvt_pk_bf16_f32 v%d, v%d, v%d" % (Q0 + r, ACC + 2 * r, ACC + 2 * r + 1))
        a("v_mov_b32 v%d, 0" % (Q1 + 2))
        a("v_mov_b32 v%d, 0" % (Q1 + 3))
        a("v_mul_f32 v%d, v%d, v%d" % (T2, ACC, ACC))
        for r in range(1, 12): a("v_fmac_f32 v%d, v%d, v%d" % (T2, ACC + r, ACC + r))
        self.halfsum([T2], ACC)
        a("v_add_f32 v%d, v%d, v%d" % (KN, KN, KN + 1))
        a("v_add_f32 v%d, v%d, v%d" % (KN, KN, KN + 2))
        for dpp in DPPS:
            a("s_nop 1")
            a("v_max_f32_dpp v%d, v%d, v%d %s row_mask:0xf bank_mask:0xf" % (KN, KN, KN, dpp))
        a("s_nop 0")
        for q in range(4): a("v_readlane_b32 s%d, v%d, %d" % (S_T + q, KN, 16 * q))
        a("s_nop 3")
        a("s_max_u32 s%d, s%d, s%d" % (S_T, S_T, S_T + 1))
        a("s_max_u32 s%d, s%d, s%d" % (S_T + 2, S_T + 2, S_T + 3))
        a("s_max_u32 s%d, s%d, s%d" % (S_T, S_T, S_T + 2))
        a("v_mul_f32 v%d, s%d, v%d" % (T2, S_T, T2))
        a("v_sqrt_f32 v%d, v%d" % (T2, T2))
        a("v_mov_b32 v%d, 0x%x" % (T3, f32bits(72.0)))
        a("v_mul_f32 v%d, 0x%x, v%d" % (T2, f32bits(1.02), T2))
        a("v_cmp_nle_f32 vcc, v%d, v%d" % (T2, T3))
        a("v_add_f32 v%d, 0x%x, v%d" % (T2, f32bits(-48.0), T2))
        a("s_nop 0")
        if "forcefb" in dbg: a("s_branch A2_FB")
        a("s_cbranch_vccnz A2_FB")
        a.label("A2_SETM")
        a("v_sub_f32 v%d, 0, v%d" % (T2, T2))
        a("v_and_b32 v%d, 0xffff0000, v%d" % (T3, T2))
        a("v_sub_f32 v%d, v%d, v%d" % (T2, T2, T3))
        a("v_and_b32 v%d, 0xffff0000, v%d" % (T0, T2))
        a("v_sub_f32 v%d, v%d, v%d" % (T2, T2, T0))
        a("v_lshrrev_b32 v%d, 16, v%d" % (T3, T3))
        a("s_mov_b32 exec_hi, 0")
        a("v_or_b32 v%d, v%d, v%d" % (Q1 + 2, T3, T0))
        a("v_lshrrev_b32 v%d, 16, v%d" % (Q1 + 3, T2))
        a("s_mov_b64 exec, -1")
        a("s_waitcnt vmcnt(0)")
        a("s_barrier")
        dma_chunk("b")
        a("s_setprio %d" % self.prio_a)
        self.stamp(3)
        def rdK0(off): a("ds_read_b128 %s, v%d offset:%d" % (vr(K0, 4), V_KA, off))
        def rdK1(off): a("ds_read_b64 %s, v%d offset:%d" % (vr(K1, 2), V_K1A, off + 1024))
        def rdV(reg, addr, off):
            a("s_mov_b64 exec, s[%d:%d]" % (S_VM, S_VM + 1))
            a("ds_read_b128 %s, v%d offset:%d" % (vr(reg, 4), addr, off))
            a("s_mov_b64 exec, -1")
        def qk0(S): a("v_mfma_f32_32x32x16_bf16 %s, %s, %s, 0" % (vr(S, 16), vr(K0, 4), vr(Q0, 4)))
        def qk1(S): a("v_mfma_f32_32x32x16_bf16 %s, %s, %s, %s" % (vr(S, 16), vr(K1, 4), vr(Q1, 4), vr(S, 16)))
        def pv(Vf, P): a("v_smfmac_f32_32x32x32_bf16 %s, %s, %s, v%d" % (vr(O, 16), vr(Vf, 4), vr(P, 8), V_IDX))
        def ex(S, lo, hi):
            for r in range(lo, hi): a("v_exp_f32 v%d, v%d" % (S + r, S + r))
        rdK0(0); rdK1(0)
        a("s_waitcnt lgkmcnt(0)")
        qk0(SAa); qk1(SAa)
        rdK0(TILE); rdK1(TILE); rdV(V0, V_V0A, 1280)
        a("s_mov_b32 s%d, 0" % S_C)
        a("s_mov_b32 s%d, 0" % S_CUR)
        a("s_nop 7")
        a.label("A2_LOOP")
        a("s_add_u32 s%d, s%d, %d" % (S_CUR, S_CUR, CHUNK))
        a("s_cmp_eq_u32 s%d, %d" % (S_CUR, 3 * CHUNK))
        sel(a, S_DK, (-2 * CHUNK) & 0xffffffff, CHUNK)
        a("s_cselect_b32 s%d, 0, s%d" % (S_CUR, S_CUR))
        for j in range(8):
            Sc, Sn = (SAa, SBb) if j % 2 == 0 else (SBb, SAa)
            if j == self.hint_j:
                a("s_cmp_lg_u32 s%d, 7" % S_C)
                a("s_cbranch_scc1 A2_NH")
                self.wave_flag("s%d" % S_FO, T0)
                a.label("A2_NH")
            if j == 6:
                a("s_cmp_eq_u32 s%d, 7" % S_C)
                a("s_cbranch_scc1 A2_NODMA")
                a("s_waitcnt vmcnt(0)")
                a("s_barrier")
                a("s_cmp_ge_u32 s%d, 6" % S_C)
                a("s_cbranch_scc1 A2_NODMA")
                a("s_setprio 3")
                dma_chunk("c")
                a("s_setprio %d" % self.prio_a)
                a.label("A2_NODMA")
                a("v_add_u32 v%d, s%d, v%d" % (V_KA, S_DK, V_KA))
                a("v_add_u32 v%d, s%d, v%d" % (V_K1A, S_DK, V_K1A))
            if j == 7:
                a("v_add_u32 v%d, s%d, v%d" % (V_V0A, S_DK, V_V0A))
            a("s_waitcnt lgkmcnt(3)")
            pv(V1, Sn + 8)
            rdV(V1, V_V1A, j * TILE + 1920)
            ex(Sc, 0, 4)
            a("s_waitcnt lgkmcnt(3)")
            qk0(Sn)
            rdK0(((j + 2) % 8) * TILE)
            ex(Sc, 4, 8)
            a("s_waitcnt lgkmcnt(3)")
            qk1(Sn)
            rdK1(((j + 2) % 8) * TILE)
            ex(Sc, 8, 12)
            a("s_waitcnt lgkmcnt(3)")
            pv(V0, Sc)
            rdV(V0, V_V0A, ((j + 1) % 8) * TILE + 1280)
            ex(Sc, 12, 16)
            if j == 7: a("v_add_u32 v%d, s%d, v%d" % (V_V1A, S_DK, V_V1A))
            else: a("s_nop 0")
        a("s_add_u32 s%d, s%d, 1" % (S_C, S_C))
        if "atst" in dbg:
            for c_, sl in ((1, 1), (2, 2), (4, 5), (6, 6)):
                a("s_cmp_lg_u32 s%d, %d" % (S_C, c_))
                a("s_cbranch_scc1 A2_S%d" % c_)
                self.stamp(sl)
                a.label("A2_S%d" % c_)
        a("s_cmp_lt_u32 s%d, 8" % S_C)
        a("s_cbranch_scc1 A2_LOOP")
        a("s_setprio 3")
        a("s_waitcnt lgkmcnt(0)")
        pv(V1, SBb + 8)
        self.stamp(4)
        a("s_nop 11")
        a("v_rcp_f32 v%d, v%d" % (T3, O + 12))
        a("s_nop 0")
        for r in range(12): a("v_mul_f32 v%d, v%d, v%d" % (O + r, T3, O + r))
        PK = SAa
        for r in range(6): a("v_cvt_pk_bf16_f32 v%d, v%d, v%d" % (PK + r, O + 2 * r, O + 2 * r + 1))
        a("buffer_store_dwordx2 %s, v%d, %s, s%d offen %s" % (vr(PK, 2), AD, sr(SWS), S_OO, SC))
        a("buffer_store_dwordx2 %s, v%d, %s, s%d offen %s" % (vr(PK + 2, 2), AD + 1, sr(SWS), S_OO, SC))
        a("s_mov_b32 exec_hi, 0")
        a("buffer_store_dwordx2 %s, v%d, %s, s%d offen %s" % (vr(PK + 4, 2), AD + 2, sr(SWS), S_OO, SC))
        a("s_mov_b64 exec, -1")
        self.finish()
        a.label("A2_FB")
        a("v_mov_b32 v%d, 0xff800000" % T2)
        a("s_mov_b32 s%d, 0x%x" % (S_T, WS_KV))
        a.label("A2_FBL")
        a("buffer_load_dwordx4 %s, v%d, %s, s%d offen %s" % (vr(K0, 4), V_KA, sr(SWS), S_T, SC))
        a("buffer_load_dwordx2 %s, v%d, %s, s%d offen offset:1024 %s" % (vr(K1, 2), V_K1A, sr(SWS), S_T, SC))
        a("s_waitcnt vmcnt(0)")
        qk0(SAa); qk1(SAa)
        a("s_nop 15")
        for r in range(0, 16, 2): a("v_max3_f32 v%d, v%d, v%d, v%d" % (T2, T2, SAa + r, SAa + r + 1))
        a("s_add_u32 s%d, s%d, %d" % (S_T, S_T, TILE))
        a("s_cmp_lt_u32 s%d, 0x%x" % (S_T, WS_KV + 64 * TILE))
        a("s_cbranch_scc1 A2_FBL")
        a("v_mov_b32 v%d, v%d" % (T3, T2))
        a("s_nop 1")
        a("v_permlane32_swap_b32 v%d, v%d" % (T3, T2))
        a("s_nop 1")
        a("v_max_f32 v%d, v%d, v%d" % (T2, T2, T3))
        a("s_branch A2_SETM")

    def role_f1(self):
        a = self.a; dbg = self.dbg
        V_VX, V_VG, V_VU = 8, 9, 10
        V_XA = 12
        V_WA = 14
        V_SX = 16
        F = [24, 40]
        ACC = 56
        S_RB, S_CB, S_TH, S_CG, S_OX, S_OW, S_BX, S_BW, S_STG, S_ACT = [S_R + i for i in range(10)]
        WREG = 32768
        a.label("ROLE_F")
        a("s_cmp_ge_u32 s%d, 28" % S_IDX)
        a("s_cbranch_scc1 ROLE_SP")
        if "noF" in dbg: self.finish()
        a("s_and_b32 s%d, s%d, 3" % (S_T, S_XCD))
        a("s_mul_i32 s%d, s%d, 28" % (S_T, S_T))
        a("s_add_u32 s%d, s%d, s%d" % (S_T, S_T, S_IDX))
        a("s_lshr_b32 s%d, s%d, 3" % (S_CB, S_T))
        a("s_and_b32 s%d, s%d, 7" % (S_T, S_T))
        a("s_and_b32 s%d, s%d, 4" % (S_RB, S_XCD))
        a("s_lshl_b32 s%d, s%d, 1" % (S_RB, S_RB))
        a("s_add_u32 s%d, s%d, s%d" % (S_RB, S_RB, S_T))
        a("s_and_b32 s%d, s%d, 1" % (S_TH, S_W))
        a("s_lshr_b32 s%d, s%d, 1" % (S_CG, S_W))
        a("s_lshl_b32 s%d, s%d, 2" % (S_T, S_CB))
        a("s_add_u32 s%d, s%d, s%d" % (S_T, S_T, S_CG))
        a("s_cmp_lt_u32 s%d, 54" % S_T)
        a("s_cselect_b32 s%d, 1, 0" % S_ACT)
        srd(a, SA, P_WG, P_WG + 1, 2211840)
        srd(a, SB, P_WU, P_WU + 1, 2211840)
        a("s_lshl_b32 s%d, s%d, 4" % (S_T, S_RB))
        a("s_add_u32 s%d, s%d, s%d" % (S_T, S_T, S_W))
        a("s_mul_i32 s%d, s%d, 10240" % (S_OX, S_T))
        a("v_lshrrev_b32 v%d, 4, v%d" % (T0, V_LANE))
        a("v_bfe_u32 v%d, v%d, 2, 2" % (T1, V_LANE))
        a("v_mul_u32_u24 v%d, 3456, v%d" % (T2, T1))
        a("v_lshl_add_u32 v%d, v%d, 6, v%d" % (T2, T0, T2))
        a("v_and_b32 v%d, 3, v%d" % (T3, V_LANE))
        a("v_lshl_add_u32 v%d, v%d, 4, v%d" % (V_VG, T3, T2))
        a("v_xor_b32 v%d, 32, v%d" % (V_VU, V_VG))
        a("s_cmp_eq_u32 s%d, 13" % S_CB)
        a("s_cbranch_scc0 F1_FULL")
        a("s_mov_b32 exec_lo, 0")
        a("v_mov_b32 v%d, 0x40000000" % V_VG)
        a("v_mov_b32 v%d, 0x40000000" % V_VU)
        a("s_mov_b64 exec, -1")
        a.label("F1_FULL")
        a("s_mul_i32 s%d, s%d, %d" % (S_OW, S_W, 4 * 3456))
        a("s_lshl_b32 s%d, s%d, 8" % (S_T, S_CB))
        a("s_add_u32 s%d, s%d, s%d" % (S_OW, S_OW, S_T))
        a("s_lshl_b32 s%d, s%d, 10" % (S_BW, S_W))
        a("s_mov_b32 s%d, s%d" % (S_BX, S_BW))
        def dmaX():
            return [
              ["s_mov_b32 m0, s%d" % S_BX, "s_add_u32 s%d, s%d, 81920" % (S_T, S_OX),
               "buffer_load_dwordx4 v%d, %s, s%d offen lds" % (V_VX, sr(SX), S_OX)],
              ["s_add_u32 m0, s%d, 8192" % S_BX, "s_add_u32 s%d, s%d, 128" % (S_OX, S_OX),
               "buffer_load_dwordx4 v%d, %s, s%d offen lds" % (V_VX, sr(SX), S_T), "s_xor_b32 s%d, s%d, 16384" % (S_BX, S_BX)],
            ]
        def dmaW(b):
            return [
              ["s_add_u32 m0, s%d, %d" % (S_BW, WREG + b * 16384), "s_nop 0",
               "buffer_load_dwordx4 v%d, %s, s%d offen lds" % (V_VG, sr(SA), S_OW)],
              ["s_add_u32 m0, s%d, %d" % (S_BW, WREG + b * 16384 + 8192), "s_nop 0",
               "buffer_load_dwordx4 v%d, %s, s%d offen lds" % (V_VU, sr(SB), S_OW), "s_add_u32 s%d, s%d, %d" % (S_OW, S_OW, 32 * 3456)],
            ]
        def emit(groups):
            for g in groups:
                for op in g: a(op)
        self.f1_first = lambda: emit(dmaX() + dmaW(0))
        def rd_setup():
            a("v_bfe_u32 v%d, v%d, 2, 2" % (T1, V_LANE))
            a("v_and_b32 v%d, 31, v%d" % (T0, V_LANE))
            a("v_lshrrev_b32 v%d, 5, v%d" % (T2, V_LANE))
            a("v_bfe_u32 v%d, v%d, 1, 3" % (T3, V_LANE))
            a("v_xor_b32 v%d, v%d, v%d" % (T3, T3, T2))
            a("v_lshlrev_b32 v%d, 4, v%d" % (T3, T3))
            a("v_lshl_add_u32 v%d, v%d, 7, v%d" % (T3, T0, T3))
            a("s_lshl_b32 s%d, s%d, 13" % (S_T, S_TH))
            a("v_add_u32 v%d, s%d, v%d" % (V_XA, S_T, T3))
            a("v_xor_b32 v%d, 32, v%d" % (V_XA + 1, V_XA))
            a("v_and_b32 v%d, 1, v%d" % (T0, V_LANE))
            a("v_lshlrev_b32 v%d, 4, v%d" % (T0, T0))
            a("v_bfe_u32 v%d, v%d, 1, 1" % (T3, V_LANE))
            a("v_lshl_add_u32 v%d, v%d, 3, v%d" % (T0, T3, T0))
            a("v_lshl_add_u32 v%d, v%d, 6, v%d" % (T0, T1, T0))
            a("v_lshl_add_u32 v%d, v%d, 11, v%d" % (T0, T2, T0))
            a("v_bfe_u32 v%d, v%d, 4, 1" % (T3, V_LANE))
            a("v_mul_u32_u24 v%d, 8224, v%d" % (T3, T3))
            a("s_lshl_b32 s%d, s%d, 8" % (S_T, S_CG))
            a("s_add_u32 s%d, s%d, %d" % (S_T, S_T, WREG))
            a("v_add3_u32 v%d, v%d, v%d, s%d" % (V_WA, T0, T3, S_T))
            a("v_xor_b32 v%d, 32, v%d" % (V_WA + 1, V_WA))
        emit(dmaX() + dmaW(0) + dmaW(1) + dmaX() + dmaW(2))
        if "tf" in dbg:
            a("s_and_b32 s%d, s%d, 7" % (S_T, S_RB))
            a("s_mul_i32 s%d, s%d, %d" % (S_T, S_T, 80 * 3456))
            a("s_lshl_b32 s%d, s%d, 8" % (S_T + 1, S_CB))
            a("s_add_u32 s%d, s%d, s%d" % (S_T, S_T, S_T + 1))
            a("v_and_b32 v%d, 255, v0" % T0)
            a("v_min_u32 v%d, 159, v%d" % (T0, T0))
            a("v_lshrrev_b32 v%d, 1, v%d" % (T1, T0))
            a("v_mul_u32_u24 v%d, 3456, v%d" % (T1, T1))
            a("v_and_b32 v%d, 1, v%d" % (T0, T0))
            a("v_lshl_add_u32 v%d, v%d, 7, v%d" % (T0, T0, T1))
            a("s_cmp_ge_u32 s%d, 4" % S_W)
            a("s_cbranch_scc1 F1_TU")
            a("buffer_load_dword v19, v%d, %s, s%d offen" % (T0, sr(SA), S_T))
            a("s_branch F1_TX")
            a.label("F1_TU")
            a("buffer_load_dword v19, v%d, %s, s%d offen" % (T0, sr(SB), S_T))
            a.label("F1_TX")
            a("s_mul_i32 s%d, s%d, 163840" % (S_T, S_RB))
            a("s_and_b32 s%d, s%d, 3" % (S_T + 1, S_CB))
            a("s_mul_i32 s%d, s%d, 40960" % (S_T + 1, S_T + 1))
            a("s_add_u32 s%d, s%d, s%d" % (S_T, S_T, S_T + 1))
            a("v_min_u32 v%d, 319, v0" % T0)
            a("v_lshlrev_b32 v%d, 7, v%d" % (T0, T0))
            a("buffer_load_dword v18, v%d, %s, s%d offen" % (T0, sr(SX), S_T))
        a("s_setprio %d" % self.prio_f1)
        rd_setup()
        for r in range(64): a("v_mov_b32 v%d, 0" % (ACC + r))
        def rops(p, b, kk):
            f = F[p]
            ops = ["ds_read_b128 %s, v%d" % (vr(f, 4), V_XA + kk)]
            for ct in range(2):
                for j in range(2):
                    ops.append("ds_read_b64_tr_b16 %s, v%d offset:%d" % (vr(f + 8 + 4 * ct + 2 * j, 2), V_WA + ct, b * 16384 + kk * 4096 + j * 1024))
            ops.append("ds_read_b128 %s, v%d offset:4096" % (vr(f + 4, 4), V_XA + kk))
            return ops
        def mf(p, q):
            ti, ct = [(0, 0), (0, 1), (1, 0), (1, 1)][q]
            f = F[p]; d = ACC + (ti * 2 + ct) * 16
            a("v_mfma_f32_32x32x16_bf16 %s, %s, %s, %s" % (vr(d, 16), vr(f + 8 + 4 * ct, 4), vr(f + 4 * ti, 4), vr(d, 16)))
        a("s_mov_b32 s%d, 0" % S_STG)
        if "gate" in dbg:
            a("s_lshl_b32 s%d, s%d, 10" % (S_T + 1, S_RB))
            a("s_add_u32 s%d, s%d, 0x%x" % (S_T + 1, S_T + 1, F2_K + 12))
            a("v_mov_b32 v%d, 0" % T0)
            a("s_waitcnt vmcnt(6)")
            self.poll([(T1, 1, T0, "s%d" % (S_T + 1))], T3, sleep=8)
        else:
            a("s_waitcnt vmcnt(%d)" % (8 if "tf" in dbg else 6))
            a("s_barrier")
        self.stamp(1)
        a("s_cmp_eq_u32 s%d, 0" % S_ACT)
        a("s_cbranch_scc1 F1_IDLE")
        for op in rops(0, 0, 0): a(op)
        a.label("F1_LOOP")
        if self.f1sw:
            a("s_cmp_lg_u32 s%d, %d" % (S_STG, self.f1sw))
            a("s_cbranch_scc1 F1_SW")
            a("s_setprio %d" % self.prio_f1b)
            a.label("F1_SW")
        if "f1st" in dbg:
            for c_, sl in ((6, 4), (12, 5), (18, 6)):
                a("s_cmp_lg_u32 s%d, %d" % (S_STG, c_))
                a("s_cbranch_scc1 F1_S%d" % c_)
                self.stamp(sl)
                a.label("F1_S%d" % c_)
        for u in range(6):
            b = u % 3; odd = u & 1
            a("s_waitcnt lgkmcnt(0)")
            mf(0, 0)
            for op in rops(1, b, 1): a(op)
            mf(0, 1)
            dl = 64 | (16384 if odd else 0)
            a("v_xor_b32 v%d, 0x%x, v%d" % (V_XA, dl, V_XA))
            a("v_xor_b32 v%d, 0x%x, v%d" % (V_XA + 1, dl, V_XA + 1))
            mf(0, 2)
            if u == 1:
                a("s_cmp_eq_u32 s%d, 19" % S_STG)
                a("s_cbranch_scc1 F1_LAST")
            if u in (5, 0):
                a("s_cmp_ge_u32 s%d, 17" % S_STG)
                a("s_cbranch_scc1 F1_T%d" % u)
            a("s_waitcnt vmcnt(%d) lgkmcnt(0)" % (2 if odd else 4))
            mf(0, 3)
            a("s_barrier")
            mf(1, 0)
            for op in rops(0, (b + 1) % 3, 0): a(op)
            ops = dmaW(b) + (dmaX() if odd else [])
            mf(1, 1)
            emit(ops[:2])
            mf(1, 2)
            emit(ops[2:])
            mf(1, 3)
            if u in (5, 0):
                a("s_branch F1_N%d" % u)
                a.label("F1_T%d" % u)
                a("s_waitcnt vmcnt(0) lgkmcnt(0)")
                mf(0, 3)
                a("s_barrier")
                mf(1, 0)
                for op in rops(0, (b + 1) % 3, 0): a(op)
                for q in (1, 2, 3): mf(1, q)
                a.label("F1_N%d" % u)
            a("s_add_u32 s%d, s%d, 1" % (S_STG, S_STG))
        a("s_branch F1_LOOP")
        a.label("F1_IDLE")
        for u in range(6):
            b = u % 3; odd = u & 1
            if u == 1:
                a("s_cmp_eq_u32 s%d, 19" % S_STG)
                a("s_cbranch_scc1 F1_PUB")
            a("s_cmp_ge_u32 s%d, 17" % S_STG)
            a("s_cbranch_scc1 F1_IT%d" % u)
            a("s_waitcnt vmcnt(%d)" % (2 if odd else 4))
            a("s_barrier")
            emit(dmaW(b) + (dmaX() if odd else []))
            a("s_branch F1_IN%d" % u)
            a.label("F1_IT%d" % u)
            a("s_waitcnt vmcnt(0)")
            a("s_barrier")
            a.label("F1_IN%d" % u)
            a("s_add_u32 s%d, s%d, 1" % (S_STG, S_STG))
        a("s_branch F1_IDLE")
        a.label("F1_LAST")
        mf(0, 3)
        a("s_waitcnt lgkmcnt(0)")
        for q in range(4): mf(1, q)
        a("s_setprio %d" % self.prio_fe)
        self.stamp(2)
        a("s_lshl_b32 s%d, s%d, 1" % (S_T + 8, S_RB))
        a("s_add_u32 s%d, s%d, s%d" % (S_T + 8, S_T + 8, S_TH))
        a("s_lshl_b32 s%d, s%d, 9" % (S_T + 1, S_T + 8))
        a("s_add_u32 s%d, s%d, 0x%x" % (S_T + 1, S_T + 1, F2_K + 12))
        a("s_lshl_b32 s%d, s%d, 8" % (S_T + 2, S_CB))
        a("s_add_u32 s%d, s%d, 0x%x" % (S_T + 2, S_T + 2, F2_C))
        a("v_and_b32 v%d, 1, v%d" % (T1, V_LANE))
        a("v_lshlrev_b32 v%d, 7, v%d" % (T1, T1))
        a("v_add_u32 v%d, s%d, v%d" % (T0, S_T + 1, T1))
        a("s_mov_b32 exec_lo, 0")
        a("v_add_u32 v%d, s%d, v%d" % (T0, S_T + 2, T1))
        a("s_mov_b64 exec, -1")
        self.poll([(T1, 1, T0, "0")], T3, wave0=False)
        a("v_and_b32 v%d, 31, v%d" % (T0, V_LANE))
        a("v_lshlrev_b32 v%d, 3, v%d" % (T0, T0))
        a("s_lshl_b32 s%d, s%d, 9" % (S_T + 1, S_T + 8))
        a("s_add_u32 s%d, s%d, 0x%x" % (S_T + 1, S_T + 1, WS_ST))
        a("buffer_load_dwordx2 %s, v%d, %s, s%d offen %s" % (vr(V_SX, 2), T0, sr(SWS), S_T + 1, SC))
        a("buffer_load_dwordx2 %s, v%d, %s, s%d offen offset:256 %s" % (vr(V_SX + 2, 2), T0, sr(SWS), S_T + 1, SC))
        CSV = F[0]
        a("v_lshrrev_b32 v%d, 5, v%d" % (T2, V_LANE))
        a("v_lshlrev_b32 v%d, 5, v%d" % (T1, T2))
        a("s_lshl_b32 s%d, s%d, 2" % (S_T + 2, S_CB))
        a("s_add_u32 s%d, s%d, s%d" % (S_T + 2, S_T + 2, S_CG))
        a("s_lshl_b32 s%d, s%d, 7" % (S_T + 1, S_T + 2))
        a("s_add_u32 s%d, s%d, 0x%x" % (S_T + 1, S_T + 1, WS_CS))
        a("s_add_u32 s%d, s%d, 7168" % (S_T + 3, S_T + 1))
        for ct in range(2):
            for mat in range(2):
                for q in range(2):
                    a("buffer_load_dwordx4 %s, v%d, %s, s%d offen offset:%d %s" % (vr(CSV + ct * 16 + mat * 8 + q * 4, 4), T1, sr(SWS), S_T + 1 + 2 * mat, ct * 64 + q * 16, SC))
        a("v_and_b32 v%d, 15, v%d" % (T0, V_LANE))
        a("v_lshlrev_b32 v%d, 4, v%d" % (T0, T0))
        a("v_lshl_add_u32 v%d, v%d, 8, v%d" % (T0, T2, T0))
        a("v_bfe_u32 v%d, v%d, 4, 1" % (T1, V_LANE))
        a("v_lshl_add_u32 v%d, v%d, 10, v%d" % (T0, T1, T0))
        a("s_mul_i32 s%d, s%d, 74" % (S_T, S_T + 8))
        a("s_add_u32 s%d, s%d, s%d" % (S_T, S_T, S_T + 2))
        a("s_lshl_b32 s%d, s%d, 12" % (S_T, S_T))
        a("s_add_u32 s%d, s%d, 0x%x" % (S_T, S_T, WS_HO))
        a("s_waitcnt vmcnt(0)")
        for ti in range(2):
            for ct in range(2):
                d = ACC + (ti * 2 + ct) * 16
                for r in range(16):
                    a("v_fmac_f32 v%d, v%d, v%d" % (d + r, V_SX + 2 * ti, CSV + ct * 16 + r))
        TE = CSV + 16
        for ti in range(2):
            a("v_mul_f32 v%d, 0x%x, v%d" % (T1, f32bits(-LOG2E), V_SX + 2 * ti + 1))
            for ct in range(2):
                d = ACC + (ti * 2 + ct) * 16
                for r in range(8): a("v_mul_f32 v%d, v%d, v%d" % (TE + r, T1, d + r))
                for r in range(8): a("v_exp_f32 v%d, v%d" % (TE + r, TE + r))
                for r in range(8): a("v_mul_f32 v%d, v%d, v%d" % (d + r, d + r, d + 8 + r))
                for r in range(8): a("v_add_f32 v%d, 1.0, v%d" % (TE + r, TE + r))
                for r in range(8): a("v_rcp_f32 v%d, v%d" % (TE + r, TE + r))
                a("s_nop 0")
                for r in range(8): a("v_mul_f32 v%d, v%d, v%d" % (d + r, TE + r, d + r))
                o = CSV + (ti * 2 + ct) * 4
                for r in range(4): a("v_cvt_pk_bf16_f32 v%d, v%d, v%d" % (o + r, d + 2 * r, d + 2 * r + 1))
                a("buffer_store_dwordx4 %s, v%d, %s, s%d offen offset:%d %s" % (vr(o, 4), T0, sr(SWS), S_T, ti * 2048 + ct * 512, SC))
        a.label("F1_PUB")
        a("s_lshl_b32 s%d, s%d, 11" % (S_T, S_RB))
        a("s_lshl_b32 s%d, s%d, 7" % (S_T + 1, S_CB))
        a("s_add_u32 s%d, s%d, s%d" % (S_T, S_T, S_T + 1))
        a("s_lshl_b32 s%d, s%d, 2" % (S_T + 1, S_W))
        a("s_add_u32 s%d, s%d, s%d" % (S_T, S_T, S_T + 1))
        a("s_add_u32 s%d, s%d, 0x%x" % (S_T, S_T, F2_H))
        self.wave_flag("s%d" % S_T, T3)
        self.stamp(3)

    def kv_issue(self):
        a = self.a
        V_PI, V_WA, V_ONE, V_J, V_H = 13, 14, 15, 16, 17
        V_ST = 20
        XF = 24
        WF = 44
        AC = 64
        R = 80
        S_MAT, S_TILE, S_JOB = S_R + 10, S_R + 11, S_R + 12
        WO = 40960
        PB, PST, PCS = 0, 32768, 34816
        a("s_lshr_b32 s%d, s%d, 3" % (S_MAT, S_IDX))
        a("s_cmp_eq_u32 s%d, 0" % S_MAT)
        a("s_cselect_b32 s%d, s%d, s%d" % (SC_, P_WK, P_WV))
        a("s_cselect_b32 s%d, s%d, s%d" % (SC_ + 1, P_WK + 1, P_WV + 1))
        a("s_mov_b32 s%d, 25600" % (SC_ + 2))
        a("s_mov_b32 s%d, 0x20000" % (SC_ + 3))
        a("s_bfe_u32 s%d, s%d, 0x10002" % (S_T, S_IDX))
        a("s_lshl_b32 s%d, s%d, 1" % (S_TILE, S_RB32))
        a("s_add_u32 s%d, s%d, s%d" % (S_TILE, S_TILE, S_T))
        a("s_mul_i32 s%d, s%d, 40960" % (S_T, S_TILE))
        a("s_lshl_b32 s%d, s%d, 10" % (S_T + 1, S_W))
        for m in range(5):
            a("v_add_u32 v%d, %d, v0" % (T0, 512 * m))
            a("v_mul_u32_u24 v%d, 3277, v%d" % (T1, T0))
            a("v_lshrrev_b32 v%d, 18, v%d" % (T1, T1))
            a("v_mul_u32_u24 v%d, 80, v%d" % (T2, T1))
            a("v_sub_u32 v%d, v%d, v%d" % (T0, T0, T2))
            a("v_and_b32 v%d, 15, v%d" % (T2, T1))
            a("v_xor_b32 v%d, v%d, v%d" % (T0, T0, T2))
            a("v_and_b32 v%d, 19, v%d" % (T2, T1))
            a("v_bfe_u32 v%d, v%d, 2, 1" % (T3, T1))
            a("v_lshl_add_u32 v%d, v%d, 3, v%d" % (T2, T3, T2))
            a("v_bfe_u32 v%d, v%d, 3, 1" % (T3, T1))
            a("v_lshl_add_u32 v%d, v%d, 2, v%d" % (T2, T3, T2))
            a("v_mul_u32_u24 v%d, 1280, v%d" % (T2, T2))
            a("s_add_u32 m0, s%d, %d" % (S_T + 1, m * 8192))
            a("v_lshl_add_u32 v%d, v%d, 4, v%d" % (T0, T0, T2))
            a("buffer_load_dwordx4 v%d, %s, s%d offen lds" % (T0, sr(SX), S_T))
        for m in range(4):
            if m == 3:
                a("s_cmp_lg_u32 s%d, 0" % S_W)
                a("s_cbranch_scc1 A1_SETUP")
            a("s_add_u32 m0, s%d, %d" % (S_T + 1, WO + m * 8192))
            a("s_add_u32 s%d, s%d, %d" % (S_T + 2, S_T + 1, m * 8192))
            a("buffer_load_dwordx4 v%d, %s, s%d offen lds" % (V_L16, sr(SC_), S_T + 2))

    def kv_body(self):
        a = self.a
        a("s_cmp_ge_u32 s%d, 4" % S_W)
        a("s_cbranch_scc1 KV_NP")
        a("s_mul_i32 s%d, s%d, 74" % (S_T, S_RB32))
        a("s_add_u32 s%d, s%d, 54" % (S_T, S_T))
        a("s_lshl_b32 s%d, s%d, 12" % (S_T, S_T))
        a("s_lshl_b32 s%d, s%d, 2" % (S_T + 1, S_HI))
        a("s_add_u32 s%d, s%d, s%d" % (S_T + 1, S_T + 1, S_W))
        a("s_mul_i32 s%d, s%d, 5120" % (S_T + 1, S_T + 1))
        a("s_add_u32 s%d, s%d, s%d" % (S_T, S_T, S_T + 1))
        a("s_add_u32 s%d, s%d, 0x%x" % (S_T, S_T, WS_HO))
        for r in range(4): a("v_mov_b32 v%d, -1" % (112 + r))
        for n in range(4):
            a("buffer_store_dwordx4 v[112:115], v%d, %s, s%d offen offset:%d %s" % (V_L16, sr(SWS), S_T, n * 1024, SC))
        a("s_add_u32 s%d, s%d, 4096" % (S_T, S_T))
        a("buffer_store_dwordx4 v[112:115], v%d, %s, s%d offen %s" % (V_L16, sr(SWS), S_T, SC))
        a.label("KV_NP")
        V_PI, V_WA, V_ONE, V_J, V_H = 13, 14, 15, 16, 17
        V_ST = 20
        XF = 24
        WF = 44
        AC = 64
        R = 80
        S_MAT, S_TILE, S_JOB = S_R + 10, S_R + 11, S_R + 12
        WO = 40960
        PB, PST, PCS = 0, 32768, 34816
        a("s_lshr_b32 s%d, s%d, 2" % (S_T, S_IDX))
        a("s_lshl_b32 s%d, s%d, 2" % (S_JOB, S_RB32))
        a("s_add_u32 s%d, s%d, s%d" % (S_JOB, S_JOB, S_T))
        a("s_lshl_b32 s%d, s%d, 5" % (S_JOB, S_JOB))
        a("s_add_u32 s%d, s%d, s%d" % (S_JOB, S_JOB, S_W))
        a("s_lshl_b32 s%d, s%d, 2" % (S_JOB, S_JOB))
        a("s_add_u32 s%d, s%d, 0x%x" % (S_JOB, S_JOB, F2_K))
        a("v_and_b32 v%d, 31, v%d" % (V_J, V_LANE))
        a("v_and_b32 v%d, 19, v%d" % (T0, V_LANE))
        a("v_bfe_u32 v%d, v%d, 2, 1" % (T1, V_LANE))
        a("v_lshl_add_u32 v%d, v%d, 3, v%d" % (T0, T1, T0))
        a("v_bfe_u32 v%d, v%d, 3, 1" % (T1, V_LANE))
        a("v_lshl_add_u32 v%d, v%d, 2, v%d" % (V_PI, T1, T0))
        a("v_lshrrev_b32 v%d, 5, v%d" % (V_H, V_LANE))
        a("v_bfe_u32 v%d, v%d, 2, 2" % (T2, V_LANE))
        a("v_lshl_add_u32 v%d, v%d, 3, v%d" % (T2, V_H, T2))
        a("v_mul_u32_u24 v%d, 40, v%d" % (T2, T2))
        a("v_bfe_u32 v%d, v%d, 4, 1" % (T3, V_LANE))
        a("v_lshl_add_u32 v%d, v%d, 5, v%d" % (T2, T3, T2))
        a("s_mul_i32 s%d, s%d, 3200" % (S_T, S_W))
        a("s_add_u32 s%d, s%d, %d" % (S_T, S_T, WO))
        a("s_sub_u32 s%d, 4, s%d" % (S_T + 1, S_MAT))
        a("s_add_u32 s%d, s%d, 3" % (S_T + 2, S_MAT))
        a("v_and_b32 v%d, 1, v%d" % (T3, V_LANE))
        a("v_lshlrev_b32 v%d, s%d, v%d" % (T3, S_T + 1, T3))
        a("v_add3_u32 v%d, v%d, v%d, s%d" % (T2, T2, T3, S_T))
        a("v_bfe_u32 v%d, v%d, 1, 1" % (T3, V_LANE))
        a("v_lshlrev_b32 v%d, s%d, v%d" % (T3, S_T + 2, T3))
        a("v_add_u32 v%d, v%d, v%d" % (V_WA, T2, T3))
        a("v_and_b32 v%d, 15, v%d" % (T2, V_LANE))
        a("v_xor_b32 v%d, v%d, v%d" % (T2, T2, V_H))
        a("v_mul_u32_u24 v%d, 1280, v%d" % (T3, V_J))
        a("s_mul_i32 s%d, s%d, 10" % (S_T, S_W))
        for s_ in range(5):
            a("v_xor_b32 v%d, s%d, v%d" % (T0, S_T, T2))
            a("s_add_u32 s%d, s%d, 2" % (S_T, S_T))
            a("v_lshl_add_u32 v%d, v%d, 4, v%d" % (R + s_, T0, T3))
        a("v_mov_b32 v%d, 0x3f803f80" % V_ONE)
        for r in range(6): a("v_mov_b32 v%d, 0" % (R + 8 + r))
        a("s_waitcnt vmcnt(5)")
        a("s_cmp_lt_u32 s%d, 4" % S_W)
        a("s_cbranch_scc1 KV_W")
        a("s_waitcnt vmcnt(0)")
        a.label("KV_W")
        a("s_barrier")
        self.stamp(5)
        for s_ in range(5):
            a("ds_read_b128 %s, v%d" % (vr(XF + 4 * s_, 4), R + s_))
            a("ds_read_b64_tr_b16 %s, v%d offset:%d" % (vr(WF + 4 * s_, 2), V_WA, s_ * 640))
            a("ds_read_b64_tr_b16 %s, v%d offset:%d" % (vr(WF + 4 * s_ + 2, 2), V_WA, s_ * 640 + 160))
        self.load_nonce(T3)
        a("s_waitcnt lgkmcnt(0)")
        D = R + 8
        for r in range(20):
            o = 3 * (r & 1)
            a("v_dot2c_f32_bf16 v%d, v%d, v%d" % (D + o, V_ONE, XF + r))
            a("v_dot2c_f32_bf16 v%d, v%d, v%d" % (D + o + 1, XF + r, XF + r))
            a("v_dot2c_f32_bf16 v%d, v%d, v%d" % (D + o + 2, V_ONE, WF + r))
        a("s_cmp_eq_u32 s%d, 0" % S_MAT)
        a("s_cbranch_scc0 KV_MV")
        for s_ in range(5):
            a("v_mfma_f32_32x32x16_bf16 %s, %s, %s, %s" % (vr(AC, 16), vr(WF + 4 * s_, 4), vr(XF + 4 * s_, 4), "0" if s_ == 0 else vr(AC, 16)))
        a("s_branch KV_MD")
        a.label("KV_MV")
        for s_ in range(5):
            a("v_mfma_f32_32x32x16_bf16 %s, %s, %s, %s" % (vr(AC, 16), vr(XF + 4 * s_, 4), vr(WF + 4 * s_, 4), "0" if s_ == 0 else vr(AC, 16)))
        a.label("KV_MD")
        a("s_barrier")
        self.a1_dma("k0"); self.a1_dma("k1")
        for r in range(3): a("v_add_f32 v%d, v%d, v%d" % (V_ST + r, D + r, D + 3 + r))
        self.halfsum([V_ST, V_ST + 1, V_ST + 2], R)
        a("s_lshl_b32 s%d, s%d, 8" % (S_T, S_W))
        a("v_lshl_add_u32 v%d, v%d, 3, s%d" % (T0, V_J, S_T))
        a("ds_write_b64 v%d, %s offset:%d" % (T0, vr(V_ST, 2), PST))
        a("s_lshl_b32 s%d, s%d, 7" % (S_T, S_W))
        a("v_lshl_add_u32 v%d, v%d, 2, s%d" % (T0, V_J, S_T))
        a("ds_write_b32 v%d, v%d offset:%d" % (T0, V_ST + 2, PCS))
        a("s_lshl_b32 s%d, s%d, 12" % (S_T, S_W))
        a("v_add_u32 v%d, s%d, v%d" % (T0, S_T, V_L16))
        for q in range(4): a("ds_write_b128 v%d, %s offset:%d" % (T0, vr(AC + 4 * q, 4), q * 1024))
        a("s_waitcnt lgkmcnt(0)")
        a("s_barrier")
        a("s_cmp_ge_u32 s%d, 4" % S_W)
        a("s_cbranch_scc1 KV_DONE")
        a("s_lshl_b32 s%d, s%d, 10" % (S_T, S_W))
        a("v_add_u32 v%d, s%d, v%d" % (T0, S_T, V_L16))
        for p in range(8): a("ds_read_b128 %s, v%d offset:%d" % (vr(XF + 4 * p, 4), T0, p * 4096))
        a("s_mul_i32 s%d, s%d, 2560" % (S_T + 3, S_TILE))
        a("s_add_u32 s%d, s%d, 0x%x" % (S_T + 3, S_T + 3, WS_KV))
        a("s_cmp_eq_u32 s%d, 0" % S_MAT)
        a("s_cbranch_scc0 KV_V")
        SP = 56; CP = 72
        a("v_lshlrev_b32 v%d, 3, v%d" % (T0, V_J))
        a("s_waitcnt lgkmcnt(4)")
        for p in range(8): a("ds_read_b64 %s, v%d offset:%d" % (vr(SP + 2 * p, 2), T0, PST + p * 256))
        a("s_lshl_b32 s%d, s%d, 5" % (S_T, S_W))
        a("v_lshl_add_u32 v%d, v%d, 4, s%d" % (T0, V_H, S_T))
        a("s_waitcnt lgkmcnt(4)")
        for p in range(8): a("ds_read_b128 %s, v%d offset:%d" % (vr(CP + 4 * p, 4), T0, PCS + p * 128))
        self.tree(XF, 4, 8, 4)
        a("s_waitcnt lgkmcnt(8)")
        self.tree(SP, 2, 8, 2)
        self.meanrstd(V_ST, SP)
        a("v_lshlrev_b32 v%d, 3, v%d" % (T2, V_PI))
        a("s_cmp_eq_u32 s%d, 3" % S_W)
        a("s_cbranch_scc0 KV_K1")
        a("s_lshl_b32 s%d, s%d, 8" % (S_T, S_TILE))
        a("s_add_u32 s%d, s%d, 0x%x" % (S_T, S_T, WS_ST))
        a("s_mov_b32 exec_hi, 0")
        a("buffer_store_dwordx2 %s, v%d, %s, s%d offen %s" % (vr(V_ST, 2), T2, sr(SWS), S_T, SC))
        a("s_mov_b64 exec, -1")
        a("s_branch KV_FLAG")
        a.label("KV_K1")
        a("s_waitcnt lgkmcnt(0)")
        self.tree(CP, 4, 8, 4)
        for r in range(4): a("v_fmac_f32 v%d, v%d, v%d" % (XF + r, V_ST, CP + r))
        for r in range(4): a("v_mul_f32 v%d, v%d, v%d" % (XF + r, V_ST + 1, XF + r))
        for r in range(2): a("v_cvt_pk_bf16_f32 v%d, v%d, v%d" % (SP + r, XF + 2 * r, XF + 2 * r + 1))
        a("v_mov_b32 v%d, 0" % T3)
        a("s_cmp_eq_u32 s%d, 2" % S_W)
        a("s_cbranch_scc1 KV_K2")
        a("v_lshlrev_b32 v%d, 9, v%d" % (T0, V_H))
        a("v_lshl_add_u32 v%d, v%d, 4, v%d" % (T2, V_PI, T0))
        a("s_lshl_b32 s%d, s%d, 3" % (S_T, S_W))
        a("s_add_u32 s%d, s%d, s%d" % (S_T + 3, S_T + 3, S_T))
        a("s_branch KV_K3")
        a.label("KV_K2")
        a("s_add_u32 s%d, s%d, 1024" % (S_T + 3, S_T + 3))
        a("s_mov_b32 exec_hi, 0")
        a.label("KV_K3")
        a("buffer_store_dwordx2 %s, v%d, %s, s%d offen %s" % (vr(SP, 2), T2, sr(SWS), S_T + 3, SC))
        for r in range(4): a("v_fmac_f32 v%d, v%d, v%d" % (T3, XF + r, XF + r))
        a("s_mov_b64 exec, -1")
        self.halfsum([T3], CP)
        for dpp in DPPS:
            a("s_nop 1")
            a("v_max_f32_dpp v%d, v%d, v%d %s row_mask:0xf bank_mask:0xf" % (T3, T3, T3, dpp))
        a("s_nop 1")
        a("v_readlane_b32 s%d, v%d, 0" % (S_T, T3))
        a("v_readlane_b32 s%d, v%d, 16" % (S_T + 1, T3))
        a("s_lshl_b32 s%d, s%d, 2" % (S_T + 2, S_TILE))
        a("s_add_u32 s%d, s%d, s%d" % (S_T + 2, S_T + 2, S_W))
        a("s_lshl_b32 s%d, s%d, 2" % (S_T + 2, S_T + 2))
        a("s_add_u32 s%d, s%d, 0x%x" % (S_T + 2, S_T + 2, WS_KN))
        a("s_max_u32 s%d, s%d, s%d" % (S_T, S_T, S_T + 1))
        a("v_mov_b32 v%d, s%d" % (T3, S_T))
        a("v_mov_b32 v%d, 0" % T0)
        a("s_mov_b64 exec, 1")
        a("buffer_store_dword v%d, v%d, %s, s%d offen %s" % (T3, T0, sr(SWS), S_T + 2, SC))
        a("s_mov_b64 exec, -1")
        a("s_branch KV_FLAG")
        a.label("KV_V")
        SP = 56
        CP = 28
        a("s_lshl_b32 s%d, s%d, 6" % (S_T, S_W))
        a("v_lshl_add_u32 v%d, v%d, 5, s%d" % (T0, V_H, S_T))
        a("s_waitcnt lgkmcnt(4)")
        for p in range(5):
            a("ds_read_b128 %s, v%d offset:%d" % (vr(SP + 8 * p, 4), T0, PST + p * 256))
            a("ds_read_b128 %s, v%d offset:%d" % (vr(SP + 8 * p + 4, 4), T0, PST + p * 256 + 16))
        a("v_lshlrev_b32 v%d, 2, v%d" % (T2, V_J))
        a("s_waitcnt lgkmcnt(8)")
        for p in range(5, 8):
            a("ds_read_b128 %s, v%d offset:%d" % (vr(SP + 8 * p, 4), T0, PST + p * 256))
            a("ds_read_b128 %s, v%d offset:%d" % (vr(SP + 8 * p + 4, 4), T0, PST + p * 256 + 16))
        self.tree(XF, 4, 8, 4)
        a("s_waitcnt lgkmcnt(6)")
        for p in range(8): a("ds_read_b32 v%d, v%d offset:%d" % (CP + p, T2, PCS + p * 128))
        a("s_waitcnt lgkmcnt(8)")
        self.tree(SP, 8, 8, 8)
        for r in range(4): self.meanrstd(SP + 8 + 2 * r, SP + 2 * r)
        a("s_waitcnt lgkmcnt(0)")
        self.tree(CP, 1, 8, 1)
        for r in range(4): a("v_fmac_f32 v%d, v%d, v%d" % (XF + r, CP, SP + 8 + 2 * r))
        for r in range(4): a("v_mul_f32 v%d, v%d, v%d" % (XF + r, SP + 9 + 2 * r, XF + r))
        for r in range(2): a("v_cvt_pk_bf16_f32 v%d, v%d, v%d" % (CP + 2 + r, XF + 2 * r, XF + 2 * r + 1))
        a("v_mul_u32_u24 v%d, 320, v%d" % (T0, V_H))
        a("v_lshl_add_u32 v%d, v%d, 4, v%d" % (T0, V_J, T0))
        a("s_lshr_b32 s%d, s%d, 1" % (S_T, S_W))
        a("s_mul_i32 s%d, s%d, 640" % (S_T, S_T))
        a("s_add_u32 s%d, s%d, s%d" % (S_T + 3, S_T + 3, S_T))
        a("s_and_b32 s%d, s%d, 1" % (S_T, S_W))
        a("s_lshl_b32 s%d, s%d, 3" % (S_T, S_T))
        a("s_add_u32 s%d, s%d, s%d" % (S_T + 3, S_T + 3, S_T))
        a("s_mov_b64 exec, s[%d:%d]" % (S_VM, S_VM + 1))
        a("buffer_store_dwordx2 %s, v%d, %s, s%d offen offset:1280 %s" % (vr(CP + 2, 2), T0, sr(SWS), S_T + 3, SC))
        a("s_mov_b64 exec, -1")
        a.label("KV_FLAG")
        if "noA" in self.dbg:
            self.wave_flag("s%d" % S_JOB, T0)
        a("s_mov_b32 s%d, s%d" % (S_R + 14, S_JOB))
        a.label("KV_DONE")
        a("s_waitcnt lgkmcnt(0)")
        a("s_barrier")

    def role_sp(self):
        a = self.a
        S_J, S_G, S_LB = S_R, S_R + 1, S_R + 2
        S_D = S_R + 4
        S_O, S_F = S_R + 12, S_R + 13
        LD = 16; AC = 8
        a.label("ROLE_SP")
        a("s_sub_u32 s%d, s%d, 28" % (S_J, S_IDX))
        a("s_lshl_b32 s%d, s%d, 3" % (S_J, S_J))
        a("s_add_u32 s%d, s%d, s%d" % (S_J, S_J, S_XCD))
        def colsum(tag, lpr, stride, nload):
            sh = {16: 4, 8: 3}[lpr]; ncol = lpr * 8; csh = sh + 3; ng = 512 // ncol
            a("v_lshrrev_b32 v%d, %d, v%d" % (T0, sh, V_LANE))
            a("v_mul_u32_u24 v%d, %d, v%d" % (T0, stride, T0))
            a("v_and_b32 v%d, %d, v%d" % (T1, lpr - 1, V_LANE))
            a("v_lshl_add_u32 v%d, v%d, 4, v%d" % (T0, T1, T0))
            for i in range(nload):
                a("buffer_load_dwordx4 %s, v%d, %s, s%d offen" % (vr(LD + 4 * i, 4), T0, sr(SA), S_T))
                a("s_add_u32 s%d, s%d, %d" % (S_T, S_T, (64 // lpr) * stride))
            for r in range(8): a("v_mov_b32 v%d, 0" % (AC + r))
            for i in range(nload):
                a("s_waitcnt vmcnt(%d)" % (nload - 1 - i))
                for q in range(4):
                    a("v_lshlrev_b32 v%d, 16, v%d" % (T2, LD + 4 * i + q))
                    a("v_and_b32 v%d, 0xffff0000, v%d" % (T3, LD + 4 * i + q))
                    a("v_add_f32 v%d, v%d, v%d" % (AC + 2 * q, AC + 2 * q, T2))
                    a("v_add_f32 v%d, v%d, v%d" % (AC + 2 * q + 1, AC + 2 * q + 1, T3))
            self.load_nonce(T3)
            a("v_lshlrev_b32 v%d, 5, v0" % T0)
            a("ds_write_b128 v%d, %s" % (T0, vr(AC, 4)))
            a("ds_write_b128 v%d, %s offset:16" % (T0, vr(AC + 4, 4)))
            a("v_lshrrev_b32 v%d, %d, v0" % (T1, csh))
            a("v_and_b32 v%d, %d, v0" % (T2, ncol - 1))
            a("v_lshlrev_b32 v%d, 2, v%d" % (T2, T2))
            a("v_lshl_add_u32 v%d, v%d, %d, v%d" % (T1, T1, csh + 5, T2))
            a("s_waitcnt lgkmcnt(0)")
            a("s_barrier")
            for p in range(8): a("ds_read_b32 v%d, v%d offset:%d" % (LD + p, T1, p * ncol * 4))
            a("v_lshlrev_b32 v%d, 2, v0" % T0)
            a("s_waitcnt lgkmcnt(0)")
            self.tree(LD, 1, 8, 1)
            a("ds_write_b32 v%d, v%d offset:16384" % (T0, LD))
            a("s_waitcnt lgkmcnt(0)")
            a("s_barrier")
            a("s_cmp_lg_u32 s%d, 0" % S_W)
            a("s_cbranch_scc1 SP_%s" % tag)
            nw = ncol // 64
            for h in range(nw):
                for p in range(ng): a("ds_read_b32 v%d, v%d offset:%d" % (LD + h * ng + p, T0, 16384 + p * ncol * 4 + h * 256))
            a("s_waitcnt lgkmcnt(0)")
            for h in range(nw):
                self.tree(LD + h * ng, 1, ng, 1)
                a("buffer_store_dword v%d, v%d, %s, s%d offen offset:%d %s" % (LD + h * ng, T0, sr(SWS), S_O, h * 256, SC))
            self.wave_flag("s%d" % S_F, T3)
            a.label("SP_%s" % tag)
        a("s_cmp_ge_u32 s%d, 20" % S_J)
        a("s_cbranch_scc1 SP_CS")
        a("s_setprio 3")
        srd(a, SA, P_WQ, P_WQ + 1, 819200)
        a("s_and_b32 s%d, s%d, 1" % (S_T + 2, S_J))
        a("s_lshr_b32 s%d, s%d, 1" % (S_T + 1, S_J))
        a("s_lshl_b32 s%d, s%d, 3" % (S_T, S_T + 2))
        a("s_add_u32 s%d, s%d, s%d" % (S_T, S_T, S_W))
        a("s_mul_i32 s%d, s%d, %d" % (S_T, S_T, 40 * 1280))
        a("s_lshl_b32 s%d, s%d, 7" % (S_T + 3, S_T + 1))
        a("s_add_u32 s%d, s%d, s%d" % (S_T, S_T, S_T + 3))
        a("s_mul_i32 s%d, s%d, 2560" % (S_O, S_T + 2))
        a("s_lshl_b32 s%d, s%d, 8" % (S_T + 3, S_T + 1))
        a("s_add_u32 s%d, s%d, s%d" % (S_O, S_O, S_T + 3))
        a("s_add_u32 s%d, s%d, 0x%x" % (S_O, S_O, WS_CQ))
        a("s_lshl_b32 s%d, s%d, 7" % (S_F, S_J))
        a("s_add_u32 s%d, s%d, 0x%x" % (S_F, S_F, F2_Q))
        colsum("QD", 8, 1280, 5)
        self.stamp(1)
        a.label("SP_CS")
        a("s_setprio 2")
        a("s_sub_u32 s%d, 31, s%d" % (S_G, S_J))
        a("s_cmp_ge_u32 s%d, 28" % S_G)
        a("s_cbranch_scc1 SP_RL")
        a("s_bitcmp1_b32 s%d, 0" % S_G)
        a("s_cselect_b32 s%d, s%d, s%d" % (SA, P_WU, P_WG))
        a("s_cselect_b32 s%d, s%d, s%d" % (SA + 1, P_WU + 1, P_WG + 1))
        a("s_cselect_b32 s%d, 7168, 0" % S_O)
        a("s_mov_b32 s%d, 2211840" % (SA + 2))
        a("s_mov_b32 s%d, 0x20000" % (SA + 3))
        a("s_mul_i32 s%d, s%d, %d" % (S_T, S_W, 80 * 3456))
        a("s_lshr_b32 s%d, s%d, 1" % (S_T + 1, S_G))
        a("s_lshl_b32 s%d, s%d, 8" % (S_T + 1, S_T + 1))
        a("s_add_u32 s%d, s%d, s%d" % (S_T, S_T, S_T + 1))
        a("s_lshl_b32 s%d, s%d, 1" % (S_T + 1, S_T + 1))
        a("s_add_u32 s%d, s%d, s%d" % (S_O, S_O, S_T + 1))
        a("s_add_u32 s%d, s%d, 0x%x" % (S_O, S_O, WS_CS))
        a("s_lshl_b32 s%d, s%d, 7" % (S_F, S_G))
        a("s_add_u32 s%d, s%d, 0x%x" % (S_F, S_F, F2_C))
        colsum("CD", 16, 3456, 20)
        self.stamp(2)
        a.label("SP_RL")
        a("s_barrier")
        V_VD, V_TA = 8, 9
        a("v_lshrrev_b32 v%d, 3, v%d" % (T0, V_LANE))
        a("v_mul_u32_u24 v%d, 1280, v%d" % (T0, T0))
        a("v_and_b32 v%d, 7, v%d" % (T1, V_LANE))
        a("v_lshl_add_u32 v%d, v%d, 4, v%d" % (V_VD, T1, T0))
        a("s_lshl_b32 s%d, s%d, 13" % (S_LB, S_W))
        a("v_lshrrev_b32 v%d, 4, v%d" % (T0, V_LANE))
        a("v_bfe_u32 v%d, v%d, 2, 2" % (T1, V_LANE))
        a("v_lshl_add_u32 v%d, v%d, 3, v%d" % (T0, T0, T1))
        a("v_lshlrev_b32 v%d, 7, v%d" % (T0, T0))
        a("v_and_b32 v%d, 3, v%d" % (T1, V_LANE))
        a("v_lshl_add_u32 v%d, v%d, 3, v%d" % (T0, T1, T0))
        a("v_add_u32 v%d, s%d, v%d" % (V_TA, S_LB, T0))
        a("s_lshl_b32 s%d, s%d, 3" % (S_G, S_J))
        a("s_add_u32 s%d, s%d, s%d" % (S_G, S_G, S_W))
        a("s_mov_b32 s%d, 0x20000" % (SA + 3))
        def issue(slot):
            a("s_mul_hi_u32 s%d, s%d, 0x%x" % (S_T + 1, S_G, (1 << 32) // 10 + 1))
            a("s_mul_i32 s%d, s%d, 10" % (S_T + 2, S_T + 1))
            a("s_sub_u32 s%d, s%d, s%d" % (S_T + 2, S_G, S_T + 2))
            for i in range(4):
                a("s_lshl_b32 s%d, s%d, 2" % (S_T + 3, S_T + 2))
                a("s_add_u32 s%d, s%d, %d" % (S_T + 3, S_T + 3, i))
                a("s_mul_hi_u32 s%d, s%d, 0x%x" % (S_T + 4, S_T + 3, (1 << 32) // 5 + 1))
                a("s_mul_i32 s%d, s%d, 365" % (S_T + 4, S_T + 4))
                a("s_add_u32 s%d, s%d, s%d" % (S_T + 4, S_T + 4, S_T + 3))
                a("s_mul_i32 s%d, s%d, 5" % (S_T + 3, S_T + 1))
                a("s_add_u32 s%d, s%d, s%d" % (S_T + 4, S_T + 4, S_T + 3))
                a("s_lshl_b32 s%d, s%d, 10" % (S_T + 4, S_T + 4))
                a("s_add_u32 s%d, s%d, 0x%x" % (S_D + slot * 4 + i, S_T + 4, WS_WF2))
            a("s_sub_u32 s%d, s%d, 54" % (S_T + 4, S_T + 1))
            a("s_cmp_lt_u32 s%d, 54" % (S_T + 1))
            a("s_cselect_b32 s%d, s%d, s%d" % (S_T + 1, S_T + 1, S_T + 4))
            a("s_cselect_b32 s%d, s%d, s%d" % (SA, P_WD, P_WO))
            a("s_cselect_b32 s%d, s%d, s%d" % (SA + 1, P_WD + 1, P_WO + 1))
            sel(a, SA + 2, 2211840, 819200)
            a("s_mul_i32 s%d, s%d, 40960" % (S_T + 1, S_T + 1))
            a("s_lshl_b32 s%d, s%d, 7" % (S_T + 2, S_T + 2))
            a("s_add_u32 s%d, s%d, s%d" % (S_T + 1, S_T + 1, S_T + 2))
            for i in range(4):
                a("s_add_u32 m0, s%d, %d" % (S_LB, slot * 4096 + i * 1024))
                a("s_nop 0")
                a("buffer_load_dwordx4 v%d, %s, s%d offen lds" % (V_VD, sr(SA), S_T + 1))
                a("s_add_u32 s%d, s%d, 10240" % (S_T + 1, S_T + 1))
            a("s_add_u32 s%d, s%d, 256" % (S_G, S_G))
        def drain(slot, reg):
            for i in range(4):
                a("ds_read_b64_tr_b16 %s, v%d offset:%d" % (vr(reg + 4 * i, 2), V_TA, slot * 4096 + i * 32))
                a("ds_read_b64_tr_b16 %s, v%d offset:%d" % (vr(reg + 4 * i + 2, 2), V_TA, slot * 4096 + i * 32 + 512))
            a("s_waitcnt lgkmcnt(0)")
            for i in range(4):
                a("buffer_store_dwordx4 %s, v%d, %s, s%d offen %s" % (vr(reg + 4 * i, 4), V_L16, sr(SWS), S_D + slot * 4 + i, SC))
        issue(0); issue(1)
        a("s_waitcnt vmcnt(4)")
        drain(0, 16)
        a("s_cmp_ge_u32 s%d, 740" % S_G)
        a("s_cbranch_scc1 SP_R2")
        issue(0)
        a("s_waitcnt vmcnt(8)")
        drain(1, 32)
        a("s_waitcnt vmcnt(4)")
        drain(0, 48)
        a("s_branch SP_R3")
        a.label("SP_R2")
        a("s_waitcnt vmcnt(4)")
        drain(1, 32)
        a.label("SP_R3")
        a("s_lshl_b32 s%d, s%d, 7" % (S_T, S_J))
        a("s_add_u32 s%d, s%d, 0x%x" % (S_T, S_T, F2_W))
        self.wg_flag("s%d" % S_T)
        self.stamp(3)
        if "noF" in self.dbg: self.finish()
        a("s_branch F2_GO")

    def role_f23(self):
        a = self.a
        V_TA = T1
        SC2 = "" if "f2nosc" in self.dbg else SC
        HB = 16
        WS_ = [48, 68]
        ACC = 88
        S_H, S_WO, S_GB, S_LB, S_TH, S_KQ, S_W1K = [S_R + i for i in range(7)]
        a.label("F2_GO")
        a("s_setprio %d" % self.prio_fr)
        srd(a, SB, P_OUT, P_OUT + 1, 2621440)
        a("s_mul_i32 s%d, s%d, 81920" % (S_GB, S_RB32))
        a("s_mul_i32 s%d, s%d, 160" % (S_T + 1, S_HI))
        a("s_add_u32 s%d, s%d, s%d" % (S_GB, S_GB, S_T + 1))
        a("s_mul_i32 s%d, s%d, 10240" % (S_LB, S_W))
        a("s_lshl_b32 s%d, s%d, 10" % (S_W1K, S_W))
        a("s_and_b32 s%d, s%d, 1" % (S_TH, S_W))
        a("s_lshr_b32 s%d, s%d, 1" % (S_KQ, S_W))
        def set_h(ksg):
            a("s_mul_i32 s%d, s%d, 74" % (S_H, S_RB32))
            a("s_add_u32 s%d, s%d, s%d" % (S_H, S_H, ksg))
            a("s_lshl_b32 s%d, s%d, 1" % (S_H, S_H))
            a("s_add_u32 s%d, s%d, s%d" % (S_H, S_H, S_TH))
            a("s_lshl_b32 s%d, s%d, 11" % (S_H, S_H))
            a("s_add_u32 s%d, s%d, 0x%x" % (S_H, S_H, WS_HO))
        set_h(S_KQ)
        a("s_mul_i32 s%d, s%d, %d" % (S_WO, S_HI, 74 * 5120))
        a("s_add_u32 s%d, s%d, s%d" % (S_WO, S_WO, S_W1K))
        a("s_add_u32 s%d, s%d, 0x%x" % (S_WO, S_WO, WS_WF2))
        a("s_mul_i32 s%d, s%d, 5120" % (S_T + 1, S_KQ))
        a("v_add_u32 v%d, s%d, v%d" % (V_TA, S_T + 1, V_L16))
        a("v_add_u32 v%d, 40960, v%d" % (T2, V_TA))
        def dmaW(g):
            for m in range(3):
                if m == 2:
                    a("s_cmp_ge_u32 s%d, 4" % S_W)
                    a("s_cbranch_scc1 F2_D%d" % g)
                a("s_add_u32 m0, s%d, %d" % (S_W1K, (g % 4) * 20480 + m * 8192))
                a("s_add_u32 s%d, s%d, %d" % (S_T, S_WO, g * 20480 + m * 8192))
                a("buffer_load_dwordx4 v%d, %s, s%d offen %s lds" % (V_L16, sr(SWS), S_WO if "f2samew" in self.dbg else S_T, SC2))
            a.label("F2_D%d" % g)
        def loadH(g):
            for tt in range(2):
                a("buffer_load_dwordx4 %s, v%d, %s, s%d offen offset:%d %s" % (vr(HB + (g % 4) * 8 + tt * 4, 4), V_L16, sr(SWS), S_H, tt * 1024, SC2))
            if "f2sameh" not in self.dbg: a("s_add_u32 s%d, s%d, 16384" % (S_H, S_H))
        def rdW(g, c):
            sl = g % 4
            a("ds_read_b128 %s, v%d offset:%d" % (vr(WS_[g & 1] + 4 * c, 4), V_TA if sl < 2 else T2, (sl & 1) * 20480 + c * 1024))
        def mm(g, c):
            if "f2nomm" in self.dbg: return
            for tt in range(2):
                d = ACC + (tt * 5 + c) * 4
                a("v_mfma_f32_16x16x32_bf16 %s, %s, %s, %s" % (vr(d, 4), vr(WS_[g & 1] + 4 * c, 4), vr(HB + (g % 4) * 8 + tt * 4, 4), "0" if g == 0 else vr(d, 4)))
        a("v_min_u32 v%d, 31, v%d" % (T0, V_LANE))
        a("v_lshlrev_b32 v%d, 7, v%d" % (T0, T0))
        a("s_mov_b32 s%d, 0x%x" % (S_T + 1, F2_W))
        self.poll([(8, 1, T0, "s%d" % (S_T + 1))], T3, sleep=8)
        for g in range(4): dmaW(g)
        if "wpf" in self.dbg:
            a("s_cmp_lt_u32 s%d, 28" % S_IDX)
            a("s_cbranch_scc1 F2_NPF")
            a("s_sub_u32 s%d, s%d, 28" % (S_T + 1, S_IDX))
            a("s_lshl_b32 s%d, s%d, 16" % (S_T + 1, S_T + 1))
            a("s_add_u32 s%d, s%d, 0x%x" % (S_T + 1, S_T + 1, WS_WF2))
            a("v_lshlrev_b32 v%d, 7, v0" % T0)
            for n in range(12):
                a("buffer_load_dword v%d, v%d, %s, s%d offen %s" % (HB + n, T0, sr(SWS), S_T + 1, SC))
                a("s_add_u32 s%d, s%d, 0x40000" % (S_T + 1, S_T + 1))
            a.label("F2_NPF")
        a("v_min_u32 v%d, 13, v%d" % (T0, V_LANE))
        a("v_lshlrev_b32 v%d, 7, v%d" % (T0, T0))
        a("s_lshr_b32 s%d, s%d, 1" % (S_T + 1, S_RB32))
        a("s_lshl_b32 s%d, s%d, 11" % (S_T + 1, S_T + 1))
        a("s_and_b32 s%d, s%d, 1" % (S_T + 2, S_RB32))
        a("s_lshl_b32 s%d, s%d, 2" % (S_T + 2, S_T + 2))
        a("s_add_u32 s%d, s%d, s%d" % (S_T + 1, S_T + 1, S_T + 2))
        a("s_lshl_b32 s%d, s%d, 3" % (S_T + 2, S_KQ))
        a("s_add_u32 s%d, s%d, s%d" % (S_T + 1, S_T + 1, S_T + 2))
        a("s_add_u32 s%d, s%d, 0x%x" % (S_T + 1, S_T + 1, F2_H))
        self.poll([(8, 1, T0, "s%d" % (S_T + 1))], T3, sleep=16, wave0=False)
        self.stamp(4, "f23")
        a("s_setprio %d" % self.prio_f2)
        q = []
        for g in range(4):
            loadH(g); q += [("H", g)] * 2
        a("s_barrier")
        for c in range(5): rdW(0, c)
        NG = 14
        for g in range(NG):
            need = [("H", g), ("W", g + 1)]
            last = max([i for i, o in enumerate(q) if o in need] + [-1])
            a("s_waitcnt lgkmcnt(0) vmcnt(%d)" % (len(q) - 1 - last))
            q = q[last + 1:]
            if g == NG - 1:
                a("s_cmp_ge_u32 s%d, 2" % S_KQ)
                a("s_cbranch_scc1 F2_X")
                for c in range(5): mm(g, c)
                break
            mm(g, 0)
            a("s_barrier")
            for c in range(5): rdW(g + 1, c)
            mm(g, 1)
            if g + 4 < NG:
                dmaW(g + 4); q += [("W", g + 4)] * 2
            for c in (2, 3, 4): mm(g, c)
            if g + 4 < NG:
                loadH(g + 4); q += [("H", g + 4)] * 2
        a.label("F2_X")
        if "noA" in self.dbg: self.stamp(6)
        a("s_setprio %d" % self.prio_fr)
        GA = 8; RS = 11
        XR0 = 20
        WR = 28; OF = 48; A3 = 88; R = 48
        a("v_and_b32 v%d, 15, v%d" % (T2, V_LANE))
        a("v_mul_u32_u24 v%d, 1280, v%d" % (T0, T2))
        a("v_lshrrev_b32 v%d, 4, v%d" % (T3, V_LANE))
        a("v_lshl_add_u32 v%d, v%d, 3, v%d" % (T0, T3, T0))
        a("v_lshlrev_b32 v%d, 3, v%d" % (T2, T2))
        a("s_lshl_b32 s%d, s%d, 9" % (S_T + 4, S_RB32))
        a("s_add_u32 s%d, s%d, 0x%x" % (S_T + 4, S_T + 4, WS_ST + 4))
        for i in range(3):
            a("s_add_u32 s%d, s%d, %d" % (S_T, S_W, 8 * i))
            a("s_min_u32 s%d, s%d, 19" % (S_T, S_T))
            a("s_mul_hi_u32 s%d, s%d, 0x%x" % (S_T + 1, S_T, (1 << 32) // 5 + 1))
            a("s_mul_i32 s%d, s%d, 5" % (S_T + 2, S_T + 1))
            a("s_sub_u32 s%d, s%d, s%d" % (S_T + 2, S_T, S_T + 2))
            a("s_mul_i32 s%d, s%d, 20480" % (S_T + 3, S_T + 1))
            a("s_lshl_b32 s%d, s%d, 5" % (S_T + 2, S_T + 2))
            a("s_add_u32 s%d, s%d, s%d" % (S_T + 3, S_T + 3, S_T + 2))
            a("v_add_u32 v%d, s%d, v%d" % (GA + i, S_T + 3, T0))
            a("s_lshl_b32 s%d, s%d, 7" % (S_T + 1, S_T + 1))
            a("s_add_u32 s%d, s%d, s%d" % (S_T + 1, S_T + 1, S_T + 4))
            a("buffer_load_dword v%d, v%d, %s, s%d offen %s" % (RS + i, T2, sr(SWS), S_T + 1, SC))
        a("s_mul_i32 s%d, s%d, 5" % (S_T + 1, S_KQ))
        a("s_add_u32 s%d, s%d, 54" % (S_T + 1, S_T + 1))
        set_h(S_T + 1)
        a("s_mul_i32 s%d, s%d, 74" % (S_WO, S_HI))
        a("s_add_u32 s%d, s%d, s%d" % (S_WO, S_WO, S_T + 1))
        a("s_mul_i32 s%d, s%d, 5120" % (S_WO, S_WO))
        a("s_add_u32 s%d, s%d, 0x%x" % (S_WO, S_WO, WS_WF2))
        a("v_add_u32 v%d, 4096, v%d" % (T3, V_L16))
        for c in range(4):
            a("buffer_load_dwordx4 %s, v%d, %s, s%d offen offset:%d %s" % (vr(WR + 4 * c, 4), V_L16, sr(SWS), S_WO, c * 1024, SC))
        a("buffer_load_dwordx4 %s, v%d, %s, s%d offen %s" % (vr(WR + 16, 4), T3, sr(SWS), S_WO, SC))
        for i in range(3):
            a("buffer_load_dwordx2 %s, v%d, %s, s%d offen" % (vr(XR0 + 2 * i, 2), GA + i, sr(SX), S_GB))
        a("s_mul_i32 s%d, s%d, 10240" % (S_T, S_TH))
        a("s_add_u32 s%d, s%d, s%d" % (S_WO, S_WO, S_T))
        a("s_add_u32 s%d, s%d, 5120" % (S_WO, S_WO))
        a("v_add_u32 v%d, s%d, v%d" % (T0, S_W1K, V_L16))
        a("v_add_u32 v%d, 16384, v%d" % (T2, T0))
        def red_write(mid=None):
            a("v_add_u32 v%d, s%d, v%d" % (T3, S_LB, V_L16))
            a("s_barrier")
            a("s_nop 4")
            for k in range(10): a("ds_write_b128 v%d, %s offset:%d" % (T3, vr(A3 + 4 * k, 4), k * 1024))
            if mid: mid()
            a("s_waitcnt lgkmcnt(0)")
            a("s_barrier")
        def own_read(after=None):
            for i in range(3):
                for k in range(4):
                    off = k * 20480 + i * 8192
                    if i < 2 and off < 65536: a("ds_read_b128 %s, v%d offset:%d" % (vr(R + i * 16 + k * 4, 4), T0, off))
                    else: a("ds_read_b128 %s, v%d offset:%d" % (vr(R + i * 16 + k * 4, 4), T2, off - 16384))
            a("s_waitcnt lgkmcnt(0)")
            if after: after()
            for i in range(3): self.tree(R + i * 16, 4, 4, 4)
        def loadW3():
            a("s_barrier")
            for p in range(2):
                a("s_add_u32 m0, s%d, %d" % (S_LB, p * 5120))
                a("s_nop 0")
                for n in range(4):
                    a("buffer_load_dwordx4 v%d, %s, s%d offen offset:%d %s lds" % (V_L16, sr(SWS), S_WO, n * 1024, SC))
                a("s_add_u32 m0, s%d, %d" % (S_LB, p * 5120 + 4096))
                a("s_add_u32 s%d, s%d, 4096" % (S_WO, S_WO))
                a("buffer_load_dwordx4 v%d, %s, s%d offen %s lds" % (V_L16, sr(SWS), S_WO, SC))
                a("s_add_u32 s%d, s%d, 1024" % (S_WO, S_WO))
        red_write()
        own_read(loadW3)
        G = 96
        GP = 14
        a("s_waitcnt vmcnt(18)")
        for i in range(3): a("v_mul_f32 v%d, v%d, v%d" % (RS + i, RS + i, RS + i))
        idx = [(i, r) for i in range(3) for r in range(4)]
        for i, r in idx: a("v_mul_f32 v%d, v%d, v%d" % (R + i * 16 + r, RS + i, R + i * 16 + r))
        for i, r in idx: a("v_mul_f32 v%d, 0x%x, v%d" % (G + 4 * i + r, f32bits(-LOG2E), R + i * 16 + r))
        for i, r in idx: a("v_exp_f32 v%d, v%d" % (G + 4 * i + r, G + 4 * i + r))
        a("s_nop 0")
        for i, r in idx: a("v_add_f32 v%d, 1.0, v%d" % (G + 4 * i + r, G + 4 * i + r))
        for i, r in idx: a("v_rcp_f32 v%d, v%d" % (G + 4 * i + r, G + 4 * i + r))
        a("s_nop 0")
        for i, r in idx: a("v_mul_f32 v%d, v%d, v%d" % (G + 4 * i + r, G + 4 * i + r, R + i * 16 + r))
        for k in range(6): a("v_cvt_pk_bf16_f32 v%d, v%d, v%d" % (GP + k, G + 2 * k, G + 2 * k + 1))
        XR = XR0
        self.stamp(5, "f23")
        if "noA" in self.dbg: self.finish()
        a("s_mul_i32 s%d, s%d, 20480" % (S_T, S_KQ))
        a("v_add_u32 v%d, s%d, v%d" % (V_TA, S_T, V_L16))
        a("v_bfe_u32 v%d, v%d, 2, 1" % (T3, V_LANE))
        a("v_and_b32 v11, 3, v%d" % V_LANE)
        a("v_lshlrev_b32 v11, 3, v11")
        a("v_lshl_add_u32 v11, v%d, 7, v11" % T3)
        a("s_lshl_b32 s%d, s%d, 10" % (S_T + 1, S_RB32))
        a("s_lshl_b32 s%d, s%d, 8" % (S_T + 2, S_KQ))
        a("s_add_u32 s%d, s%d, s%d" % (S_T + 1, S_T + 1, S_T + 2))
        a("s_lshl_b32 s%d, s%d, 2" % (S_T + 2, S_TH))
        a("s_add_u32 s%d, s%d, s%d" % (S_T + 1, S_T + 1, S_T + 2))
        a("s_add_u32 s%d, s%d, 0x%x" % (S_T + 1, S_T + 1, F2_O))
        a("s_waitcnt vmcnt(0)")
        a("s_barrier")
        self.poll([(12, 1, 11, "s%d" % (S_T + 1))], T3, sleep=6, wave0=False)
        a("s_mov_b32 s%d, %d" % (S_T + 2, SPIN_MAX))
        a.label("F3_PL")
        a("s_mov_b32 s%d, s%d" % (S_T, S_H))
        for s_ in range(5):
            for tt in range(2):
                a("buffer_load_dwordx4 %s, v%d, %s, s%d offen offset:%d %s" % (vr(OF + s_ * 8 + tt * 4, 4), V_L16, sr(SWS), S_T, tt * 1024, SC))
            a("s_add_u32 s%d, s%d, 4096" % (S_T, S_T))
        for s_ in range(5):
            a("s_waitcnt vmcnt(%d)" % (8 - 2 * s_))
            b = OF + s_ * 8
            if s_ == 0: a("v_max_u32 v12, v%d, v%d" % (b, b + 1))
            else: a("v_max3_u32 v12, v12, v%d, v%d" % (b, b + 1))
            for k in (2, 4, 6): a("v_max3_u32 v12, v12, v%d, v%d" % (b + k, b + k + 1))
        a("v_cmp_eq_u32 vcc, -1, v12")
        a("s_sub_u32 s%d, s%d, 1" % (S_T + 2, S_T + 2))
        a("s_cbranch_scc1 F3_GO")
        a("s_cbranch_vccnz F3_PL")
        a.label("F3_GO")
        a("s_setprio 3")
        self.stamp(6, "f23")
        for s_ in range(5):
            for c in range(5):
                if s_ > 0: a("s_waitcnt lgkmcnt(%d)" % (4 if s_ < 4 else 4 - c))
                for tt in range(2):
                    d = A3 + (tt * 5 + c) * 4
                    a("v_mfma_f32_16x16x32_bf16 %s, %s, %s, %s" % (vr(d, 4), vr(WR + 4 * c, 4), vr(OF + s_ * 8 + tt * 4, 4), "0" if s_ == 0 else vr(d, 4)))
                if s_ < 4: a("ds_read_b128 %s, v%d offset:%d" % (vr(WR + 4 * c, 4), V_TA, s_ * 5120 + c * 1024))
        U = 28; GF = 96
        def unpack_x():
            for k in range(6):
                a("v_lshlrev_b32 v%d, 16, v%d" % (U + 2 * k, XR + k))
                a("v_and_b32 v%d, 0xffff0000, v%d" % (U + 2 * k + 1, XR + k))
        red_write(unpack_x)
        for k in range(6):
            a("v_lshlrev_b32 v%d, 16, v%d" % (GF + 2 * k, GP + k))
            a("v_and_b32 v%d, 0xffff0000, v%d" % (GF + 2 * k + 1, GP + k))
        own_read()
        for i, r in idx: a("v_fmac_f32 v%d, v%d, v%d" % (U + 4 * i + r, R + i * 16 + r, GF + 4 * i + r))
        for k in range(6): a("v_cvt_pk_bf16_f32 v%d, v%d, v%d" % (XR + k, U + 2 * k, U + 2 * k + 1))
        for i in range(3):
            if i == 2:
                a("s_cmp_ge_u32 s%d, 4" % S_W)
                a("s_cbranch_scc1 F3_FIN")
            a("buffer_store_dwordx2 %s, v%d, %s, s%d offen%s" % (vr(XR + 2 * i, 2), GA + i, sr(SB), S_GB, " sc1" if "osc" in self.dbg else " nt" if "ont" in self.dbg else " sc0 sc1" if "osys" in self.dbg else ""))
        a.label("F3_FIN")
        if self.pad:
            a("v_readfirstlane_b32 s%d, v%d" % (S_T + 2, V_NONCE))
            if "padown" in self.dbg: a("s_mov_b32 s%d, s100" % (S_T + 2))
            a.label("F3_PAD")
            a("s_memrealtime s[%d:%d]" % (S_T, S_T + 1))
            a("s_waitcnt lgkmcnt(0)")
            a("s_sub_u32 s%d, s%d, s%d" % (S_T, S_T, S_T + 2))
            a("s_cmp_lt_u32 s%d, %d" % (S_T, self.pad * 100))
            a("s_cbranch_scc1 F3_PAD")
        self.finish()

    def build(self):
        name = NAME + "_kernel"
        self.prologue(name)
        self.role_a()
        self.role_f1()
        self.role_f23()
        self.role_sp()
        self.a.end_kernel(name, NVGPR)
        return self.a.text(HEADER + "; @launch grid=(512,1,1) block=(512,1,1) lds=%d\n" % LDS_BYTES)

if __name__ == "__main__":
    dbg = sys.argv[2] if len(sys.argv) > 2 else ""
    import subprocess, re
    cb = 0x4000
    for it in range(2):
        m = Mega(stamps="st" in dbg.split(","), dbg=dbg, code_bytes=cb)
        open(sys.argv[1], "w").write(m.build())
        subprocess.run(["clang", "-x", "assembler", "-target", "amdgcn-amd-amdhsa", "-mcpu=gfx950", "-c", sys.argv[1], "-o", "_m.o"], check=True)
        o = subprocess.run(["llvm-objdump", "-h", "_m.o"], capture_output=True, text=True).stdout
        size = int(re.search(r"\.text\s+([0-9a-f]+)", o).group(1), 16)
        cb = (size - 256) & ~127
    print(sys.argv[1], "text bytes", size)
```

```python
from common import *

LDS_BYTES = 81920
NVGPR = 128
S_W = 3
SWS, SX, SA, SB, SDBG = 8, 12, 16, 20, 24
S_ID, S_RB32, S_HI, S_XCD, S_IDX = 28, 29, 30, 31, 32
S_VM = 34
P_X, P_WQ, P_WK, P_WV, P_WO, P_WG, P_WU, P_WD, P_OUT, P_DBG, P_WS = 36, 38, 40, 42, 44, 48, 50, 52, 54, 56, 58
SC_ = 4
S_T = 60
S_R = 70
STAMP0 = 86
V_LANE, V_L16, V_NONCE = 1, 2, 3
T0, T1, T2, T3 = 4, 5, 6, 7
SC = "sc1"
VMASK = 0x000FFFFF
TILE = 2560
CHUNK = 8 * TILE
SPIN_MAX = 1 << 14
DPPS = ("quad_perm:[1,0,3,2]", "quad_perm:[2,3,0,1]", "row_half_mirror", "row_mirror")

class Mega:
    def __init__(self, stamps=False, dbg="", code_bytes=0x4000):
        self.a = Asm()
        self.stamps = stamps
        self.code_bytes = code_bytes
        self.dbg = d = dbg.split(",")
        def opt(name, default):
            for x in d:
                if x.startswith(name + "="): return int(x.split("=")[1])
            return default
        self.prio_a = opt("pa", 1)
        self.prio_f1 = opt("pf1", 2)
        self.prio_fe = opt("pfe", 2)
        self.prio_f2 = opt("pf2", 0)
        self.prio_fr = opt("pfr", 0)
        self.hint_j = opt("hj", 6)
        self.pad = opt("pad", 0)
        self.pat1 = "".join(x[2:] for x in d if x.startswith("u="))
        self.pat2 = "".join(x[2:] for x in d if x.startswith("w="))
        self.qsleep = opt("qs", 6)
        self.prio_rl = opt("prl", 1)
        self.ksleep = opt("ks", 24)
        self.osleep = opt("os", 2)
        self.prio_sp = opt("psp", 3)
        self.prio_q = opt("pq", 1)
        self.prio_kv = opt("pkv", 3)
        self.f1sw = opt("f1sw", 0)
        self.prio_f1b = opt("pf1b", 0)
        self.asw = opt("asw", 99)
        self.prio_ab = opt("pab", 1)

    def stamp(self, i, tag=""):
        if tag == "f23" and ("f1st" in self.dbg or "kvst" in self.dbg): return
        if tag == "kv" and "kvst" not in self.dbg: return
        if self.stamps:
            self.a("s_memrealtime s[%d:%d]" % (STAMP0 + 2 * i, STAMP0 + 2 * i + 1))

    def finish(self, i_end=7):
        a = self.a
        if self.stamps:
            a("s_waitcnt vmcnt(0)")
            self.stamp(i_end)
            a("s_waitcnt lgkmcnt(0)")
            lab = a.newlabel("LST")
            a("s_cmp_lg_u32 s%d, 0" % S_W)
            a("s_cbranch_scc1 %s" % lab)
            a("s_xor_b32 s%d, s2, %d" % (S_T, 0 if "ffirst" not in self.dbg else 256))
            a("s_lshl_b32 s%d, s%d, 6" % (S_T, S_T))
            a("s_add_u32 s%d, s%d, 0x%x" % (S_T, S_T, STAMP_OFF))
            a("s_add_u32 s%d, s%d, s%d" % (S_T + 2, P_WS, S_T))
            a("s_addc_u32 s%d, s%d, 0" % (S_T + 3, P_WS + 1))
            for r in range(16):
                a("v_mov_b32 v%d, s%d" % (8 + r, STAMP0 + r))
            a("v_mov_b32 v%d, 0" % T0)
            a("s_mov_b64 exec, 1")
            for q in range(4):
                a("global_store_dwordx4 v%d, %s, s[%d:%d] offset:%d" % (T0, vr(8 + 4 * q, 4), S_T + 2, S_T + 3, q * 16))
            a.label(lab)
        a("s_endpgm")

    def load_nonce(self, vz):
        self.a("v_mov_b32 v%d, 0" % vz)
        self.a("buffer_load_dword v%d, v%d, %s, 0 offen %s" % (V_NONCE, vz, sr(SDBG), SC))

    def poll(self, loads, vz, sleep=2, wave0=True):
        a = self.a
        done = a.newlabel("PD"); loop = a.newlabel("PL")
        if wave0:
            a("s_cmp_lg_u32 s%d, 0" % S_W)
            a("s_cbranch_scc1 %s" % done)
        a("s_mov_b32 s%d, %d" % (S_T, SPIN_MAX))
        a.label(loop)
        self.load_nonce(vz)
        for d, n, ad, so in loads:
            op = {1: "dword", 2: "dwordx2", 4: "dwordx4"}[n]
            a("buffer_load_%s %s, v%d, %s, %s offen %s" % (op, "v%d" % d if n == 1 else vr(d, n), ad, sr(SWS), so, SC))
        a("s_waitcnt vmcnt(0)")
        a("v_cmp_eq_u32 vcc, 0, v%d" % V_NONCE)
        for d, n, ad, so in loads:
            for r in range(n):
                a("v_cmp_ne_u32 s[%d:%d], v%d, v%d" % (S_T + 4, S_T + 5, V_NONCE, d + r))
                a("s_or_b64 vcc, vcc, s[%d:%d]" % (S_T + 4, S_T + 5))
        a("s_cbranch_scc0 %s" % done)
        a("s_sleep %d" % sleep)
        a("s_sub_u32 s%d, s%d, 1" % (S_T, S_T))
        a("s_cmp_lg_u32 s%d, 0" % S_T)
        a("s_cbranch_scc1 %s" % loop)
        a.label(done)
        if wave0: a("s_barrier")

    def wave_flag(self, soff, vz, first_wait=0):
        a = self.a
        loop = a.newlabel("GL"); ok = a.newlabel("GK")
        a("s_mov_b32 s%d, %d" % (S_T + 6, SPIN_MAX))
        a("v_mov_b32 v%d, 0" % vz)
        if first_wait:
            ent = a.newlabel("GE")
            a("s_waitcnt vmcnt(%d)" % first_wait)
            a("s_branch %s" % ent)
        a.label(loop)
        a("s_waitcnt vmcnt(0)")
        if first_wait: a.label(ent)
        a("v_cmp_ne_u32 vcc, 0, v%d" % V_NONCE)
        a("s_nop 0")
        a("s_cbranch_vccnz %s" % ok)
        a("buffer_load_dword v%d, v%d, %s, 0 offen %s" % (V_NONCE, vz, sr(SDBG), SC))
        a("s_sub_u32 s%d, s%d, 1" % (S_T + 6, S_T + 6))
        a("s_cmp_lg_u32 s%d, 0" % (S_T + 6))
        a("s_cbranch_scc1 %s" % loop)
        a.label(ok)
        a("s_mov_b64 exec, 1")
        a("buffer_store_dword v%d, v%d, %s, %s offen %s" % (V_NONCE, vz, sr(SWS), soff, SC))
        a("s_mov_b64 exec, -1")

    def wg_flag(self, soff):
        a = self.a
        done = a.newlabel("FD")
        self.load_nonce(T3)
        a("s_waitcnt vmcnt(0)")
        a("s_barrier")
        a("s_cmp_lg_u32 s%d, 0" % S_W)
        a("s_cbranch_scc1 %s" % done)
        self.wave_flag(soff, T3)
        a.label(done)

    def meanrstd(self, dst, s0):
        a = self.a
        a("v_mul_f32 v%d, 0x%x, v%d" % (dst, f32bits(-1.0 / 640), s0))
        a("v_mul_f32 v%d, 0x%x, v%d" % (s0 + 1, f32bits(1.0 / 640), s0 + 1))
        a("v_fma_f32 v%d, -v%d, v%d, v%d" % (s0 + 1, dst, dst, s0 + 1))
        a("v_max_f32 v%d, 0, v%d" % (s0 + 1, s0 + 1))
        a("v_add_f32 v%d, 0x%x, v%d" % (s0 + 1, f32bits(1e-5), s0 + 1))
        a("v_rsq_f32 v%d, v%d" % (dst + 1, s0 + 1))
        a("s_nop 0")

    def halfsum(self, regs, tmp):
        a = self.a
        for n, r in enumerate(regs): a("v_mov_b32 v%d, v%d" % (tmp + n, r))
        a("s_nop 1")
        for n, r in enumerate(regs): a("v_permlane32_swap_b32 v%d, v%d" % (tmp + n, r))
        a("s_nop 1")
        for n, r in enumerate(regs): a("v_add_f32 v%d, v%d, v%d" % (r, tmp + n, r))

    def tree(self, base, stride, n, width):
        step = 1
        while step < n:
            for p in range(0, n, 2 * step):
                for r in range(width):
                    self.a("v_add_f32 v%d, v%d, v%d" % (base + p * stride + r, base + p * stride + r, base + (p + step) * stride + r))
            step *= 2

    def prologue(self, name):
        a = self.a
        a.begin_kernel(name)
        if self.stamps:
            for i in range(1, 8): a("s_mov_b64 s[%d:%d], 0" % (STAMP0 + 2 * i, STAMP0 + 2 * i + 1))
        self.stamp(0)
        a("s_cmp_ge_u32 s2, 512")
        a("s_cbranch_scc0 M_GO")
        a("s_endpgm")
        a.label("M_GO")
        a("s_load_dwordx4 s[36:39], s[0:1], 0")
        a("s_load_dwordx4 s[40:43], s[0:1], 16")
        a("s_load_dwordx2 s[44:45], s[0:1], 32")
        a("s_load_dwordx4 s[48:51], s[0:1], 48")
        a("s_load_dwordx4 s[52:55], s[0:1], 64")
        a("s_load_dwordx4 s[56:59], s[0:1], 80")
        a("s_memrealtime s[%d:%d]" % (S_T + 8, S_T + 9))
        if "padown" in self.dbg: a("s_memrealtime s[100:101]")
        a("v_lshrrev_b32 v%d, 6, v0" % T0)
        a("v_and_b32 v%d, 63, v0" % V_LANE)
        a("v_readfirstlane_b32 s%d, v%d" % (S_W, T0))
        a("v_lshlrev_b32 v%d, 4, v%d" % (V_L16, V_LANE))
        if "pf" in self.dbg:
            a("s_getpc_b64 s[%d:%d]" % (S_T + 4, S_T + 5))
            a("v_lshlrev_b32 v%d, 7, v0" % T1)
            a("v_cmp_gt_u32 vcc, 0x%x, v%d" % (self.code_bytes, T1))
            a("s_and_saveexec_b64 s[%d:%d], vcc" % (S_T + 6, S_T + 7))
            a("s_cbranch_execz M_NPF")
            a("global_load_dword v19, v%d, s[%d:%d]" % (T1, S_T + 4, S_T + 5))
            a.label("M_NPF")
            a("s_mov_b64 exec, -1")
        a("v_mov_b32 v%d, 0" % V_NONCE)
        a("s_and_b32 s%d, s2, 255" % S_ID)
        a("s_and_b32 s%d, s2, 7" % S_XCD)
        a("s_lshr_b32 s%d, s%d, 3" % (S_IDX, S_ID))
        a("s_lshl_b32 s%d, s%d, 2" % (S_RB32, S_XCD))
        a("s_and_b32 s%d, s%d, 3" % (S_T + 2, S_IDX))
        a("s_add_u32 s%d, s%d, s%d" % (S_RB32, S_RB32, S_T + 2))
        a("s_lshr_b32 s%d, s%d, 5" % (S_HI, S_ID))
        a("s_mov_b32 s%d, 0x%x" % (S_VM, VMASK))
        a("s_mov_b32 s%d, 0x%x" % (S_VM + 1, VMASK))
        a("v_lshrrev_b32 v%d, 4, v%d" % (T0, V_LANE))
        a("s_and_b32 s%d, s%d, 1" % (S_T, S_W))
        a("s_lshl_b32 s%d, s%d, 2" % (S_T, S_T))
        a("v_add_u32 v%d, s%d, v%d" % (T0, S_T, T0))
        a("v_and_b32 v%d, 7, v%d" % (T1, V_LANE))
        a("v_xor_b32 v%d, v%d, v%d" % (T0, T0, T1))
        a("v_lshrrev_b32 v%d, 3, v%d" % (T1, V_LANE))
        a("v_mul_u32_u24 v%d, 1280, v%d" % (T1, T1))
        a("v_lshl_add_u32 v8, v%d, 4, v%d" % (T0, T1))
        a("s_cmp_lt_u32 s2, 256" if "ffirst" not in self.dbg else "s_cmp_ge_u32 s2, 256")
        a("s_waitcnt lgkmcnt(0)")
        srd(a, SWS, P_WS, P_WS + 1, WS_USED)
        srd(a, SX, P_X, P_X + 1, 2621440)
        srd(a, SDBG, P_DBG, P_DBG + 1, 256)
        a("s_cbranch_scc0 ROLE_F" if "ffirst" not in self.dbg else "s_cbranch_scc1 ROLE_A")

    def role_a(self):
        a = self.a; dbg = self.dbg
        S_TI, S_HEAD = S_R, S_R + 1
        a.label("ROLE_A")
        a("s_cmp_lt_u32 s%d, 4" % S_HI)
        a("s_cbranch_scc0 AUX_2")
        a("s_setprio %d" % self.prio_kv)
        self.kv_issue()
        a.label("KV_I")
        self.kv_body()
        self.wave_flag("s%d" % (S_R + 15), T0)
        a("s_branch AUX_RL")
        a.label("A_GO")
        self.stamp(1)
        if "noA" in dbg: self.finish()
        a("s_setprio %d" % self.prio_q)
        V_KA, V_K1A, V_V0A, V_V1A, V_IDX = 120, 121, 122, 123, 124
        AD = 125
        O = 96
        V0, V1 = 112, 116
        Q0, Q1 = 8, 12
        K0, K1 = 16, 20
        SAa, SBb = 24, 40
        QA = 74
        S_SRC, S_DST, S_C, S_DK, S_CUR, S_OO, S_FO, S_KM, S_QO = S_R + 2, S_R + 3, S_R + 4, S_R + 5, S_R + 6, S_R + 8, S_R + 9, S_R + 10, S_R + 11
        a("s_and_b32 s%d, s%d, 1" % (S_TI, S_W))
        a("s_lshr_b32 s%d, s%d, 1" % (S_T + 2, S_W))
        a("s_lshl_b32 s%d, s%d, 2" % (S_HEAD, S_HI))
        a("s_add_u32 s%d, s%d, s%d" % (S_HEAD, S_HEAD, S_T + 2))
        a("v_and_b32 v%d, 31, v%d" % (T0, V_LANE))
        a("v_lshrrev_b32 v%d, 5, v%d" % (T1, V_LANE))
        a("v_mov_b32 v%d, v%d" % (V_KA, V_L16))
        a("v_lshlrev_b32 v%d, 3, v%d" % (V_K1A, T0))
        a("v_mul_u32_u24 v%d, 320, v%d" % (V_V0A, T1))
        a("v_lshl_add_u32 v%d, v%d, 4, v%d" % (V_V0A, T0, V_V0A))
        a("v_mov_b32 v%d, v%d" % (V_V1A, V_V0A))
        a("v_mov_b32 v%d, 0xdddddddd" % V_IDX)
        a("s_mul_i32 s%d, s%d, 20" % (S_T, S_HEAD))
        a("v_lshlrev_b32 v%d, 4, v%d" % (T0, T0))
        for j in range(3):
            if j < 2:
                a("v_lshl_add_u32 v%d, v%d, 3, s%d" % (T2, T1, S_T))
                if j: a("v_add_u32 v%d, 4, v%d" % (T2, T2))
            else:
                a("v_mov_b32 v%d, s%d" % (T2, S_T))
                a("v_add_u32 v%d, 16, v%d" % (T2, T2))
            a("v_lshrrev_b32 v%d, 3, v%d" % (T3, T2))
            a("v_lshl_add_u32 v%d, v%d, 9, v%d" % (QA + j, T3, T0))
            a("v_and_b32 v%d, 4, v%d" % (T3, T2))
            a("v_lshl_add_u32 v%d, v%d, 1, v%d" % (QA + j, T3, QA + j))
        a("s_lshl_b32 s%d, s%d, 1" % (S_QO, S_RB32))
        a("s_add_u32 s%d, s%d, s%d" % (S_QO, S_QO, S_TI))
        a("s_mul_i32 s%d, s%d, 40960" % (S_QO, S_QO))
        if WS_QP: a("s_add_u32 s%d, s%d, 0x%x" % (S_QO, S_QO, WS_QP))
        a("v_and_b32 v%d, 3, v%d" % (T2, V_LANE))
        a("v_lshlrev_b32 v%d, 5, v%d" % (T2, T2))
        a("v_min_u32 v%d, 79, v%d" % (T2, T2))
        a("s_mul_i32 s%d, s%d, 80" % (S_T + 1, S_HI))
        a("v_add_u32 v%d, s%d, v%d" % (T2, S_T + 1, T2))
        a("v_lshrrev_b32 v%d, 7, v%d" % (T3, T2))
        a("v_add_u32 v%d, 27, v%d" % (T3, T3))
        a("v_lshrrev_b32 v77, 1, v%d" % T3)
        a("v_lshlrev_b32 v77, 7, v77")
        a("v_and_b32 v%d, 1, v%d" % (T3, T3))
        a("v_lshl_add_u32 v77, v%d, 4, v77" % T3)
        a("v_bfe_u32 v%d, v%d, 5, 1" % (T3, T2))
        a("v_lshl_add_u32 v77, v%d, 3, v77" % T3)
        a("s_lshr_b32 s%d, s%d, 1" % (S_T + 1, S_RB32))
        a("s_lshl_b32 s%d, s%d, 11" % (S_T + 1, S_T + 1))
        a("s_and_b32 s%d, s%d, 1" % (S_T + 2, S_RB32))
        a("s_lshl_b32 s%d, s%d, 2" % (S_T + 2, S_T + 2))
        a("s_add_u32 s%d, s%d, s%d" % (S_T + 1, S_T + 1, S_T + 2))
        a("s_add_u32 s%d, s%d, 0x%x" % (S_T + 1, S_T + 1, F2_H))
        a("v_add_u32 v77, s%d, v77" % (S_T + 1))
        a("v_lshl_add_u32 v%d, v%d, 2, s%d" % (T1, T1, S_T))
        a("v_and_b32 v%d, 15, v%d" % (T0, V_LANE))
        a("v_lshlrev_b32 v%d, 4, v%d" % (T0, T0))
        a("v_bfe_u32 v%d, v%d, 4, 1" % (T2, V_LANE))
        a("v_lshl_add_u32 v%d, v%d, 10, v%d" % (T0, T2, T0))
        for j in range(3):
            a("v_add_u32 v%d, %d, v%d" % (T2, 8 * j, T1))
            a("v_lshrrev_b32 v%d, 5, v%d" % (T3, T2))
            a("v_lshl_add_u32 v%d, v%d, 12, v%d" % (AD + j, T3, T0))
            a("v_bfe_u32 v%d, v%d, 3, 2" % (T3, T2))
            a("v_lshl_add_u32 v%d, v%d, 8, v%d" % (AD + j, T3, AD + j))
            a("v_and_b32 v%d, 7, v%d" % (T3, T2))
            a("v_lshl_add_u32 v%d, v%d, 1, v%d" % (AD + j, T3, AD + j))
        a("s_mul_i32 s%d, s%d, 74" % (S_OO, S_RB32))
        a("s_add_u32 s%d, s%d, 54" % (S_OO, S_OO))
        a("s_lshl_b32 s%d, s%d, 12" % (S_OO, S_OO))
        a("s_lshl_b32 s%d, s%d, 11" % (S_T + 1, S_TI))
        a("s_add_u32 s%d, s%d, s%d" % (S_OO, S_OO, S_T + 1))
        a("s_add_u32 s%d, s%d, 0x%x" % (S_OO, S_OO, WS_HO))
        a("s_lshl_b32 s%d, s%d, 10" % (S_FO, S_RB32))
        a("s_lshl_b32 s%d, s%d, 7" % (S_T + 1, S_HI))
        a("s_add_u32 s%d, s%d, s%d" % (S_FO, S_FO, S_T + 1))
        a("s_lshl_b32 s%d, s%d, 2" % (S_T + 1, S_W))
        a("s_add_u32 s%d, s%d, s%d" % (S_FO, S_FO, S_T + 1))
        a("s_add_u32 s%d, s%d, 0x%x" % (S_FO, S_FO, F2_O))
        for r in range(8): a("v_mov_b32 v%d, 0" % (V0 + r))
        a("s_mov_b32 exec_lo, 0x11000000")
        a("s_mov_b32 exec_hi, 0x11000000")
        for r in range(8): a("v_mov_b32 v%d, 0x3f803f80" % (V0 + r))
        a("s_mov_b64 exec, -1")
        for r in range(8): a("v_mov_b32 v%d, v%d" % (64 + r, V0))
        for r in range(16): a("v_mov_b32 v%d, 0" % (O + r))
        for r in range(8, 16): a("v_mov_b32 v%d, 0" % (SBb + r))
        for k in (K1 + 2, 62): a("v_mov_b32 v%d, 0x3f803f80" % k)
        for k in (K1 + 3, 63): a("v_mov_b32 v%d, 0x00003f80" % k)
        a("v_mov_b32 v%d, 0" % (Q1 + 2))
        a("v_mov_b32 v%d, 0" % (Q1 + 3))
        a("v_lshlrev_b32 v%d, 7, v%d" % (T0, V_LANE))
        a("s_mov_b32 s%d, 0x%x" % (S_T + 1, F2_K))
        a("s_mov_b32 s%d, 0x%x" % (S_T + 2, F2_K + 8192))
        a("s_cmp_lg_u32 s%d, 0" % S_W)
        a("s_cbranch_scc1 A_PP")
        a("v_and_b32 v%d, 0x180, v%d" % (T1, T0))
        a("s_lshl_b32 s%d, s%d, 9" % (S_T + 3, S_RB32))
        a("s_add_u32 s%d, s%d, 0x%x" % (S_T + 3, S_T + 3, F2_K))
        self.poll([(24, 4, T1, "s%d" % (S_T + 3))], T3, sleep=40, wave0=False)
        a("s_sleep 40")
        a.label("A_PP")
        self.poll([(24, 4, T0, "s%d" % (S_T + 1)), (28, 4, T0, "s%d" % (S_T + 2))], T3, sleep=self.ksleep)
        self.stamp(5)
        def dma_chunk(tag):
            for m in range(3):
                if m == 2:
                    a("s_cmp_ge_u32 s%d, 4" % S_W)
                    a("s_cbranch_scc1 A2_DS%s" % tag)
                a("s_add_u32 m0, s%d, %d" % (S_DST, m * 8192))
                a("s_add_u32 s%d, s%d, %d" % (S_T, S_SRC, m * 8192))
                a("buffer_load_dwordx4 v%d, %s, s%d offen %s lds" % (V_L16, sr(SWS), S_T, SC))
            a.label("A2_DS%s" % tag)
            a("s_add_u32 s%d, s%d, %d" % (S_SRC, S_SRC, CHUNK))
            a("s_add_u32 s%d, s%d, %d" % (S_DST, S_DST, CHUNK))
            a("s_cmp_ge_u32 s%d, %d" % (S_DST, 3 * CHUNK))
            a("s_cbranch_scc0 A2_DW%s" % tag)
            a("s_sub_u32 s%d, s%d, %d" % (S_DST, S_DST, 3 * CHUNK))
            a.label("A2_DW%s" % tag)
        KN = 24
        a("s_mov_b32 s%d, 0x%x" % (S_T, WS_KN))
        a("buffer_load_dwordx4 %s, v%d, %s, s%d offen %s" % (vr(KN, 4), V_L16, sr(SWS), S_T, SC))
        a("s_lshl_b32 s%d, s%d, 10" % (S_DST, S_W))
        a("s_add_u32 s%d, s%d, 0x%x" % (S_SRC, S_DST, WS_KV))
        dma_chunk("a")
        dma_chunk("b")
        a("s_waitcnt vmcnt(0)")
        a("s_barrier")
        a("v_add_f32 v%d, v%d, v%d" % (KN, KN, KN + 1))
        a("v_add_f32 v%d, v%d, v%d" % (KN, KN, KN + 2))
        for dpp in DPPS:
            a("s_nop 1")
            a("v_max_f32_dpp v%d, v%d, v%d %s row_mask:0xf bank_mask:0xf" % (KN, KN, KN, dpp))
        a("s_nop 0")
        for q in range(4): a("v_readlane_b32 s%d, v%d, %d" % (S_T + q, KN, 16 * q))
        a("s_nop 3")
        a("s_max_u32 s%d, s%d, s%d" % (S_T, S_T, S_T + 1))
        a("s_max_u32 s%d, s%d, s%d" % (S_T + 2, S_T + 2, S_T + 3))
        a("s_max_u32 s%d, s%d, s%d" % (S_KM, S_T, S_T + 2))
        self.load_nonce(T3)
        self.poll([(T1, 1, 77, "0")], T3, sleep=self.qsleep)
        a("s_setprio 3")
        self.stamp(2)
        a("buffer_load_dwordx2 %s, v%d, %s, s%d offen %s" % (vr(Q0, 2), QA, sr(SWS), S_QO, SC))
        a("buffer_load_dwordx2 %s, v%d, %s, s%d offen %s" % (vr(Q0 + 2, 2), QA + 1, sr(SWS), S_QO, SC))
        a("buffer_load_dwordx2 %s, v%d, %s, s%d offen %s" % (vr(Q1, 2), QA + 2, sr(SWS), S_QO, SC))
        a("v_mov_b32 v%d, 0" % T2)
        a("s_waitcnt vmcnt(0)")
        a("s_mov_b32 exec_lo, 0")
        a("v_mov_b32 v%d, 0" % Q1)
        a("v_mov_b32 v%d, 0" % (Q1 + 1))
        a("s_mov_b64 exec, -1")
        for r in range(6):
            a("v_lshlrev_b32 v%d, 16, v%d" % (T0, Q0 + r))
            a("v_and_b32 v%d, 0xffff0000, v%d" % (T1, Q0 + r))
            a("v_fmac_f32 v%d, v%d, v%d" % (T2, T0, T0))
            a("v_fmac_f32 v%d, v%d, v%d" % (T2, T1, T1))
        self.halfsum([T2], T3)
        a("v_mul_f32 v%d, s%d, v%d" % (T2, S_KM, T2))
        a("v_sqrt_f32 v%d, v%d" % (T2, T2))
        a("v_mov_b32 v%d, 0x%x" % (T3, f32bits(72.0)))
        a("v_mul_f32 v%d, 0x%x, v%d" % (T2, f32bits(1.02), T2))
        a("v_cmp_nle_f32 vcc, v%d, v%d" % (T2, T3))
        a("v_add_f32 v%d, 0x%x, v%d" % (T2, f32bits(-48.0), T2))
        a("s_nop 0")
        if "forcefb" in dbg: a("s_branch A2_FB")
        a("s_cbranch_vccnz A2_FB")
        a.label("A2_SETM")
        a("v_sub_f32 v%d, 0, v%d" % (T2, T2))
        a("v_and_b32 v%d, 0xffff0000, v%d" % (T3, T2))
        a("v_sub_f32 v%d, v%d, v%d" % (T2, T2, T3))
        a("v_and_b32 v%d, 0xffff0000, v%d" % (T0, T2))
        a("v_sub_f32 v%d, v%d, v%d" % (T2, T2, T0))
        a("v_lshrrev_b32 v%d, 16, v%d" % (T3, T3))
        a("s_mov_b32 exec_hi, 0")
        a("v_or_b32 v%d, v%d, v%d" % (Q1 + 2, T3, T0))
        a("v_lshrrev_b32 v%d, 16, v%d" % (Q1 + 3, T2))
        a("s_mov_b64 exec, -1")
        a("s_setprio %d" % self.prio_a)
        self.stamp(3)
        KS = [K0, 56]; VS = [V0, 64]
        def rdK0(p, off): a("ds_read_b128 %s, v%d offset:%d" % (vr(KS[p], 4), V_KA, off))
        def rdK1(p, off): a("ds_read_b64 %s, v%d offset:%d" % (vr(KS[p] + 4, 2), V_K1A, off + 1024))
        def qk0(S, p=0): a("v_mfma_f32_32x32x16_bf16 %s, %s, %s, 0" % (vr(S, 16), vr(KS[p], 4), vr(Q0, 4)))
        def qk1(S, p=0): a("v_mfma_f32_32x32x16_bf16 %s, %s, %s, %s" % (vr(S, 16), vr(KS[p] + 4, 4), vr(Q1, 4), vr(S, 16)))
        def pv(Vf, P): a("v_smfmac_f32_32x32x32_bf16 %s, %s, %s, v%d" % (vr(O, 16), vr(Vf, 4), vr(P, 8), V_IDX))
        def ex(S, lo, hi):
            for r in range(lo, hi): a("v_exp_f32 v%d, v%d" % (S + r, S + r))
        rdK0(1, 0); rdK1(1, 0)
        rdK0(0, TILE); rdK1(0, TILE)
        a("s_mov_b64 exec, s[%d:%d]" % (S_VM, S_VM + 1))
        a("ds_read_b128 %s, v%d offset:1280" % (vr(VS[0], 4), V_V0A))
        a("s_mov_b64 exec, -1")
        a("s_waitcnt lgkmcnt(3)")
        qk0(SAa, 1); qk1(SAa, 1)
        a("s_mov_b32 s%d, 0" % S_C)
        a("s_mov_b32 s%d, 0" % S_CUR)
        a("s_nop 7")
        a.label("A2_LOOP")
        a("s_add_u32 s%d, s%d, %d" % (S_CUR, S_CUR, CHUNK))
        a("s_cmp_eq_u32 s%d, %d" % (S_CUR, 3 * CHUNK))
        sel(a, S_DK, (-2 * CHUNK) & 0xffffffff, CHUNK)
        a("s_cselect_b32 s%d, 0, s%d" % (S_CUR, S_CUR))
        for j in range(8):
            Sc, Sn = (SAa, SBb) if j % 2 == 0 else (SBb, SAa)
            p = j & 1; n = 1 - p
            if j == 6:
                a("s_cmp_eq_u32 s%d, 7" % S_C)
                a("s_cbranch_scc1 A2_NODMA")
                a("s_waitcnt vmcnt(0)")
                a("s_barrier")
                a("s_cmp_ge_u32 s%d, 6" % S_C)
                a("s_cbranch_scc1 A2_NODMA")
                a("s_setprio 3")
                dma_chunk("c")
                a("s_setprio %d" % self.prio_a)
                a.label("A2_NODMA")
                a("v_add_u32 v%d, s%d, v%d" % (V_KA, S_DK, V_KA))
                a("v_add_u32 v%d, s%d, v%d" % (V_K1A, S_DK, V_K1A))
            if j == 7:
                a("v_add_u32 v%d, s%d, v%d" % (V_V0A, S_DK, V_V0A))
            a("s_waitcnt lgkmcnt(0)")
            rdK0(n, ((j + 2) % 8) * TILE)
            pv(VS[p] + 4, Sn + 8)
            rdK1(n, ((j + 2) % 8) * TILE)
            ex(Sc, 0, 4)
            qk0(Sn, p)
            a("s_mov_b64 exec, s[%d:%d]" % (S_VM, S_VM + 1))
            a("ds_read_b128 %s, v%d offset:%d" % (vr(VS[n] + 4, 4), V_V1A, j * TILE + 1920))
            a("ds_read_b128 %s, v%d offset:%d" % (vr(VS[n], 4), V_V0A, ((j + 1) % 8) * TILE + 1280))
            a("s_mov_b64 exec, -1")
            ex(Sc, 4, 8)
            qk1(Sn, p)
            ex(Sc, 8, 12)
            pv(VS[p], Sc)
            ex(Sc, 12, 16)
            if j == 7: a("v_add_u32 v%d, s%d, v%d" % (V_V1A, S_DK, V_V1A))
        a("s_add_u32 s%d, s%d, 1" % (S_C, S_C))
        if "atst" in dbg:
            for c_, sl in ((1, 1), (2, 2), (4, 5), (6, 6)):
                a("s_cmp_lg_u32 s%d, %d" % (S_C, c_))
                a("s_cbranch_scc1 A2_S%d" % c_)
                self.stamp(sl)
                a.label("A2_S%d" % c_)
        a("s_cmp_lt_u32 s%d, 8" % S_C)
        a("s_cbranch_scc1 A2_LOOP")
        a("s_setprio 3")
        a("s_waitcnt lgkmcnt(0)")
        pv(V1, SBb + 8)
        self.stamp(4)
        a("s_nop 11")
        a("v_rcp_f32 v%d, v%d" % (T3, O + 12))
        a("s_nop 0")
        for r in range(12): a("v_mul_f32 v%d, v%d, v%d" % (O + r, T3, O + r))
        PK = SAa
        for r in range(6): a("v_cvt_pk_bf16_f32 v%d, v%d, v%d" % (PK + r, O + 2 * r, O + 2 * r + 1))
        a("buffer_store_dwordx2 %s, v%d, %s, s%d offen %s" % (vr(PK, 2), AD, sr(SWS), S_OO, SC))
        a("buffer_store_dwordx2 %s, v%d, %s, s%d offen %s" % (vr(PK + 2, 2), AD + 1, sr(SWS), S_OO, SC))
        a("s_mov_b32 exec_hi, 0")
        a("buffer_store_dwordx2 %s, v%d, %s, s%d offen %s" % (vr(PK + 4, 2), AD + 2, sr(SWS), S_OO, SC))
        a("s_mov_b64 exec, -1")
        self.wave_flag("s%d" % S_FO, T0)
        self.finish()
        a.label("A2_FB")
        a("v_mov_b32 v%d, 0xff800000" % T2)
        a("s_mov_b32 s%d, 0x%x" % (S_T, WS_KV))
        a.label("A2_FBL")
        a("buffer_load_dwordx4 %s, v%d, %s, s%d offen %s" % (vr(K0, 4), V_KA, sr(SWS), S_T, SC))
        a("buffer_load_dwordx2 %s, v%d, %s, s%d offen offset:1024 %s" % (vr(K1, 2), V_K1A, sr(SWS), S_T, SC))
        a("s_waitcnt vmcnt(0)")
        qk0(SAa); qk1(SAa)
        a("s_nop 15")
        for r in range(0, 16, 2): a("v_max3_f32 v%d, v%d, v%d, v%d" % (T2, T2, SAa + r, SAa + r + 1))
        a("s_add_u32 s%d, s%d, %d" % (S_T, S_T, TILE))
        a("s_cmp_lt_u32 s%d, 0x%x" % (S_T, WS_KV + 64 * TILE))
        a("s_cbranch_scc1 A2_FBL")
        a("v_mov_b32 v%d, v%d" % (T3, T2))
        a("s_nop 1")
        a("v_permlane32_swap_b32 v%d, v%d" % (T3, T2))
        a("s_nop 1")
        a("v_max_f32 v%d, v%d, v%d" % (T2, T2, T3))
        a("s_branch A2_SETM")

    F2_WO, F2_W1K, F2_RLOK = S_R + 12, S_R + 13, S_R + 14
    def f2_wsetup(self):
        a = self.a
        a("s_lshl_b32 s%d, s%d, 10" % (self.F2_W1K, S_W))
        a("s_mul_i32 s%d, s%d, %d" % (self.F2_WO, S_HI, 74 * 5120))
        a("s_add_u32 s%d, s%d, s%d" % (self.F2_WO, self.F2_WO, self.F2_W1K))
        a("s_add_u32 s%d, s%d, 0x%x" % (self.F2_WO, self.F2_WO, WS_WF2))
    def f2_dmaW(self, g):
        a = self.a
        lab = a.newlabel("F2D")
        for m in range(3):
            if m == 2:
                a("s_cmp_ge_u32 s%d, 4" % S_W)
                a("s_cbranch_scc1 %s" % lab)
            a("s_add_u32 m0, s%d, %d" % (self.F2_W1K, (g % 4) * 20480 + m * 8192))
            a("s_add_u32 s%d, s%d, %d" % (S_T + 7, self.F2_WO, g * 20480 + m * 8192))
            a("buffer_load_dwordx4 v%d, %s, s%d offen %s lds" % (V_L16, sr(SWS), S_T + 7, SC))
        a.label(lab)

    def role_f1(self):
        a = self.a; dbg = self.dbg
        V_VX, V_VG, V_VU = 8, 9, 10
        V_XA = 12
        V_WA = 14
        V_SX = 16
        F = [24, 40]
        ACC = 56
        S_RB, S_CB, S_TH, S_CG, S_OX, S_OW, S_BX, S_BW, S_STG, S_ACT = [S_R + i for i in range(10)]
        WREG = 32768
        S_HT, S_WST = S_R + 10, S_R + 11
        a.label("ROLE_F")
        a("s_setprio %d" % self.prio_f1)
        a("s_and_b32 s%d, s%d, 3" % (S_T, S_XCD))
        a("s_lshr_b32 s%d, s%d, 3" % (S_CB, S_IDX))
        a("s_sub_u32 s%d, 3, s%d" % (S_CB, S_CB))
        a("s_lshl_b32 s%d, s%d, 2" % (S_CB, S_CB))
        a("s_add_u32 s%d, s%d, s%d" % (S_CB, S_CB, S_T))
        a("s_and_b32 s%d, s%d, 7" % (S_T, S_IDX))
        a("s_and_b32 s%d, s%d, 4" % (S_RB, S_XCD))
        a("s_lshl_b32 s%d, s%d, 1" % (S_RB, S_RB))
        a("s_add_u32 s%d, s%d, s%d" % (S_RB, S_RB, S_T))
        a("s_lshl_b32 s%d, s%d, 4" % (S_T, S_RB))
        a("s_add_u32 s%d, s%d, s%d" % (S_T, S_T, S_W))
        a("s_mul_i32 s%d, s%d, 10240" % (S_OX, S_T))
        a("s_lshl_b32 s%d, s%d, 10" % (S_BW, S_W))
        a("s_mov_b32 s%d, s%d" % (S_BX, S_BW))
        def dmaX():
            return [
              ["s_mov_b32 m0, s%d" % S_BX, "s_add_u32 s%d, s%d, 81920" % (S_T, S_OX),
               "buffer_load_dwordx4 v%d, %s, s%d offen lds" % (V_VX, sr(SX), S_OX)],
              ["s_add_u32 m0, s%d, 8192" % S_BX, "s_add_u32 s%d, s%d, 128" % (S_OX, S_OX),
               "buffer_load_dwordx4 v%d, %s, s%d offen lds" % (V_VX, sr(SX), S_T), "s_xor_b32 s%d, s%d, 16384" % (S_BX, S_BX)],
            ]
        def dmaW(b):
            return [
              ["s_add_u32 m0, s%d, %d" % (S_BW, WREG + b * 16384), "s_nop 0",
               "buffer_load_dwordx4 v%d, %s, s%d offen lds" % (V_VG, sr(SA), S_OW)],
              ["s_add_u32 m0, s%d, %d" % (S_BW, WREG + b * 16384 + 8192), "s_nop 0",
               "buffer_load_dwordx4 v%d, %s, s%d offen lds" % (V_VU, sr(SB), S_OW), "s_add_u32 s%d, s%d, s%d" % (S_OW, S_OW, S_WST)],
            ]
        def emit(groups):
            for g in groups:
                for op in g: a(op)
        if "noF" in dbg:
            a("s_cmp_lt_u32 s%d, 5" % S_CB)
            a("s_cbranch_scc1 F1_KEEP")
            a("s_or_b32 s%d, s%d, s%d" % (S_T + 2, S_ID, S_W))
            a("s_cmp_lg_u32 s%d, 0" % (S_T + 2))
            a("s_cbranch_scc1 M_NT2")
            a("s_or_b32 s%d, s%d, 1" % (S_T + 8, S_T + 8))
            a("v_mov_b32 v%d, s%d" % (T0, S_T + 8))
            a("v_mov_b32 v%d, 0" % T1)
            a("s_mov_b64 exec, 1")
            a("buffer_store_dword v%d, v%d, %s, 0 offen %s" % (T0, T1, sr(SDBG), SC))
            a("s_mov_b64 exec, -1")
            a.label("M_NT2")
            self.finish()
            a.label("F1_KEEP")
        emit(dmaX())
        a("s_lshr_b32 s%d, s%d, 2" % (S_T, S_W))
        a("s_lshl_b32 s%d, s%d, 1" % (S_HT, S_CB))
        a("s_add_u32 s%d, s%d, s%d" % (S_HT, S_HT, S_T))
        a("s_sub_u32 s%d, s%d, 5" % (S_HT, S_HT))
        a("s_cmp_eq_u32 s%d, 0" % S_T)
        a("s_cselect_b32 s%d, 27, 0" % (S_T + 1))
        a("s_add_u32 s%d, s%d, s%d" % (S_T + 1, S_T + 1, S_CB))
        a("s_cmp_lt_u32 s%d, 5" % S_CB)
        a("s_cselect_b32 s%d, s%d, s%d" % (S_HT, S_T + 1, S_HT))
        a("s_lshl_b32 s%d, s%d, 7" % (S_T + 1, S_HT))
        a("s_lshl_b32 s%d, s%d, 8" % (S_T + 2, S_HT))
        a("s_sub_u32 s%d, s%d, %d" % (S_T + 2, S_T + 2, 27 * 256))
        a("s_cmp_lt_u32 s%d, 27" % S_HT)
        a("s_cselect_b32 s%d, 1, 0" % S_ACT)
        a("s_cselect_b32 s%d, s%d, s%d" % (S_OW, S_T + 1, S_T + 2))
        sel(a, S_T + 3, 3456, 1280)
        a("s_cselect_b32 s%d, s%d, s%d" % (SA, P_WG, P_WQ))
        a("s_cselect_b32 s%d, s%d, s%d" % (SA + 1, P_WG + 1, P_WQ + 1))
        sel(a, SA + 2, 2211840, 819200)
        a("s_mov_b32 s%d, 0x20000" % (SA + 3))
        a("s_cselect_b32 s%d, s%d, s%d" % (SB, P_WU, P_WQ))
        a("s_cselect_b32 s%d, s%d, s%d" % (SB + 1, P_WU + 1, P_WQ + 1))
        a("s_mov_b32 s%d, s%d" % (SB + 2, SA + 2))
        a("s_mov_b32 s%d, 0x20000" % (SB + 3))
        a("s_cselect_b32 s%d, 32, 128" % (S_T + 4))
        a("s_lshl_b32 s%d, s%d, 5" % (S_WST, S_T + 3))
        a("s_and_b32 s%d, s%d, 3" % (S_T, S_W))
        a("s_mul_i32 s%d, s%d, s%d" % (S_T, S_T, S_T + 3))
        a("s_lshl_b32 s%d, s%d, 3" % (S_T, S_T))
        a("s_add_u32 s%d, s%d, s%d" % (S_OW, S_OW, S_T))
        a("v_lshrrev_b32 v%d, 5, v%d" % (T2, V_LANE))
        a("v_bfe_u32 v%d, v%d, 2, 2" % (T1, V_LANE))
        a("v_lshl_add_u32 v%d, v%d, 2, v%d" % (T0, T2, T1))
        a("v_mul_lo_u32 v%d, v%d, s%d" % (T0, T0, S_T + 3))
        a("v_bfe_u32 v%d, v%d, 4, 1" % (T3, V_LANE))
        a("v_lshl_add_u32 v%d, v%d, 6, v%d" % (T0, T3, T0))
        a("v_and_b32 v%d, 3, v%d" % (T3, V_LANE))
        a("v_lshl_add_u32 v%d, v%d, 4, v%d" % (V_VG, T3, T0))
        a("v_xor_b32 v%d, s%d, v%d" % (V_VU, S_T + 4, V_VG))
        emit(dmaW(0) + dmaW(1) + dmaX() + dmaW(2))
        a("s_or_b32 s%d, s%d, s%d" % (S_T + 2, S_ID, S_W))
        a("s_cmp_lg_u32 s%d, 0" % (S_T + 2))
        a("s_cbranch_scc1 M_NT")
        a("s_or_b32 s%d, s%d, 1" % (S_T + 8, S_T + 8))
        a("v_mov_b32 v%d, s%d" % (T0, S_T + 8))
        a("v_mov_b32 v%d, 0" % T1)
        a("s_mov_b64 exec, 1")
        a("buffer_store_dword v%d, v%d, %s, 0 offen %s" % (T0, T1, sr(SDBG), SC))
        a("s_mov_b64 exec, -1")
        a.label("M_NT")
        a("s_and_b32 s%d, s%d, 1" % (S_TH, S_W))
        a("s_lshr_b32 s%d, s%d, 1" % (S_CG, S_W))
        a("v_bfe_u32 v%d, v%d, 2, 2" % (T1, V_LANE))
        a("v_and_b32 v%d, 31, v%d" % (T0, V_LANE))
        a("v_bfe_u32 v%d, v%d, 1, 3" % (T3, V_LANE))
        a("v_xor_b32 v%d, v%d, v%d" % (T3, T3, T2))
        a("v_lshlrev_b32 v%d, 4, v%d" % (T3, T3))
        a("v_lshl_add_u32 v%d, v%d, 7, v%d" % (T3, T0, T3))
        a("s_lshl_b32 s%d, s%d, 13" % (S_T, S_TH))
        a("v_add_u32 v%d, s%d, v%d" % (V_XA, S_T, T3))
        a("v_xor_b32 v%d, 32, v%d" % (V_XA + 1, V_XA))
        a("v_and_b32 v%d, 1, v%d" % (T0, V_LANE))
        a("v_lshlrev_b32 v%d, 4, v%d" % (T0, T0))
        a("v_bfe_u32 v%d, v%d, 1, 1" % (T3, V_LANE))
        a("v_lshl_add_u32 v%d, v%d, 3, v%d" % (T0, T3, T0))
        a("v_lshl_add_u32 v%d, v%d, 6, v%d" % (T0, T1, T0))
        a("v_lshl_add_u32 v%d, v%d, 10, v%d" % (T0, T2, T0))
        a("s_cmp_lg_u32 s%d, 0" % S_ACT)
        a("s_cselect_b32 s%d, 8224, 32" % (S_T + 1))
        a("s_cselect_b32 s%d, 32, 8192" % (S_T + 2))
        a("v_bfe_u32 v%d, v%d, 4, 1" % (T3, V_LANE))
        a("v_mul_lo_u32 v%d, v%d, s%d" % (T3, T3, S_T + 1))
        a("s_lshr_b32 s%d, s%d, 2" % (S_T, S_W))
        a("s_lshl_b32 s%d, s%d, 12" % (S_T, S_T))
        a("s_and_b32 s%d, s%d, 1" % (S_T + 3, S_CG))
        a("s_lshl_b32 s%d, s%d, 8" % (S_T + 3, S_T + 3))
        a("s_add_u32 s%d, s%d, s%d" % (S_T, S_T, S_T + 3))
        a("s_add_u32 s%d, s%d, %d" % (S_T, S_T, WREG))
        a("v_add3_u32 v%d, v%d, v%d, s%d" % (V_WA, T0, T3, S_T))
        a("v_xor_b32 v%d, s%d, v%d" % (V_WA + 1, S_T + 2, V_WA))
        for r in range(64): a("v_mov_b32 v%d, 0" % (ACC + r))
        V_C, V_FL, V_FA, V_CA, V_SA = 20, 22, 120, 121, 122
        S_R32, S_KS, S_CST, S_PRE = S_R + 12, S_R + 13, S_R + 14, S_R + 15
        a("s_lshl_b32 s%d, s%d, 1" % (S_R32, S_RB))
        a("s_add_u32 s%d, s%d, s%d" % (S_R32, S_R32, S_TH))
        a("s_and_b32 s%d, s%d, 1" % (S_T + 4, S_CG))
        a("s_lshl_b32 s%d, s%d, 1" % (S_T + 2, S_HT))
        a("s_add_u32 s%d, s%d, s%d" % (S_KS, S_T + 2, S_T + 4))
        a("s_lshl_b32 s%d, s%d, 9" % (S_T + 1, S_R32))
        a("s_add_u32 s%d, s%d, 0x%x" % (S_T, S_T + 1, WS_ST))
        a("v_and_b32 v%d, 31, v%d" % (T0, V_LANE))
        a("v_lshl_add_u32 v%d, v%d, 3, s%d" % (V_SA, T0, S_T))
        a("s_add_u32 s%d, s%d, 0x%x" % (S_T + 1, S_T + 1, F2_K + 12))
        a("s_lshl_b32 s%d, s%d, 7" % (S_T + 5, S_KS))
        a("s_lshl_b32 s%d, s%d, 9" % (S_T + 3, S_HT))
        a("s_lshl_b32 s%d, s%d, 7" % (S_T + 4, S_T + 4))
        a("s_add_u32 s%d, s%d, s%d" % (S_T + 3, S_T + 3, S_T + 4))
        a("s_add_u32 s%d, s%d, %d" % (S_T + 3, S_T + 3, 14336 - 27 * 512))
        a("s_cmp_lg_u32 s%d, 0" % S_ACT)
        a("s_cselect_b32 s%d, s%d, s%d" % (S_T + 2, S_HT, S_T + 2))
        a("s_cselect_b32 s%d, s%d, s%d" % (S_T + 5, S_T + 5, S_T + 3))
        a("s_cselect_b32 s%d, 64, 256" % S_CST)
        a("s_cselect_b32 s%d, 7168, 64" % (S_T + 6))
        sel(a, S_T + 3, 27 * 128, 128)
        a("s_add_u32 s%d, s%d, 0x%x" % (S_T + 5, S_T + 5, WS_CS))
        a("s_lshl_b32 s%d, s%d, 7" % (S_T + 2, S_T + 2))
        a("s_add_u32 s%d, s%d, 0x%x" % (S_T + 2, S_T + 2, F3_C))
        a("v_and_b32 v%d, 1, v%d" % (T1, V_LANE))
        a("v_lshlrev_b32 v%d, 7, v%d" % (T0, T1))
        a("v_add_u32 v%d, s%d, v%d" % (V_FA, S_T + 1, T0))
        a("v_mul_lo_u32 v%d, v%d, s%d" % (T1, T1, S_T + 3))
        a("s_mov_b32 exec_lo, 0")
        a("v_add_u32 v%d, s%d, v%d" % (V_FA, S_T + 2, T1))
        a("s_mov_b64 exec, -1")
        a("v_bfe_u32 v%d, v%d, 4, 1" % (T0, V_LANE))
        a("v_mul_lo_u32 v%d, v%d, s%d" % (T0, T0, S_T + 6))
        a("v_and_b32 v%d, 3, v%d" % (T1, V_LANE))
        a("v_lshl_add_u32 v%d, v%d, 2, v%d" % (T0, T1, T0))
        a("v_bfe_u32 v%d, v%d, 2, 1" % (T1, V_LANE))
        a("v_lshl_add_u32 v%d, v%d, 5, v%d" % (T0, T1, T0))
        a("v_bfe_u32 v%d, v%d, 3, 1" % (T1, V_LANE))
        a("v_lshl_add_u32 v%d, v%d, 4, v%d" % (T0, T1, T0))
        a("v_add_u32 v%d, s%d, v%d" % (V_CA, S_T + 5, T0))
        a("s_mov_b32 s%d, 0" % S_PRE)
        def pre_loads():
            a("buffer_load_dwordx2 %s, v%d, %s, 0 offen %s" % (vr(V_SX, 2), V_SA, sr(SWS), SC))
            a("buffer_load_dwordx2 %s, v%d, %s, 0 offen offset:256 %s" % (vr(V_SX + 2, 2), V_SA, sr(SWS), SC))
            a("buffer_load_dword v%d, v%d, %s, 0 offen %s" % (V_C, V_CA, sr(SWS), SC))
            a("buffer_load_dword v%d, v%d, %s, s%d offen %s" % (V_C + 1, V_CA, sr(SWS), S_CST, SC))
        def rops(p, b, kk):
            f = F[p]
            ops = ["ds_read_b128 %s, v%d" % (vr(f, 4), V_XA + kk)]
            for ct in range(2):
                for j in range(2):
                    ops.append("ds_read_b64_tr_b16 %s, v%d offset:%d" % (vr(f + 8 + 4 * ct + 2 * j, 2), V_WA + ct, b * 16384 + kk * 2048 + j * 512))
            ops.append("ds_read_b128 %s, v%d offset:4096" % (vr(f + 4, 4), V_XA + kk))
            return ops
        def mf(p, q):
            if self.pat1:
                pr = self.pat1[(p * 4 + q) % len(self.pat1)]; prev = self.pat1[(p * 4 + q - 1) % len(self.pat1)]
                if pr != prev: a("s_setprio %s" % pr)
            ti, ct = [(0, 0), (0, 1), (1, 0), (1, 1)][q]
            f = F[p]; d = ACC + (ti * 2 + ct) * 16
            a("v_mfma_f32_32x32x16_bf16 %s, %s, %s, %s" % (vr(d, 16), vr(f + 8 + 4 * ct, 4), vr(f + 4 * ti, 4), vr(d, 16)))
        a("s_mov_b32 s%d, 0" % S_STG)
        a("s_waitcnt vmcnt(6)")
        a("s_barrier")
        self.stamp(1)
        for op in rops(0, 0, 0): a(op)
        a.label("F1_LOOP")
        a("s_cmp_lg_u32 s%d, 18" % S_STG)
        a("s_cbranch_scc1 F1_P2")
        a("v_cmp_ne_u32 vcc, v%d, v%d" % (V_NONCE, V_FL))
        a("v_cmp_eq_u32 s[%d:%d], 0, v%d" % (S_T + 4, S_T + 5, V_FL))
        a("s_or_b64 vcc, vcc, s[%d:%d]" % (S_T + 4, S_T + 5))
        a("s_cbranch_scc1 F1_P2")
        a("s_mov_b32 s%d, 1" % S_PRE)
        pre_loads()
        a.label("F1_P2")
        if self.f1sw:
            a("s_cmp_lg_u32 s%d, %d" % (S_STG, self.f1sw))
            a("s_cbranch_scc1 F1_SW")
            a("s_setprio %d" % self.prio_f1b)
            a.label("F1_SW")
        if "f1st" in dbg:
            for c_, sl in ((6, 4), (12, 5), (18, 6)):
                a("s_cmp_lg_u32 s%d, %d" % (S_STG, c_))
                a("s_cbranch_scc1 F1_S%d" % c_)
                self.stamp(sl)
                a.label("F1_S%d" % c_)
        for u in range(6):
            b = u % 3; odd = u & 1
            if u == 4:
                a("s_cmp_lg_u32 s%d, 16" % S_STG)
                a("s_cbranch_scc1 F1_P1")
                self.load_nonce(T3)
                a("buffer_load_dword v%d, v%d, %s, 0 offen %s" % (V_FL, V_FA, sr(SWS), SC))
                a.label("F1_P1")
            a("s_waitcnt lgkmcnt(0)")
            mf(0, 0)
            for op in rops(1, b, 1): a(op)
            mf(0, 1)
            dl = 64 | (16384 if odd else 0)
            a("v_xor_b32 v%d, 0x%x, v%d" % (V_XA, dl, V_XA))
            a("v_xor_b32 v%d, 0x%x, v%d" % (V_XA + 1, dl, V_XA + 1))
            mf(0, 2)
            if u == 1:
                a("s_cmp_eq_u32 s%d, 19" % S_STG)
                a("s_cbranch_scc1 F1_LAST")
            if u in (5, 0):
                a("s_cmp_ge_u32 s%d, 17" % S_STG)
                a("s_cbranch_scc1 F1_T%d" % u)
            a("s_waitcnt vmcnt(%d) lgkmcnt(0)" % (2 if odd else 4))
            mf(0, 3)
            a("s_barrier")
            mf(1, 0)
            for op in rops(0, (b + 1) % 3, 0): a(op)
            ops = dmaW(b) + (dmaX() if odd else [])
            mf(1, 1)
            if "vlow1" in dbg:
                mf(1, 2); mf(1, 3)
                a("s_setprio 0")
                emit(ops)
                a("s_setprio %d" % self.prio_f1)
            else:
                emit(ops[:2])
                mf(1, 2)
                emit(ops[2:])
                mf(1, 3)
            if u in (5, 0):
                a("s_branch F1_N%d" % u)
                a.label("F1_T%d" % u)
                a("s_waitcnt vmcnt(0) lgkmcnt(0)")
                mf(0, 3)
                a("s_barrier")
                mf(1, 0)
                for op in rops(0, (b + 1) % 3, 0): a(op)
                for q in (1, 2, 3): mf(1, q)
                a.label("F1_N%d" % u)
            a("s_add_u32 s%d, s%d, 1" % (S_STG, S_STG))
        a("s_branch F1_LOOP")
        a.label("F1_LAST")
        mf(0, 3)
        a("s_waitcnt lgkmcnt(0)")
        a("s_barrier")
        for q in range(4): mf(1, q)
        a("s_setprio %d" % self.prio_fe)
        self.stamp(2)
        a("s_cmp_lg_u32 s%d, 0" % S_PRE)
        a("s_cbranch_scc1 F1_P3")
        self.poll([(V_FL, 1, V_FA, "0")], T3, wave0=False)
        pre_loads()
        a("s_waitcnt vmcnt(0)")
        a.label("F1_P3")
        CSV = F[0]
        FA, FB = F[0], F[0] + 8
        for k in range(2):
            a("v_and_b32 v%d, 0xffff0000, v%d" % (T0, V_C + k))
            a("v_sub_f32 v%d, v%d, v%d" % (T1, V_C + k, T0))
            a("v_lshrrev_b32 v%d, 16, v%d" % (FA + 4 * k + 1, T0))
            a("v_and_b32 v%d, 0xffff0000, v%d" % (T1, T1))
            a("v_or_b32 v%d, v%d, v%d" % (FA + 4 * k, FA + 4 * k + 1, T1))
            a("v_and_b32 v%d, 0xffff0000, v%d" % (T0, V_SX + 2 * k))
            a("v_sub_f32 v%d, v%d, v%d" % (T1, V_SX + 2 * k, T0))
            a("v_lshrrev_b32 v%d, 16, v%d" % (FB + 4 * k + 1, T1))
            a("v_lshrrev_b32 v%d, 16, v%d" % (T1, T0))
            a("v_or_b32 v%d, v%d, v%d" % (FB + 4 * k, T0, T1))
            for r in (2, 3):
                a("v_mov_b32 v%d, 0" % (FA + 4 * k + r))
                a("v_mov_b32 v%d, 0" % (FB + 4 * k + r))
        a("s_mov_b32 exec_lo, 0")
        for k in range(2):
            a("v_mov_b32 v%d, 0" % (FA + 4 * k))
            a("v_mov_b32 v%d, 0" % (FA + 4 * k + 1))
        a("s_mov_b64 exec, -1")
        a("v_lshrrev_b32 v%d, 5, v%d" % (T2, V_LANE))
        a("v_and_b32 v%d, 15, v%d" % (T0, V_LANE))
        for ti in range(2):
            for ct in range(2):
                d = ACC + (ti * 2 + ct) * 16
                a("v_mfma_f32_32x32x16_bf16 %s, %s, %s, %s" % (vr(d, 16), vr(FA + 4 * ct, 4), vr(FB + 4 * ti, 4), vr(d, 16)))
        a("v_lshlrev_b32 v%d, 4, v%d" % (T0, T0))
        a("v_lshl_add_u32 v%d, v%d, 8, v%d" % (T0, T2, T0))
        a("v_bfe_u32 v%d, v%d, 4, 1" % (T1, V_LANE))
        a("v_lshl_add_u32 v%d, v%d, 10, v%d" % (T0, T1, T0))
        a("s_mul_i32 s%d, s%d, 74" % (S_T, S_R32))
        a("s_add_u32 s%d, s%d, s%d" % (S_T, S_T, S_KS))
        a("s_lshl_b32 s%d, s%d, 12" % (S_T, S_T))
        a("s_add_u32 s%d, s%d, 0x%x" % (S_T, S_T, WS_HO))
        a("s_nop 3")
        a("s_cmp_lg_u32 s%d, 0" % S_ACT)
        a("s_cbranch_scc1 F1_GU")
        a("s_setprio 3")
        a("s_mul_i32 s%d, s%d, 81920" % (S_T, S_R32))
        a("s_sub_u32 s%d, s%d, 27" % (S_T + 1, S_HT))
        a("s_lshl_b32 s%d, s%d, 13" % (S_T + 1, S_T + 1))
        a("s_add_u32 s%d, s%d, s%d" % (S_T, S_T, S_T + 1))
        a("s_and_b32 s%d, s%d, 1" % (S_T + 4, S_CG))
        a("s_lshl_b32 s%d, s%d, 11" % (S_T + 4, S_T + 4))
        a("s_add_u32 s%d, s%d, s%d" % (S_T, S_T, S_T + 4))
        if WS_QP: a("s_add_u32 s%d, s%d, 0x%x" % (S_T, S_T, WS_QP))
        for ti in range(2):
            a("v_mul_f32 v%d, 0x%x, v%d" % (T1, f32bits(LOG2E * 20 ** -0.5), V_SX + 2 * ti + 1))
            for ct in range(2):
                d = ACC + (ti * 2 + ct) * 16
                for r in range(16): a("v_mul_f32 v%d, v%d, v%d" % (d + r, T1, d + r))
                o = CSV + (ti * 2 + ct) * 8
                for r in range(8): a("v_cvt_pk_bf16_f32 v%d, v%d, v%d" % (o + r, d + 2 * r, d + 2 * r + 1))
                a("s_add_u32 s%d, s%d, %d" % (S_T + 1, S_T, ti * 40960 + ct * 4096))
                a("buffer_store_dwordx4 %s, v%d, %s, s%d offen %s" % (vr(o, 4), V_L16, sr(SWS), S_T + 1, SC))
                a("buffer_store_dwordx4 %s, v%d, %s, s%d offen offset:1024 %s" % (vr(o + 4, 4), V_L16, sr(SWS), S_T + 1, SC))
        a("s_branch F1_PUB")
        a.label("F1_GU")
        TE = CSV + 16
        for ti in range(2):
            a("v_mul_f32 v%d, 0x%x, v%d" % (T1, f32bits(-LOG2E), V_SX + 2 * ti + 1))
            for ct in range(2):
                d = ACC + (ti * 2 + ct) * 16
                for r in range(8): a("v_mul_f32 v%d, v%d, v%d" % (TE + r, T1, d + r))
                for r in range(8): a("v_exp_f32 v%d, v%d" % (TE + r, TE + r))
                for r in range(8): a("v_mul_f32 v%d, v%d, v%d" % (d + r, d + r, d + 8 + r))
                for r in range(8): a("v_add_f32 v%d, 1.0, v%d" % (TE + r, TE + r))
                for r in range(8): a("v_rcp_f32 v%d, v%d" % (TE + r, TE + r))
                a("s_nop 0")
                for r in range(8): a("v_mul_f32 v%d, v%d, v%d" % (d + r, TE + r, d + r))
                o = CSV + (ti * 2 + ct) * 4
                for r in range(4): a("v_cvt_pk_bf16_f32 v%d, v%d, v%d" % (o + r, d + 2 * r, d + 2 * r + 1))
                a("buffer_store_dwordx4 %s, v%d, %s, s%d offen offset:%d %s" % (vr(o, 4), T0, sr(SWS), S_T, ti * 2048 + ct * 512, SC))
        a.label("F1_PUB")
        a("s_lshl_b32 s%d, s%d, 11" % (S_T, S_RB))
        a("s_lshr_b32 s%d, s%d, 1" % (S_T + 1, S_HT))
        a("s_lshl_b32 s%d, s%d, 7" % (S_T + 1, S_T + 1))
        a("s_add_u32 s%d, s%d, s%d" % (S_T, S_T, S_T + 1))
        a("s_and_b32 s%d, s%d, 1" % (S_T + 1, S_HT))
        a("s_lshl_b32 s%d, s%d, 4" % (S_T + 1, S_T + 1))
        a("s_add_u32 s%d, s%d, s%d" % (S_T, S_T, S_T + 1))
        a("s_and_b32 s%d, s%d, 3" % (S_T + 1, S_W))
        a("s_lshl_b32 s%d, s%d, 2" % (S_T + 1, S_T + 1))
        a("s_add_u32 s%d, s%d, s%d" % (S_T, S_T, S_T + 1))
        a("s_add_u32 s%d, s%d, 0x%x" % (S_T, S_T, F2_H))
        self.wave_flag("s%d" % S_T, T3)
        self.stamp(3)
        if "noF" in dbg: self.finish()

    def kv_issue(self):
        a = self.a
        V_PI, V_WA, V_ONE, V_J, V_H = 120, 121, 122, 123, 124
        V_ST = 20
        XF = 24
        WF = 44
        AC = 64
        R = 80
        S_MAT, S_TILE, S_JOB = S_R + 10, S_R + 11, S_R + 12
        WO = 40960
        PB, PST, PCS = 49152, 16384, 18432
        a("s_lshr_b32 s%d, s%d, 3" % (S_MAT, S_IDX))
        a("s_cmp_eq_u32 s%d, 0" % S_MAT)
        a("s_cselect_b32 s%d, s%d, s%d" % (SC_, P_WK, P_WV))
        a("s_cselect_b32 s%d, s%d, s%d" % (SC_ + 1, P_WK + 1, P_WV + 1))
        a("s_mov_b32 s%d, 25600" % (SC_ + 2))
        a("s_mov_b32 s%d, 0x20000" % (SC_ + 3))
        a("s_bfe_u32 s%d, s%d, 0x10002" % (S_T, S_IDX))
        a("s_lshl_b32 s%d, s%d, 1" % (S_TILE, S_RB32))
        a("s_add_u32 s%d, s%d, s%d" % (S_TILE, S_TILE, S_T))
        a("s_mul_i32 s%d, s%d, 40960" % (S_T, S_TILE))
        a("s_lshl_b32 s%d, s%d, 10" % (S_T + 1, S_W))
        for m in range(5):
            a("v_add_u32 v%d, %d, v0" % (T0, 512 * m))
            a("v_mul_u32_u24 v%d, 3277, v%d" % (T1, T0))
            a("v_lshrrev_b32 v%d, 18, v%d" % (T1, T1))
            a("v_mul_u32_u24 v%d, 80, v%d" % (T2, T1))
            a("v_sub_u32 v%d, v%d, v%d" % (T0, T0, T2))
            a("v_and_b32 v%d, 15, v%d" % (T2, T1))
            a("v_xor_b32 v%d, v%d, v%d" % (T0, T0, T2))
            a("v_and_b32 v%d, 19, v%d" % (T2, T1))
            a("v_bfe_u32 v%d, v%d, 2, 1" % (T3, T1))
            a("v_lshl_add_u32 v%d, v%d, 3, v%d" % (T2, T3, T2))
            a("v_bfe_u32 v%d, v%d, 3, 1" % (T3, T1))
            a("v_lshl_add_u32 v%d, v%d, 2, v%d" % (T2, T3, T2))
            a("v_mul_u32_u24 v%d, 1280, v%d" % (T2, T2))
            a("s_add_u32 m0, s%d, %d" % (S_T + 1, m * 8192))
            a("v_lshl_add_u32 v%d, v%d, 4, v%d" % (T0, T0, T2))
            a("buffer_load_dwordx4 v%d, %s, s%d offen lds" % (T0, sr(SX), S_T))
        for m in range(4):
            if m == 3:
                a("s_cmp_lg_u32 s%d, 0" % S_W)
                a("s_cbranch_scc1 KV_I")
            a("s_add_u32 m0, s%d, %d" % (S_T + 1, WO + m * 8192))
            a("s_add_u32 s%d, s%d, %d" % (S_T + 2, S_T + 1, m * 8192))
            a("buffer_load_dwordx4 v%d, %s, s%d offen lds" % (V_L16, sr(SC_), S_T + 2))

    def kv_body(self):
        a = self.a
        V_PI, V_WA, V_ONE, V_J, V_H = 120, 121, 122, 123, 124
        V_ST = 20
        XF = 24
        WF = 44
        AC = 64
        R = 80
        S_MAT, S_TILE, S_JOB = S_R + 10, S_R + 11, S_R + 12
        WO = 40960
        PB, PST, PCS = 49152, 16384, 18432
        a("s_lshr_b32 s%d, s%d, 2" % (S_T, S_IDX))
        a("s_lshl_b32 s%d, s%d, 2" % (S_JOB, S_RB32))
        a("s_add_u32 s%d, s%d, s%d" % (S_JOB, S_JOB, S_T))
        a("s_lshl_b32 s%d, s%d, 5" % (S_JOB, S_JOB))
        a("s_add_u32 s%d, s%d, s%d" % (S_JOB, S_JOB, S_W))
        a("s_lshl_b32 s%d, s%d, 2" % (S_JOB, S_JOB))
        a("s_add_u32 s%d, s%d, 0x%x" % (S_JOB, S_JOB, F2_K))
        a("v_and_b32 v%d, 31, v%d" % (V_J, V_LANE))
        a("v_and_b32 v%d, 19, v%d" % (T0, V_LANE))
        a("v_bfe_u32 v%d, v%d, 2, 1" % (T1, V_LANE))
        a("v_lshl_add_u32 v%d, v%d, 3, v%d" % (T0, T1, T0))
        a("v_bfe_u32 v%d, v%d, 3, 1" % (T1, V_LANE))
        a("v_lshl_add_u32 v%d, v%d, 2, v%d" % (V_PI, T1, T0))
        a("v_lshrrev_b32 v%d, 5, v%d" % (V_H, V_LANE))
        a("v_bfe_u32 v%d, v%d, 2, 2" % (T2, V_LANE))
        a("v_lshl_add_u32 v%d, v%d, 3, v%d" % (T2, V_H, T2))
        a("v_mul_u32_u24 v%d, 40, v%d" % (T2, T2))
        a("v_bfe_u32 v%d, v%d, 4, 1" % (T3, V_LANE))
        a("v_lshl_add_u32 v%d, v%d, 5, v%d" % (T2, T3, T2))
        a("s_mul_i32 s%d, s%d, 3200" % (S_T, S_W))
        a("s_add_u32 s%d, s%d, %d" % (S_T, S_T, WO))
        a("s_sub_u32 s%d, 4, s%d" % (S_T + 1, S_MAT))
        a("s_add_u32 s%d, s%d, 3" % (S_T + 2, S_MAT))
        a("v_and_b32 v%d, 1, v%d" % (T3, V_LANE))
        a("v_lshlrev_b32 v%d, s%d, v%d" % (T3, S_T + 1, T3))
        a("v_add3_u32 v%d, v%d, v%d, s%d" % (T2, T2, T3, S_T))
        a("v_bfe_u32 v%d, v%d, 1, 1" % (T3, V_LANE))
        a("v_lshlrev_b32 v%d, s%d, v%d" % (T3, S_T + 2, T3))
        a("v_add_u32 v%d, v%d, v%d" % (V_WA, T2, T3))
        a("v_and_b32 v%d, 15, v%d" % (T2, V_LANE))
        a("v_xor_b32 v%d, v%d, v%d" % (T2, T2, V_H))
        a("v_mul_u32_u24 v%d, 1280, v%d" % (T3, V_J))
        a("s_mul_i32 s%d, s%d, 10" % (S_T, S_W))
        for s_ in range(5):
            a("v_xor_b32 v%d, s%d, v%d" % (T0, S_T, T2))
            a("s_add_u32 s%d, s%d, 2" % (S_T, S_T))
            a("v_lshl_add_u32 v%d, v%d, 4, v%d" % (R + s_, T0, T3))
        a("v_mov_b32 v%d, 0x3f803f80" % V_ONE)
        for r in range(6): a("v_mov_b32 v%d, 0" % (R + 8 + r))
        a("s_waitcnt vmcnt(0)")
        a("s_barrier")
        self.stamp(5, "kv")
        for s_ in range(5):
            a("ds_read_b128 %s, v%d" % (vr(XF + 4 * s_, 4), R + s_))
            a("ds_read_b64_tr_b16 %s, v%d offset:%d" % (vr(WF + 4 * s_, 2), V_WA, s_ * 640))
            a("ds_read_b64_tr_b16 %s, v%d offset:%d" % (vr(WF + 4 * s_ + 2, 2), V_WA, s_ * 640 + 160))
        self.load_nonce(T3)
        a("s_waitcnt lgkmcnt(0)")
        D = R + 8
        for r in range(20):
            o = 3 * (r & 1)
            a("v_dot2c_f32_bf16 v%d, v%d, v%d" % (D + o, V_ONE, XF + r))
            a("v_dot2c_f32_bf16 v%d, v%d, v%d" % (D + o + 1, XF + r, XF + r))
            a("v_dot2c_f32_bf16 v%d, v%d, v%d" % (D + o + 2, V_ONE, WF + r))
        a("s_cmp_eq_u32 s%d, 0" % S_MAT)
        a("s_cbranch_scc0 KV_MV")
        for s_ in range(5):
            a("v_mfma_f32_32x32x16_bf16 %s, %s, %s, %s" % (vr(AC, 16), vr(WF + 4 * s_, 4), vr(XF + 4 * s_, 4), "0" if s_ == 0 else vr(AC, 16)))
        a("s_branch KV_MD")
        a.label("KV_MV")
        for s_ in range(5):
            a("v_mfma_f32_32x32x16_bf16 %s, %s, %s, %s" % (vr(AC, 16), vr(XF + 4 * s_, 4), vr(WF + 4 * s_, 4), "0" if s_ == 0 else vr(AC, 16)))
        a.label("KV_MD")
        a("s_barrier")
        for r in range(3): a("v_add_f32 v%d, v%d, v%d" % (V_ST + r, D + r, D + 3 + r))
        self.halfsum([V_ST, V_ST + 1, V_ST + 2], R)
        a("s_lshl_b32 s%d, s%d, 8" % (S_T, S_W))
        a("v_lshl_add_u32 v%d, v%d, 3, s%d" % (T0, V_J, S_T))
        a("ds_write_b64 v%d, %s offset:%d" % (T0, vr(V_ST, 2), PST))
        a("s_lshl_b32 s%d, s%d, 7" % (S_T, S_W))
        a("v_lshl_add_u32 v%d, v%d, 2, s%d" % (T0, V_J, S_T))
        a("ds_write_b32 v%d, v%d offset:%d" % (T0, V_ST + 2, PCS))
        a("s_lshl_b32 s%d, s%d, 12" % (S_T, S_W))
        a("s_add_u32 s%d, s%d, %d" % (S_T, S_T, PB))
        a("v_add_u32 v%d, s%d, v%d" % (T0, S_T, V_L16))
        for q in range(4): a("ds_write_b128 v%d, %s offset:%d" % (T0, vr(AC + 4 * q, 4), q * 1024))
        a("s_waitcnt lgkmcnt(0)")
        a("s_barrier")
        a("s_cmp_ge_u32 s%d, 4" % S_W)
        a("s_cbranch_scc1 AUX_RL")
        a("s_lshl_b32 s%d, s%d, 10" % (S_T, S_W))
        a("s_add_u32 s%d, s%d, %d" % (S_T, S_T, PB))
        a("v_add_u32 v%d, s%d, v%d" % (T0, S_T, V_L16))
        for p in range(8): a("ds_read_b128 %s, v%d offset:%d" % (vr(XF + 4 * p, 4), T0, p * 4096))
        a("s_mul_i32 s%d, s%d, 2560" % (S_T + 3, S_TILE))
        a("s_add_u32 s%d, s%d, 0x%x" % (S_T + 3, S_T + 3, WS_KV))
        a("s_cmp_eq_u32 s%d, 0" % S_MAT)
        a("s_cbranch_scc0 KV_V")
        SP = 56; CP = 72
        a("v_lshlrev_b32 v%d, 3, v%d" % (T0, V_J))
        a("s_waitcnt lgkmcnt(4)")
        for p in range(8): a("ds_read_b64 %s, v%d offset:%d" % (vr(SP + 2 * p, 2), T0, PST + p * 256))
        a("s_lshl_b32 s%d, s%d, 5" % (S_T, S_W))
        a("v_lshl_add_u32 v%d, v%d, 4, s%d" % (T0, V_H, S_T))
        a("s_waitcnt lgkmcnt(4)")
        for p in range(8): a("ds_read_b128 %s, v%d offset:%d" % (vr(CP + 4 * p, 4), T0, PCS + p * 128))
        self.tree(XF, 4, 8, 4)
        a("s_waitcnt lgkmcnt(8)")
        self.tree(SP, 2, 8, 2)
        self.meanrstd(V_ST, SP)
        a("v_lshlrev_b32 v%d, 3, v%d" % (T2, V_PI))
        a("s_cmp_eq_u32 s%d, 3" % S_W)
        a("s_cbranch_scc0 KV_K1")
        a("s_lshl_b32 s%d, s%d, 8" % (S_T, S_TILE))
        a("s_add_u32 s%d, s%d, 0x%x" % (S_T, S_T, WS_ST))
        a("s_mov_b32 exec_hi, 0")
        a("buffer_store_dwordx2 %s, v%d, %s, s%d offen %s" % (vr(V_ST, 2), T2, sr(SWS), S_T, SC))
        a("s_mov_b64 exec, -1")
        a("s_branch KV_FLAG")
        a.label("KV_K1")
        a("s_waitcnt lgkmcnt(0)")
        self.tree(CP, 4, 8, 4)
        for r in range(4): a("v_fmac_f32 v%d, v%d, v%d" % (XF + r, V_ST, CP + r))
        for r in range(4): a("v_mul_f32 v%d, v%d, v%d" % (XF + r, V_ST + 1, XF + r))
        for r in range(2): a("v_cvt_pk_bf16_f32 v%d, v%d, v%d" % (SP + r, XF + 2 * r, XF + 2 * r + 1))
        a("v_mov_b32 v%d, 0" % T3)
        a("s_cmp_eq_u32 s%d, 2" % S_W)
        a("s_cbranch_scc1 KV_K2")
        a("v_lshlrev_b32 v%d, 9, v%d" % (T0, V_H))
        a("v_lshl_add_u32 v%d, v%d, 4, v%d" % (T2, V_PI, T0))
        a("s_lshl_b32 s%d, s%d, 3" % (S_T, S_W))
        a("s_add_u32 s%d, s%d, s%d" % (S_T + 3, S_T + 3, S_T))
        a("s_branch KV_K3")
        a.label("KV_K2")
        a("s_add_u32 s%d, s%d, 1024" % (S_T + 3, S_T + 3))
        a("s_mov_b32 exec_hi, 0")
        a.label("KV_K3")
        a("buffer_store_dwordx2 %s, v%d, %s, s%d offen %s" % (vr(SP, 2), T2, sr(SWS), S_T + 3, SC))
        for r in range(4): a("v_fmac_f32 v%d, v%d, v%d" % (T3, XF + r, XF + r))
        a("s_mov_b64 exec, -1")
        self.halfsum([T3], CP)
        for dpp in DPPS:
            a("s_nop 1")
            a("v_max_f32_dpp v%d, v%d, v%d %s row_mask:0xf bank_mask:0xf" % (T3, T3, T3, dpp))
        a("s_nop 1")
        a("v_readlane_b32 s%d, v%d, 0" % (S_T, T3))
        a("v_readlane_b32 s%d, v%d, 16" % (S_T + 1, T3))
        a("s_lshl_b32 s%d, s%d, 2" % (S_T + 2, S_TILE))
        a("s_add_u32 s%d, s%d, s%d" % (S_T + 2, S_T + 2, S_W))
        a("s_lshl_b32 s%d, s%d, 2" % (S_T + 2, S_T + 2))
        a("s_add_u32 s%d, s%d, 0x%x" % (S_T + 2, S_T + 2, WS_KN))
        a("s_max_u32 s%d, s%d, s%d" % (S_T, S_T, S_T + 1))
        a("v_mov_b32 v%d, s%d" % (T3, S_T))
        a("v_mov_b32 v%d, 0" % T0)
        a("s_mov_b64 exec, 1")
        a("buffer_store_dword v%d, v%d, %s, s%d offen %s" % (T3, T0, sr(SWS), S_T + 2, SC))
        a("s_mov_b64 exec, -1")
        a("s_branch KV_FLAG")
        a.label("KV_V")
        SP = 56
        CP = 28
        a("s_lshl_b32 s%d, s%d, 6" % (S_T, S_W))
        a("v_lshl_add_u32 v%d, v%d, 5, s%d" % (T0, V_H, S_T))
        a("s_waitcnt lgkmcnt(4)")
        for p in range(5):
            a("ds_read_b128 %s, v%d offset:%d" % (vr(SP + 8 * p, 4), T0, PST + p * 256))
            a("ds_read_b128 %s, v%d offset:%d" % (vr(SP + 8 * p + 4, 4), T0, PST + p * 256 + 16))
        a("v_lshlrev_b32 v%d, 2, v%d" % (T2, V_J))
        a("s_waitcnt lgkmcnt(8)")
        for p in range(5, 8):
            a("ds_read_b128 %s, v%d offset:%d" % (vr(SP + 8 * p, 4), T0, PST + p * 256))
            a("ds_read_b128 %s, v%d offset:%d" % (vr(SP + 8 * p + 4, 4), T0, PST + p * 256 + 16))
        self.tree(XF, 4, 8, 4)
        a("s_waitcnt lgkmcnt(6)")
        for p in range(8): a("ds_read_b32 v%d, v%d offset:%d" % (CP + p, T2, PCS + p * 128))
        a("s_waitcnt lgkmcnt(8)")
        self.tree(SP, 8, 8, 8)
        for r in range(4): self.meanrstd(SP + 8 + 2 * r, SP + 2 * r)
        a("s_waitcnt lgkmcnt(0)")
        self.tree(CP, 1, 8, 1)
        for r in range(4): a("v_fmac_f32 v%d, v%d, v%d" % (XF + r, CP, SP + 8 + 2 * r))
        for r in range(4): a("v_mul_f32 v%d, v%d, v%d" % (XF + r, SP + 9 + 2 * r, XF + r))
        for r in range(2): a("v_cvt_pk_bf16_f32 v%d, v%d, v%d" % (CP + 2 + r, XF + 2 * r, XF + 2 * r + 1))
        a("v_mul_u32_u24 v%d, 320, v%d" % (T0, V_H))
        a("v_lshl_add_u32 v%d, v%d, 4, v%d" % (T0, V_J, T0))
        a("s_lshr_b32 s%d, s%d, 1" % (S_T, S_W))
        a("s_mul_i32 s%d, s%d, 640" % (S_T, S_T))
        a("s_add_u32 s%d, s%d, s%d" % (S_T + 3, S_T + 3, S_T))
        a("s_and_b32 s%d, s%d, 1" % (S_T, S_W))
        a("s_lshl_b32 s%d, s%d, 3" % (S_T, S_T))
        a("s_add_u32 s%d, s%d, s%d" % (S_T + 3, S_T + 3, S_T))
        a("s_mov_b64 exec, s[%d:%d]" % (S_VM, S_VM + 1))
        a("buffer_store_dwordx2 %s, v%d, %s, s%d offen offset:1280 %s" % (vr(CP + 2, 2), T0, sr(SWS), S_T + 3, SC))
        a("s_mov_b64 exec, -1")
        a.label("KV_FLAG")
        a("s_mov_b32 s%d, s%d" % (S_R + 15, S_JOB))
        a("s_waitcnt lgkmcnt(0)")

    def role_sp(self):
        a = self.a
        S_J, S_G, S_LB, S_JJ = S_R, S_R + 1, S_R + 2, S_R + 3
        S_D = S_R + 4
        S_O, S_F = S_R + 12, S_R + 13
        LD = 16; AC = 8
        V_VD, V_TA = 126, 127
        RG = 96
        def cs_issue(lpr, stride, nload):
            sh = {16: 4, 8: 3}[lpr]
            a("v_lshrrev_b32 v%d, %d, v%d" % (T0, sh, V_LANE))
            a("v_mul_lo_u32 v%d, v%d, s%d" % (T0, T0, stride))
            a("s_lshl_b32 s%d, s%d, %d" % (stride, stride, 6 - sh))
            a("v_and_b32 v%d, %d, v%d" % (T1, lpr - 1, V_LANE))
            a("v_lshl_add_u32 v%d, v%d, 4, v%d" % (T0, T1, T0))
            for i in range(nload):
                a("buffer_load_dwordx4 %s, v%d, %s, s%d offen" % (vr(LD + 4 * i, 4), T0, sr(SB), S_T))
                a("s_add_u32 s%d, s%d, s%d" % (S_T, S_T, stride))
        def cs_finish(tag, lpr, nload, younger):
            sh = {16: 4, 8: 3}[lpr]; ncol = lpr * 8; csh = sh + 3; ng = 512 // ncol
            for r in range(8): a("v_mov_b32 v%d, 0" % (AC + r))
            for i in range(nload):
                a("s_waitcnt vmcnt(%d)" % (nload - 1 - i + younger))
                for q in range(4):
                    a("v_lshlrev_b32 v%d, 16, v%d" % (T2, LD + 4 * i + q))
                    a("v_and_b32 v%d, 0xffff0000, v%d" % (T3, LD + 4 * i + q))
                    a("v_add_f32 v%d, v%d, v%d" % (AC + 2 * q, AC + 2 * q, T2))
                    a("v_add_f32 v%d, v%d, v%d" % (AC + 2 * q + 1, AC + 2 * q + 1, T3))
            self.load_nonce(T3)
            a("v_lshlrev_b32 v%d, 5, v0" % T0)
            a("ds_write_b128 v%d, %s" % (T0, vr(AC, 4)))
            a("ds_write_b128 v%d, %s offset:16" % (T0, vr(AC + 4, 4)))
            a("v_lshrrev_b32 v%d, %d, v0" % (T1, csh))
            a("v_and_b32 v%d, %d, v0" % (T2, ncol - 1))
            a("v_lshlrev_b32 v%d, 2, v%d" % (T2, T2))
            a("v_lshl_add_u32 v%d, v%d, %d, v%d" % (T1, T1, csh + 5, T2))
            a("s_waitcnt lgkmcnt(0)")
            a("s_barrier")
            for p in range(8): a("ds_read_b32 v%d, v%d offset:%d" % (LD + p, T1, p * ncol * 4))
            a("v_lshlrev_b32 v%d, 2, v0" % T0)
            a("s_waitcnt lgkmcnt(0)")
            self.tree(LD, 1, 8, 1)
            a("ds_write_b32 v%d, v%d" % (T1, LD))
            a("s_waitcnt lgkmcnt(0)")
            a("s_barrier")
            a("s_cmp_lg_u32 s%d, 0" % S_W)
            a("s_cbranch_scc1 SP_%s" % tag)
            nw = ncol // 64
            for h in range(nw):
                for p in range(ng): a("ds_read_b32 v%d, v%d offset:%d" % (LD + h * ng + p, T0, p * ncol * 32 + h * 256))
            a("s_waitcnt lgkmcnt(0)")
            for h in range(nw):
                self.tree(LD + h * ng, 1, ng, 1)
                a("buffer_store_dword v%d, v%d, %s, s%d offen offset:%d %s" % (LD + h * ng, T0, sr(SWS), S_O, h * 256, SC))
            self.wave_flag("s%d" % S_F, T3)
            a.label("SP_%s" % tag)
        def issue(slot):
            a("s_mul_hi_u32 s%d, s%d, 0x%x" % (S_T + 1, S_G, (1 << 32) // 10 + 1))
            a("s_mul_i32 s%d, s%d, 10" % (S_T + 2, S_T + 1))
            a("s_sub_u32 s%d, s%d, s%d" % (S_T + 2, S_G, S_T + 2))
            for i in range(4):
                a("s_lshl_b32 s%d, s%d, 2" % (S_T + 3, S_T + 2))
                a("s_add_u32 s%d, s%d, %d" % (S_T + 3, S_T + 3, i))
                a("s_mul_hi_u32 s%d, s%d, 0x%x" % (S_T + 4, S_T + 3, (1 << 32) // 5 + 1))
                a("s_mul_i32 s%d, s%d, 365" % (S_T + 4, S_T + 4))
                a("s_add_u32 s%d, s%d, s%d" % (S_T + 4, S_T + 4, S_T + 3))
                a("s_mul_i32 s%d, s%d, 5" % (S_T + 3, S_T + 1))
                a("s_add_u32 s%d, s%d, s%d" % (S_T + 4, S_T + 4, S_T + 3))
                a("s_lshl_b32 s%d, s%d, 10" % (S_T + 4, S_T + 4))
                a("s_add_u32 s%d, s%d, 0x%x" % (S_D + slot * 4 + i, S_T + 4, WS_WF2))
            a("s_sub_u32 s%d, s%d, 54" % (S_T + 4, S_T + 1))
            a("s_cmp_lt_u32 s%d, 54" % (S_T + 1))
            a("s_cselect_b32 s%d, s%d, s%d" % (S_T + 1, S_T + 1, S_T + 4))
            a("s_cselect_b32 s%d, s%d, s%d" % (SA, P_WD, P_WO))
            a("s_cselect_b32 s%d, s%d, s%d" % (SA + 1, P_WD + 1, P_WO + 1))
            sel(a, SA + 2, 2211840, 819200)
            a("s_mul_i32 s%d, s%d, 40960" % (S_T + 1, S_T + 1))
            a("s_lshl_b32 s%d, s%d, 7" % (S_T + 2, S_T + 2))
            a("s_add_u32 s%d, s%d, s%d" % (S_T + 1, S_T + 1, S_T + 2))
            a("s_cmp_lt_u32 s%d, 740" % S_G)
            for i in range(4): a("s_cselect_b32 s%d, s%d, 0x40000000" % (S_D + slot * 4 + i, S_D + slot * 4 + i))
            for i in range(4):
                a("s_add_u32 m0, s%d, %d" % (S_LB, slot * 4096 + i * 1024))
                a("s_nop 0")
                a("buffer_load_dwordx4 v%d, %s, s%d offen lds" % (V_VD, sr(SA), S_T + 1))
                a("s_add_u32 s%d, s%d, 10240" % (S_T + 1, S_T + 1))
            a("s_add_u32 s%d, s%d, 512" % (S_G, S_G))
        def drain(slot, reg):
            for i in range(4):
                a("ds_read_b64_tr_b16 %s, v%d offset:%d" % (vr(reg + 4 * i, 2), V_TA, slot * 4096 + i * 32))
                a("ds_read_b64_tr_b16 %s, v%d offset:%d" % (vr(reg + 4 * i + 2, 2), V_TA, slot * 4096 + i * 32 + 512))
            a("s_waitcnt lgkmcnt(0)")
            for i in range(4):
                a("buffer_store_dwordx4 %s, v%d, %s, s%d offen %s" % (vr(reg + 4 * i, 4), V_L16, sr(SWS), S_D + slot * 4 + i, SC))
        def rl_setup():
            a("v_lshrrev_b32 v%d, 3, v%d" % (T0, V_LANE))
            a("v_mul_u32_u24 v%d, 1280, v%d" % (T0, T0))
            a("v_and_b32 v%d, 7, v%d" % (T1, V_LANE))
            a("v_lshl_add_u32 v%d, v%d, 4, v%d" % (V_VD, T1, T0))
            a("s_lshl_b32 s%d, s%d, 12" % (S_LB, S_W))
            a("s_cmp_ge_u32 s%d, 4" % S_W)
            a("s_cselect_b32 s%d, 8192, 0" % S_T)
            a("s_add_u32 s%d, s%d, s%d" % (S_LB, S_LB, S_T))
            a("v_lshrrev_b32 v%d, 4, v%d" % (T0, V_LANE))
            a("v_bfe_u32 v%d, v%d, 2, 2" % (T1, V_LANE))
            a("v_lshl_add_u32 v%d, v%d, 3, v%d" % (T0, T0, T1))
            a("v_lshlrev_b32 v%d, 7, v%d" % (T0, T0))
            a("v_and_b32 v%d, 3, v%d" % (T1, V_LANE))
            a("v_lshl_add_u32 v%d, v%d, 3, v%d" % (T0, T1, T0))
            a("v_add_u32 v%d, s%d, v%d" % (V_TA, S_LB, T0))
            a("s_mul_i32 s%d, s%d, 6" % (S_G, S_J))
            a("s_add_u32 s%d, s%d, s%d" % (S_G, S_G, S_W))
            a("s_sub_u32 s%d, s%d, 2" % (S_G, S_G))
            a("s_mov_b32 s%d, 0x20000" % (SA + 3))
            issue(0)
        a.label("AUX_2")
        a("s_setprio %d" % self.prio_sp)
        a("s_cmp_ge_u32 s%d, 6" % S_HI)
        a("s_cbranch_scc1 A_GO")
        a("s_and_b32 s%d, s%d, 3" % (S_T, S_XCD))
        a("s_cmp_eq_u32 s%d, 0" % S_T)
        a("s_cbranch_scc1 A_GO")
        a("s_sub_u32 s%d, s%d, 16" % (S_J, S_IDX))
        a("s_mul_i32 s%d, s%d, 6" % (S_J, S_J))
        a("s_add_u32 s%d, s%d, s%d" % (S_J, S_J, S_XCD))
        a("s_lshr_b32 s%d, s%d, 2" % (S_T, S_XCD))
        a("s_sub_u32 s%d, s%d, s%d" % (S_J, S_J, S_T))
        a("s_sub_u32 s%d, s%d, 1" % (S_J, S_J))
        a("s_sub_u32 s%d, 63, s%d" % (S_J, S_J))
        a.label("AUX_CS")
        a("s_cmp_lt_u32 s%d, 27" % S_J)
        a("s_cselect_b32 s%d, s%d, s%d" % (SB, P_WG, P_WU))
        a("s_cselect_b32 s%d, s%d, s%d" % (SB + 1, P_WG + 1, P_WU + 1))
        a("s_cselect_b32 s%d, 0, 27" % (S_T + 1))
        a("s_cselect_b32 s%d, 0, 7168" % S_O)
        a("s_cmp_lt_u32 s%d, 54" % S_J)
        a("s_cselect_b32 s%d, s%d, s%d" % (SB, SB, P_WQ))
        a("s_cselect_b32 s%d, s%d, s%d" % (SB + 1, SB + 1, P_WQ + 1))
        a("s_cselect_b32 s%d, s%d, 54" % (S_T + 1, S_T + 1))
        a("s_cselect_b32 s%d, s%d, 14336" % (S_O, S_O))
        sel(a, SB + 2, 2211840, 819200)
        sel(a, S_T + 2, 3456, 1280)
        a("s_mov_b32 s%d, 0x20000" % (SB + 3))
        a("s_sub_u32 s%d, s%d, s%d" % (S_T + 1, S_J, S_T + 1))
        a("s_mul_i32 s%d, s%d, s%d" % (S_T, S_W, S_T + 2))
        a("s_mul_i32 s%d, s%d, 80" % (S_T, S_T))
        a("s_lshl_b32 s%d, s%d, 7" % (S_T + 3, S_T + 1))
        a("s_add_u32 s%d, s%d, s%d" % (S_T, S_T, S_T + 3))
        a("s_lshl_b32 s%d, s%d, 8" % (S_T + 3, S_T + 1))
        a("s_add_u32 s%d, s%d, s%d" % (S_O, S_O, S_T + 3))
        a("s_add_u32 s%d, s%d, 0x%x" % (S_O, S_O, WS_CS))
        a("s_lshl_b32 s%d, s%d, 7" % (S_F, S_J))
        a("s_add_u32 s%d, s%d, 0x%x" % (S_F, S_F, F3_C))
        cs_issue(8, S_T + 2, 10)
        cs_finish("CD", 8, 10, 0)
        a("s_sub_u32 s%d, s%d, 48" % (S_J, S_J))
        a("s_cbranch_scc1 A_GO")
        a("s_barrier")
        a("s_branch AUX_CS")
        a.label("AUX_RL")
        a("s_setprio %d" % self.prio_rl)
        a("s_lshl_b32 s%d, s%d, 5" % (S_J, S_HI))
        a("s_add_u32 s%d, s%d, s%d" % (S_J, S_J, S_RB32))
        a("s_cmp_lt_u32 s%d, 2" % S_W)
        a("s_cbranch_scc1 AUX_RD")
        rl_setup()
        a("s_waitcnt vmcnt(0)")
        drain(0, 16)
        a.label("AUX_RD")
        a("s_lshl_b32 s%d, s%d, 7" % (S_T, S_J))
        a("s_add_u32 s%d, s%d, 0x%x" % (S_T, S_T, F2_P))
        self.wg_flag("s%d" % S_T)
        a("s_branch A_GO")

    def role_f23(self):
        a = self.a
        V_TA = T1
        VW = 8
        GA = 11
        HBS = [16, 68, 76]
        WS_ = [28, 48]
        ACC = 88
        S_H, S_WO, S_GB, S_LB, S_TH, S_KQ, S_W1K = [S_R + i for i in range(7)]
        a.label("F2_GO")
        a("s_setprio %d" % self.prio_fr)
        srd(a, SB, P_OUT, P_OUT + 1, 2621440)
        a("s_mul_i32 s%d, s%d, 81920" % (S_GB, S_RB32))
        a("s_mul_i32 s%d, s%d, 160" % (S_WO, S_HI))
        a("s_add_u32 s%d, s%d, s%d" % (S_GB, S_GB, S_WO))
        a("s_mul_i32 s%d, s%d, 10240" % (S_LB, S_W))
        a("s_lshl_b32 s%d, s%d, 10" % (S_W1K, S_W))
        a("s_and_b32 s%d, s%d, 1" % (S_TH, S_W))
        a("s_lshr_b32 s%d, s%d, 1" % (S_KQ, S_W))
        a("s_mul_i32 s%d, s%d, %d" % (S_WO, S_HI, 74 * 5120))
        a("s_add_u32 s%d, s%d, s%d" % (S_WO, S_WO, S_W1K))
        a("s_add_u32 s%d, s%d, 0x%x" % (S_WO, S_WO, WS_WF2))
        def dmaW(g, slot=None):
            lab = a.newlabel("F2D")
            slot = g % 4 if slot is None else slot
            base = g * 20480 if g < 14 else 54 * 5120 + (g - 14) * 20480
            for m in range(3):
                if m == 2:
                    a("s_cmp_ge_u32 s%d, 4" % S_W)
                    a("s_cbranch_scc1 %s" % lab)
                a("s_add_u32 m0, s%d, %d" % (S_W1K, slot * 20480 + m * 8192))
                a("s_add_u32 s%d, s%d, %d" % (S_T + 7, S_WO, base + m * 8192))
                a("buffer_load_dwordx4 v%d, %s, s%d offen %s lds" % (V_L16, sr(SWS), S_T + 7, SC))
            a.label(lab)
        if "wearly" in self.dbg:
            for g in range(4): dmaW(g)
        def set_h(base):
            a("s_mul_i32 s%d, s%d, 74" % (S_H, S_RB32))
            a("s_add_u32 s%d, s%d, s%d" % (S_H, S_H, S_KQ))
            if base: a("s_add_u32 s%d, s%d, %d" % (S_H, S_H, base))
            a("s_lshl_b32 s%d, s%d, 1" % (S_H, S_H))
            a("s_add_u32 s%d, s%d, s%d" % (S_H, S_H, S_TH))
            a("s_lshl_b32 s%d, s%d, 11" % (S_H, S_H))
            a("s_add_u32 s%d, s%d, 0x%x" % (S_H, S_H, WS_HO))
        set_h(0)
        a("s_mul_i32 s%d, s%d, 5120" % (S_T + 1, S_KQ))
        a("v_add_u32 v%d, s%d, v%d" % (V_TA, S_T + 1, V_L16))
        a("v_add_u32 v%d, 40960, v%d" % (VW, V_TA))
        def loadH(g):
            for tt in range(2):
                a("buffer_load_dwordx4 %s, v%d, %s, s%d offen offset:%d %s" % (vr(HBS[g % 3] + tt * 4, 4), V_L16, sr(SWS), S_H, tt * 1024, SC))
            a("s_add_u32 s%d, s%d, 16384" % (S_H, S_H))
        def rdW(dst, slot, c):
            a("ds_read_b128 %s, v%d offset:%d" % (vr(dst + 4 * c, 4), V_TA if slot < 2 else VW, (slot & 1) * 20480 + c * 1024))
        def mm(g, c):
            for tt in range(2):
                d = ACC + (tt * 5 + c) * 4
                a("v_mfma_f32_16x16x32_bf16 %s, %s, %s, %s" % (vr(d, 4), vr(WS_[g & 1] + 4 * c, 4), vr(HBS[g % 3] + tt * 4, 4), "0" if g == 0 else vr(d, 4)))
        a("v_min_u32 v%d, 13, v%d" % (T0, V_LANE))
        a("v_lshlrev_b32 v%d, 7, v%d" % (T0, T0))
        a("s_lshr_b32 s%d, s%d, 1" % (S_T + 1, S_RB32))
        a("s_lshl_b32 s%d, s%d, 11" % (S_T + 1, S_T + 1))
        a("s_and_b32 s%d, s%d, 1" % (S_T + 2, S_RB32))
        a("s_lshl_b32 s%d, s%d, 2" % (S_T + 2, S_T + 2))
        a("s_add_u32 s%d, s%d, s%d" % (S_T + 1, S_T + 1, S_T + 2))
        a("s_lshl_b32 s%d, s%d, 3" % (S_T + 2, S_KQ))
        a("s_add_u32 s%d, s%d, s%d" % (S_T + 1, S_T + 1, S_T + 2))
        a("s_add_u32 s%d, s%d, 0x%x" % (S_T + 1, S_T + 1, F2_H))
        a("v_lshlrev_b32 v9, 7, v%d" % V_LANE)
        a("s_mov_b32 s%d, 0x%x" % (S_T + 2, F2_P))
        a("s_mov_b32 s%d, 0x%x" % (S_T + 3, F2_P + 8192))
        self.poll([(16, 1, 9, "s%d" % (S_T + 2)), (17, 1, 9, "s%d" % (S_T + 3))], T3, sleep=24)
        self.poll([(T2, 1, T0, "s%d" % (S_T + 1))], T3, sleep=24, wave0=False)
        self.stamp(4, "f23")
        a("s_setprio %d" % self.prio_f2)
        q = []
        if "wearly" in self.dbg:
            for g in range(3):
                loadH(g); q += [("H", g)] * 2
        else:
            for g in range(4):
                dmaW(g); q += [("W", g)] * 2
                if g < 3:
                    loadH(g); q += [("H", g)] * 2
            a("s_waitcnt vmcnt(%d)" % (len(q) - 2))
            q = q[2:]
        a("s_barrier")
        for c in range(5): rdW(WS_[0], 0, c)
        NG = 14
        for g in range(NG):
            need = [("H", g), ("W", g + 1)]
            last = max([i for i, o in enumerate(q) if o in need] + [-1])
            a("s_waitcnt lgkmcnt(0) vmcnt(%d)" % (len(q) - 1 - last))
            q = q[last + 1:]
            if g == NG - 1:
                a("s_barrier")
                for c in range(5): rdW(WS_[0], (g + 1) % 4, c)
                a("s_cmp_ge_u32 s%d, 2" % S_KQ)
                a("s_cbranch_scc1 F2_X")
                for c in range(5): mm(g, c)
                break
            mm(g, 0)
            a("s_barrier")
            for c in range(3): rdW(WS_[(g + 1) & 1], (g + 1) % 4, c)
            mm(g, 1)
            for c in (3, 4): rdW(WS_[(g + 1) & 1], (g + 1) % 4, c)
            mm(g, 2)
            if g + 4 <= NG:
                dmaW(g + 4); q += [("W", g + 4)] * 2
            for c in (3, 4): mm(g, c)
            if g + 3 < NG:
                loadH(g + 3); q += [("H", g + 3)] * 2
        a.label("F2_X")
        if "noA" in self.dbg: self.stamp(6)
        a("s_setprio %d" % self.prio_fr)
        RS = 14; XR = 20
        WR = WS_[0]; OF = 48; A3 = 88; R = 48
        a("v_and_b32 v%d, 15, v%d" % (T2, V_LANE))
        a("v_mul_u32_u24 v%d, 1280, v%d" % (T0, T2))
        a("v_lshrrev_b32 v%d, 4, v%d" % (T3, V_LANE))
        a("v_lshl_add_u32 v%d, v%d, 3, v%d" % (T0, T3, T0))
        a("v_lshlrev_b32 v%d, 3, v%d" % (T2, T2))
        a("s_lshl_b32 s%d, s%d, 9" % (S_T + 4, S_RB32))
        a("s_add_u32 s%d, s%d, 0x%x" % (S_T + 4, S_T + 4, WS_ST + 4))
        for i in range(3):
            a("s_add_u32 s%d, s%d, %d" % (S_T, S_W, 8 * i))
            a("s_min_u32 s%d, s%d, 19" % (S_T, S_T))
            a("s_mul_hi_u32 s%d, s%d, 0x%x" % (S_T + 1, S_T, (1 << 32) // 5 + 1))
            a("s_mul_i32 s%d, s%d, 5" % (S_T + 2, S_T + 1))
            a("s_sub_u32 s%d, s%d, s%d" % (S_T + 2, S_T, S_T + 2))
            a("s_mul_i32 s%d, s%d, 20480" % (S_T + 3, S_T + 1))
            a("s_lshl_b32 s%d, s%d, 5" % (S_T + 2, S_T + 2))
            a("s_add_u32 s%d, s%d, s%d" % (S_T + 3, S_T + 3, S_T + 2))
            a("v_add_u32 v%d, s%d, v%d" % (GA + i, S_T + 3, T0))
            a("s_lshl_b32 s%d, s%d, 7" % (S_T + 1, S_T + 1))
            a("s_add_u32 s%d, s%d, s%d" % (S_T + 1, S_T + 1, S_T + 4))
            a("buffer_load_dword v%d, v%d, %s, s%d offen %s" % (RS + i, T2, sr(SWS), S_T + 1, SC))
        for i in range(3):
            a("buffer_load_dwordx2 %s, v%d, %s, s%d offen" % (vr(XR + 2 * i, 2), GA + i, sr(SX), S_GB))
        set_h(54)
        a("v_add_u32 v%d, s%d, v%d" % (T0, S_W1K, V_L16))
        a("v_add_u32 v%d, 16384, v%d" % (T2, T0))
        def red_write(mid=None):
            a("v_add_u32 v%d, s%d, v%d" % (T3, S_LB, V_L16))
            a("s_waitcnt lgkmcnt(0)")
            a("s_barrier")
            a("s_nop 4")
            for k in range(10): a("ds_write_b128 v%d, %s offset:%d" % (T3, vr(A3 + 4 * k, 4), k * 1024))
            if mid: mid()
            a("s_waitcnt lgkmcnt(0)")
            a("s_barrier")
        def own_read(after=None):
            for i in range(3):
                for k in range(4):
                    off = k * 20480 + i * 8192
                    if i < 2 and off < 65536: a("ds_read_b128 %s, v%d offset:%d" % (vr(R + i * 16 + k * 4, 4), T0, off))
                    else: a("ds_read_b128 %s, v%d offset:%d" % (vr(R + i * 16 + k * 4, 4), T2, off - 16384))
            a("s_waitcnt lgkmcnt(0)")
            if after: after()
            for i in range(3): self.tree(R + i * 16, 4, 4, 4)
        def loadW3():
            a("s_barrier")
            for G in range(1, 5): dmaW(14 + G, G - 1)
        red_write()
        own_read(loadW3)
        G_ = 96; GP = 14
        a("s_waitcnt vmcnt(8)")
        for i in range(3): a("v_mul_f32 v%d, v%d, v%d" % (RS + i, RS + i, RS + i))
        idx = [(i, r) for i in range(3) for r in range(4)]
        for i, r in idx: a("v_mul_f32 v%d, v%d, v%d" % (R + i * 16 + r, RS + i, R + i * 16 + r))
        for i, r in idx: a("v_mul_f32 v%d, 0x%x, v%d" % (G_ + 4 * i + r, f32bits(-LOG2E), R + i * 16 + r))
        for i, r in idx: a("v_exp_f32 v%d, v%d" % (G_ + 4 * i + r, G_ + 4 * i + r))
        a("s_nop 0")
        for i, r in idx: a("v_add_f32 v%d, 1.0, v%d" % (G_ + 4 * i + r, G_ + 4 * i + r))
        for i, r in idx: a("v_rcp_f32 v%d, v%d" % (G_ + 4 * i + r, G_ + 4 * i + r))
        a("s_nop 0")
        for i, r in idx: a("v_mul_f32 v%d, v%d, v%d" % (G_ + 4 * i + r, G_ + 4 * i + r, R + i * 16 + r))
        for k in range(6): a("v_cvt_pk_bf16_f32 v%d, v%d, v%d" % (GP + k, G_ + 2 * k, G_ + 2 * k + 1))
        self.stamp(5, "f23")
        if "noA" in self.dbg: self.finish()
        a("v_bfe_u32 v%d, v%d, 2, 3" % (T3, V_LANE))
        a("v_and_b32 v26, 3, v%d" % V_LANE)
        a("v_lshlrev_b32 v26, 3, v26")
        a("v_lshl_add_u32 v26, v%d, 7, v26" % T3)
        a("s_lshl_b32 s%d, s%d, 10" % (S_T + 1, S_RB32))
        a("s_lshl_b32 s%d, s%d, 2" % (S_T + 2, S_TH))
        a("s_add_u32 s%d, s%d, s%d" % (S_T + 1, S_T + 1, S_T + 2))
        a("s_add_u32 s%d, s%d, 0x%x" % (S_T + 1, S_T + 1, F2_O))
        a("s_waitcnt vmcnt(0)")
        if "owv" not in self.dbg:
            a("v_lshrrev_b32 v%d, 3, v%d" % (T3, V_LANE))
            a("v_and_b32 v26, 7, v%d" % V_LANE)
            a("v_lshlrev_b32 v26, 2, v26")
            a("v_lshl_add_u32 v26, v%d, 7, v26" % T3)
            self.poll([(27, 1, 26, "s%d" % (S_T + 1))], T3, sleep=self.osleep)
        else:
            a("s_barrier")
            self.poll([(27, 1, 26, "s%d" % (S_T + 1))], T3, sleep=self.osleep, wave0=False)
        a("s_setprio 3")
        self.stamp(6, "f23")
        for s_ in range(5):
            for tt in range(2):
                a("buffer_load_dwordx4 %s, v%d, %s, s%d offen offset:%d %s" % (vr(OF + s_ * 8 + tt * 4, 4), V_L16, sr(SWS), S_H, tt * 1024, SC))
            a("s_add_u32 s%d, s%d, 16384" % (S_H, S_H))
        for s_ in range(5):
            a("s_waitcnt vmcnt(%d)" % (8 - 2 * s_))
            for c in range(5):
                if s_ > 0: a("s_waitcnt lgkmcnt(%d)" % (4 if s_ < 4 else 4 - c))
                for tt in range(2):
                    d = A3 + (tt * 5 + c) * 4
                    a("v_mfma_f32_16x16x32_bf16 %s, %s, %s, %s" % (vr(d, 4), vr(WR + 4 * c, 4), vr(OF + s_ * 8 + tt * 4, 4), "0" if s_ == 0 else vr(d, 4)))
                if s_ < 4: rdW(WR, s_, c)
        U = 28; GF = 96
        def unpack_x():
            for k in range(6):
                a("v_lshlrev_b32 v%d, 16, v%d" % (U + 2 * k, XR + k))
                a("v_and_b32 v%d, 0xffff0000, v%d" % (U + 2 * k + 1, XR + k))
        red_write(unpack_x)
        for k in range(6):
            a("v_lshlrev_b32 v%d, 16, v%d" % (GF + 2 * k, GP + k))
            a("v_and_b32 v%d, 0xffff0000, v%d" % (GF + 2 * k + 1, GP + k))
        own_read()
        for i, r in idx: a("v_fmac_f32 v%d, v%d, v%d" % (U + 4 * i + r, R + i * 16 + r, GF + 4 * i + r))
        for k in range(6): a("v_cvt_pk_bf16_f32 v%d, v%d, v%d" % (XR + k, U + 2 * k, U + 2 * k + 1))
        for i in range(3):
            if i == 2:
                a("s_cmp_ge_u32 s%d, 4" % S_W)
                a("s_cbranch_scc1 F3_FIN")
            a("buffer_store_dwordx2 %s, v%d, %s, s%d offen" % (vr(XR + 2 * i, 2), GA + i, sr(SB), S_GB))
        a.label("F3_FIN")
        self.finish()

    def build(self):
        name = NAME + "_kernel"
        self.prologue(name)
        if "ffirst" not in self.dbg: self.role_a()
        self.role_f1()
        self.role_f23()
        if "ffirst" in self.dbg: self.role_a()
        self.role_sp()
        self.a.end_kernel(name, NVGPR)
        return self.a.text(HEADER + "; @launch grid=(512,1,1) block=(512,1,1) lds=%d\n" % LDS_BYTES)

if __name__ == "__main__":
    dbg = sys.argv[2] if len(sys.argv) > 2 else ""
    import subprocess, re
    cb = 0x4000
    for it in range(2):
        m = Mega(stamps="st" in dbg.split(","), dbg=dbg, code_bytes=cb)
        open(sys.argv[1], "w").write(m.build())
        subprocess.run(["clang", "-x", "assembler", "-target", "amdgcn-amd-amdhsa", "-mcpu=gfx950", "-c", sys.argv[1], "-o", "_m.o"], check=True)
        o = subprocess.run(["llvm-objdump", "-h", "_m.o"], capture_output=True, text=True).stdout
        size = int(re.search(r"\.text\s+([0-9a-f]+)", o).group(1), 16)
        cb = (size - 256) & ~127
    print(sys.argv[1], "text bytes", size)
```

```python
from common import *

LDS_BYTES = 81920
NVGPR = 128
S_W = 3
SWS, SX, SA, SB, SDBG = 8, 12, 16, 20, 24
S_ID, S_RB32, S_HI, S_XCD, S_IDX = 28, 29, 30, 31, 32
S_VM = 34
P_X, P_WQ, P_WK, P_WV, P_WO, P_WG, P_WU, P_WD, P_OUT, P_DBG, P_WS = 36, 38, 40, 42, 44, 48, 50, 52, 54, 56, 58
SC_ = 4
S_T = 60
S_R = 70
STAMP0 = 86
V_LANE, V_L16, V_NONCE = 1, 2, 3
T0, T1, T2, T3 = 4, 5, 6, 7
SC = "sc1"
VMASK = 0x000FFFFF
TILE = 2560
CHUNK = 8 * TILE
SPIN_MAX = 1 << 14
DPPS = ("quad_perm:[1,0,3,2]", "quad_perm:[2,3,0,1]", "row_half_mirror", "row_mirror")

class Mega:
    def __init__(self, stamps=False, dbg="", code_bytes=0x4000):
        self.a = Asm()
        self.stamps = stamps
        self.code_bytes = code_bytes
        self.dbg = d = dbg.split(",")
        def opt(name, default):
            for x in d:
                if x.startswith(name + "="): return int(x.split("=")[1])
            return default
        self.prio_a = opt("pa", 1)
        self.prio_f1 = opt("pf1", 2)
        self.prio_fe = opt("pfe", 2)
        self.prio_f2 = opt("pf2", 0)
        self.prio_fr = opt("pfr", 0)
        self.hint_j = opt("hj", 6)
        self.pad = opt("pad", 0)
        self.pat1 = "".join(x[2:] for x in d if x.startswith("u="))
        self.pat2 = "".join(x[2:] for x in d if x.startswith("w="))
        self.qsleep = opt("qs", 6)
        self.prio_rl = opt("prl", 1)
        self.ksleep = opt("ks", 24)
        self.osleep = opt("os", 2)
        self.prio_sp = opt("psp", 3)
        self.prio_q = opt("pq", 1)
        self.prio_kv = opt("pkv", 3)
        self.f1sw = opt("f1sw", 0)
        self.prio_f1b = opt("pf1b", 0)
        self.asw = opt("asw", 99)
        self.prio_ab = opt("pab", 1)

    def stamp(self, i, tag=""):
        if tag == "f23" and ("f1st" in self.dbg or "kvst" in self.dbg): return
        if tag == "kv" and "kvst" not in self.dbg: return
        if self.stamps:
            self.a("s_memrealtime s[%d:%d]" % (STAMP0 + 2 * i, STAMP0 + 2 * i + 1))

    def finish(self, i_end=7):
        a = self.a
        if self.stamps:
            a("s_waitcnt vmcnt(0)")
            self.stamp(i_end)
            a("s_waitcnt lgkmcnt(0)")
            lab = a.newlabel("LST")
            a("s_cmp_lg_u32 s%d, 0" % S_W)
            a("s_cbranch_scc1 %s" % lab)
            a("s_xor_b32 s%d, s2, %d" % (S_T, 0 if "ffirst" not in self.dbg else 256))
            a("s_lshl_b32 s%d, s%d, 6" % (S_T, S_T))
            a("s_add_u32 s%d, s%d, 0x%x" % (S_T, S_T, STAMP_OFF))
            a("s_add_u32 s%d, s%d, s%d" % (S_T + 2, P_WS, S_T))
            a("s_addc_u32 s%d, s%d, 0" % (S_T + 3, P_WS + 1))
            for r in range(16):
                a("v_mov_b32 v%d, s%d" % (8 + r, STAMP0 + r))
            a("v_mov_b32 v%d, 0" % T0)
            a("s_mov_b64 exec, 1")
            for q in range(4):
                a("global_store_dwordx4 v%d, %s, s[%d:%d] offset:%d" % (T0, vr(8 + 4 * q, 4), S_T + 2, S_T + 3, q * 16))
            a.label(lab)
        a("s_endpgm")

    def load_nonce(self, vz):
        self.a("v_mov_b32 v%d, 0" % vz)
        self.a("buffer_load_dword v%d, v%d, %s, 0 offen %s" % (V_NONCE, vz, sr(SDBG), SC))

    def poll(self, loads, vz, sleep=2, wave0=True):
        a = self.a
        done = a.newlabel("PD"); loop = a.newlabel("PL")
        if wave0:
            a("s_cmp_lg_u32 s%d, 0" % S_W)
            a("s_cbranch_scc1 %s" % done)
        a("s_mov_b32 s%d, %d" % (S_T, SPIN_MAX))
        a.label(loop)
        self.load_nonce(vz)
        for d, n, ad, so in loads:
            op = {1: "dword", 2: "dwordx2", 4: "dwordx4"}[n]
            a("buffer_load_%s %s, v%d, %s, %s offen %s" % (op, "v%d" % d if n == 1 else vr(d, n), ad, sr(SWS), so, SC))
        a("s_waitcnt vmcnt(0)")
        a("v_cmp_eq_u32 vcc, 0, v%d" % V_NONCE)
        for d, n, ad, so in loads:
            for r in range(n):
                a("v_cmp_ne_u32 s[%d:%d], v%d, v%d" % (S_T + 4, S_T + 5, V_NONCE, d + r))
                a("s_or_b64 vcc, vcc, s[%d:%d]" % (S_T + 4, S_T + 5))
        a("s_cbranch_scc0 %s" % done)
        a("s_sleep %d" % sleep)
        a("s_sub_u32 s%d, s%d, 1" % (S_T, S_T))
        a("s_cmp_lg_u32 s%d, 0" % S_T)
        a("s_cbranch_scc1 %s" % loop)
        a.label(done)
        if wave0: a("s_barrier")

    def wave_flag(self, soff, vz, first_wait=0):
        a = self.a
        loop = a.newlabel("GL"); ok = a.newlabel("GK")
        a("s_mov_b32 s%d, %d" % (S_T + 6, SPIN_MAX))
        a("v_mov_b32 v%d, 0" % vz)
        if first_wait:
            ent = a.newlabel("GE")
            a("s_waitcnt vmcnt(%d)" % first_wait)
            a("s_branch %s" % ent)
        a.label(loop)
        a("s_waitcnt vmcnt(0)")
        if first_wait: a.label(ent)
        a("v_cmp_ne_u32 vcc, 0, v%d" % V_NONCE)
        a("s_nop 0")
        a("s_cbranch_vccnz %s" % ok)
        a("buffer_load_dword v%d, v%d, %s, 0 offen %s" % (V_NONCE, vz, sr(SDBG), SC))
        a("s_sub_u32 s%d, s%d, 1" % (S_T + 6, S_T + 6))
        a("s_cmp_lg_u32 s%d, 0" % (S_T + 6))
        a("s_cbranch_scc1 %s" % loop)
        a.label(ok)
        a("s_mov_b64 exec, 1")
        a("buffer_store_dword v%d, v%d, %s, %s offen %s" % (V_NONCE, vz, sr(SWS), soff, SC))
        a("s_mov_b64 exec, -1")

    def wg_flag(self, soff):
        a = self.a
        done = a.newlabel("FD")
        self.load_nonce(T3)
        a("s_waitcnt vmcnt(0)")
        a("s_barrier")
        a("s_cmp_lg_u32 s%d, 0" % S_W)
        a("s_cbranch_scc1 %s" % done)
        self.wave_flag(soff, T3)
        a.label(done)

    def meanrstd(self, dst, s0):
        a = self.a
        a("v_mul_f32 v%d, 0x%x, v%d" % (dst, f32bits(-1.0 / 640), s0))
        a("v_mul_f32 v%d, 0x%x, v%d" % (s0 + 1, f32bits(1.0 / 640), s0 + 1))
        a("v_fma_f32 v%d, -v%d, v%d, v%d" % (s0 + 1, dst, dst, s0 + 1))
        a("v_max_f32 v%d, 0, v%d" % (s0 + 1, s0 + 1))
        a("v_add_f32 v%d, 0x%x, v%d" % (s0 + 1, f32bits(1e-5), s0 + 1))
        a("v_rsq_f32 v%d, v%d" % (dst + 1, s0 + 1))
        a("s_nop 0")

    def halfsum(self, regs, tmp):
        a = self.a
        for n, r in enumerate(regs): a("v_mov_b32 v%d, v%d" % (tmp + n, r))
        a("s_nop 1")
        for n, r in enumerate(regs): a("v_permlane32_swap_b32 v%d, v%d" % (tmp + n, r))
        a("s_nop 1")
        for n, r in enumerate(regs): a("v_add_f32 v%d, v%d, v%d" % (r, tmp + n, r))

    def tree(self, base, stride, n, width):
        step = 1
        while step < n:
            for p in range(0, n, 2 * step):
                for r in range(width):
                    self.a("v_add_f32 v%d, v%d, v%d" % (base + p * stride + r, base + p * stride + r, base + (p + step) * stride + r))
            step *= 2

    def prologue(self, name):
        a = self.a
        a.begin_kernel(name)
        if self.stamps:
            for i in range(1, 8): a("s_mov_b64 s[%d:%d], 0" % (STAMP0 + 2 * i, STAMP0 + 2 * i + 1))
        self.stamp(0)
        a("s_cmp_ge_u32 s2, 512")
        a("s_cbranch_scc0 M_GO")
        a("s_endpgm")
        a.label("M_GO")
        a("s_load_dwordx4 s[36:39], s[0:1], 0")
        a("s_load_dwordx4 s[40:43], s[0:1], 16")
        a("s_load_dwordx2 s[44:45], s[0:1], 32")
        a("s_load_dwordx4 s[48:51], s[0:1], 48")
        a("s_load_dwordx4 s[52:55], s[0:1], 64")
        a("s_load_dwordx4 s[56:59], s[0:1], 80")
        a("s_memrealtime s[%d:%d]" % (S_T + 8, S_T + 9))
        if "padown" in self.dbg: a("s_memrealtime s[100:101]")
        a("v_lshrrev_b32 v%d, 6, v0" % T0)
        a("v_and_b32 v%d, 63, v0" % V_LANE)
        a("v_readfirstlane_b32 s%d, v%d" % (S_W, T0))
        a("v_lshlrev_b32 v%d, 4, v%d" % (V_L16, V_LANE))
        if "pf" in self.dbg:
            a("s_getpc_b64 s[%d:%d]" % (S_T + 4, S_T + 5))
            a("v_lshlrev_b32 v%d, 7, v0" % T1)
            a("v_cmp_gt_u32 vcc, 0x%x, v%d" % (self.code_bytes, T1))
            a("s_and_saveexec_b64 s[%d:%d], vcc" % (S_T + 6, S_T + 7))
            a("s_cbranch_execz M_NPF")
            a("global_load_dword v19, v%d, s[%d:%d]" % (T1, S_T + 4, S_T + 5))
            a.label("M_NPF")
            a("s_mov_b64 exec, -1")
        a("v_mov_b32 v%d, 0" % V_NONCE)
        a("s_and_b32 s%d, s2, 255" % S_ID)
        a("s_and_b32 s%d, s2, 7" % S_XCD)
        a("s_lshr_b32 s%d, s%d, 3" % (S_IDX, S_ID))
        a("s_lshl_b32 s%d, s%d, 2" % (S_RB32, S_XCD))
        a("s_and_b32 s%d, s%d, 3" % (S_T + 2, S_IDX))
        a("s_add_u32 s%d, s%d, s%d" % (S_RB32, S_RB32, S_T + 2))
        a("s_lshr_b32 s%d, s%d, 5" % (S_HI, S_ID))
        a("s_mov_b32 s%d, 0x%x" % (S_VM, VMASK))
        a("s_mov_b32 s%d, 0x%x" % (S_VM + 1, VMASK))
        a("v_lshrrev_b32 v%d, 4, v%d" % (T0, V_LANE))
        a("s_and_b32 s%d, s%d, 1" % (S_T, S_W))
        a("s_lshl_b32 s%d, s%d, 2" % (S_T, S_T))
        a("v_add_u32 v%d, s%d, v%d" % (T0, S_T, T0))
        a("v_and_b32 v%d, 7, v%d" % (T1, V_LANE))
        a("v_xor_b32 v%d, v%d, v%d" % (T0, T0, T1))
        a("v_lshrrev_b32 v%d, 3, v%d" % (T1, V_LANE))
        a("v_mul_u32_u24 v%d, 1280, v%d" % (T1, T1))
        a("v_lshl_add_u32 v8, v%d, 4, v%d" % (T0, T1))
        a("s_cmp_lt_u32 s2, 256" if "ffirst" not in self.dbg else "s_cmp_ge_u32 s2, 256")
        a("s_waitcnt lgkmcnt(0)")
        srd(a, SWS, P_WS, P_WS + 1, WS_USED)
        srd(a, SX, P_X, P_X + 1, 2621440)
        srd(a, SDBG, P_DBG, P_DBG + 1, 256)
        a("s_cbranch_scc0 ROLE_F" if "ffirst" not in self.dbg else "s_cbranch_scc1 ROLE_A")

    def role_a(self):
        a = self.a; dbg = self.dbg
        S_TI, S_HEAD = S_R, S_R + 1
        a.label("ROLE_A")
        a("s_or_b32 s%d, s%d, s%d" % (S_T + 2, S_ID, S_W))
        a("s_cmp_lg_u32 s%d, 0" % (S_T + 2))
        a("s_cbranch_scc1 M_NT")
        a("s_or_b32 s%d, s%d, 1" % (S_T + 8, S_T + 8))
        a("v_mov_b32 v%d, s%d" % (T0, S_T + 8))
        a("v_mov_b32 v%d, 0" % T1)
        a("s_mov_b64 exec, 1")
        a("buffer_store_dword v%d, v%d, %s, 0 offen %s" % (T0, T1, sr(SDBG), SC))
        a("s_mov_b64 exec, -1")
        a.label("M_NT")
        a("s_cmp_lt_u32 s%d, 4" % S_HI)
        a("s_cbranch_scc0 AUX_2")
        a("s_setprio %d" % self.prio_kv)
        self.kv_issue()
        a.label("KV_I")
        self.kv_body()
        self.wave_flag("s%d" % (S_R + 15), T0)
        a("s_branch AUX_RL")
        a.label("A_GO")
        self.stamp(1)
        if "noA" in dbg: self.finish()
        a("s_setprio %d" % self.prio_q)
        V_KA, V_K1A, V_V0A, V_V1A, V_IDX = 120, 121, 122, 123, 124
        AD = 125
        O = 96
        V0, V1 = 112, 116
        Q0, Q1 = 8, 12
        K0, K1 = 16, 20
        SAa, SBb = 24, 40
        QA = 74
        S_SRC, S_DST, S_C, S_DK, S_CUR, S_OO, S_FO, S_KM, S_QO = S_R + 2, S_R + 3, S_R + 4, S_R + 5, S_R + 6, S_R + 8, S_R + 9, S_R + 10, S_R + 11
        a("s_and_b32 s%d, s%d, 1" % (S_TI, S_W))
        a("s_lshr_b32 s%d, s%d, 1" % (S_T + 2, S_W))
        a("s_lshl_b32 s%d, s%d, 2" % (S_HEAD, S_HI))
        a("s_add_u32 s%d, s%d, s%d" % (S_HEAD, S_HEAD, S_T + 2))
        a("v_and_b32 v%d, 31, v%d" % (T0, V_LANE))
        a("v_lshrrev_b32 v%d, 5, v%d" % (T1, V_LANE))
        a("v_mov_b32 v%d, v%d" % (V_KA, V_L16))
        a("v_lshlrev_b32 v%d, 3, v%d" % (V_K1A, T0))
        a("v_mul_u32_u24 v%d, 320, v%d" % (V_V0A, T1))
        a("v_lshl_add_u32 v%d, v%d, 4, v%d" % (V_V0A, T0, V_V0A))
        a("v_mov_b32 v%d, v%d" % (V_V1A, V_V0A))
        a("v_mov_b32 v%d, 0xdddddddd" % V_IDX)
        a("s_mul_i32 s%d, s%d, 20" % (S_T, S_HEAD))
        a("v_lshlrev_b32 v%d, 4, v%d" % (T0, T0))
        for j in range(3):
            if j < 2:
                a("v_lshl_add_u32 v%d, v%d, 3, s%d" % (T2, T1, S_T))
                if j: a("v_add_u32 v%d, 4, v%d" % (T2, T2))
            else:
                a("v_mov_b32 v%d, s%d" % (T2, S_T))
                a("v_add_u32 v%d, 16, v%d" % (T2, T2))
            a("v_lshrrev_b32 v%d, 3, v%d" % (T3, T2))
            a("v_lshl_add_u32 v%d, v%d, 9, v%d" % (QA + j, T3, T0))
            a("v_and_b32 v%d, 4, v%d" % (T3, T2))
            a("v_lshl_add_u32 v%d, v%d, 1, v%d" % (QA + j, T3, QA + j))
        a("s_lshl_b32 s%d, s%d, 1" % (S_QO, S_RB32))
        a("s_add_u32 s%d, s%d, s%d" % (S_QO, S_QO, S_TI))
        a("s_mul_i32 s%d, s%d, 40960" % (S_QO, S_QO))
        if WS_QP: a("s_add_u32 s%d, s%d, 0x%x" % (S_QO, S_QO, WS_QP))
        a("v_and_b32 v%d, 3, v%d" % (T2, V_LANE))
        a("v_lshlrev_b32 v%d, 5, v%d" % (T2, T2))
        a("v_min_u32 v%d, 79, v%d" % (T2, T2))
        a("s_mul_i32 s%d, s%d, 80" % (S_T + 1, S_HI))
        a("v_add_u32 v%d, s%d, v%d" % (T2, S_T + 1, T2))
        a("v_lshrrev_b32 v%d, 7, v%d" % (T3, T2))
        a("v_add_u32 v%d, 27, v%d" % (T3, T3))
        a("v_lshrrev_b32 v77, 1, v%d" % T3)
        a("v_lshlrev_b32 v77, 7, v77")
        a("v_and_b32 v%d, 1, v%d" % (T3, T3))
        a("v_lshl_add_u32 v77, v%d, 4, v77" % T3)
        a("v_bfe_u32 v%d, v%d, 5, 1" % (T3, T2))
        a("v_lshl_add_u32 v77, v%d, 3, v77" % T3)
        a("s_lshr_b32 s%d, s%d, 1" % (S_T + 1, S_RB32))
        a("s_lshl_b32 s%d, s%d, 11" % (S_T + 1, S_T + 1))
        a("s_and_b32 s%d, s%d, 1" % (S_T + 2, S_RB32))
        a("s_lshl_b32 s%d, s%d, 2" % (S_T + 2, S_T + 2))
        a("s_add_u32 s%d, s%d, s%d" % (S_T + 1, S_T + 1, S_T + 2))
        a("s_add_u32 s%d, s%d, 0x%x" % (S_T + 1, S_T + 1, F2_H))
        a("v_add_u32 v77, s%d, v77" % (S_T + 1))
        a("v_lshl_add_u32 v%d, v%d, 2, s%d" % (T1, T1, S_T))
        a("v_and_b32 v%d, 15, v%d" % (T0, V_LANE))
        a("v_lshlrev_b32 v%d, 4, v%d" % (T0, T0))
        a("v_bfe_u32 v%d, v%d, 4, 1" % (T2, V_LANE))
        a("v_lshl_add_u32 v%d, v%d, 10, v%d" % (T0, T2, T0))
        for j in range(3):
            a("v_add_u32 v%d, %d, v%d" % (T2, 8 * j, T1))
            a("v_lshrrev_b32 v%d, 5, v%d" % (T3, T2))
            a("v_lshl_add_u32 v%d, v%d, 12, v%d" % (AD + j, T3, T0))
            a("v_bfe_u32 v%d, v%d, 3, 2" % (T3, T2))
            a("v_lshl_add_u32 v%d, v%d, 8, v%d" % (AD + j, T3, AD + j))
            a("v_and_b32 v%d, 7, v%d" % (T3, T2))
            a("v_lshl_add_u32 v%d, v%d, 1, v%d" % (AD + j, T3, AD + j))
        a("s_mul_i32 s%d, s%d, 74" % (S_OO, S_RB32))
        a("s_add_u32 s%d, s%d, 54" % (S_OO, S_OO))
        a("s_lshl_b32 s%d, s%d, 12" % (S_OO, S_OO))
        a("s_lshl_b32 s%d, s%d, 11" % (S_T + 1, S_TI))
        a("s_add_u32 s%d, s%d, s%d" % (S_OO, S_OO, S_T + 1))
        a("s_add_u32 s%d, s%d, 0x%x" % (S_OO, S_OO, WS_HO))
        a("s_lshl_b32 s%d, s%d, 10" % (S_FO, S_RB32))
        a("s_lshl_b32 s%d, s%d, 7" % (S_T + 1, S_HI))
        a("s_add_u32 s%d, s%d, s%d" % (S_FO, S_FO, S_T + 1))
        a("s_lshl_b32 s%d, s%d, 2" % (S_T + 1, S_W))
        a("s_add_u32 s%d, s%d, s%d" % (S_FO, S_FO, S_T + 1))
        a("s_add_u32 s%d, s%d, 0x%x" % (S_FO, S_FO, F2_O))
        for r in range(8): a("v_mov_b32 v%d, 0" % (V0 + r))
        a("s_mov_b32 exec_lo, 0x11000000")
        a("s_mov_b32 exec_hi, 0x11000000")
        for r in range(8): a("v_mov_b32 v%d, 0x3f803f80" % (V0 + r))
        a("s_mov_b64 exec, -1")
        for r in range(8): a("v_mov_b32 v%d, v%d" % (64 + r, V0))
        for r in range(16): a("v_mov_b32 v%d, 0" % (O + r))
        for r in range(8, 16): a("v_mov_b32 v%d, 0" % (SBb + r))
        for k in (K1 + 2, 62): a("v_mov_b32 v%d, 0x3f803f80" % k)
        for k in (K1 + 3, 63): a("v_mov_b32 v%d, 0x00003f80" % k)
        a("v_mov_b32 v%d, 0" % (Q1 + 2))
        a("v_mov_b32 v%d, 0" % (Q1 + 3))
        a("v_lshlrev_b32 v%d, 7, v%d" % (T0, V_LANE))
        a("s_mov_b32 s%d, 0x%x" % (S_T + 1, F2_K))
        a("s_mov_b32 s%d, 0x%x" % (S_T + 2, F2_K + 8192))
        a("s_cmp_lg_u32 s%d, 0" % S_W)
        a("s_cbranch_scc1 A_PP")
        a("v_and_b32 v%d, 0x180, v%d" % (T1, T0))
        a("s_lshl_b32 s%d, s%d, 9" % (S_T + 3, S_RB32))
        a("s_add_u32 s%d, s%d, 0x%x" % (S_T + 3, S_T + 3, F2_K))
        self.poll([(24, 4, T1, "s%d" % (S_T + 3))], T3, sleep=40, wave0=False)
        a("s_sleep 40")
        a.label("A_PP")
        self.poll([(24, 4, T0, "s%d" % (S_T + 1)), (28, 4, T0, "s%d" % (S_T + 2))], T3, sleep=self.ksleep)
        self.stamp(5)
        def dma_chunk(tag):
            for m in range(3):
                if m == 2:
                    a("s_cmp_ge_u32 s%d, 4" % S_W)
                    a("s_cbranch_scc1 A2_DS%s" % tag)
                a("s_add_u32 m0, s%d, %d" % (S_DST, m * 8192))
                a("s_add_u32 s%d, s%d, %d" % (S_T, S_SRC, m * 8192))
                a("buffer_load_dwordx4 v%d, %s, s%d offen %s lds" % (V_L16, sr(SWS), S_T, SC))
            a.label("A2_DS%s" % tag)
            a("s_add_u32 s%d, s%d, %d" % (S_SRC, S_SRC, CHUNK))
            a("s_add_u32 s%d, s%d, %d" % (S_DST, S_DST, CHUNK))
            a("s_cmp_ge_u32 s%d, %d" % (S_DST, 3 * CHUNK))
            a("s_cbranch_scc0 A2_DW%s" % tag)
            a("s_sub_u32 s%d, s%d, %d" % (S_DST, S_DST, 3 * CHUNK))
            a.label("A2_DW%s" % tag)
        KN = 24
        a("s_mov_b32 s%d, 0x%x" % (S_T, WS_KN))
        a("buffer_load_dwordx4 %s, v%d, %s, s%d offen %s" % (vr(KN, 4), V_L16, sr(SWS), S_T, SC))
        a("s_lshl_b32 s%d, s%d, 10" % (S_DST, S_W))
        a("s_add_u32 s%d, s%d, 0x%x" % (S_SRC, S_DST, WS_KV))
        dma_chunk("a")
        dma_chunk("b")
        a("s_waitcnt vmcnt(0)")
        a("s_barrier")
        a("v_add_f32 v%d, v%d, v%d" % (KN, KN, KN + 1))
        a("v_add_f32 v%d, v%d, v%d" % (KN, KN, KN + 2))
        for dpp in DPPS:
            a("s_nop 1")
            a("v_max_f32_dpp v%d, v%d, v%d %s row_mask:0xf bank_mask:0xf" % (KN, KN, KN, dpp))
        a("s_nop 0")
        for q in range(4): a("v_readlane_b32 s%d, v%d, %d" % (S_T + q, KN, 16 * q))
        a("s_nop 3")
        a("s_max_u32 s%d, s%d, s%d" % (S_T, S_T, S_T + 1))
        a("s_max_u32 s%d, s%d, s%d" % (S_T + 2, S_T + 2, S_T + 3))
        a("s_max_u32 s%d, s%d, s%d" % (S_KM, S_T, S_T + 2))
        self.load_nonce(T3)
        self.poll([(T1, 1, 77, "0")], T3, sleep=self.qsleep)
        a("s_setprio 3")
        self.stamp(2)
        a("buffer_load_dwordx2 %s, v%d, %s, s%d offen %s" % (vr(Q0, 2), QA, sr(SWS), S_QO, SC))
        a("buffer_load_dwordx2 %s, v%d, %s, s%d offen %s" % (vr(Q0 + 2, 2), QA + 1, sr(SWS), S_QO, SC))
        a("buffer_load_dwordx2 %s, v%d, %s, s%d offen %s" % (vr(Q1, 2), QA + 2, sr(SWS), S_QO, SC))
        a("v_mov_b32 v%d, 0" % T2)
        a("s_waitcnt vmcnt(0)")
        a("s_mov_b32 exec_lo, 0")
        a("v_mov_b32 v%d, 0" % Q1)
        a("v_mov_b32 v%d, 0" % (Q1 + 1))
        a("s_mov_b64 exec, -1")
        for r in range(6):
            a("v_lshlrev_b32 v%d, 16, v%d" % (T0, Q0 + r))
            a("v_and_b32 v%d, 0xffff0000, v%d" % (T1, Q0 + r))
            a("v_fmac_f32 v%d, v%d, v%d" % (T2, T0, T0))
            a("v_fmac_f32 v%d, v%d, v%d" % (T2, T1, T1))
        self.halfsum([T2], T3)
        a("v_mul_f32 v%d, s%d, v%d" % (T2, S_KM, T2))
        a("v_sqrt_f32 v%d, v%d" % (T2, T2))
        a("v_mov_b32 v%d, 0x%x" % (T3, f32bits(72.0)))
        a("v_mul_f32 v%d, 0x%x, v%d" % (T2, f32bits(1.02), T2))
        a("v_cmp_nle_f32 vcc, v%d, v%d" % (T2, T3))
        a("v_add_f32 v%d, 0x%x, v%d" % (T2, f32bits(-48.0), T2))
        a("s_nop 0")
        if "forcefb" in dbg: a("s_branch A2_FB")
        a("s_cbranch_vccnz A2_FB")
        a.label("A2_SETM")
        a("v_sub_f32 v%d, 0, v%d" % (T2, T2))
        a("v_and_b32 v%d, 0xffff0000, v%d" % (T3, T2))
        a("v_sub_f32 v%d, v%d, v%d" % (T2, T2, T3))
        a("v_and_b32 v%d, 0xffff0000, v%d" % (T0, T2))
        a("v_sub_f32 v%d, v%d, v%d" % (T2, T2, T0))
        a("v_lshrrev_b32 v%d, 16, v%d" % (T3, T3))
        a("s_mov_b32 exec_hi, 0")
        a("v_or_b32 v%d, v%d, v%d" % (Q1 + 2, T3, T0))
        a("v_lshrrev_b32 v%d, 16, v%d" % (Q1 + 3, T2))
        a("s_mov_b64 exec, -1")
        a("s_setprio %d" % self.prio_a)
        self.stamp(3)
        KS = [K0, 56]; VS = [V0, 64]
        def rdK0(p, off): a("ds_read_b128 %s, v%d offset:%d" % (vr(KS[p], 4), V_KA, off))
        def rdK1(p, off): a("ds_read_b64 %s, v%d offset:%d" % (vr(KS[p] + 4, 2), V_K1A, off + 1024))
        def qk0(S, p=0): a("v_mfma_f32_32x32x16_bf16 %s, %s, %s, 0" % (vr(S, 16), vr(KS[p], 4), vr(Q0, 4)))
        def qk1(S, p=0): a("v_mfma_f32_32x32x16_bf16 %s, %s, %s, %s" % (vr(S, 16), vr(KS[p] + 4, 4), vr(Q1, 4), vr(S, 16)))
        def pv(Vf, P): a("v_smfmac_f32_32x32x32_bf16 %s, %s, %s, v%d" % (vr(O, 16), vr(Vf, 4), vr(P, 8), V_IDX))
        def ex(S, lo, hi):
            for r in range(lo, hi): a("v_exp_f32 v%d, v%d" % (S + r, S + r))
        rdK0(1, 0); rdK1(1, 0)
        rdK0(0, TILE); rdK1(0, TILE)
        a("s_mov_b64 exec, s[%d:%d]" % (S_VM, S_VM + 1))
        a("ds_read_b128 %s, v%d offset:1280" % (vr(VS[0], 4), V_V0A))
        a("s_mov_b64 exec, -1")
        a("s_waitcnt lgkmcnt(3)")
        qk0(SAa, 1); qk1(SAa, 1)
        a("s_mov_b32 s%d, 0" % S_C)
        a("s_mov_b32 s%d, 0" % S_CUR)
        a("s_nop 7")
        a.label("A2_LOOP")
        a("s_add_u32 s%d, s%d, %d" % (S_CUR, S_CUR, CHUNK))
        a("s_cmp_eq_u32 s%d, %d" % (S_CUR, 3 * CHUNK))
        sel(a, S_DK, (-2 * CHUNK) & 0xffffffff, CHUNK)
        a("s_cselect_b32 s%d, 0, s%d" % (S_CUR, S_CUR))
        for j in range(8):
            Sc, Sn = (SAa, SBb) if j % 2 == 0 else (SBb, SAa)
            p = j & 1; n = 1 - p
            if j == 6:
                a("s_cmp_eq_u32 s%d, 7" % S_C)
                a("s_cbranch_scc1 A2_NODMA")
                a("s_waitcnt vmcnt(0)")
                a("s_barrier")
                a("s_cmp_ge_u32 s%d, 6" % S_C)
                a("s_cbranch_scc1 A2_NODMA")
                a("s_setprio 3")
                dma_chunk("c")
                a("s_setprio %d" % self.prio_a)
                a.label("A2_NODMA")
                a("v_add_u32 v%d, s%d, v%d" % (V_KA, S_DK, V_KA))
                a("v_add_u32 v%d, s%d, v%d" % (V_K1A, S_DK, V_K1A))
            if j == 7:
                a("v_add_u32 v%d, s%d, v%d" % (V_V0A, S_DK, V_V0A))
            a("s_waitcnt lgkmcnt(0)")
            rdK0(n, ((j + 2) % 8) * TILE)
            pv(VS[p] + 4, Sn + 8)
            rdK1(n, ((j + 2) % 8) * TILE)
            ex(Sc, 0, 4)
            qk0(Sn, p)
            a("s_mov_b64 exec, s[%d:%d]" % (S_VM, S_VM + 1))
            a("ds_read_b128 %s, v%d offset:%d" % (vr(VS[n] + 4, 4), V_V1A, j * TILE + 1920))
            a("ds_read_b128 %s, v%d offset:%d" % (vr(VS[n], 4), V_V0A, ((j + 1) % 8) * TILE + 1280))
            a("s_mov_b64 exec, -1")
            ex(Sc, 4, 8)
            qk1(Sn, p)
            ex(Sc, 8, 12)
            pv(VS[p], Sc)
            ex(Sc, 12, 16)
            if j == 7: a("v_add_u32 v%d, s%d, v%d" % (V_V1A, S_DK, V_V1A))
        a("s_add_u32 s%d, s%d, 1" % (S_C, S_C))
        if "atst" in dbg:
            for c_, sl in ((1, 1), (2, 2), (4, 5), (6, 6)):
                a("s_cmp_lg_u32 s%d, %d" % (S_C, c_))
                a("s_cbranch_scc1 A2_S%d" % c_)
                self.stamp(sl)
                a.label("A2_S%d" % c_)
        a("s_cmp_lt_u32 s%d, 8" % S_C)
        a("s_cbranch_scc1 A2_LOOP")
        a("s_setprio 3")
        a("s_waitcnt lgkmcnt(0)")
        pv(V1, SBb + 8)
        self.stamp(4)
        a("s_nop 11")
        a("v_rcp_f32 v%d, v%d" % (T3, O + 12))
        a("s_nop 0")
        for r in range(12): a("v_mul_f32 v%d, v%d, v%d" % (O + r, T3, O + r))
        PK = SAa
        for r in range(6): a("v_cvt_pk_bf16_f32 v%d, v%d, v%d" % (PK + r, O + 2 * r, O + 2 * r + 1))
        a("buffer_store_dwordx2 %s, v%d, %s, s%d offen %s" % (vr(PK, 2), AD, sr(SWS), S_OO, SC))
        a("buffer_store_dwordx2 %s, v%d, %s, s%d offen %s" % (vr(PK + 2, 2), AD + 1, sr(SWS), S_OO, SC))
        a("s_mov_b32 exec_hi, 0")
        a("buffer_store_dwordx2 %s, v%d, %s, s%d offen %s" % (vr(PK + 4, 2), AD + 2, sr(SWS), S_OO, SC))
        a("s_mov_b64 exec, -1")
        self.load_nonce(T0)
        self.wave_flag("s%d" % S_FO, T0)
        self.finish()
        a.label("A2_FB")
        a("v_mov_b32 v%d, 0xff800000" % T2)
        a("s_mov_b32 s%d, 0x%x" % (S_T, WS_KV))
        a.label("A2_FBL")
        a("buffer_load_dwordx4 %s, v%d, %s, s%d offen %s" % (vr(K0, 4), V_KA, sr(SWS), S_T, SC))
        a("buffer_load_dwordx2 %s, v%d, %s, s%d offen offset:1024 %s" % (vr(K1, 2), V_K1A, sr(SWS), S_T, SC))
        a("s_waitcnt vmcnt(0)")
        qk0(SAa); qk1(SAa)
        a("s_nop 15")
        for r in range(0, 16, 2): a("v_max3_f32 v%d, v%d, v%d, v%d" % (T2, T2, SAa + r, SAa + r + 1))
        a("s_add_u32 s%d, s%d, %d" % (S_T, S_T, TILE))
        a("s_cmp_lt_u32 s%d, 0x%x" % (S_T, WS_KV + 64 * TILE))
        a("s_cbranch_scc1 A2_FBL")
        a("v_mov_b32 v%d, v%d" % (T3, T2))
        a("s_nop 1")
        a("v_permlane32_swap_b32 v%d, v%d" % (T3, T2))
        a("s_nop 1")
        a("v_max_f32 v%d, v%d, v%d" % (T2, T2, T3))
        a("s_branch A2_SETM")

    F2_WO, F2_W1K, F2_RLOK = S_R + 12, S_R + 13, S_R + 14
    def f2_wsetup(self):
        a = self.a
        a("s_lshl_b32 s%d, s%d, 10" % (self.F2_W1K, S_W))
        a("s_mul_i32 s%d, s%d, %d" % (self.F2_WO, S_HI, 74 * 5120))
        a("s_add_u32 s%d, s%d, s%d" % (self.F2_WO, self.F2_WO, self.F2_W1K))
        a("s_add_u32 s%d, s%d, 0x%x" % (self.F2_WO, self.F2_WO, WS_WF2))
    def f2_dmaW(self, g):
        a = self.a
        lab = a.newlabel("F2D")
        for m in range(3):
            if m == 2:
                a("s_cmp_ge_u32 s%d, 4" % S_W)
                a("s_cbranch_scc1 %s" % lab)
            a("s_add_u32 m0, s%d, %d" % (self.F2_W1K, (g % 4) * 20480 + m * 8192))
            a("s_add_u32 s%d, s%d, %d" % (S_T + 7, self.F2_WO, g * 20480 + m * 8192))
            a("buffer_load_dwordx4 v%d, %s, s%d offen %s lds" % (V_L16, sr(SWS), S_T + 7, SC))
        a.label(lab)

    def role_f1(self):
        a = self.a; dbg = self.dbg
        V_VX, V_VG, V_VU = 8, 9, 10
        V_XA = 12
        V_WA = 14
        V_SX = 16
        F = [24, 40]
        ACC = 56
        S_RB, S_CB, S_TH, S_CG, S_OX, S_OW, S_BX, S_BW, S_STG, S_ACT = [S_R + i for i in range(10)]
        WREG = 32768
        S_HT, S_WST = S_R + 10, S_R + 11
        a.label("ROLE_F")
        a("s_setprio %d" % self.prio_f1)
        a("s_and_b32 s%d, s%d, 3" % (S_T, S_XCD))
        a("s_lshr_b32 s%d, s%d, 3" % (S_CB, S_IDX))
        a("s_sub_u32 s%d, 3, s%d" % (S_CB, S_CB))
        a("s_lshl_b32 s%d, s%d, 2" % (S_CB, S_CB))
        a("s_add_u32 s%d, s%d, s%d" % (S_CB, S_CB, S_T))
        a("s_and_b32 s%d, s%d, 7" % (S_T, S_IDX))
        a("s_and_b32 s%d, s%d, 4" % (S_RB, S_XCD))
        a("s_lshl_b32 s%d, s%d, 1" % (S_RB, S_RB))
        a("s_add_u32 s%d, s%d, s%d" % (S_RB, S_RB, S_T))
        a("s_lshl_b32 s%d, s%d, 4" % (S_T, S_RB))
        a("s_add_u32 s%d, s%d, s%d" % (S_T, S_T, S_W))
        a("s_mul_i32 s%d, s%d, 10240" % (S_OX, S_T))
        a("s_lshl_b32 s%d, s%d, 10" % (S_BW, S_W))
        a("s_mov_b32 s%d, s%d" % (S_BX, S_BW))
        def dmaX():
            return [
              ["s_mov_b32 m0, s%d" % S_BX, "s_add_u32 s%d, s%d, 81920" % (S_T, S_OX),
               "buffer_load_dwordx4 v%d, %s, s%d offen lds" % (V_VX, sr(SX), S_OX)],
              ["s_add_u32 m0, s%d, 8192" % S_BX, "s_add_u32 s%d, s%d, 128" % (S_OX, S_OX),
               "buffer_load_dwordx4 v%d, %s, s%d offen lds" % (V_VX, sr(SX), S_T), "s_xor_b32 s%d, s%d, 16384" % (S_BX, S_BX)],
            ]
        def dmaW(b):
            return [
              ["s_add_u32 m0, s%d, %d" % (S_BW, WREG + b * 16384), "s_nop 0",
               "buffer_load_dwordx4 v%d, %s, s%d offen lds" % (V_VG, sr(SA), S_OW)],
              ["s_add_u32 m0, s%d, %d" % (S_BW, WREG + b * 16384 + 8192), "s_nop 0",
               "buffer_load_dwordx4 v%d, %s, s%d offen lds" % (V_VU, sr(SB), S_OW), "s_add_u32 s%d, s%d, s%d" % (S_OW, S_OW, S_WST)],
            ]
        def emit(groups):
            for g in groups:
                for op in g: a(op)
        if "noF" in dbg:
            a("s_cmp_lt_u32 s%d, 5" % S_CB)
            a("s_cbranch_scc1 F1_KEEP")
            self.finish()
            a.label("F1_KEEP")
        emit(dmaX())
        a("s_lshr_b32 s%d, s%d, 2" % (S_T, S_W))
        a("s_lshl_b32 s%d, s%d, 1" % (S_HT, S_CB))
        a("s_add_u32 s%d, s%d, s%d" % (S_HT, S_HT, S_T))
        a("s_sub_u32 s%d, s%d, 5" % (S_HT, S_HT))
        a("s_cmp_eq_u32 s%d, 0" % S_T)
        a("s_cselect_b32 s%d, 27, 0" % (S_T + 1))
        a("s_add_u32 s%d, s%d, s%d" % (S_T + 1, S_T + 1, S_CB))
        a("s_cmp_lt_u32 s%d, 5" % S_CB)
        a("s_cselect_b32 s%d, s%d, s%d" % (S_HT, S_T + 1, S_HT))
        a("s_lshl_b32 s%d, s%d, 7" % (S_T + 1, S_HT))
        a("s_lshl_b32 s%d, s%d, 8" % (S_T + 2, S_HT))
        a("s_sub_u32 s%d, s%d, %d" % (S_T + 2, S_T + 2, 27 * 256))
        a("s_cmp_lt_u32 s%d, 27" % S_HT)
        a("s_cselect_b32 s%d, 1, 0" % S_ACT)
        a("s_cselect_b32 s%d, s%d, s%d" % (S_OW, S_T + 1, S_T + 2))
        sel(a, S_T + 3, 3456, 1280)
        a("s_cselect_b32 s%d, s%d, s%d" % (SA, P_WG, P_WQ))
        a("s_cselect_b32 s%d, s%d, s%d" % (SA + 1, P_WG + 1, P_WQ + 1))
        sel(a, SA + 2, 2211840, 819200)
        a("s_mov_b32 s%d, 0x20000" % (SA + 3))
        a("s_cselect_b32 s%d, s%d, s%d" % (SB, P_WU, P_WQ))
        a("s_cselect_b32 s%d, s%d, s%d" % (SB + 1, P_WU + 1, P_WQ + 1))
        a("s_mov_b32 s%d, s%d" % (SB + 2, SA + 2))
        a("s_mov_b32 s%d, 0x20000" % (SB + 3))
        a("s_cselect_b32 s%d, 32, 128" % (S_T + 4))
        a("s_lshl_b32 s%d, s%d, 5" % (S_WST, S_T + 3))
        a("s_and_b32 s%d, s%d, 3" % (S_T, S_W))
        a("s_mul_i32 s%d, s%d, s%d" % (S_T, S_T, S_T + 3))
        a("s_lshl_b32 s%d, s%d, 3" % (S_T, S_T))
        a("s_add_u32 s%d, s%d, s%d" % (S_OW, S_OW, S_T))
        a("v_lshrrev_b32 v%d, 5, v%d" % (T2, V_LANE))
        a("v_bfe_u32 v%d, v%d, 2, 2" % (T1, V_LANE))
        a("v_lshl_add_u32 v%d, v%d, 2, v%d" % (T0, T2, T1))
        a("v_mul_lo_u32 v%d, v%d, s%d" % (T0, T0, S_T + 3))
        a("v_bfe_u32 v%d, v%d, 4, 1" % (T3, V_LANE))
        a("v_lshl_add_u32 v%d, v%d, 6, v%d" % (T0, T3, T0))
        a("v_and_b32 v%d, 3, v%d" % (T3, V_LANE))
        a("v_lshl_add_u32 v%d, v%d, 4, v%d" % (V_VG, T3, T0))
        a("v_xor_b32 v%d, s%d, v%d" % (V_VU, S_T + 4, V_VG))
        emit(dmaW(0) + dmaW(1) + dmaX() + dmaW(2))
        a("s_and_b32 s%d, s%d, 1" % (S_TH, S_W))
        a("s_lshr_b32 s%d, s%d, 1" % (S_CG, S_W))
        a("v_bfe_u32 v%d, v%d, 2, 2" % (T1, V_LANE))
        a("v_and_b32 v%d, 31, v%d" % (T0, V_LANE))
        a("v_bfe_u32 v%d, v%d, 1, 3" % (T3, V_LANE))
        a("v_xor_b32 v%d, v%d, v%d" % (T3, T3, T2))
        a("v_lshlrev_b32 v%d, 4, v%d" % (T3, T3))
        a("v_lshl_add_u32 v%d, v%d, 7, v%d" % (T3, T0, T3))
        a("s_lshl_b32 s%d, s%d, 13" % (S_T, S_TH))
        a("v_add_u32 v%d, s%d, v%d" % (V_XA, S_T, T3))
        a("v_xor_b32 v%d, 32, v%d" % (V_XA + 1, V_XA))
        a("v_and_b32 v%d, 1, v%d" % (T0, V_LANE))
        a("v_lshlrev_b32 v%d, 4, v%d" % (T0, T0))
        a("v_bfe_u32 v%d, v%d, 1, 1" % (T3, V_LANE))
        a("v_lshl_add_u32 v%d, v%d, 3, v%d" % (T0, T3, T0))
        a("v_lshl_add_u32 v%d, v%d, 6, v%d" % (T0, T1, T0))
        a("v_lshl_add_u32 v%d, v%d, 10, v%d" % (T0, T2, T0))
        a("s_cmp_lg_u32 s%d, 0" % S_ACT)
        a("s_cselect_b32 s%d, 8224, 32" % (S_T + 1))
        a("s_cselect_b32 s%d, 32, 8192" % (S_T + 2))
        a("v_bfe_u32 v%d, v%d, 4, 1" % (T3, V_LANE))
        a("v_mul_lo_u32 v%d, v%d, s%d" % (T3, T3, S_T + 1))
        a("s_lshr_b32 s%d, s%d, 2" % (S_T, S_W))
        a("s_lshl_b32 s%d, s%d, 12" % (S_T, S_T))
        a("s_and_b32 s%d, s%d, 1" % (S_T + 3, S_CG))
        a("s_lshl_b32 s%d, s%d, 8" % (S_T + 3, S_T + 3))
        a("s_add_u32 s%d, s%d, s%d" % (S_T, S_T, S_T + 3))
        a("s_add_u32 s%d, s%d, %d" % (S_T, S_T, WREG))
        a("v_add3_u32 v%d, v%d, v%d, s%d" % (V_WA, T0, T3, S_T))
        a("v_xor_b32 v%d, s%d, v%d" % (V_WA + 1, S_T + 2, V_WA))
        for r in range(64): a("v_mov_b32 v%d, 0" % (ACC + r))
        V_C, V_FL, V_FA, V_CA, V_SA = 20, 22, 120, 121, 122
        S_R32, S_KS, S_CST, S_PRE = S_R + 12, S_R + 13, S_R + 14, S_R + 15
        a("s_lshl_b32 s%d, s%d, 1" % (S_R32, S_RB))
        a("s_add_u32 s%d, s%d, s%d" % (S_R32, S_R32, S_TH))
        a("s_and_b32 s%d, s%d, 1" % (S_T + 4, S_CG))
        a("s_lshl_b32 s%d, s%d, 1" % (S_T + 2, S_HT))
        a("s_add_u32 s%d, s%d, s%d" % (S_KS, S_T + 2, S_T + 4))
        a("s_lshl_b32 s%d, s%d, 9" % (S_T + 1, S_R32))
        a("s_add_u32 s%d, s%d, 0x%x" % (S_T, S_T + 1, WS_ST))
        a("v_and_b32 v%d, 31, v%d" % (T0, V_LANE))
        a("v_lshl_add_u32 v%d, v%d, 3, s%d" % (V_SA, T0, S_T))
        a("s_add_u32 s%d, s%d, 0x%x" % (S_T + 1, S_T + 1, F2_K + 12))
        a("s_lshl_b32 s%d, s%d, 7" % (S_T + 5, S_KS))
        a("s_lshl_b32 s%d, s%d, 9" % (S_T + 3, S_HT))
        a("s_lshl_b32 s%d, s%d, 7" % (S_T + 4, S_T + 4))
        a("s_add_u32 s%d, s%d, s%d" % (S_T + 3, S_T + 3, S_T + 4))
        a("s_add_u32 s%d, s%d, %d" % (S_T + 3, S_T + 3, 14336 - 27 * 512))
        a("s_cmp_lg_u32 s%d, 0" % S_ACT)
        a("s_cselect_b32 s%d, s%d, s%d" % (S_T + 2, S_HT, S_T + 2))
        a("s_cselect_b32 s%d, s%d, s%d" % (S_T + 5, S_T + 5, S_T + 3))
        a("s_cselect_b32 s%d, 64, 256" % S_CST)
        a("s_cselect_b32 s%d, 7168, 64" % (S_T + 6))
        sel(a, S_T + 3, 27 * 128, 128)
        a("s_add_u32 s%d, s%d, 0x%x" % (S_T + 5, S_T + 5, WS_CS))
        a("s_lshl_b32 s%d, s%d, 7" % (S_T + 2, S_T + 2))
        a("s_add_u32 s%d, s%d, 0x%x" % (S_T + 2, S_T + 2, F3_C))
        a("v_and_b32 v%d, 1, v%d" % (T1, V_LANE))
        a("v_lshlrev_b32 v%d, 7, v%d" % (T0, T1))
        a("v_add_u32 v%d, s%d, v%d" % (V_FA, S_T + 1, T0))
        a("v_mul_lo_u32 v%d, v%d, s%d" % (T1, T1, S_T + 3))
        a("s_mov_b32 exec_lo, 0")
        a("v_add_u32 v%d, s%d, v%d" % (V_FA, S_T + 2, T1))
        a("s_mov_b64 exec, -1")
        a("v_bfe_u32 v%d, v%d, 4, 1" % (T0, V_LANE))
        a("v_mul_lo_u32 v%d, v%d, s%d" % (T0, T0, S_T + 6))
        a("v_and_b32 v%d, 3, v%d" % (T1, V_LANE))
        a("v_lshl_add_u32 v%d, v%d, 2, v%d" % (T0, T1, T0))
        a("v_bfe_u32 v%d, v%d, 2, 1" % (T1, V_LANE))
        a("v_lshl_add_u32 v%d, v%d, 5, v%d" % (T0, T1, T0))
        a("v_bfe_u32 v%d, v%d, 3, 1" % (T1, V_LANE))
        a("v_lshl_add_u32 v%d, v%d, 4, v%d" % (T0, T1, T0))
        a("v_add_u32 v%d, s%d, v%d" % (V_CA, S_T + 5, T0))
        a("s_mov_b32 s%d, 0" % S_PRE)
        def pre_loads():
            a("buffer_load_dwordx2 %s, v%d, %s, 0 offen %s" % (vr(V_SX, 2), V_SA, sr(SWS), SC))
            a("buffer_load_dwordx2 %s, v%d, %s, 0 offen offset:256 %s" % (vr(V_SX + 2, 2), V_SA, sr(SWS), SC))
            a("buffer_load_dword v%d, v%d, %s, 0 offen %s" % (V_C, V_CA, sr(SWS), SC))
            a("buffer_load_dword v%d, v%d, %s, s%d offen %s" % (V_C + 1, V_CA, sr(SWS), S_CST, SC))
        def rops(p, b, kk):
            f = F[p]
            ops = ["ds_read_b128 %s, v%d" % (vr(f, 4), V_XA + kk)]
            for ct in range(2):
                for j in range(2):
                    ops.append("ds_read_b64_tr_b16 %s, v%d offset:%d" % (vr(f + 8 + 4 * ct + 2 * j, 2), V_WA + ct, b * 16384 + kk * 2048 + j * 512))
            ops.append("ds_read_b128 %s, v%d offset:4096" % (vr(f + 4, 4), V_XA + kk))
            return ops
        def mf(p, q):
            if self.pat1:
                pr = self.pat1[(p * 4 + q) % len(self.pat1)]; prev = self.pat1[(p * 4 + q - 1) % len(self.pat1)]
                if pr != prev: a("s_setprio %s" % pr)
            ti, ct = [(0, 0), (0, 1), (1, 0), (1, 1)][q]
            f = F[p]; d = ACC + (ti * 2 + ct) * 16
            a("v_mfma_f32_32x32x16_bf16 %s, %s, %s, %s" % (vr(d, 16), vr(f + 8 + 4 * ct, 4), vr(f + 4 * ti, 4), vr(d, 16)))
        a("s_mov_b32 s%d, 0" % S_STG)
        a("s_waitcnt vmcnt(6)")
        a("s_barrier")
        self.stamp(1)
        for op in rops(0, 0, 0): a(op)
        a.label("F1_LOOP")
        a("s_cmp_lg_u32 s%d, 18" % S_STG)
        a("s_cbranch_scc1 F1_P2")
        a("v_cmp_ne_u32 vcc, v%d, v%d" % (V_NONCE, V_FL))
        a("v_cmp_eq_u32 s[%d:%d], 0, v%d" % (S_T + 4, S_T + 5, V_FL))
        a("s_or_b64 vcc, vcc, s[%d:%d]" % (S_T + 4, S_T + 5))
        a("s_cbranch_scc1 F1_P2")
        a("s_mov_b32 s%d, 1" % S_PRE)
        pre_loads()
        a.label("F1_P2")
        if self.f1sw:
            a("s_cmp_lg_u32 s%d, %d" % (S_STG, self.f1sw))
            a("s_cbranch_scc1 F1_SW")
            a("s_setprio %d" % self.prio_f1b)
            a.label("F1_SW")
        if "f1st" in dbg:
            for c_, sl in ((6, 4), (12, 5), (18, 6)):
                a("s_cmp_lg_u32 s%d, %d" % (S_STG, c_))
                a("s_cbranch_scc1 F1_S%d" % c_)
                self.stamp(sl)
                a.label("F1_S%d" % c_)
        for u in range(6):
            b = u % 3; odd = u & 1
            if u == 4:
                a("s_cmp_lg_u32 s%d, 16" % S_STG)
                a("s_cbranch_scc1 F1_P1")
                self.load_nonce(T3)
                a("buffer_load_dword v%d, v%d, %s, 0 offen %s" % (V_FL, V_FA, sr(SWS), SC))
                a.label("F1_P1")
            a("s_waitcnt lgkmcnt(0)")
            mf(0, 0)
            for op in rops(1, b, 1): a(op)
            mf(0, 1)
            dl = 64 | (16384 if odd else 0)
            a("v_xor_b32 v%d, 0x%x, v%d" % (V_XA, dl, V_XA))
            a("v_xor_b32 v%d, 0x%x, v%d" % (V_XA + 1, dl, V_XA + 1))
            mf(0, 2)
            if u == 1:
                a("s_cmp_eq_u32 s%d, 19" % S_STG)
                a("s_cbranch_scc1 F1_LAST")
            if u in (5, 0):
                a("s_cmp_ge_u32 s%d, 17" % S_STG)
                a("s_cbranch_scc1 F1_T%d" % u)
            a("s_waitcnt vmcnt(%d) lgkmcnt(0)" % (2 if odd else 4))
            mf(0, 3)
            a("s_barrier")
            mf(1, 0)
            for op in rops(0, (b + 1) % 3, 0): a(op)
            ops = dmaW(b) + (dmaX() if odd else [])
            mf(1, 1)
            if "vlow1" in dbg:
                mf(1, 2); mf(1, 3)
                a("s_setprio 0")
                emit(ops)
                a("s_setprio %d" % self.prio_f1)
            else:
                emit(ops[:2])
                mf(1, 2)
                emit(ops[2:])
                mf(1, 3)
            if u in (5, 0):
                a("s_branch F1_N%d" % u)
                a.label("F1_T%d" % u)
                a("s_waitcnt vmcnt(0) lgkmcnt(0)")
                mf(0, 3)
                a("s_barrier")
                mf(1, 0)
                for op in rops(0, (b + 1) % 3, 0): a(op)
                for q in (1, 2, 3): mf(1, q)
                a.label("F1_N%d" % u)
            a("s_add_u32 s%d, s%d, 1" % (S_STG, S_STG))
        a("s_branch F1_LOOP")
        a.label("F1_LAST")
        mf(0, 3)
        a("s_waitcnt lgkmcnt(0)")
        a("s_barrier")
        for q in range(4): mf(1, q)
        a("s_setprio %d" % self.prio_fe)
        self.stamp(2)
        a("s_cmp_lg_u32 s%d, 0" % S_PRE)
        a("s_cbranch_scc1 F1_P3")
        self.poll([(V_FL, 1, V_FA, "0")], T3, wave0=False)
        pre_loads()
        a("s_waitcnt vmcnt(0)")
        a.label("F1_P3")
        CSV = F[0]
        FA, FB = F[0], F[0] + 8
        for k in range(2):
            a("v_and_b32 v%d, 0xffff0000, v%d" % (T0, V_C + k))
            a("v_sub_f32 v%d, v%d, v%d" % (T1, V_C + k, T0))
            a("v_lshrrev_b32 v%d, 16, v%d" % (FA + 4 * k + 1, T0))
            a("v_and_b32 v%d, 0xffff0000, v%d" % (T1, T1))
            a("v_or_b32 v%d, v%d, v%d" % (FA + 4 * k, FA + 4 * k + 1, T1))
            a("v_and_b32 v%d, 0xffff0000, v%d" % (T0, V_SX + 2 * k))
            a("v_sub_f32 v%d, v%d, v%d" % (T1, V_SX + 2 * k, T0))
            a("v_lshrrev_b32 v%d, 16, v%d" % (FB + 4 * k + 1, T1))
            a("v_lshrrev_b32 v%d, 16, v%d" % (T1, T0))
            a("v_or_b32 v%d, v%d, v%d" % (FB + 4 * k, T0, T1))
            for r in (2, 3):
                a("v_mov_b32 v%d, 0" % (FA + 4 * k + r))
                a("v_mov_b32 v%d, 0" % (FB + 4 * k + r))
        a("s_mov_b32 exec_lo, 0")
        for k in range(2):
            a("v_mov_b32 v%d, 0" % (FA + 4 * k))
            a("v_mov_b32 v%d, 0" % (FA + 4 * k + 1))
        a("s_mov_b64 exec, -1")
        a("v_lshrrev_b32 v%d, 5, v%d" % (T2, V_LANE))
        a("v_and_b32 v%d, 15, v%d" % (T0, V_LANE))
        for ti in range(2):
            for ct in range(2):
                d = ACC + (ti * 2 + ct) * 16
                a("v_mfma_f32_32x32x16_bf16 %s, %s, %s, %s" % (vr(d, 16), vr(FA + 4 * ct, 4), vr(FB + 4 * ti, 4), vr(d, 16)))
        a("v_lshlrev_b32 v%d, 4, v%d" % (T0, T0))
        a("v_lshl_add_u32 v%d, v%d, 8, v%d" % (T0, T2, T0))
        a("v_bfe_u32 v%d, v%d, 4, 1" % (T1, V_LANE))
        a("v_lshl_add_u32 v%d, v%d, 10, v%d" % (T0, T1, T0))
        a("s_mul_i32 s%d, s%d, 74" % (S_T, S_R32))
        a("s_add_u32 s%d, s%d, s%d" % (S_T, S_T, S_KS))
        a("s_lshl_b32 s%d, s%d, 12" % (S_T, S_T))
        a("s_add_u32 s%d, s%d, 0x%x" % (S_T, S_T, WS_HO))
        a("s_nop 3")
        a("s_cmp_lg_u32 s%d, 0" % S_ACT)
        a("s_cbranch_scc1 F1_GU")
        a("s_setprio 3")
        a("s_mul_i32 s%d, s%d, 81920" % (S_T, S_R32))
        a("s_sub_u32 s%d, s%d, 27" % (S_T + 1, S_HT))
        a("s_lshl_b32 s%d, s%d, 13" % (S_T + 1, S_T + 1))
        a("s_add_u32 s%d, s%d, s%d" % (S_T, S_T, S_T + 1))
        a("s_and_b32 s%d, s%d, 1" % (S_T + 4, S_CG))
        a("s_lshl_b32 s%d, s%d, 11" % (S_T + 4, S_T + 4))
        a("s_add_u32 s%d, s%d, s%d" % (S_T, S_T, S_T + 4))
        if WS_QP: a("s_add_u32 s%d, s%d, 0x%x" % (S_T, S_T, WS_QP))
        for ti in range(2):
            a("v_mul_f32 v%d, 0x%x, v%d" % (T1, f32bits(LOG2E * 20 ** -0.5), V_SX + 2 * ti + 1))
            for ct in range(2):
                d = ACC + (ti * 2 + ct) * 16
                for r in range(16): a("v_mul_f32 v%d, v%d, v%d" % (d + r, T1, d + r))
                o = CSV + (ti * 2 + ct) * 8
                for r in range(8): a("v_cvt_pk_bf16_f32 v%d, v%d, v%d" % (o + r, d + 2 * r, d + 2 * r + 1))
                a("s_add_u32 s%d, s%d, %d" % (S_T + 1, S_T, ti * 40960 + ct * 4096))
                a("buffer_store_dwordx4 %s, v%d, %s, s%d offen %s" % (vr(o, 4), V_L16, sr(SWS), S_T + 1, SC))
                a("buffer_store_dwordx4 %s, v%d, %s, s%d offen offset:1024 %s" % (vr(o + 4, 4), V_L16, sr(SWS), S_T + 1, SC))
        a("s_branch F1_PUB")
        a.label("F1_GU")
        TE = CSV + 16
        for ti in range(2):
            a("v_mul_f32 v%d, 0x%x, v%d" % (T1, f32bits(-LOG2E), V_SX + 2 * ti + 1))
            for ct in range(2):
                d = ACC + (ti * 2 + ct) * 16
                for r in range(8): a("v_mul_f32 v%d, v%d, v%d" % (TE + r, T1, d + r))
                for r in range(8): a("v_exp_f32 v%d, v%d" % (TE + r, TE + r))
                for r in range(8): a("v_mul_f32 v%d, v%d, v%d" % (d + r, d + r, d + 8 + r))
                for r in range(8): a("v_add_f32 v%d, 1.0, v%d" % (TE + r, TE + r))
                for r in range(8): a("v_rcp_f32 v%d, v%d" % (TE + r, TE + r))
                a("s_nop 0")
                for r in range(8): a("v_mul_f32 v%d, v%d, v%d" % (d + r, TE + r, d + r))
                o = CSV + (ti * 2 + ct) * 4
                for r in range(4): a("v_cvt_pk_bf16_f32 v%d, v%d, v%d" % (o + r, d + 2 * r, d + 2 * r + 1))
                a("buffer_store_dwordx4 %s, v%d, %s, s%d offen offset:%d %s" % (vr(o, 4), T0, sr(SWS), S_T, ti * 2048 + ct * 512, SC))
        a.label("F1_PUB")
        a("s_lshl_b32 s%d, s%d, 11" % (S_T, S_RB))
        a("s_lshr_b32 s%d, s%d, 1" % (S_T + 1, S_HT))
        a("s_lshl_b32 s%d, s%d, 7" % (S_T + 1, S_T + 1))
        a("s_add_u32 s%d, s%d, s%d" % (S_T, S_T, S_T + 1))
        a("s_and_b32 s%d, s%d, 1" % (S_T + 1, S_HT))
        a("s_lshl_b32 s%d, s%d, 4" % (S_T + 1, S_T + 1))
        a("s_add_u32 s%d, s%d, s%d" % (S_T, S_T, S_T + 1))
        a("s_and_b32 s%d, s%d, 3" % (S_T + 1, S_W))
        a("s_lshl_b32 s%d, s%d, 2" % (S_T + 1, S_T + 1))
        a("s_add_u32 s%d, s%d, s%d" % (S_T, S_T, S_T + 1))
        a("s_add_u32 s%d, s%d, 0x%x" % (S_T, S_T, F2_H))
        self.wave_flag("s%d" % S_T, T3)
        self.stamp(3)
        if "noF" in dbg: self.finish()

    def kv_issue(self):
        a = self.a
        V_PI, V_WA, V_ONE, V_J, V_H = 120, 121, 122, 123, 124
        V_ST = 20
        XF = 24
        WF = 44
        AC = 64
        R = 80
        S_MAT, S_TILE, S_JOB = S_R + 10, S_R + 11, S_R + 12
        WO = 40960
        PB, PST, PCS = 49152, 16384, 18432
        a("s_lshr_b32 s%d, s%d, 3" % (S_MAT, S_IDX))
        a("s_cmp_eq_u32 s%d, 0" % S_MAT)
        a("s_cselect_b32 s%d, s%d, s%d" % (SC_, P_WK, P_WV))
        a("s_cselect_b32 s%d, s%d, s%d" % (SC_ + 1, P_WK + 1, P_WV + 1))
        a("s_mov_b32 s%d, 25600" % (SC_ + 2))
        a("s_mov_b32 s%d, 0x20000" % (SC_ + 3))
        a("s_bfe_u32 s%d, s%d, 0x10002" % (S_T, S_IDX))
        a("s_lshl_b32 s%d, s%d, 1" % (S_TILE, S_RB32))
        a("s_add_u32 s%d, s%d, s%d" % (S_TILE, S_TILE, S_T))
        a("s_mul_i32 s%d, s%d, 40960" % (S_T, S_TILE))
        a("s_lshl_b32 s%d, s%d, 10" % (S_T + 1, S_W))
        for m in range(5):
            a("v_add_u32 v%d, %d, v0" % (T0, 512 * m))
            a("v_mul_u32_u24 v%d, 3277, v%d" % (T1, T0))
            a("v_lshrrev_b32 v%d, 18, v%d" % (T1, T1))
            a("v_mul_u32_u24 v%d, 80, v%d" % (T2, T1))
            a("v_sub_u32 v%d, v%d, v%d" % (T0, T0, T2))
            a("v_and_b32 v%d, 15, v%d" % (T2, T1))
            a("v_xor_b32 v%d, v%d, v%d" % (T0, T0, T2))
            a("v_and_b32 v%d, 19, v%d" % (T2, T1))
            a("v_bfe_u32 v%d, v%d, 2, 1" % (T3, T1))
            a("v_lshl_add_u32 v%d, v%d, 3, v%d" % (T2, T3, T2))
            a("v_bfe_u32 v%d, v%d, 3, 1" % (T3, T1))
            a("v_lshl_add_u32 v%d, v%d, 2, v%d" % (T2, T3, T2))
            a("v_mul_u32_u24 v%d, 1280, v%d" % (T2, T2))
            a("s_add_u32 m0, s%d, %d" % (S_T + 1, m * 8192))
            a("v_lshl_add_u32 v%d, v%d, 4, v%d" % (T0, T0, T2))
            a("buffer_load_dwordx4 v%d, %s, s%d offen lds" % (T0, sr(SX), S_T))
        for m in range(4):
            if m == 3:
                a("s_cmp_lg_u32 s%d, 0" % S_W)
                a("s_cbranch_scc1 KV_I")
            a("s_add_u32 m0, s%d, %d" % (S_T + 1, WO + m * 8192))
            a("s_add_u32 s%d, s%d, %d" % (S_T + 2, S_T + 1, m * 8192))
            a("buffer_load_dwordx4 v%d, %s, s%d offen lds" % (V_L16, sr(SC_), S_T + 2))

    def kv_body(self):
        a = self.a
        V_PI, V_WA, V_ONE, V_J, V_H = 120, 121, 122, 123, 124
        V_ST = 20
        XF = 24
        WF = 44
        AC = 64
        R = 80
        S_MAT, S_TILE, S_JOB = S_R + 10, S_R + 11, S_R + 12
        WO = 40960
        PB, PST, PCS = 49152, 16384, 18432
        a("s_lshr_b32 s%d, s%d, 2" % (S_T, S_IDX))
        a("s_lshl_b32 s%d, s%d, 2" % (S_JOB, S_RB32))
        a("s_add_u32 s%d, s%d, s%d" % (S_JOB, S_JOB, S_T))
        a("s_lshl_b32 s%d, s%d, 5" % (S_JOB, S_JOB))
        a("s_add_u32 s%d, s%d, s%d" % (S_JOB, S_JOB, S_W))
        a("s_lshl_b32 s%d, s%d, 2" % (S_JOB, S_JOB))
        a("s_add_u32 s%d, s%d, 0x%x" % (S_JOB, S_JOB, F2_K))
        a("v_and_b32 v%d, 31, v%d" % (V_J, V_LANE))
        a("v_and_b32 v%d, 19, v%d" % (T0, V_LANE))
        a("v_bfe_u32 v%d, v%d, 2, 1" % (T1, V_LANE))
        a("v_lshl_add_u32 v%d, v%d, 3, v%d" % (T0, T1, T0))
        a("v_bfe_u32 v%d, v%d, 3, 1" % (T1, V_LANE))
        a("v_lshl_add_u32 v%d, v%d, 2, v%d" % (V_PI, T1, T0))
        a("v_lshrrev_b32 v%d, 5, v%d" % (V_H, V_LANE))
        a("v_bfe_u32 v%d, v%d, 2, 2" % (T2, V_LANE))
        a("v_lshl_add_u32 v%d, v%d, 3, v%d" % (T2, V_H, T2))
        a("v_mul_u32_u24 v%d, 40, v%d" % (T2, T2))
        a("v_bfe_u32 v%d, v%d, 4, 1" % (T3, V_LANE))
        a("v_lshl_add_u32 v%d, v%d, 5, v%d" % (T2, T3, T2))
        a("s_mul_i32 s%d, s%d, 3200" % (S_T, S_W))
        a("s_add_u32 s%d, s%d, %d" % (S_T, S_T, WO))
        a("s_sub_u32 s%d, 4, s%d" % (S_T + 1, S_MAT))
        a("s_add_u32 s%d, s%d, 3" % (S_T + 2, S_MAT))
        a("v_and_b32 v%d, 1, v%d" % (T3, V_LANE))
        a("v_lshlrev_b32 v%d, s%d, v%d" % (T3, S_T + 1, T3))
        a("v_add3_u32 v%d, v%d, v%d, s%d" % (T2, T2, T3, S_T))
        a("v_bfe_u32 v%d, v%d, 1, 1" % (T3, V_LANE))
        a("v_lshlrev_b32 v%d, s%d, v%d" % (T3, S_T + 2, T3))
        a("v_add_u32 v%d, v%d, v%d" % (V_WA, T2, T3))
        a("v_and_b32 v%d, 15, v%d" % (T2, V_LANE))
        a("v_xor_b32 v%d, v%d, v%d" % (T2, T2, V_H))
        a("v_mul_u32_u24 v%d, 1280, v%d" % (T3, V_J))
        a("s_mul_i32 s%d, s%d, 10" % (S_T, S_W))
        for s_ in range(5):
            a("v_xor_b32 v%d, s%d, v%d" % (T0, S_T, T2))
            a("s_add_u32 s%d, s%d, 2" % (S_T, S_T))
            a("v_lshl_add_u32 v%d, v%d, 4, v%d" % (R + s_, T0, T3))
        a("v_mov_b32 v%d, 0x3f803f80" % V_ONE)
        for r in range(6): a("v_mov_b32 v%d, 0" % (R + 8 + r))
        a("s_waitcnt vmcnt(0)")
        a("s_barrier")
        self.stamp(5, "kv")
        for s_ in range(5):
            a("ds_read_b128 %s, v%d" % (vr(XF + 4 * s_, 4), R + s_))
            a("ds_read_b64_tr_b16 %s, v%d offset:%d" % (vr(WF + 4 * s_, 2), V_WA, s_ * 640))
            a("ds_read_b64_tr_b16 %s, v%d offset:%d" % (vr(WF + 4 * s_ + 2, 2), V_WA, s_ * 640 + 160))
        self.load_nonce(T3)
        a("s_waitcnt lgkmcnt(0)")
        D = R + 8
        for r in range(20):
            o = 3 * (r & 1)
            a("v_dot2c_f32_bf16 v%d, v%d, v%d" % (D + o, V_ONE, XF + r))
            a("v_dot2c_f32_bf16 v%d, v%d, v%d" % (D + o + 1, XF + r, XF + r))
            a("v_dot2c_f32_bf16 v%d, v%d, v%d" % (D + o + 2, V_ONE, WF + r))
        a("s_cmp_eq_u32 s%d, 0" % S_MAT)
        a("s_cbranch_scc0 KV_MV")
        for s_ in range(5):
            a("v_mfma_f32_32x32x16_bf16 %s, %s, %s, %s" % (vr(AC, 16), vr(WF + 4 * s_, 4), vr(XF + 4 * s_, 4), "0" if s_ == 0 else vr(AC, 16)))
        a("s_branch KV_MD")
        a.label("KV_MV")
        for s_ in range(5):
            a("v_mfma_f32_32x32x16_bf16 %s, %s, %s, %s" % (vr(AC, 16), vr(XF + 4 * s_, 4), vr(WF + 4 * s_, 4), "0" if s_ == 0 else vr(AC, 16)))
        a.label("KV_MD")
        a("s_barrier")
        for r in range(3): a("v_add_f32 v%d, v%d, v%d" % (V_ST + r, D + r, D + 3 + r))
        self.halfsum([V_ST, V_ST + 1, V_ST + 2], R)
        a("s_lshl_b32 s%d, s%d, 8" % (S_T, S_W))
        a("v_lshl_add_u32 v%d, v%d, 3, s%d" % (T0, V_J, S_T))
        a("ds_write_b64 v%d, %s offset:%d" % (T0, vr(V_ST, 2), PST))
        a("s_lshl_b32 s%d, s%d, 7" % (S_T, S_W))
        a("v_lshl_add_u32 v%d, v%d, 2, s%d" % (T0, V_J, S_T))
        a("ds_write_b32 v%d, v%d offset:%d" % (T0, V_ST + 2, PCS))
        a("s_lshl_b32 s%d, s%d, 12" % (S_T, S_W))
        a("s_add_u32 s%d, s%d, %d" % (S_T, S_T, PB))
        a("v_add_u32 v%d, s%d, v%d" % (T0, S_T, V_L16))
        for q in range(4): a("ds_write_b128 v%d, %s offset:%d" % (T0, vr(AC + 4 * q, 4), q * 1024))
        a("s_waitcnt lgkmcnt(0)")
        a("s_barrier")
        a("s_cmp_ge_u32 s%d, 4" % S_W)
        a("s_cbranch_scc1 AUX_RL")
        a("s_lshl_b32 s%d, s%d, 10" % (S_T, S_W))
        a("s_add_u32 s%d, s%d, %d" % (S_T, S_T, PB))
        a("v_add_u32 v%d, s%d, v%d" % (T0, S_T, V_L16))
        for p in range(8): a("ds_read_b128 %s, v%d offset:%d" % (vr(XF + 4 * p, 4), T0, p * 4096))
        a("s_mul_i32 s%d, s%d, 2560" % (S_T + 3, S_TILE))
        a("s_add_u32 s%d, s%d, 0x%x" % (S_T + 3, S_T + 3, WS_KV))
        a("s_cmp_eq_u32 s%d, 0" % S_MAT)
        a("s_cbranch_scc0 KV_V")
        SP = 56; CP = 72
        a("v_lshlrev_b32 v%d, 3, v%d" % (T0, V_J))
        a("s_waitcnt lgkmcnt(4)")
        for p in range(8): a("ds_read_b64 %s, v%d offset:%d" % (vr(SP + 2 * p, 2), T0, PST + p * 256))
        a("s_lshl_b32 s%d, s%d, 5" % (S_T, S_W))
        a("v_lshl_add_u32 v%d, v%d, 4, s%d" % (T0, V_H, S_T))
        a("s_waitcnt lgkmcnt(4)")
        for p in range(8): a("ds_read_b128 %s, v%d offset:%d" % (vr(CP + 4 * p, 4), T0, PCS + p * 128))
        self.tree(XF, 4, 8, 4)
        a("s_waitcnt lgkmcnt(8)")
        self.tree(SP, 2, 8, 2)
        self.meanrstd(V_ST, SP)
        a("v_lshlrev_b32 v%d, 3, v%d" % (T2, V_PI))
        a("s_cmp_eq_u32 s%d, 3" % S_W)
        a("s_cbranch_scc0 KV_K1")
        a("s_lshl_b32 s%d, s%d, 8" % (S_T, S_TILE))
        a("s_add_u32 s%d, s%d, 0x%x" % (S_T, S_T, WS_ST))
        a("s_mov_b32 exec_hi, 0")
        a("buffer_store_dwordx2 %s, v%d, %s, s%d offen %s" % (vr(V_ST, 2), T2, sr(SWS), S_T, SC))
        a("s_mov_b64 exec, -1")
        a("s_branch KV_FLAG")
        a.label("KV_K1")
        a("s_waitcnt lgkmcnt(0)")
        self.tree(CP, 4, 8, 4)
        for r in range(4): a("v_fmac_f32 v%d, v%d, v%d" % (XF + r, V_ST, CP + r))
        for r in range(4): a("v_mul_f32 v%d, v%d, v%d" % (XF + r, V_ST + 1, XF + r))
        for r in range(2): a("v_cvt_pk_bf16_f32 v%d, v%d, v%d" % (SP + r, XF + 2 * r, XF + 2 * r + 1))
        a("v_mov_b32 v%d, 0" % T3)
        a("s_cmp_eq_u32 s%d, 2" % S_W)
        a("s_cbranch_scc1 KV_K2")
        a("v_lshlrev_b32 v%d, 9, v%d" % (T0, V_H))
        a("v_lshl_add_u32 v%d, v%d, 4, v%d" % (T2, V_PI, T0))
        a("s_lshl_b32 s%d, s%d, 3" % (S_T, S_W))
        a("s_add_u32 s%d, s%d, s%d" % (S_T + 3, S_T + 3, S_T))
        a("s_branch KV_K3")
        a.label("KV_K2")
        a("s_add_u32 s%d, s%d, 1024" % (S_T + 3, S_T + 3))
        a("s_mov_b32 exec_hi, 0")
        a.label("KV_K3")
        a("buffer_store_dwordx2 %s, v%d, %s, s%d offen %s" % (vr(SP, 2), T2, sr(SWS), S_T + 3, SC))
        for r in range(4): a("v_fmac_f32 v%d, v%d, v%d" % (T3, XF + r, XF + r))
        a("s_mov_b64 exec, -1")
        self.halfsum([T3], CP)
        for dpp in DPPS:
            a("s_nop 1")
            a("v_max_f32_dpp v%d, v%d, v%d %s row_mask:0xf bank_mask:0xf" % (T3, T3, T3, dpp))
        a("s_nop 1")
        a("v_readlane_b32 s%d, v%d, 0" % (S_T, T3))
        a("v_readlane_b32 s%d, v%d, 16" % (S_T + 1, T3))
        a("s_lshl_b32 s%d, s%d, 2" % (S_T + 2, S_TILE))
        a("s_add_u32 s%d, s%d, s%d" % (S_T + 2, S_T + 2, S_W))
        a("s_lshl_b32 s%d, s%d, 2" % (S_T + 2, S_T + 2))
        a("s_add_u32 s%d, s%d, 0x%x" % (S_T + 2, S_T + 2, WS_KN))
        a("s_max_u32 s%d, s%d, s%d" % (S_T, S_T, S_T + 1))
        a("v_mov_b32 v%d, s%d" % (T3, S_T))
        a("v_mov_b32 v%d, 0" % T0)
        a("s_mov_b64 exec, 1")
        a("buffer_store_dword v%d, v%d, %s, s%d offen %s" % (T3, T0, sr(SWS), S_T + 2, SC))
        a("s_mov_b64 exec, -1")
        a("s_branch KV_FLAG")
        a.label("KV_V")
        SP = 56
        CP = 28
        a("s_lshl_b32 s%d, s%d, 6" % (S_T, S_W))
        a("v_lshl_add_u32 v%d, v%d, 5, s%d" % (T0, V_H, S_T))
        a("s_waitcnt lgkmcnt(4)")
        for p in range(5):
            a("ds_read_b128 %s, v%d offset:%d" % (vr(SP + 8 * p, 4), T0, PST + p * 256))
            a("ds_read_b128 %s, v%d offset:%d" % (vr(SP + 8 * p + 4, 4), T0, PST + p * 256 + 16))
        a("v_lshlrev_b32 v%d, 2, v%d" % (T2, V_J))
        a("s_waitcnt lgkmcnt(8)")
        for p in range(5, 8):
            a("ds_read_b128 %s, v%d offset:%d" % (vr(SP + 8 * p, 4), T0, PST + p * 256))
            a("ds_read_b128 %s, v%d offset:%d" % (vr(SP + 8 * p + 4, 4), T0, PST + p * 256 + 16))
        self.tree(XF, 4, 8, 4)
        a("s_waitcnt lgkmcnt(6)")
        for p in range(8): a("ds_read_b32 v%d, v%d offset:%d" % (CP + p, T2, PCS + p * 128))
        a("s_waitcnt lgkmcnt(8)")
        self.tree(SP, 8, 8, 8)
        for r in range(4): self.meanrstd(SP + 8 + 2 * r, SP + 2 * r)
        a("s_waitcnt lgkmcnt(0)")
        self.tree(CP, 1, 8, 1)
        for r in range(4): a("v_fmac_f32 v%d, v%d, v%d" % (XF + r, CP, SP + 8 + 2 * r))
        for r in range(4): a("v_mul_f32 v%d, v%d, v%d" % (XF + r, SP + 9 + 2 * r, XF + r))
        for r in range(2): a("v_cvt_pk_bf16_f32 v%d, v%d, v%d" % (CP + 2 + r, XF + 2 * r, XF + 2 * r + 1))
        a("v_mul_u32_u24 v%d, 320, v%d" % (T0, V_H))
        a("v_lshl_add_u32 v%d, v%d, 4, v%d" % (T0, V_J, T0))
        a("s_lshr_b32 s%d, s%d, 1" % (S_T, S_W))
        a("s_mul_i32 s%d, s%d, 640" % (S_T, S_T))
        a("s_add_u32 s%d, s%d, s%d" % (S_T + 3, S_T + 3, S_T))
        a("s_and_b32 s%d, s%d, 1" % (S_T, S_W))
        a("s_lshl_b32 s%d, s%d, 3" % (S_T, S_T))
        a("s_add_u32 s%d, s%d, s%d" % (S_T + 3, S_T + 3, S_T))
        a("s_mov_b64 exec, s[%d:%d]" % (S_VM, S_VM + 1))
        a("buffer_store_dwordx2 %s, v%d, %s, s%d offen offset:1280 %s" % (vr(CP + 2, 2), T0, sr(SWS), S_T + 3, SC))
        a("s_mov_b64 exec, -1")
        a.label("KV_FLAG")
        a("s_mov_b32 s%d, s%d" % (S_R + 15, S_JOB))
        a("s_waitcnt lgkmcnt(0)")

    def role_sp(self):
        a = self.a
        S_J, S_G, S_LB, S_JJ = S_R, S_R + 1, S_R + 2, S_R + 3
        S_D = S_R + 4
        S_O, S_F = S_R + 12, S_R + 13
        LD = 16; AC = 8
        V_VD, V_TA = 126, 127
        RG = 96
        def cs_issue(lpr, stride, nload):
            sh = {16: 4, 8: 3}[lpr]
            a("v_lshrrev_b32 v%d, %d, v%d" % (T0, sh, V_LANE))
            a("v_mul_lo_u32 v%d, v%d, s%d" % (T0, T0, stride))
            a("s_lshl_b32 s%d, s%d, %d" % (stride, stride, 6 - sh))
            a("v_and_b32 v%d, %d, v%d" % (T1, lpr - 1, V_LANE))
            a("v_lshl_add_u32 v%d, v%d, 4, v%d" % (T0, T1, T0))
            for i in range(nload):
                a("buffer_load_dwordx4 %s, v%d, %s, s%d offen" % (vr(LD + 4 * i, 4), T0, sr(SB), S_T))
                a("s_add_u32 s%d, s%d, s%d" % (S_T, S_T, stride))
        def cs_finish(tag, lpr, nload, younger):
            sh = {16: 4, 8: 3}[lpr]; ncol = lpr * 8; csh = sh + 3; ng = 512 // ncol
            for r in range(8): a("v_mov_b32 v%d, 0" % (AC + r))
            for i in range(nload):
                a("s_waitcnt vmcnt(%d)" % (nload - 1 - i + younger))
                for q in range(4):
                    a("v_lshlrev_b32 v%d, 16, v%d" % (T2, LD + 4 * i + q))
                    a("v_and_b32 v%d, 0xffff0000, v%d" % (T3, LD + 4 * i + q))
                    a("v_add_f32 v%d, v%d, v%d" % (AC + 2 * q, AC + 2 * q, T2))
                    a("v_add_f32 v%d, v%d, v%d" % (AC + 2 * q + 1, AC + 2 * q + 1, T3))
            self.load_nonce(T3)
            a("v_lshlrev_b32 v%d, 5, v0" % T0)
            a("ds_write_b128 v%d, %s" % (T0, vr(AC, 4)))
            a("ds_write_b128 v%d, %s offset:16" % (T0, vr(AC + 4, 4)))
            a("v_lshrrev_b32 v%d, %d, v0" % (T1, csh))
            a("v_and_b32 v%d, %d, v0" % (T2, ncol - 1))
            a("v_lshlrev_b32 v%d, 2, v%d" % (T2, T2))
            a("v_lshl_add_u32 v%d, v%d, %d, v%d" % (T1, T1, csh + 5, T2))
            a("s_waitcnt lgkmcnt(0)")
            a("s_barrier")
            for p in range(8): a("ds_read_b32 v%d, v%d offset:%d" % (LD + p, T1, p * ncol * 4))
            a("v_lshlrev_b32 v%d, 2, v0" % T0)
            a("s_waitcnt lgkmcnt(0)")
            self.tree(LD, 1, 8, 1)
            a("ds_write_b32 v%d, v%d" % (T1, LD))
            a("s_waitcnt lgkmcnt(0)")
            a("s_barrier")
            a("s_cmp_lg_u32 s%d, 0" % S_W)
            a("s_cbranch_scc1 SP_%s" % tag)
            nw = ncol // 64
            for h in range(nw):
                for p in range(ng): a("ds_read_b32 v%d, v%d offset:%d" % (LD + h * ng + p, T0, p * ncol * 32 + h * 256))
            a("s_waitcnt lgkmcnt(0)")
            for h in range(nw):
                self.tree(LD + h * ng, 1, ng, 1)
                a("buffer_store_dword v%d, v%d, %s, s%d offen offset:%d %s" % (LD + h * ng, T0, sr(SWS), S_O, h * 256, SC))
            self.wave_flag("s%d" % S_F, T3)
            a.label("SP_%s" % tag)
        def issue(slot):
            a("s_mul_hi_u32 s%d, s%d, 0x%x" % (S_T + 1, S_G, (1 << 32) // 10 + 1))
            a("s_mul_i32 s%d, s%d, 10" % (S_T + 2, S_T + 1))
            a("s_sub_u32 s%d, s%d, s%d" % (S_T + 2, S_G, S_T + 2))
            for i in range(4):
                a("s_lshl_b32 s%d, s%d, 2" % (S_T + 3, S_T + 2))
                a("s_add_u32 s%d, s%d, %d" % (S_T + 3, S_T + 3, i))
                a("s_mul_hi_u32 s%d, s%d, 0x%x" % (S_T + 4, S_T + 3, (1 << 32) // 5 + 1))
                a("s_mul_i32 s%d, s%d, 365" % (S_T + 4, S_T + 4))
                a("s_add_u32 s%d, s%d, s%d" % (S_T + 4, S_T + 4, S_T + 3))
                a("s_mul_i32 s%d, s%d, 5" % (S_T + 3, S_T + 1))
                a("s_add_u32 s%d, s%d, s%d" % (S_T + 4, S_T + 4, S_T + 3))
                a("s_lshl_b32 s%d, s%d, 10" % (S_T + 4, S_T + 4))
                a("s_add_u32 s%d, s%d, 0x%x" % (S_D + slot * 4 + i, S_T + 4, WS_WF2))
            a("s_sub_u32 s%d, s%d, 54" % (S_T + 4, S_T + 1))
            a("s_cmp_lt_u32 s%d, 54" % (S_T + 1))
            a("s_cselect_b32 s%d, s%d, s%d" % (S_T + 1, S_T + 1, S_T + 4))
            a("s_cselect_b32 s%d, s%d, s%d" % (SA, P_WD, P_WO))
            a("s_cselect_b32 s%d, s%d, s%d" % (SA + 1, P_WD + 1, P_WO + 1))
            sel(a, SA + 2, 2211840, 819200)
            a("s_mul_i32 s%d, s%d, 40960" % (S_T + 1, S_T + 1))
            a("s_lshl_b32 s%d, s%d, 7" % (S_T + 2, S_T + 2))
            a("s_add_u32 s%d, s%d, s%d" % (S_T + 1, S_T + 1, S_T + 2))
            a("s_cmp_lt_u32 s%d, 740" % S_G)
            for i in range(4): a("s_cselect_b32 s%d, s%d, 0x40000000" % (S_D + slot * 4 + i, S_D + slot * 4 + i))
            for i in range(4):
                a("s_add_u32 m0, s%d, %d" % (S_LB, slot * 4096 + i * 1024))
                a("s_nop 0")
                a("buffer_load_dwordx4 v%d, %s, s%d offen lds" % (V_VD, sr(SA), S_T + 1))
                a("s_add_u32 s%d, s%d, 10240" % (S_T + 1, S_T + 1))
            a("s_add_u32 s%d, s%d, 512" % (S_G, S_G))
        def drain(slot, reg):
            for i in range(4):
                a("ds_read_b64_tr_b16 %s, v%d offset:%d" % (vr(reg + 4 * i, 2), V_TA, slot * 4096 + i * 32))
                a("ds_read_b64_tr_b16 %s, v%d offset:%d" % (vr(reg + 4 * i + 2, 2), V_TA, slot * 4096 + i * 32 + 512))
            a("s_waitcnt lgkmcnt(0)")
            for i in range(4):
                a("buffer_store_dwordx4 %s, v%d, %s, s%d offen %s" % (vr(reg + 4 * i, 4), V_L16, sr(SWS), S_D + slot * 4 + i, SC))
        def rl_setup():
            a("v_lshrrev_b32 v%d, 3, v%d" % (T0, V_LANE))
            a("v_mul_u32_u24 v%d, 1280, v%d" % (T0, T0))
            a("v_and_b32 v%d, 7, v%d" % (T1, V_LANE))
            a("v_lshl_add_u32 v%d, v%d, 4, v%d" % (V_VD, T1, T0))
            a("s_lshl_b32 s%d, s%d, 12" % (S_LB, S_W))
            a("s_cmp_ge_u32 s%d, 4" % S_W)
            a("s_cselect_b32 s%d, 8192, 0" % S_T)
            a("s_add_u32 s%d, s%d, s%d" % (S_LB, S_LB, S_T))
            a("v_lshrrev_b32 v%d, 4, v%d" % (T0, V_LANE))
            a("v_bfe_u32 v%d, v%d, 2, 2" % (T1, V_LANE))
            a("v_lshl_add_u32 v%d, v%d, 3, v%d" % (T0, T0, T1))
            a("v_lshlrev_b32 v%d, 7, v%d" % (T0, T0))
            a("v_and_b32 v%d, 3, v%d" % (T1, V_LANE))
            a("v_lshl_add_u32 v%d, v%d, 3, v%d" % (T0, T1, T0))
            a("v_add_u32 v%d, s%d, v%d" % (V_TA, S_LB, T0))
            a("s_mul_i32 s%d, s%d, 6" % (S_G, S_J))
            a("s_add_u32 s%d, s%d, s%d" % (S_G, S_G, S_W))
            a("s_sub_u32 s%d, s%d, 2" % (S_G, S_G))
            a("s_mov_b32 s%d, 0x20000" % (SA + 3))
            issue(0)
        a.label("AUX_2")
        a("s_setprio %d" % self.prio_sp)
        a("s_cmp_ge_u32 s%d, 6" % S_HI)
        a("s_cbranch_scc1 A_GO")
        a("s_and_b32 s%d, s%d, 3" % (S_T, S_XCD))
        a("s_cmp_eq_u32 s%d, 0" % S_T)
        a("s_cbranch_scc1 A_GO")
        a("s_sub_u32 s%d, s%d, 16" % (S_J, S_IDX))
        a("s_mul_i32 s%d, s%d, 6" % (S_J, S_J))
        a("s_add_u32 s%d, s%d, s%d" % (S_J, S_J, S_XCD))
        a("s_lshr_b32 s%d, s%d, 2" % (S_T, S_XCD))
        a("s_sub_u32 s%d, s%d, s%d" % (S_J, S_J, S_T))
        a("s_sub_u32 s%d, s%d, 1" % (S_J, S_J))
        a("s_sub_u32 s%d, 63, s%d" % (S_J, S_J))
        a.label("AUX_CS")
        a("s_cmp_lt_u32 s%d, 27" % S_J)
        a("s_cselect_b32 s%d, s%d, s%d" % (SB, P_WG, P_WU))
        a("s_cselect_b32 s%d, s%d, s%d" % (SB + 1, P_WG + 1, P_WU + 1))
        a("s_cselect_b32 s%d, 0, 27" % (S_T + 1))
        a("s_cselect_b32 s%d, 0, 7168" % S_O)
        a("s_cmp_lt_u32 s%d, 54" % S_J)
        a("s_cselect_b32 s%d, s%d, s%d" % (SB, SB, P_WQ))
        a("s_cselect_b32 s%d, s%d, s%d" % (SB + 1, SB + 1, P_WQ + 1))
        a("s_cselect_b32 s%d, s%d, 54" % (S_T + 1, S_T + 1))
        a("s_cselect_b32 s%d, s%d, 14336" % (S_O, S_O))
        sel(a, SB + 2, 2211840, 819200)
        sel(a, S_T + 2, 3456, 1280)
        a("s_mov_b32 s%d, 0x20000" % (SB + 3))
        a("s_sub_u32 s%d, s%d, s%d" % (S_T + 1, S_J, S_T + 1))
        a("s_mul_i32 s%d, s%d, s%d" % (S_T, S_W, S_T + 2))
        a("s_mul_i32 s%d, s%d, 80" % (S_T, S_T))
        a("s_lshl_b32 s%d, s%d, 7" % (S_T + 3, S_T + 1))
        a("s_add_u32 s%d, s%d, s%d" % (S_T, S_T, S_T + 3))
        a("s_lshl_b32 s%d, s%d, 8" % (S_T + 3, S_T + 1))
        a("s_add_u32 s%d, s%d, s%d" % (S_O, S_O, S_T + 3))
        a("s_add_u32 s%d, s%d, 0x%x" % (S_O, S_O, WS_CS))
        a("s_lshl_b32 s%d, s%d, 7" % (S_F, S_J))
        a("s_add_u32 s%d, s%d, 0x%x" % (S_F, S_F, F3_C))
        cs_issue(8, S_T + 2, 10)
        cs_finish("CD", 8, 10, 0)
        a("s_sub_u32 s%d, s%d, 48" % (S_J, S_J))
        a("s_cbranch_scc1 A_GO")
        a("s_barrier")
        a("s_branch AUX_CS")
        a.label("AUX_RL")
        a("s_setprio %d" % self.prio_rl)
        a("s_lshl_b32 s%d, s%d, 5" % (S_J, S_HI))
        a("s_add_u32 s%d, s%d, s%d" % (S_J, S_J, S_RB32))
        a("s_cmp_lt_u32 s%d, 2" % S_W)
        a("s_cbranch_scc1 AUX_RD")
        rl_setup()
        a("s_waitcnt vmcnt(0)")
        drain(0, 16)
        a.label("AUX_RD")
        a("s_lshl_b32 s%d, s%d, 7" % (S_T, S_J))
        a("s_add_u32 s%d, s%d, 0x%x" % (S_T, S_T, F2_P))
        self.wg_flag("s%d" % S_T)
        a("s_branch A_GO")

    def role_f23(self):
        a = self.a
        V_TA = T1
        VW = 8
        GA = 11
        HBS = [16, 68, 76]
        WS_ = [28, 48]
        ACC = 88
        S_H, S_WO, S_GB, S_LB, S_TH, S_KQ, S_W1K = [S_R + i for i in range(7)]
        a.label("F2_GO")
        a("s_setprio %d" % self.prio_fr)
        srd(a, SB, P_OUT, P_OUT + 1, 2621440)
        a("s_mul_i32 s%d, s%d, 81920" % (S_GB, S_RB32))
        a("s_mul_i32 s%d, s%d, 160" % (S_WO, S_HI))
        a("s_add_u32 s%d, s%d, s%d" % (S_GB, S_GB, S_WO))
        a("s_mul_i32 s%d, s%d, 10240" % (S_LB, S_W))
        a("s_lshl_b32 s%d, s%d, 10" % (S_W1K, S_W))
        a("s_and_b32 s%d, s%d, 1" % (S_TH, S_W))
        a("s_lshr_b32 s%d, s%d, 1" % (S_KQ, S_W))
        a("s_mul_i32 s%d, s%d, %d" % (S_WO, S_HI, 74 * 5120))
        a("s_add_u32 s%d, s%d, s%d" % (S_WO, S_WO, S_W1K))
        a("s_add_u32 s%d, s%d, 0x%x" % (S_WO, S_WO, WS_WF2))
        def dmaW(g, slot=None):
            lab = a.newlabel("F2D")
            slot = g % 4 if slot is None else slot
            base = g * 20480 if g < 14 else 54 * 5120 + (g - 14) * 20480
            for m in range(3):
                if m == 2:
                    a("s_cmp_ge_u32 s%d, 4" % S_W)
                    a("s_cbranch_scc1 %s" % lab)
                a("s_add_u32 m0, s%d, %d" % (S_W1K, slot * 20480 + m * 8192))
                a("s_add_u32 s%d, s%d, %d" % (S_T + 7, S_WO, base + m * 8192))
                a("buffer_load_dwordx4 v%d, %s, s%d offen %s lds" % (V_L16, sr(SWS), S_T + 7, SC))
            a.label(lab)
        if "wearly" in self.dbg:
            for g in range(4): dmaW(g)
        def set_h(base):
            a("s_mul_i32 s%d, s%d, 74" % (S_H, S_RB32))
            a("s_add_u32 s%d, s%d, s%d" % (S_H, S_H, S_KQ))
            if base: a("s_add_u32 s%d, s%d, %d" % (S_H, S_H, base))
            a("s_lshl_b32 s%d, s%d, 1" % (S_H, S_H))
            a("s_add_u32 s%d, s%d, s%d" % (S_H, S_H, S_TH))
            a("s_lshl_b32 s%d, s%d, 11" % (S_H, S_H))
            a("s_add_u32 s%d, s%d, 0x%x" % (S_H, S_H, WS_HO))
        set_h(0)
        a("s_mul_i32 s%d, s%d, 5120" % (S_T + 1, S_KQ))
        a("v_add_u32 v%d, s%d, v%d" % (V_TA, S_T + 1, V_L16))
        a("v_add_u32 v%d, 40960, v%d" % (VW, V_TA))
        def loadH(g):
            for tt in range(2):
                a("buffer_load_dwordx4 %s, v%d, %s, s%d offen offset:%d %s" % (vr(HBS[g % 3] + tt * 4, 4), V_L16, sr(SWS), S_H, tt * 1024, SC))
            a("s_add_u32 s%d, s%d, 16384" % (S_H, S_H))
        def rdW(dst, slot, c):
            a("ds_read_b128 %s, v%d offset:%d" % (vr(dst + 4 * c, 4), V_TA if slot < 2 else VW, (slot & 1) * 20480 + c * 1024))
        def mm(g, c):
            for tt in range(2):
                d = ACC + (tt * 5 + c) * 4
                a("v_mfma_f32_16x16x32_bf16 %s, %s, %s, %s" % (vr(d, 4), vr(WS_[g & 1] + 4 * c, 4), vr(HBS[g % 3] + tt * 4, 4), "0" if g == 0 else vr(d, 4)))
        a("v_min_u32 v%d, 13, v%d" % (T0, V_LANE))
        a("v_lshlrev_b32 v%d, 7, v%d" % (T0, T0))
        a("s_lshr_b32 s%d, s%d, 1" % (S_T + 1, S_RB32))
        a("s_lshl_b32 s%d, s%d, 11" % (S_T + 1, S_T + 1))
        a("s_and_b32 s%d, s%d, 1" % (S_T + 2, S_RB32))
        a("s_lshl_b32 s%d, s%d, 2" % (S_T + 2, S_T + 2))
        a("s_add_u32 s%d, s%d, s%d" % (S_T + 1, S_T + 1, S_T + 2))
        a("s_lshl_b32 s%d, s%d, 3" % (S_T + 2, S_KQ))
        a("s_add_u32 s%d, s%d, s%d" % (S_T + 1, S_T + 1, S_T + 2))
        a("s_add_u32 s%d, s%d, 0x%x" % (S_T + 1, S_T + 1, F2_H))
        a("v_lshlrev_b32 v9, 7, v%d" % V_LANE)
        a("s_mov_b32 s%d, 0x%x" % (S_T + 2, F2_P))
        a("s_mov_b32 s%d, 0x%x" % (S_T + 3, F2_P + 8192))
        self.poll([(16, 1, 9, "s%d" % (S_T + 2)), (17, 1, 9, "s%d" % (S_T + 3))], T3, sleep=24)
        self.poll([(T2, 1, T0, "s%d" % (S_T + 1))], T3, sleep=24, wave0=False)
        self.stamp(4, "f23")
        a("s_setprio %d" % self.prio_f2)
        q = []
        if "wearly" in self.dbg:
            for g in range(3):
                loadH(g); q += [("H", g)] * 2
        else:
            for g in range(4):
                dmaW(g); q += [("W", g)] * 2
                if g < 3:
                    loadH(g); q += [("H", g)] * 2
            a("s_waitcnt vmcnt(%d)" % (len(q) - 2))
            q = q[2:]
        a("s_barrier")
        for c in range(5): rdW(WS_[0], 0, c)
        NG = 14
        for g in range(NG):
            need = [("H", g), ("W", g + 1)]
            last = max([i for i, o in enumerate(q) if o in need] + [-1])
            a("s_waitcnt lgkmcnt(0) vmcnt(%d)" % (len(q) - 1 - last))
            q = q[last + 1:]
            if g == NG - 1:
                a("s_barrier")
                for c in range(5): rdW(WS_[0], (g + 1) % 4, c)
                a("s_cmp_ge_u32 s%d, 2" % S_KQ)
                a("s_cbranch_scc1 F2_X")
                for c in range(5): mm(g, c)
                break
            mm(g, 0)
            a("s_barrier")
            for c in range(3): rdW(WS_[(g + 1) & 1], (g + 1) % 4, c)
            mm(g, 1)
            for c in (3, 4): rdW(WS_[(g + 1) & 1], (g + 1) % 4, c)
            mm(g, 2)
            if g + 4 <= NG:
                dmaW(g + 4); q += [("W", g + 4)] * 2
            for c in (3, 4): mm(g, c)
            if g + 3 < NG:
                loadH(g + 3); q += [("H", g + 3)] * 2
        a.label("F2_X")
        if "noA" in self.dbg: self.stamp(6)
        a("s_setprio %d" % self.prio_fr)
        RS = 14; XR = 20
        WR = WS_[0]; OF = 48; A3 = 88; R = 48
        a("v_and_b32 v%d, 15, v%d" % (T2, V_LANE))
        a("v_mul_u32_u24 v%d, 1280, v%d" % (T0, T2))
        a("v_lshrrev_b32 v%d, 4, v%d" % (T3, V_LANE))
        a("v_lshl_add_u32 v%d, v%d, 3, v%d" % (T0, T3, T0))
        a("v_lshlrev_b32 v%d, 3, v%d" % (T2, T2))
        a("s_lshl_b32 s%d, s%d, 9" % (S_T + 4, S_RB32))
        a("s_add_u32 s%d, s%d, 0x%x" % (S_T + 4, S_T + 4, WS_ST + 4))
        for i in range(3):
            a("s_add_u32 s%d, s%d, %d" % (S_T, S_W, 8 * i))
            a("s_min_u32 s%d, s%d, 19" % (S_T, S_T))
            a("s_mul_hi_u32 s%d, s%d, 0x%x" % (S_T + 1, S_T, (1 << 32) // 5 + 1))
            a("s_mul_i32 s%d, s%d, 5" % (S_T + 2, S_T + 1))
            a("s_sub_u32 s%d, s%d, s%d" % (S_T + 2, S_T, S_T + 2))
            a("s_mul_i32 s%d, s%d, 20480" % (S_T + 3, S_T + 1))
            a("s_lshl_b32 s%d, s%d, 5" % (S_T + 2, S_T + 2))
            a("s_add_u32 s%d, s%d, s%d" % (S_T + 3, S_T + 3, S_T + 2))
            a("v_add_u32 v%d, s%d, v%d" % (GA + i, S_T + 3, T0))
            a("s_lshl_b32 s%d, s%d, 7" % (S_T + 1, S_T + 1))
            a("s_add_u32 s%d, s%d, s%d" % (S_T + 1, S_T + 1, S_T + 4))
            a("buffer_load_dword v%d, v%d, %s, s%d offen %s" % (RS + i, T2, sr(SWS), S_T + 1, SC))
        for i in range(3):
            a("buffer_load_dwordx2 %s, v%d, %s, s%d offen" % (vr(XR + 2 * i, 2), GA + i, sr(SX), S_GB))
        set_h(54)
        a("v_add_u32 v%d, s%d, v%d" % (T0, S_W1K, V_L16))
        a("v_add_u32 v%d, 16384, v%d" % (T2, T0))
        def red_write(mid=None):
            a("v_add_u32 v%d, s%d, v%d" % (T3, S_LB, V_L16))
            a("s_waitcnt lgkmcnt(0)")
            a("s_barrier")
            a("s_nop 4")
            for k in range(10): a("ds_write_b128 v%d, %s offset:%d" % (T3, vr(A3 + 4 * k, 4), k * 1024))
            if mid: mid()
            a("s_waitcnt lgkmcnt(0)")
            a("s_barrier")
        def own_read(after=None):
            for i in range(3):
                for k in range(4):
                    off = k * 20480 + i * 8192
                    if i < 2 and off < 65536: a("ds_read_b128 %s, v%d offset:%d" % (vr(R + i * 16 + k * 4, 4), T0, off))
                    else: a("ds_read_b128 %s, v%d offset:%d" % (vr(R + i * 16 + k * 4, 4), T2, off - 16384))
            a("s_waitcnt lgkmcnt(0)")
            if after: after()
            for i in range(3): self.tree(R + i * 16, 4, 4, 4)
        def loadW3():
            a("s_barrier")
            for G in range(1, 5): dmaW(14 + G, G - 1)
        red_write()
        own_read(loadW3)
        G_ = 96; GP = 14
        a("s_waitcnt vmcnt(8)")
        for i in range(3): a("v_mul_f32 v%d, v%d, v%d" % (RS + i, RS + i, RS + i))
        idx = [(i, r) for i in range(3) for r in range(4)]
        for i, r in idx: a("v_mul_f32 v%d, v%d, v%d" % (R + i * 16 + r, RS + i, R + i * 16 + r))
        for i, r in idx: a("v_mul_f32 v%d, 0x%x, v%d" % (G_ + 4 * i + r, f32bits(-LOG2E), R + i * 16 + r))
        for i, r in idx: a("v_exp_f32 v%d, v%d" % (G_ + 4 * i + r, G_ + 4 * i + r))
        a("s_nop 0")
        for i, r in idx: a("v_add_f32 v%d, 1.0, v%d" % (G_ + 4 * i + r, G_ + 4 * i + r))
        for i, r in idx: a("v_rcp_f32 v%d, v%d" % (G_ + 4 * i + r, G_ + 4 * i + r))
        a("s_nop 0")
        for i, r in idx: a("v_mul_f32 v%d, v%d, v%d" % (G_ + 4 * i + r, G_ + 4 * i + r, R + i * 16 + r))
        for k in range(6): a("v_cvt_pk_bf16_f32 v%d, v%d, v%d" % (GP + k, G_ + 2 * k, G_ + 2 * k + 1))
        self.stamp(5, "f23")
        if "noA" in self.dbg: self.finish()
        a("v_bfe_u32 v%d, v%d, 2, 3" % (T3, V_LANE))
        a("v_and_b32 v26, 3, v%d" % V_LANE)
        a("v_lshlrev_b32 v26, 3, v26")
        a("v_lshl_add_u32 v26, v%d, 7, v26" % T3)
        a("s_lshl_b32 s%d, s%d, 10" % (S_T + 1, S_RB32))
        a("s_lshl_b32 s%d, s%d, 2" % (S_T + 2, S_TH))
        a("s_add_u32 s%d, s%d, s%d" % (S_T + 1, S_T + 1, S_T + 2))
        a("s_add_u32 s%d, s%d, 0x%x" % (S_T + 1, S_T + 1, F2_O))
        a("s_waitcnt vmcnt(0)")
        if "owv" not in self.dbg:
            a("v_lshrrev_b32 v%d, 3, v%d" % (T3, V_LANE))
            a("v_and_b32 v26, 7, v%d" % V_LANE)
            a("v_lshlrev_b32 v26, 2, v26")
            a("v_lshl_add_u32 v26, v%d, 7, v26" % T3)
            self.poll([(27, 1, 26, "s%d" % (S_T + 1))], T3, sleep=self.osleep)
        else:
            a("s_barrier")
            self.poll([(27, 1, 26, "s%d" % (S_T + 1))], T3, sleep=self.osleep, wave0=False)
        a("s_setprio 3")
        self.stamp(6, "f23")
        for s_ in range(5):
            for tt in range(2):
                a("buffer_load_dwordx4 %s, v%d, %s, s%d offen offset:%d %s" % (vr(OF + s_ * 8 + tt * 4, 4), V_L16, sr(SWS), S_H, tt * 1024, SC))
            a("s_add_u32 s%d, s%d, 16384" % (S_H, S_H))
        for s_ in range(5):
            a("s_waitcnt vmcnt(%d)" % (8 - 2 * s_))
            for c in range(5):
                if s_ > 0: a("s_waitcnt lgkmcnt(%d)" % (4 if s_ < 4 else 4 - c))
                for tt in range(2):
                    d = A3 + (tt * 5 + c) * 4
                    a("v_mfma_f32_16x16x32_bf16 %s, %s, %s, %s" % (vr(d, 4), vr(WR + 4 * c, 4), vr(OF + s_ * 8 + tt * 4, 4), "0" if s_ == 0 else vr(d, 4)))
                if s_ < 4: rdW(WR, s_, c)
        U = 28; GF = 96
        def unpack_x():
            for k in range(6):
                a("v_lshlrev_b32 v%d, 16, v%d" % (U + 2 * k, XR + k))
                a("v_and_b32 v%d, 0xffff0000, v%d" % (U + 2 * k + 1, XR + k))
        red_write(unpack_x)
        for k in range(6):
            a("v_lshlrev_b32 v%d, 16, v%d" % (GF + 2 * k, GP + k))
            a("v_and_b32 v%d, 0xffff0000, v%d" % (GF + 2 * k + 1, GP + k))
        own_read()
        for i, r in idx: a("v_fmac_f32 v%d, v%d, v%d" % (U + 4 * i + r, R + i * 16 + r, GF + 4 * i + r))
        for k in range(6): a("v_cvt_pk_bf16_f32 v%d, v%d, v%d" % (XR + k, U + 2 * k, U + 2 * k + 1))
        for i in range(3):
            if i == 2:
                a("s_cmp_ge_u32 s%d, 4" % S_W)
                a("s_cbranch_scc1 F3_FIN")
            a("buffer_store_dwordx2 %s, v%d, %s, s%d offen" % (vr(XR + 2 * i, 2), GA + i, sr(SB), S_GB))
        a.label("F3_FIN")
        self.finish()

    def build(self):
        name = NAME + "_kernel"
        self.prologue(name)
        if "ffirst" not in self.dbg: self.role_a()
        self.role_f1()
        self.role_f23()
        if "ffirst" in self.dbg: self.role_a()
        self.role_sp()
        self.a.end_kernel(name, NVGPR)
        return self.a.text(HEADER + "; @launch grid=(512,1,1) block=(512,1,1) lds=%d\n" % LDS_BYTES)

if __name__ == "__main__":
    dbg = sys.argv[2] if len(sys.argv) > 2 else ""
    import subprocess, re
    cb = 0x4000
    for it in range(2):
        m = Mega(stamps="st" in dbg.split(","), dbg=dbg, code_bytes=cb)
        open(sys.argv[1], "w").write(m.build())
        subprocess.run(["clang", "-x", "assembler", "-target", "amdgcn-amd-amdhsa", "-mcpu=gfx950", "-c", sys.argv[1], "-o", "_m.o"], check=True)
        o = subprocess.run(["llvm-objdump", "-h", "_m.o"], capture_output=True, text=True).stdout
        size = int(re.search(r"\.text\s+([0-9a-f]+)", o).group(1), 16)
        cb = (size - 256) & ~127
    print(sys.argv[1], "text bytes", size)
```

```python
from common import *

LDS_BYTES = 81920
NVGPR = 128
S_W = 3
SWS, SX, SA, SB, SDBG = 8, 12, 16, 20, 24
S_ID, S_RB32, S_HI, S_XCD, S_IDX = 28, 29, 30, 31, 32
S_VM = 34
P_X, P_WQ, P_WK, P_WV, P_WO, P_WG, P_WU, P_WD, P_OUT, P_DBG, P_WS = 36, 38, 40, 42, 44, 48, 50, 52, 54, 56, 58
SC_ = 4
S_T = 60
S_R = 70
STAMP0 = 86
V_LANE, V_L16, V_NONCE = 1, 2, 3
T0, T1, T2, T3 = 4, 5, 6, 7
SC = "sc1"
VMASK = 0x000FFFFF
TILE = 2560
CHUNK = 8 * TILE
SPIN_MAX = 1 << 14
DPPS = ("quad_perm:[1,0,3,2]", "quad_perm:[2,3,0,1]", "row_half_mirror", "row_mirror")

class Mega:
    def __init__(self, stamps=False, dbg="", code_bytes=0x4000):
        self.a = Asm()
        self.stamps = stamps
        self.code_bytes = code_bytes
        self.dbg = d = dbg.split(",")
        def opt(name, default):
            for x in d:
                if x.startswith(name + "="): return int(x.split("=")[1])
            return default
        self.prio_a = opt("pa", 1)
        self.prio_f1 = opt("pf1", 2)
        self.prio_fe = opt("pfe", 2)
        self.prio_f2 = opt("pf2", 0)
        self.prio_fr = opt("pfr", 0)
        self.hint_j = opt("hj", 6)
        self.pad = opt("pad", 0)
        self.pat1 = "".join(x[2:] for x in d if x.startswith("u="))
        self.pat2 = "".join(x[2:] for x in d if x.startswith("w="))
        self.qsleep = opt("qs", 6)
        self.gsleep = opt("gs", 8)
        self.gmax = opt("gm", 6)
        self.prio_rl = opt("prl", 1)
        self.ksleep = opt("ks", 24)
        self.osleep = opt("os", 2)
        self.prio_sp = opt("psp", 3)
        self.prio_q = opt("pq", 1)
        self.prio_kv = opt("pkv", 3)
        self.f1sw = opt("f1sw", 0)
        self.prio_f1b = opt("pf1b", 0)
        self.asw = opt("asw", 99)
        self.prio_ab = opt("pab", 1)

    def stamp(self, i, tag=""):
        if tag == "f23" and ("f1st" in self.dbg or "kvst" in self.dbg): return
        if tag == "kv" and "kvst" not in self.dbg: return
        if self.stamps:
            self.a("s_memrealtime s[%d:%d]" % (STAMP0 + 2 * i, STAMP0 + 2 * i + 1))

    def finish(self, i_end=7):
        a = self.a
        if self.stamps:
            a("s_waitcnt vmcnt(0)")
            self.stamp(i_end)
            a("s_waitcnt lgkmcnt(0)")
            lab = a.newlabel("LST")
            a("s_cmp_lg_u32 s%d, 0" % S_W)
            a("s_cbranch_scc1 %s" % lab)
            a("s_xor_b32 s%d, s2, %d" % (S_T, 0 if "ffirst" not in self.dbg else 256))
            a("s_lshl_b32 s%d, s%d, 6" % (S_T, S_T))
            a("s_add_u32 s%d, s%d, 0x%x" % (S_T, S_T, STAMP_OFF))
            a("s_add_u32 s%d, s%d, s%d" % (S_T + 2, P_WS, S_T))
            a("s_addc_u32 s%d, s%d, 0" % (S_T + 3, P_WS + 1))
            for r in range(16):
                a("v_mov_b32 v%d, s%d" % (8 + r, STAMP0 + r))
            a("v_mov_b32 v%d, 0" % T0)
            a("s_mov_b64 exec, 1")
            for q in range(4):
                a("global_store_dwordx4 v%d, %s, s[%d:%d] offset:%d" % (T0, vr(8 + 4 * q, 4), S_T + 2, S_T + 3, q * 16))
            a.label(lab)
        a("s_endpgm")

    def load_nonce(self, vz):
        self.a("v_mov_b32 v%d, 0" % vz)
        self.a("buffer_load_dword v%d, v%d, %s, 0 offen %s" % (V_NONCE, vz, sr(SDBG), SC))

    def poll(self, loads, vz, sleep=2, wave0=True, maxit=SPIN_MAX):
        a = self.a
        done = a.newlabel("PD"); loop = a.newlabel("PL")
        if wave0:
            a("s_cmp_lg_u32 s%d, 0" % S_W)
            a("s_cbranch_scc1 %s" % done)
        a("s_mov_b32 s%d, %d" % (S_T, maxit))
        a.label(loop)
        self.load_nonce(vz)
        for d, n, ad, so in loads:
            op = {1: "dword", 2: "dwordx2", 4: "dwordx4"}[n]
            a("buffer_load_%s %s, v%d, %s, %s offen %s" % (op, "v%d" % d if n == 1 else vr(d, n), ad, sr(SWS), so, SC))
        a("s_waitcnt vmcnt(0)")
        a("v_cmp_eq_u32 vcc, 0, v%d" % V_NONCE)
        for d, n, ad, so in loads:
            for r in range(n):
                a("v_cmp_ne_u32 s[%d:%d], v%d, v%d" % (S_T + 4, S_T + 5, V_NONCE, d + r))
                a("s_or_b64 vcc, vcc, s[%d:%d]" % (S_T + 4, S_T + 5))
        a("s_cbranch_scc0 %s" % done)
        a("s_sleep %d" % sleep)
        a("s_sub_u32 s%d, s%d, 1" % (S_T, S_T))
        a("s_cmp_lg_u32 s%d, 0" % S_T)
        a("s_cbranch_scc1 %s" % loop)
        a.label(done)
        if wave0: a("s_barrier")

    def wave_flag(self, soff, vz, first_wait=0):
        a = self.a
        loop = a.newlabel("GL"); ok = a.newlabel("GK")
        a("s_mov_b32 s%d, %d" % (S_T + 6, SPIN_MAX))
        a("v_mov_b32 v%d, 0" % vz)
        if first_wait:
            ent = a.newlabel("GE")
            a("s_waitcnt vmcnt(%d)" % first_wait)
            a("s_branch %s" % ent)
        a.label(loop)
        a("s_waitcnt vmcnt(0)")
        if first_wait: a.label(ent)
        a("v_cmp_ne_u32 vcc, 0, v%d" % V_NONCE)
        a("s_nop 0")
        a("s_cbranch_vccnz %s" % ok)
        a("buffer_load_dword v%d, v%d, %s, 0 offen %s" % (V_NONCE, vz, sr(SDBG), SC))
        a("s_sub_u32 s%d, s%d, 1" % (S_T + 6, S_T + 6))
        a("s_cmp_lg_u32 s%d, 0" % (S_T + 6))
        a("s_cbranch_scc1 %s" % loop)
        a.label(ok)
        a("s_mov_b64 exec, 1")
        a("buffer_store_dword v%d, v%d, %s, %s offen %s" % (V_NONCE, vz, sr(SWS), soff, SC))
        a("s_mov_b64 exec, -1")

    def wg_flag(self, soff):
        a = self.a
        done = a.newlabel("FD")
        self.load_nonce(T3)
        a("s_waitcnt vmcnt(0)")
        a("s_barrier")
        a("s_cmp_lg_u32 s%d, 0" % S_W)
        a("s_cbranch_scc1 %s" % done)
        self.wave_flag(soff, T3)
        a.label(done)

    def meanrstd(self, dst, s0):
        a = self.a
        a("v_mul_f32 v%d, 0x%x, v%d" % (dst, f32bits(-1.0 / 640), s0))
        a("v_mul_f32 v%d, 0x%x, v%d" % (s0 + 1, f32bits(1.0 / 640), s0 + 1))
        a("v_fma_f32 v%d, -v%d, v%d, v%d" % (s0 + 1, dst, dst, s0 + 1))
        a("v_max_f32 v%d, 0, v%d" % (s0 + 1, s0 + 1))
        a("v_add_f32 v%d, 0x%x, v%d" % (s0 + 1, f32bits(1e-5), s0 + 1))
        a("v_rsq_f32 v%d, v%d" % (dst + 1, s0 + 1))
        a("s_nop 0")

    def halfsum(self, regs, tmp):
        a = self.a
        for n, r in enumerate(regs): a("v_mov_b32 v%d, v%d" % (tmp + n, r))
        a("s_nop 1")
        for n, r in enumerate(regs): a("v_permlane32_swap_b32 v%d, v%d" % (tmp + n, r))
        a("s_nop 1")
        for n, r in enumerate(regs): a("v_add_f32 v%d, v%d, v%d" % (r, tmp + n, r))

    def tree(self, base, stride, n, width):
        step = 1
        while step < n:
            for p in range(0, n, 2 * step):
                for r in range(width):
                    self.a("v_add_f32 v%d, v%d, v%d" % (base + p * stride + r, base + p * stride + r, base + (p + step) * stride + r))
            step *= 2

    def prologue(self, name):
        a = self.a
        a.begin_kernel(name)
        if self.stamps:
            for i in range(1, 8): a("s_mov_b64 s[%d:%d], 0" % (STAMP0 + 2 * i, STAMP0 + 2 * i + 1))
        self.stamp(0)
        a("s_cmp_ge_u32 s2, 512")
        a("s_cbranch_scc0 M_GO")
        a("s_endpgm")
        a.label("M_GO")
        a("s_load_dwordx4 s[36:39], s[0:1], 0")
        a("s_load_dwordx4 s[40:43], s[0:1], 16")
        a("s_load_dwordx2 s[44:45], s[0:1], 32")
        a("s_load_dwordx4 s[48:51], s[0:1], 48")
        a("s_load_dwordx4 s[52:55], s[0:1], 64")
        a("s_load_dwordx4 s[56:59], s[0:1], 80")
        a("s_memrealtime s[%d:%d]" % (S_T + 8, S_T + 9))
        if "padown" in self.dbg: a("s_memrealtime s[100:101]")
        a("v_lshrrev_b32 v%d, 6, v0" % T0)
        a("v_and_b32 v%d, 63, v0" % V_LANE)
        a("v_readfirstlane_b32 s%d, v%d" % (S_W, T0))
        a("v_lshlrev_b32 v%d, 4, v%d" % (V_L16, V_LANE))
        if "pf" in self.dbg:
            a("s_getpc_b64 s[%d:%d]" % (S_T + 4, S_T + 5))
            a("v_lshlrev_b32 v%d, 7, v0" % T1)
            a("v_cmp_gt_u32 vcc, 0x%x, v%d" % (self.code_bytes, T1))
            a("s_and_saveexec_b64 s[%d:%d], vcc" % (S_T + 6, S_T + 7))
            a("s_cbranch_execz M_NPF")
            a("global_load_dword v19, v%d, s[%d:%d]" % (T1, S_T + 4, S_T + 5))
            a.label("M_NPF")
            a("s_mov_b64 exec, -1")
        a("v_mov_b32 v%d, 0" % V_NONCE)
        a("s_and_b32 s%d, s2, 255" % S_ID)
        a("s_and_b32 s%d, s2, 7" % S_XCD)
        a("s_lshr_b32 s%d, s%d, 3" % (S_IDX, S_ID))
        a("s_lshl_b32 s%d, s%d, 2" % (S_RB32, S_XCD))
        a("s_and_b32 s%d, s%d, 3" % (S_T + 2, S_IDX))
        a("s_add_u32 s%d, s%d, s%d" % (S_RB32, S_RB32, S_T + 2))
        a("s_lshr_b32 s%d, s%d, 5" % (S_HI, S_ID))
        a("s_mov_b32 s%d, 0x%x" % (S_VM, VMASK))
        a("s_mov_b32 s%d, 0x%x" % (S_VM + 1, VMASK))
        a("v_lshrrev_b32 v%d, 4, v%d" % (T0, V_LANE))
        a("s_and_b32 s%d, s%d, 1" % (S_T, S_W))
        a("s_lshl_b32 s%d, s%d, 2" % (S_T, S_T))
        a("v_add_u32 v%d, s%d, v%d" % (T0, S_T, T0))
        a("v_and_b32 v%d, 7, v%d" % (T1, V_LANE))
        a("v_xor_b32 v%d, v%d, v%d" % (T0, T0, T1))
        a("v_lshrrev_b32 v%d, 3, v%d" % (T1, V_LANE))
        a("v_mul_u32_u24 v%d, 1280, v%d" % (T1, T1))
        a("v_lshl_add_u32 v8, v%d, 4, v%d" % (T0, T1))
        a("s_cmp_lt_u32 s2, 256" if "ffirst" not in self.dbg else "s_cmp_ge_u32 s2, 256")
        a("s_waitcnt lgkmcnt(0)")
        srd(a, SWS, P_WS, P_WS + 1, WS_USED)
        srd(a, SX, P_X, P_X + 1, 2621440)
        srd(a, SDBG, P_DBG, P_DBG + 1, 256)
        a("s_cbranch_scc0 ROLE_F" if "ffirst" not in self.dbg else "s_cbranch_scc1 ROLE_A")

    def role_a(self):
        a = self.a; dbg = self.dbg
        S_TI, S_HEAD = S_R, S_R + 1
        a.label("ROLE_A")
        a("s_or_b32 s%d, s%d, s%d" % (S_T + 2, S_ID, S_W))
        a("s_cmp_lg_u32 s%d, 0" % (S_T + 2))
        a("s_cbranch_scc1 M_NT")
        a("s_or_b32 s%d, s%d, 1" % (S_T + 8, S_T + 8))
        a("v_mov_b32 v%d, s%d" % (T0, S_T + 8))
        a("v_mov_b32 v%d, 0" % T1)
        a("s_mov_b64 exec, 1")
        a("buffer_store_dword v%d, v%d, %s, 0 offen %s" % (T0, T1, sr(SDBG), SC))
        a("s_mov_b64 exec, -1")
        a.label("M_NT")
        a("s_cmp_lt_u32 s%d, 4" % S_HI)
        a("s_cbranch_scc0 AUX_2")
        a("s_setprio %d" % self.prio_kv)
        self.kv_issue()
        a.label("KV_I")
        self.kv_body()
        self.wave_flag("s%d" % (S_R + 15), T0)
        a("s_branch AUX_RL")
        a.label("A_GO")
        self.stamp(1)
        if "noA" in dbg: self.finish()
        a("s_setprio %d" % self.prio_q)
        V_KA, V_K1A, V_V0A, V_V1A, V_IDX = 120, 121, 122, 123, 124
        AD = 125
        O = 96
        V0, V1 = 112, 116
        Q0, Q1 = 8, 12
        K0, K1 = 16, 20
        SAa, SBb = 24, 40
        QA = 74
        S_SRC, S_DST, S_C, S_DK, S_CUR, S_OO, S_FO, S_KM, S_QO = S_R + 2, S_R + 3, S_R + 4, S_R + 5, S_R + 6, S_R + 8, S_R + 9, S_R + 10, S_R + 11
        a("s_and_b32 s%d, s%d, 1" % (S_TI, S_W))
        a("s_lshr_b32 s%d, s%d, 1" % (S_T + 2, S_W))
        a("s_lshl_b32 s%d, s%d, 2" % (S_HEAD, S_HI))
        a("s_add_u32 s%d, s%d, s%d" % (S_HEAD, S_HEAD, S_T + 2))
        a("v_and_b32 v%d, 31, v%d" % (T0, V_LANE))
        a("v_lshrrev_b32 v%d, 5, v%d" % (T1, V_LANE))
        a("v_mov_b32 v%d, v%d" % (V_KA, V_L16))
        a("v_lshlrev_b32 v%d, 3, v%d" % (V_K1A, T0))
        a("v_mul_u32_u24 v%d, 320, v%d" % (V_V0A, T1))
        a("v_lshl_add_u32 v%d, v%d, 4, v%d" % (V_V0A, T0, V_V0A))
        a("v_mov_b32 v%d, v%d" % (V_V1A, V_V0A))
        a("v_mov_b32 v%d, 0xdddddddd" % V_IDX)
        a("s_mul_i32 s%d, s%d, 20" % (S_T, S_HEAD))
        a("v_lshlrev_b32 v%d, 4, v%d" % (T0, T0))
        for j in range(3):
            if j < 2:
                a("v_lshl_add_u32 v%d, v%d, 3, s%d" % (T2, T1, S_T))
                if j: a("v_add_u32 v%d, 4, v%d" % (T2, T2))
            else:
                a("v_mov_b32 v%d, s%d" % (T2, S_T))
                a("v_add_u32 v%d, 16, v%d" % (T2, T2))
            a("v_lshrrev_b32 v%d, 3, v%d" % (T3, T2))
            a("v_lshl_add_u32 v%d, v%d, 9, v%d" % (QA + j, T3, T0))
            a("v_and_b32 v%d, 4, v%d" % (T3, T2))
            a("v_lshl_add_u32 v%d, v%d, 1, v%d" % (QA + j, T3, QA + j))
        a("s_lshl_b32 s%d, s%d, 1" % (S_QO, S_RB32))
        a("s_add_u32 s%d, s%d, s%d" % (S_QO, S_QO, S_TI))
        a("s_mul_i32 s%d, s%d, 40960" % (S_QO, S_QO))
        if WS_QP: a("s_add_u32 s%d, s%d, 0x%x" % (S_QO, S_QO, WS_QP))
        a("v_and_b32 v%d, 3, v%d" % (T2, V_LANE))
        a("v_lshlrev_b32 v%d, 5, v%d" % (T2, T2))
        a("v_min_u32 v%d, 79, v%d" % (T2, T2))
        a("s_mul_i32 s%d, s%d, 80" % (S_T + 1, S_HI))
        a("v_add_u32 v%d, s%d, v%d" % (T2, S_T + 1, T2))
        a("v_lshrrev_b32 v%d, 7, v%d" % (T3, T2))
        a("v_add_u32 v%d, 27, v%d" % (T3, T3))
        a("v_lshrrev_b32 v77, 1, v%d" % T3)
        a("v_lshlrev_b32 v77, 7, v77")
        a("v_and_b32 v%d, 1, v%d" % (T3, T3))
        a("v_lshl_add_u32 v77, v%d, 4, v77" % T3)
        a("v_bfe_u32 v%d, v%d, 5, 1" % (T3, T2))
        a("v_lshl_add_u32 v77, v%d, 3, v77" % T3)
        a("s_lshr_b32 s%d, s%d, 1" % (S_T + 1, S_RB32))
        a("s_lshl_b32 s%d, s%d, 11" % (S_T + 1, S_T + 1))
        a("s_and_b32 s%d, s%d, 1" % (S_T + 2, S_RB32))
        a("s_lshl_b32 s%d, s%d, 2" % (S_T + 2, S_T + 2))
        a("s_add_u32 s%d, s%d, s%d" % (S_T + 1, S_T + 1, S_T + 2))
        a("s_add_u32 s%d, s%d, 0x%x" % (S_T + 1, S_T + 1, F2_H))
        a("v_add_u32 v77, s%d, v77" % (S_T + 1))
        a("v_lshl_add_u32 v%d, v%d, 2, s%d" % (T1, T1, S_T))
        a("v_and_b32 v%d, 15, v%d" % (T0, V_LANE))
        a("v_lshlrev_b32 v%d, 4, v%d" % (T0, T0))
        a("v_bfe_u32 v%d, v%d, 4, 1" % (T2, V_LANE))
        a("v_lshl_add_u32 v%d, v%d, 10, v%d" % (T0, T2, T0))
        for j in range(3):
            a("v_add_u32 v%d, %d, v%d" % (T2, 8 * j, T1))
            a("v_lshrrev_b32 v%d, 5, v%d" % (T3, T2))
            a("v_lshl_add_u32 v%d, v%d, 12, v%d" % (AD + j, T3, T0))
            a("v_bfe_u32 v%d, v%d, 3, 2" % (T3, T2))
            a("v_lshl_add_u32 v%d, v%d, 8, v%d" % (AD + j, T3, AD + j))
            a("v_and_b32 v%d, 7, v%d" % (T3, T2))
            a("v_lshl_add_u32 v%d, v%d, 1, v%d" % (AD + j, T3, AD + j))
        a("s_mul_i32 s%d, s%d, 74" % (S_OO, S_RB32))
        a("s_add_u32 s%d, s%d, 54" % (S_OO, S_OO))
        a("s_lshl_b32 s%d, s%d, 12" % (S_OO, S_OO))
        a("s_lshl_b32 s%d, s%d, 11" % (S_T + 1, S_TI))
        a("s_add_u32 s%d, s%d, s%d" % (S_OO, S_OO, S_T + 1))
        a("s_add_u32 s%d, s%d, 0x%x" % (S_OO, S_OO, WS_HO))
        a("s_lshl_b32 s%d, s%d, 10" % (S_FO, S_RB32))
        a("s_lshl_b32 s%d, s%d, 7" % (S_T + 1, S_HI))
        a("s_add_u32 s%d, s%d, s%d" % (S_FO, S_FO, S_T + 1))
        a("s_lshl_b32 s%d, s%d, 2" % (S_T + 1, S_W))
        a("s_add_u32 s%d, s%d, s%d" % (S_FO, S_FO, S_T + 1))
        a("s_add_u32 s%d, s%d, 0x%x" % (S_FO, S_FO, F2_O))
        a("s_lshl_b32 s%d, s%d, 10" % (S_T + 1, S_RB32))
        a("s_add_u32 s%d, s%d, 0x%x" % (S_T + 1, S_T + 1, F2_O + 32))
        a("v_and_b32 v72, 7, v%d" % V_LANE)
        a("v_lshlrev_b32 v72, 7, v72")
        a("v_add_u32 v72, s%d, v72" % (S_T + 1))
        for r in range(8): a("v_mov_b32 v%d, 0" % (V0 + r))
        a("s_mov_b32 exec_lo, 0x11000000")
        a("s_mov_b32 exec_hi, 0x11000000")
        for r in range(8): a("v_mov_b32 v%d, 0x3f803f80" % (V0 + r))
        a("s_mov_b64 exec, -1")
        for r in range(8): a("v_mov_b32 v%d, v%d" % (64 + r, V0))
        for r in range(16): a("v_mov_b32 v%d, 0" % (O + r))
        for r in range(8, 16): a("v_mov_b32 v%d, 0" % (SBb + r))
        for k in (K1 + 2, 62): a("v_mov_b32 v%d, 0x3f803f80" % k)
        for k in (K1 + 3, 63): a("v_mov_b32 v%d, 0x00003f80" % k)
        a("v_mov_b32 v%d, 0" % (Q1 + 2))
        a("v_mov_b32 v%d, 0" % (Q1 + 3))
        a("v_lshlrev_b32 v%d, 7, v%d" % (T0, V_LANE))
        a("s_mov_b32 s%d, 0x%x" % (S_T + 1, F2_K))
        a("s_mov_b32 s%d, 0x%x" % (S_T + 2, F2_K + 8192))
        a("s_cmp_lg_u32 s%d, 0" % S_W)
        a("s_cbranch_scc1 A_PP")
        a("s_cmp_lt_u32 s%d, 4" % S_HI)
        a("s_cbranch_scc1 A_PP")
        a("v_and_b32 v%d, 0x180, v%d" % (T1, T0))
        a("s_lshl_b32 s%d, s%d, 9" % (S_T + 3, S_RB32))
        a("s_add_u32 s%d, s%d, 0x%x" % (S_T + 3, S_T + 3, F2_K))
        self.poll([(24, 4, T1, "s%d" % (S_T + 3))], T3, sleep=40, wave0=False)
        a("s_sleep 40")
        a.label("A_PP")
        self.poll([(24, 4, T0, "s%d" % (S_T + 1)), (28, 4, T0, "s%d" % (S_T + 2))], T3, sleep=self.ksleep)
        self.stamp(5)
        def dma_chunk(tag):
            for m in range(3):
                if m == 2:
                    a("s_cmp_ge_u32 s%d, 4" % S_W)
                    a("s_cbranch_scc1 A2_DS%s" % tag)
                a("s_add_u32 m0, s%d, %d" % (S_DST, m * 8192))
                a("s_add_u32 s%d, s%d, %d" % (S_T, S_SRC, m * 8192))
                a("buffer_load_dwordx4 v%d, %s, s%d offen %s lds" % (V_L16, sr(SWS), S_T, SC))
            a.label("A2_DS%s" % tag)
            a("s_add_u32 s%d, s%d, %d" % (S_SRC, S_SRC, CHUNK))
            a("s_add_u32 s%d, s%d, %d" % (S_DST, S_DST, CHUNK))
            a("s_cmp_ge_u32 s%d, %d" % (S_DST, 3 * CHUNK))
            a("s_cbranch_scc0 A2_DW%s" % tag)
            a("s_sub_u32 s%d, s%d, %d" % (S_DST, S_DST, 3 * CHUNK))
            a.label("A2_DW%s" % tag)
        KN = 24
        a("s_mov_b32 s%d, 0x%x" % (S_T, WS_KN))
        a("buffer_load_dwordx4 %s, v%d, %s, s%d offen %s" % (vr(KN, 4), V_L16, sr(SWS), S_T, SC))
        a("s_lshl_b32 s%d, s%d, 10" % (S_DST, S_W))
        a("s_add_u32 s%d, s%d, 0x%x" % (S_SRC, S_DST, WS_KV))
        dma_chunk("a")
        dma_chunk("b")
        a("s_waitcnt vmcnt(0)")
        a("s_barrier")
        a("v_add_f32 v%d, v%d, v%d" % (KN, KN, KN + 1))
        a("v_add_f32 v%d, v%d, v%d" % (KN, KN, KN + 2))
        for dpp in DPPS:
            a("s_nop 1")
            a("v_max_f32_dpp v%d, v%d, v%d %s row_mask:0xf bank_mask:0xf" % (KN, KN, KN, dpp))
        a("s_nop 0")
        for q in range(4): a("v_readlane_b32 s%d, v%d, %d" % (S_T + q, KN, 16 * q))
        a("s_nop 3")
        a("s_max_u32 s%d, s%d, s%d" % (S_T, S_T, S_T + 1))
        a("s_max_u32 s%d, s%d, s%d" % (S_T + 2, S_T + 2, S_T + 3))
        a("s_max_u32 s%d, s%d, s%d" % (S_KM, S_T, S_T + 2))
        self.load_nonce(T3)
        self.poll([(T1, 1, 77, "0")], T3, sleep=self.qsleep)
        a("s_setprio 3")
        self.stamp(2)
        a("buffer_load_dwordx2 %s, v%d, %s, s%d offen %s" % (vr(Q0, 2), QA, sr(SWS), S_QO, SC))
        a("buffer_load_dwordx2 %s, v%d, %s, s%d offen %s" % (vr(Q0 + 2, 2), QA + 1, sr(SWS), S_QO, SC))
        a("buffer_load_dwordx2 %s, v%d, %s, s%d offen %s" % (vr(Q1, 2), QA + 2, sr(SWS), S_QO, SC))
        a("v_mov_b32 v%d, 0" % T2)
        a("s_waitcnt vmcnt(0)")
        if "nogate" not in dbg:
            a("s_cmp_lg_u32 s%d, 0" % S_W)
            a("s_cbranch_scc1 A_NS")
            a("s_mov_b64 exec, 1")
            a("buffer_store_dword v%d, v%d, %s, s%d offen offset:36 %s" % (V_NONCE, T2, sr(SWS), S_FO, SC))
            a("s_mov_b64 exec, -1")
            a.label("A_NS")
        a("s_mov_b32 exec_lo, 0")
        a("v_mov_b32 v%d, 0" % Q1)
        a("v_mov_b32 v%d, 0" % (Q1 + 1))
        a("s_mov_b64 exec, -1")
        for r in range(6):
            a("v_lshlrev_b32 v%d, 16, v%d" % (T0, Q0 + r))
            a("v_and_b32 v%d, 0xffff0000, v%d" % (T1, Q0 + r))
            a("v_fmac_f32 v%d, v%d, v%d" % (T2, T0, T0))
            a("v_fmac_f32 v%d, v%d, v%d" % (T2, T1, T1))
        self.halfsum([T2], T3)
        a("v_mul_f32 v%d, s%d, v%d" % (T2, S_KM, T2))
        a("v_sqrt_f32 v%d, v%d" % (T2, T2))
        a("v_mov_b32 v%d, 0x%x" % (T3, f32bits(72.0)))
        a("v_mul_f32 v%d, 0x%x, v%d" % (T2, f32bits(1.02), T2))
        a("v_cmp_nle_f32 vcc, v%d, v%d" % (T2, T3))
        a("v_add_f32 v%d, 0x%x, v%d" % (T2, f32bits(-48.0), T2))
        a("s_nop 0")
        if "forcefb" in dbg: a("s_branch A2_FB")
        a("s_cbranch_vccnz A2_FB")
        a.label("A2_SETM")
        a("v_sub_f32 v%d, 0, v%d" % (T2, T2))
        a("v_and_b32 v%d, 0xffff0000, v%d" % (T3, T2))
        a("v_sub_f32 v%d, v%d, v%d" % (T2, T2, T3))
        a("v_and_b32 v%d, 0xffff0000, v%d" % (T0, T2))
        a("v_sub_f32 v%d, v%d, v%d" % (T2, T2, T0))
        a("v_lshrrev_b32 v%d, 16, v%d" % (T3, T3))
        a("s_mov_b32 exec_hi, 0")
        a("v_or_b32 v%d, v%d, v%d" % (Q1 + 2, T3, T0))
        a("v_lshrrev_b32 v%d, 16, v%d" % (Q1 + 3, T2))
        a("s_mov_b64 exec, -1")
        a("s_setprio %d" % self.prio_a)
        self.stamp(3)
        KS = [K0, 56]; VS = [V0, 64]
        def rdK0(p, off): a("ds_read_b128 %s, v%d offset:%d" % (vr(KS[p], 4), V_KA, off))
        def rdK1(p, off): a("ds_read_b64 %s, v%d offset:%d" % (vr(KS[p] + 4, 2), V_K1A, off + 1024))
        def qk0(S, p=0): a("v_mfma_f32_32x32x16_bf16 %s, %s, %s, 0" % (vr(S, 16), vr(KS[p], 4), vr(Q0, 4)))
        def qk1(S, p=0): a("v_mfma_f32_32x32x16_bf16 %s, %s, %s, %s" % (vr(S, 16), vr(KS[p] + 4, 4), vr(Q1, 4), vr(S, 16)))
        def pv(Vf, P): a("v_smfmac_f32_32x32x32_bf16 %s, %s, %s, v%d" % (vr(O, 16), vr(Vf, 4), vr(P, 8), V_IDX))
        def ex(S, lo, hi):
            for r in range(lo, hi): a("v_exp_f32 v%d, v%d" % (S + r, S + r))
        rdK0(1, 0); rdK1(1, 0)
        rdK0(0, TILE); rdK1(0, TILE)
        a("s_mov_b64 exec, s[%d:%d]" % (S_VM, S_VM + 1))
        a("ds_read_b128 %s, v%d offset:1280" % (vr(VS[0], 4), V_V0A))
        a("s_mov_b64 exec, -1")
        a("s_waitcnt lgkmcnt(3)")
        qk0(SAa, 1); qk1(SAa, 1)
        a("s_mov_b32 s%d, 0" % S_C)
        a("s_mov_b32 s%d, 0" % S_CUR)
        a("s_nop 7")
        a.label("A2_LOOP")
        a("s_add_u32 s%d, s%d, %d" % (S_CUR, S_CUR, CHUNK))
        a("s_cmp_eq_u32 s%d, %d" % (S_CUR, 3 * CHUNK))
        sel(a, S_DK, (-2 * CHUNK) & 0xffffffff, CHUNK)
        a("s_cselect_b32 s%d, 0, s%d" % (S_CUR, S_CUR))
        for j in range(8):
            Sc, Sn = (SAa, SBb) if j % 2 == 0 else (SBb, SAa)
            p = j & 1; n = 1 - p
            if j == self.hint_j and "nofill" not in dbg:
                a("s_cmp_lg_u32 s%d, 7" % S_C)
                a("s_cbranch_scc1 A2_NH")
                a("s_waitcnt vmcnt(0)")
                a("v_cmp_ne_u32 vcc, v%d, v73" % V_NONCE)
                a("v_cmp_eq_u32 s[%d:%d], 0, v73" % (S_T + 4, S_T + 5))
                a("s_or_b64 vcc, vcc, s[%d:%d]" % (S_T + 4, S_T + 5))
                a("s_cbranch_scc0 A2_PF")
                self.poll([(73, 1, 72, "0")], T0, sleep=4, wave0=False)
                a.label("A2_PF")
                self.wave_flag("s%d" % S_FO, T0)
                a.label("A2_NH")
            if j == 6:
                a("s_cmp_eq_u32 s%d, 7" % S_C)
                a("s_cbranch_scc1 A2_NODMA")
                a("s_waitcnt vmcnt(0)")
                a("s_barrier")
                a("s_cmp_ge_u32 s%d, 6" % S_C)
                a("s_cbranch_scc1 A2_LC")
                a("s_setprio 3")
                dma_chunk("c")
                a("s_setprio %d" % self.prio_a)
                a("s_branch A2_NODMA")
                a.label("A2_LC")
                self.load_nonce(T0)
                a("buffer_load_dword v73, v72, %s, 0 offen %s" % (sr(SWS), SC))
                a.label("A2_NODMA")
                a("v_add_u32 v%d, s%d, v%d" % (V_KA, S_DK, V_KA))
                a("v_add_u32 v%d, s%d, v%d" % (V_K1A, S_DK, V_K1A))
            if j == 7:
                a("v_add_u32 v%d, s%d, v%d" % (V_V0A, S_DK, V_V0A))
            a("s_waitcnt lgkmcnt(0)")
            rdK0(n, ((j + 2) % 8) * TILE)
            pv(VS[p] + 4, Sn + 8)
            rdK1(n, ((j + 2) % 8) * TILE)
            ex(Sc, 0, 4)
            qk0(Sn, p)
            a("s_mov_b64 exec, s[%d:%d]" % (S_VM, S_VM + 1))
            a("ds_read_b128 %s, v%d offset:%d" % (vr(VS[n] + 4, 4), V_V1A, j * TILE + 1920))
            a("ds_read_b128 %s, v%d offset:%d" % (vr(VS[n], 4), V_V0A, ((j + 1) % 8) * TILE + 1280))
            a("s_mov_b64 exec, -1")
            ex(Sc, 4, 8)
            qk1(Sn, p)
            ex(Sc, 8, 12)
            pv(VS[p], Sc)
            ex(Sc, 12, 16)
            if j == 7: a("v_add_u32 v%d, s%d, v%d" % (V_V1A, S_DK, V_V1A))
        a("s_add_u32 s%d, s%d, 1" % (S_C, S_C))
        if "atst" in dbg:
            for c_, sl in ((1, 1), (2, 2), (4, 5), (6, 6)):
                a("s_cmp_lg_u32 s%d, %d" % (S_C, c_))
                a("s_cbranch_scc1 A2_S%d" % c_)
                self.stamp(sl)
                a.label("A2_S%d" % c_)
        a("s_cmp_lt_u32 s%d, 8" % S_C)
        a("s_cbranch_scc1 A2_LOOP")
        a("s_setprio 3")
        a("s_waitcnt lgkmcnt(0)")
        pv(V1, SBb + 8)
        self.stamp(4)
        a("s_nop 11")
        a("v_rcp_f32 v%d, v%d" % (T3, O + 12))
        a("s_nop 0")
        for r in range(12): a("v_mul_f32 v%d, v%d, v%d" % (O + r, T3, O + r))
        PK = SAa
        for r in range(6): a("v_cvt_pk_bf16_f32 v%d, v%d, v%d" % (PK + r, O + 2 * r, O + 2 * r + 1))
        a("buffer_store_dwordx2 %s, v%d, %s, s%d offen %s" % (vr(PK, 2), AD, sr(SWS), S_OO, SC))
        a("buffer_store_dwordx2 %s, v%d, %s, s%d offen %s" % (vr(PK + 2, 2), AD + 1, sr(SWS), S_OO, SC))
        a("s_mov_b32 exec_hi, 0")
        a("buffer_store_dwordx2 %s, v%d, %s, s%d offen %s" % (vr(PK + 4, 2), AD + 2, sr(SWS), S_OO, SC))
        a("s_mov_b64 exec, -1")
        if "nofill" in dbg: self.wave_flag("s%d" % S_FO, T0)
        self.finish()
        a.label("A2_FB")
        a("v_mov_b32 v%d, 0xff800000" % T2)
        a("s_mov_b32 s%d, 0x%x" % (S_T, WS_KV))
        a.label("A2_FBL")
        a("buffer_load_dwordx4 %s, v%d, %s, s%d offen %s" % (vr(K0, 4), V_KA, sr(SWS), S_T, SC))
        a("buffer_load_dwordx2 %s, v%d, %s, s%d offen offset:1024 %s" % (vr(K1, 2), V_K1A, sr(SWS), S_T, SC))
        a("s_waitcnt vmcnt(0)")
        qk0(SAa); qk1(SAa)
        a("s_nop 15")
        for r in range(0, 16, 2): a("v_max3_f32 v%d, v%d, v%d, v%d" % (T2, T2, SAa + r, SAa + r + 1))
        a("s_add_u32 s%d, s%d, %d" % (S_T, S_T, TILE))
        a("s_cmp_lt_u32 s%d, 0x%x" % (S_T, WS_KV + 64 * TILE))
        a("s_cbranch_scc1 A2_FBL")
        a("v_mov_b32 v%d, v%d" % (T3, T2))
        a("s_nop 1")
        a("v_permlane32_swap_b32 v%d, v%d" % (T3, T2))
        a("s_nop 1")
        a("v_max_f32 v%d, v%d, v%d" % (T2, T2, T3))
        a("s_branch A2_SETM")

    F2_WO, F2_W1K, F2_RLOK = S_R + 12, S_R + 13, S_R + 14
    def f2_wsetup(self):
        a = self.a
        a("s_lshl_b32 s%d, s%d, 10" % (self.F2_W1K, S_W))
        a("s_mul_i32 s%d, s%d, %d" % (self.F2_WO, S_HI, 74 * 5120))
        a("s_add_u32 s%d, s%d, s%d" % (self.F2_WO, self.F2_WO, self.F2_W1K))
        a("s_add_u32 s%d, s%d, 0x%x" % (self.F2_WO, self.F2_WO, WS_WF2))
    def f2_dmaW(self, g):
        a = self.a
        lab = a.newlabel("F2D")
        for m in range(3):
            if m == 2:
                a("s_cmp_ge_u32 s%d, 4" % S_W)
                a("s_cbranch_scc1 %s" % lab)
            a("s_add_u32 m0, s%d, %d" % (self.F2_W1K, (g % 4) * 20480 + m * 8192))
            a("s_add_u32 s%d, s%d, %d" % (S_T + 7, self.F2_WO, g * 20480 + m * 8192))
            a("buffer_load_dwordx4 v%d, %s, s%d offen %s lds" % (V_L16, sr(SWS), S_T + 7, SC))
        a.label(lab)

    def role_f1(self):
        a = self.a; dbg = self.dbg
        V_VX, V_VG, V_VU = 8, 9, 10
        V_XA = 12
        V_WA = 14
        V_SX = 16
        F = [24, 40]
        ACC = 56
        S_RB, S_CB, S_TH, S_CG, S_OX, S_OW, S_BX, S_BW, S_STG, S_ACT = [S_R + i for i in range(10)]
        WREG = 32768
        S_HT, S_WST = S_R + 10, S_R + 11
        a.label("ROLE_F")
        a("s_setprio %d" % self.prio_f1)
        a("s_and_b32 s%d, s%d, 3" % (S_T, S_XCD))
        a("s_lshr_b32 s%d, s%d, 3" % (S_CB, S_IDX))
        a("s_sub_u32 s%d, 3, s%d" % (S_CB, S_CB))
        a("s_lshl_b32 s%d, s%d, 2" % (S_CB, S_CB))
        a("s_add_u32 s%d, s%d, s%d" % (S_CB, S_CB, S_T))
        a("s_and_b32 s%d, s%d, 7" % (S_T, S_IDX))
        a("s_and_b32 s%d, s%d, 4" % (S_RB, S_XCD))
        a("s_lshl_b32 s%d, s%d, 1" % (S_RB, S_RB))
        a("s_add_u32 s%d, s%d, s%d" % (S_RB, S_RB, S_T))
        a("s_lshl_b32 s%d, s%d, 4" % (S_T, S_RB))
        a("s_add_u32 s%d, s%d, s%d" % (S_T, S_T, S_W))
        a("s_mul_i32 s%d, s%d, 10240" % (S_OX, S_T))
        a("s_lshl_b32 s%d, s%d, 10" % (S_BW, S_W))
        a("s_mov_b32 s%d, s%d" % (S_BX, S_BW))
        def dmaX():
            return [
              ["s_mov_b32 m0, s%d" % S_BX, "s_add_u32 s%d, s%d, 81920" % (S_T, S_OX),
               "buffer_load_dwordx4 v%d, %s, s%d offen lds" % (V_VX, sr(SX), S_OX)],
              ["s_add_u32 m0, s%d, 8192" % S_BX, "s_add_u32 s%d, s%d, 128" % (S_OX, S_OX),
               "buffer_load_dwordx4 v%d, %s, s%d offen lds" % (V_VX, sr(SX), S_T), "s_xor_b32 s%d, s%d, 16384" % (S_BX, S_BX)],
            ]
        def dmaW(b):
            return [
              ["s_add_u32 m0, s%d, %d" % (S_BW, WREG + b * 16384), "s_nop 0",
               "buffer_load_dwordx4 v%d, %s, s%d offen lds" % (V_VG, sr(SA), S_OW)],
              ["s_add_u32 m0, s%d, %d" % (S_BW, WREG + b * 16384 + 8192), "s_nop 0",
               "buffer_load_dwordx4 v%d, %s, s%d offen lds" % (V_VU, sr(SB), S_OW), "s_add_u32 s%d, s%d, s%d" % (S_OW, S_OW, S_WST)],
            ]
        def emit(groups):
            for g in groups:
                for op in g: a(op)
        if "noF" in dbg:
            a("s_cmp_lt_u32 s%d, 3" % S_CB)
            a("s_cbranch_scc1 F1_KEEP")
            self.finish()
            a.label("F1_KEEP")
        emit(dmaX())
        a("s_lshr_b32 s%d, s%d, 2" % (S_T, S_W))
        a("s_lshl_b32 s%d, s%d, 1" % (S_HT, S_CB))
        a("s_add_u32 s%d, s%d, s%d" % (S_HT, S_HT, S_T))
        a("s_add_u32 s%d, s%d, 27" % (S_HT, S_HT))
        a("s_and_b32 s%d, s%d, 31" % (S_HT, S_HT))
        a("s_lshl_b32 s%d, s%d, 7" % (S_T + 1, S_HT))
        a("s_lshl_b32 s%d, s%d, 8" % (S_T + 2, S_HT))
        a("s_sub_u32 s%d, s%d, %d" % (S_T + 2, S_T + 2, 27 * 256))
        a("s_cmp_lt_u32 s%d, 27" % S_HT)
        a("s_cselect_b32 s%d, 1, 0" % S_ACT)
        a("s_cselect_b32 s%d, s%d, s%d" % (S_OW, S_T + 1, S_T + 2))
        sel(a, S_T + 3, 3456, 1280)
        a("s_cselect_b32 s%d, s%d, s%d" % (SA, P_WG, P_WQ))
        a("s_cselect_b32 s%d, s%d, s%d" % (SA + 1, P_WG + 1, P_WQ + 1))
        sel(a, SA + 2, 2211840, 819200)
        a("s_mov_b32 s%d, 0x20000" % (SA + 3))
        a("s_cselect_b32 s%d, s%d, s%d" % (SB, P_WU, P_WQ))
        a("s_cselect_b32 s%d, s%d, s%d" % (SB + 1, P_WU + 1, P_WQ + 1))
        a("s_mov_b32 s%d, s%d" % (SB + 2, SA + 2))
        a("s_mov_b32 s%d, 0x20000" % (SB + 3))
        a("s_cselect_b32 s%d, 32, 128" % (S_T + 4))
        a("s_lshl_b32 s%d, s%d, 5" % (S_WST, S_T + 3))
        a("s_and_b32 s%d, s%d, 3" % (S_T, S_W))
        a("s_mul_i32 s%d, s%d, s%d" % (S_T, S_T, S_T + 3))
        a("s_lshl_b32 s%d, s%d, 3" % (S_T, S_T))
        a("s_add_u32 s%d, s%d, s%d" % (S_OW, S_OW, S_T))
        a("v_lshrrev_b32 v%d, 5, v%d" % (T2, V_LANE))
        a("v_bfe_u32 v%d, v%d, 2, 2" % (T1, V_LANE))
        a("v_lshl_add_u32 v%d, v%d, 2, v%d" % (T0, T2, T1))
        a("v_mul_lo_u32 v%d, v%d, s%d" % (T0, T0, S_T + 3))
        a("v_bfe_u32 v%d, v%d, 4, 1" % (T3, V_LANE))
        a("v_lshl_add_u32 v%d, v%d, 6, v%d" % (T0, T3, T0))
        a("v_and_b32 v%d, 3, v%d" % (T3, V_LANE))
        a("v_lshl_add_u32 v%d, v%d, 4, v%d" % (V_VG, T3, T0))
        a("v_xor_b32 v%d, s%d, v%d" % (V_VU, S_T + 4, V_VG))
        emit(dmaW(0) + dmaW(1) + dmaX() + dmaW(2))
        a("s_and_b32 s%d, s%d, 1" % (S_TH, S_W))
        a("s_lshr_b32 s%d, s%d, 1" % (S_CG, S_W))
        a("v_bfe_u32 v%d, v%d, 2, 2" % (T1, V_LANE))
        a("v_and_b32 v%d, 31, v%d" % (T0, V_LANE))
        a("v_bfe_u32 v%d, v%d, 1, 3" % (T3, V_LANE))
        a("v_xor_b32 v%d, v%d, v%d" % (T3, T3, T2))
        a("v_lshlrev_b32 v%d, 4, v%d" % (T3, T3))
        a("v_lshl_add_u32 v%d, v%d, 7, v%d" % (T3, T0, T3))
        a("s_lshl_b32 s%d, s%d, 13" % (S_T, S_TH))
        a("v_add_u32 v%d, s%d, v%d" % (V_XA, S_T, T3))
        a("v_xor_b32 v%d, 32, v%d" % (V_XA + 1, V_XA))
        a("v_and_b32 v%d, 1, v%d" % (T0, V_LANE))
        a("v_lshlrev_b32 v%d, 4, v%d" % (T0, T0))
        a("v_bfe_u32 v%d, v%d, 1, 1" % (T3, V_LANE))
        a("v_lshl_add_u32 v%d, v%d, 3, v%d" % (T0, T3, T0))
        a("v_lshl_add_u32 v%d, v%d, 6, v%d" % (T0, T1, T0))
        a("v_lshl_add_u32 v%d, v%d, 10, v%d" % (T0, T2, T0))
        a("s_cmp_lg_u32 s%d, 0" % S_ACT)
        a("s_cselect_b32 s%d, 8224, 32" % (S_T + 1))
        a("s_cselect_b32 s%d, 32, 8192" % (S_T + 2))
        a("v_bfe_u32 v%d, v%d, 4, 1" % (T3, V_LANE))
        a("v_mul_lo_u32 v%d, v%d, s%d" % (T3, T3, S_T + 1))
        a("s_lshr_b32 s%d, s%d, 2" % (S_T, S_W))
        a("s_lshl_b32 s%d, s%d, 12" % (S_T, S_T))
        a("s_and_b32 s%d, s%d, 1" % (S_T + 3, S_CG))
        a("s_lshl_b32 s%d, s%d, 8" % (S_T + 3, S_T + 3))
        a("s_add_u32 s%d, s%d, s%d" % (S_T, S_T, S_T + 3))
        a("s_add_u32 s%d, s%d, %d" % (S_T, S_T, WREG))
        a("v_add3_u32 v%d, v%d, v%d, s%d" % (V_WA, T0, T3, S_T))
        a("v_xor_b32 v%d, s%d, v%d" % (V_WA + 1, S_T + 2, V_WA))
        for r in range(64): a("v_mov_b32 v%d, 0" % (ACC + r))
        V_C, V_FL, V_FA, V_CA, V_SA = 20, 22, 120, 121, 122
        S_R32, S_KS, S_CST, S_PRE = S_R + 12, S_R + 13, S_R + 14, S_R + 15
        a("s_lshl_b32 s%d, s%d, 1" % (S_R32, S_RB))
        a("s_add_u32 s%d, s%d, s%d" % (S_R32, S_R32, S_TH))
        a("s_and_b32 s%d, s%d, 1" % (S_T + 4, S_CG))
        a("s_lshl_b32 s%d, s%d, 1" % (S_T + 2, S_HT))
        a("s_add_u32 s%d, s%d, s%d" % (S_KS, S_T + 2, S_T + 4))
        a("s_lshl_b32 s%d, s%d, 9" % (S_T + 1, S_R32))
        a("s_add_u32 s%d, s%d, 0x%x" % (S_T, S_T + 1, WS_ST))
        a("v_and_b32 v%d, 31, v%d" % (T0, V_LANE))
        a("v_lshl_add_u32 v%d, v%d, 3, s%d" % (V_SA, T0, S_T))
        a("s_add_u32 s%d, s%d, 0x%x" % (S_T + 1, S_T + 1, F2_K + 12))
        a("s_lshl_b32 s%d, s%d, 7" % (S_T + 5, S_KS))
        a("s_lshl_b32 s%d, s%d, 9" % (S_T + 3, S_HT))
        a("s_lshl_b32 s%d, s%d, 7" % (S_T + 4, S_T + 4))
        a("s_add_u32 s%d, s%d, s%d" % (S_T + 3, S_T + 3, S_T + 4))
        a("s_add_u32 s%d, s%d, %d" % (S_T + 3, S_T + 3, 14336 - 27 * 512))
        a("s_cmp_lg_u32 s%d, 0" % S_ACT)
        a("s_cselect_b32 s%d, s%d, s%d" % (S_T + 2, S_HT, S_T + 2))
        a("s_cselect_b32 s%d, s%d, s%d" % (S_T + 5, S_T + 5, S_T + 3))
        a("s_cselect_b32 s%d, 64, 256" % S_CST)
        a("s_cselect_b32 s%d, 7168, 64" % (S_T + 6))
        sel(a, S_T + 3, 27 * 128, 128)
        a("s_add_u32 s%d, s%d, 0x%x" % (S_T + 5, S_T + 5, WS_CS))
        a("s_lshl_b32 s%d, s%d, 7" % (S_T + 2, S_T + 2))
        a("s_add_u32 s%d, s%d, 0x%x" % (S_T + 2, S_T + 2, F3_C))
        a("v_and_b32 v%d, 1, v%d" % (T1, V_LANE))
        a("v_lshlrev_b32 v%d, 7, v%d" % (T0, T1))
        a("v_add_u32 v%d, s%d, v%d" % (V_FA, S_T + 1, T0))
        a("v_mul_lo_u32 v%d, v%d, s%d" % (T1, T1, S_T + 3))
        a("s_mov_b32 exec_lo, 0")
        a("v_add_u32 v%d, s%d, v%d" % (V_FA, S_T + 2, T1))
        a("s_mov_b64 exec, -1")
        a("v_bfe_u32 v%d, v%d, 4, 1" % (T0, V_LANE))
        a("v_mul_lo_u32 v%d, v%d, s%d" % (T0, T0, S_T + 6))
        a("v_and_b32 v%d, 3, v%d" % (T1, V_LANE))
        a("v_lshl_add_u32 v%d, v%d, 2, v%d" % (T0, T1, T0))
        a("v_bfe_u32 v%d, v%d, 2, 1" % (T1, V_LANE))
        a("v_lshl_add_u32 v%d, v%d, 5, v%d" % (T0, T1, T0))
        a("v_bfe_u32 v%d, v%d, 3, 1" % (T1, V_LANE))
        a("v_lshl_add_u32 v%d, v%d, 4, v%d" % (T0, T1, T0))
        a("v_add_u32 v%d, s%d, v%d" % (V_CA, S_T + 5, T0))
        a("s_mov_b32 s%d, 0" % S_PRE)
        def pre_loads():
            a("buffer_load_dwordx2 %s, v%d, %s, 0 offen %s" % (vr(V_SX, 2), V_SA, sr(SWS), SC))
            a("buffer_load_dwordx2 %s, v%d, %s, 0 offen offset:256 %s" % (vr(V_SX + 2, 2), V_SA, sr(SWS), SC))
            a("buffer_load_dword v%d, v%d, %s, 0 offen %s" % (V_C, V_CA, sr(SWS), SC))
            a("buffer_load_dword v%d, v%d, %s, s%d offen %s" % (V_C + 1, V_CA, sr(SWS), S_CST, SC))
        def rops(p, b, kk):
            f = F[p]
            ops = ["ds_read_b128 %s, v%d" % (vr(f, 4), V_XA + kk)]
            for ct in range(2):
                for j in range(2):
                    ops.append("ds_read_b64_tr_b16 %s, v%d offset:%d" % (vr(f + 8 + 4 * ct + 2 * j, 2), V_WA + ct, b * 16384 + kk * 2048 + j * 512))
            ops.append("ds_read_b128 %s, v%d offset:4096" % (vr(f + 4, 4), V_XA + kk))
            return ops
        def mf(p, q):
            if self.pat1:
                pr = self.pat1[(p * 4 + q) % len(self.pat1)]; prev = self.pat1[(p * 4 + q - 1) % len(self.pat1)]
                if pr != prev: a("s_setprio %s" % pr)
            ti, ct = [(0, 0), (0, 1), (1, 0), (1, 1)][q]
            f = F[p]; d = ACC + (ti * 2 + ct) * 16
            a("v_mfma_f32_32x32x16_bf16 %s, %s, %s, %s" % (vr(d, 16), vr(f + 8 + 4 * ct, 4), vr(f + 4 * ti, 4), vr(d, 16)))
        a("s_mov_b32 s%d, 0" % S_STG)
        a("s_waitcnt vmcnt(6)")
        a("s_barrier")
        self.stamp(1)
        for op in rops(0, 0, 0): a(op)
        a.label("F1_LOOP")
        a("s_cmp_lg_u32 s%d, 18" % S_STG)
        a("s_cbranch_scc1 F1_P2")
        a("v_cmp_ne_u32 vcc, v%d, v%d" % (V_NONCE, V_FL))
        a("v_cmp_eq_u32 s[%d:%d], 0, v%d" % (S_T + 4, S_T + 5, V_FL))
        a("s_or_b64 vcc, vcc, s[%d:%d]" % (S_T + 4, S_T + 5))
        a("s_cbranch_scc1 F1_P2")
        a("s_mov_b32 s%d, 1" % S_PRE)
        pre_loads()
        a.label("F1_P2")
        if self.f1sw:
            a("s_cmp_lg_u32 s%d, %d" % (S_STG, self.f1sw))
            a("s_cbranch_scc1 F1_SW")
            a("s_setprio %d" % self.prio_f1b)
            a.label("F1_SW")
        if "f1st" in dbg:
            for c_, sl in ((6, 4), (12, 5), (18, 6)):
                a("s_cmp_lg_u32 s%d, %d" % (S_STG, c_))
                a("s_cbranch_scc1 F1_S%d" % c_)
                self.stamp(sl)
                a.label("F1_S%d" % c_)
        for u in range(6):
            b = u % 3; odd = u & 1
            if u == 4:
                a("s_cmp_lg_u32 s%d, 16" % S_STG)
                a("s_cbranch_scc1 F1_P1")
                self.load_nonce(T3)
                a("buffer_load_dword v%d, v%d, %s, 0 offen %s" % (V_FL, V_FA, sr(SWS), SC))
                a.label("F1_P1")
            a("s_waitcnt lgkmcnt(0)")
            mf(0, 0)
            for op in rops(1, b, 1): a(op)
            mf(0, 1)
            dl = 64 | (16384 if odd else 0)
            a("v_xor_b32 v%d, 0x%x, v%d" % (V_XA, dl, V_XA))
            a("v_xor_b32 v%d, 0x%x, v%d" % (V_XA + 1, dl, V_XA + 1))
            mf(0, 2)
            if u == 1:
                a("s_cmp_eq_u32 s%d, 19" % S_STG)
                a("s_cbranch_scc1 F1_LAST")
            if u in (5, 0):
                a("s_cmp_ge_u32 s%d, 17" % S_STG)
                a("s_cbranch_scc1 F1_T%d" % u)
            a("s_waitcnt vmcnt(%d) lgkmcnt(0)" % (2 if odd else 4))
            mf(0, 3)
            a("s_barrier")
            mf(1, 0)
            for op in rops(0, (b + 1) % 3, 0): a(op)
            ops = dmaW(b) + (dmaX() if odd else [])
            mf(1, 1)
            if "vlow1" in dbg:
                mf(1, 2); mf(1, 3)
                a("s_setprio 0")
                emit(ops)
                a("s_setprio %d" % self.prio_f1)
            else:
                emit(ops[:2])
                mf(1, 2)
                emit(ops[2:])
                mf(1, 3)
            if u in (5, 0):
                a("s_branch F1_N%d" % u)
                a.label("F1_T%d" % u)
                a("s_waitcnt vmcnt(0) lgkmcnt(0)" if u == 5 else "s_waitcnt lgkmcnt(0)")
                mf(0, 3)
                a("s_barrier")
                mf(1, 0)
                for op in rops(0, (b + 1) % 3, 0): a(op)
                for q in (1, 2, 3): mf(1, q)
                a.label("F1_N%d" % u)
            a("s_add_u32 s%d, s%d, 1" % (S_STG, S_STG))
        a("s_branch F1_LOOP")
        a.label("F1_LAST")
        mf(0, 3)
        a("s_waitcnt lgkmcnt(0)")
        a("s_barrier")
        for q in range(4): mf(1, q)
        a("s_setprio %d" % self.prio_fe)
        self.stamp(2)
        a("s_cmp_lg_u32 s%d, 0" % S_PRE)
        a("s_cbranch_scc1 F1_P3")
        self.poll([(V_FL, 1, V_FA, "0")], T3, wave0=False)
        pre_loads()
        a.label("F1_P3")
        a("s_waitcnt vmcnt(0)")
        CSV = F[0]
        FA, FB = F[0], F[0] + 8
        for k in range(2):
            a("v_and_b32 v%d, 0xffff0000, v%d" % (T0, V_C + k))
            a("v_sub_f32 v%d, v%d, v%d" % (T1, V_C + k, T0))
            a("v_lshrrev_b32 v%d, 16, v%d" % (FA + 4 * k + 1, T0))
            a("v_and_b32 v%d, 0xffff0000, v%d" % (T1, T1))
            a("v_or_b32 v%d, v%d, v%d" % (FA + 4 * k, FA + 4 * k + 1, T1))
            a("v_and_b32 v%d, 0xffff0000, v%d" % (T0, V_SX + 2 * k))
            a("v_sub_f32 v%d, v%d, v%d" % (T1, V_SX + 2 * k, T0))
            a("v_lshrrev_b32 v%d, 16, v%d" % (FB + 4 * k + 1, T1))
            a("v_lshrrev_b32 v%d, 16, v%d" % (T1, T0))
            a("v_or_b32 v%d, v%d, v%d" % (FB + 4 * k, T0, T1))
            for r in (2, 3):
                a("v_mov_b32 v%d, 0" % (FA + 4 * k + r))
                a("v_mov_b32 v%d, 0" % (FB + 4 * k + r))
        a("s_mov_b32 exec_lo, 0")
        for k in range(2):
            a("v_mov_b32 v%d, 0" % (FA + 4 * k))
            a("v_mov_b32 v%d, 0" % (FA + 4 * k + 1))
        a("s_mov_b64 exec, -1")
        a("v_lshrrev_b32 v%d, 5, v%d" % (T2, V_LANE))
        a("v_and_b32 v%d, 15, v%d" % (T0, V_LANE))
        for ti in range(2):
            for ct in range(2):
                d = ACC + (ti * 2 + ct) * 16
                a("v_mfma_f32_32x32x16_bf16 %s, %s, %s, %s" % (vr(d, 16), vr(FA + 4 * ct, 4), vr(FB + 4 * ti, 4), vr(d, 16)))
        a("v_lshlrev_b32 v%d, 4, v%d" % (T0, T0))
        a("v_lshl_add_u32 v%d, v%d, 8, v%d" % (T0, T2, T0))
        a("v_bfe_u32 v%d, v%d, 4, 1" % (T1, V_LANE))
        a("v_lshl_add_u32 v%d, v%d, 10, v%d" % (T0, T1, T0))
        a("s_mul_i32 s%d, s%d, 74" % (S_T, S_R32))
        a("s_add_u32 s%d, s%d, s%d" % (S_T, S_T, S_KS))
        a("s_lshl_b32 s%d, s%d, 12" % (S_T, S_T))
        a("s_add_u32 s%d, s%d, 0x%x" % (S_T, S_T, WS_HO))
        a("s_nop 3")
        a("s_cmp_lg_u32 s%d, 0" % S_ACT)
        a("s_cbranch_scc1 F1_GU")
        a("s_setprio 3")
        a("s_mul_i32 s%d, s%d, 81920" % (S_T, S_R32))
        a("s_sub_u32 s%d, s%d, 27" % (S_T + 1, S_HT))
        a("s_lshl_b32 s%d, s%d, 13" % (S_T + 1, S_T + 1))
        a("s_add_u32 s%d, s%d, s%d" % (S_T, S_T, S_T + 1))
        a("s_and_b32 s%d, s%d, 1" % (S_T + 4, S_CG))
        a("s_lshl_b32 s%d, s%d, 11" % (S_T + 4, S_T + 4))
        a("s_add_u32 s%d, s%d, s%d" % (S_T, S_T, S_T + 4))
        if WS_QP: a("s_add_u32 s%d, s%d, 0x%x" % (S_T, S_T, WS_QP))
        for ti in range(2):
            a("v_mul_f32 v%d, 0x%x, v%d" % (T1, f32bits(LOG2E * 20 ** -0.5), V_SX + 2 * ti + 1))
            for ct in range(2):
                d = ACC + (ti * 2 + ct) * 16
                for r in range(16): a("v_mul_f32 v%d, v%d, v%d" % (d + r, T1, d + r))
                o = CSV + (ti * 2 + ct) * 8
                for r in range(8): a("v_cvt_pk_bf16_f32 v%d, v%d, v%d" % (o + r, d + 2 * r, d + 2 * r + 1))
                a("s_add_u32 s%d, s%d, %d" % (S_T + 1, S_T, ti * 40960 + ct * 4096))
                a("buffer_store_dwordx4 %s, v%d, %s, s%d offen %s" % (vr(o, 4), V_L16, sr(SWS), S_T + 1, SC))
                a("buffer_store_dwordx4 %s, v%d, %s, s%d offen offset:1024 %s" % (vr(o + 4, 4), V_L16, sr(SWS), S_T + 1, SC))
        a("s_branch F1_PUB")
        a.label("F1_GU")
        TE = CSV + 16
        for ti in range(2):
            a("v_mul_f32 v%d, 0x%x, v%d" % (T1, f32bits(-LOG2E), V_SX + 2 * ti + 1))
            for ct in range(2):
                d = ACC + (ti * 2 + ct) * 16
                for r in range(8): a("v_mul_f32 v%d, v%d, v%d" % (TE + r, T1, d + r))
                for r in range(8): a("v_exp_f32 v%d, v%d" % (TE + r, TE + r))
                for r in range(8): a("v_mul_f32 v%d, v%d, v%d" % (d + r, d + r, d + 8 + r))
                for r in range(8): a("v_add_f32 v%d, 1.0, v%d" % (TE + r, TE + r))
                for r in range(8): a("v_rcp_f32 v%d, v%d" % (TE + r, TE + r))
                a("s_nop 0")
                for r in range(8): a("v_mul_f32 v%d, v%d, v%d" % (d + r, TE + r, d + r))
                o = CSV + (ti * 2 + ct) * 4
                for r in range(4): a("v_cvt_pk_bf16_f32 v%d, v%d, v%d" % (o + r, d + 2 * r, d + 2 * r + 1))
                if "early_st" in dbg: a("buffer_store_dwordx4 %s, v%d, %s, s%d offen offset:%d %s" % (vr(o, 4), T0, sr(SWS), S_T, ti * 2048 + ct * 512, SC))
        if "nogate" not in dbg:
            a("s_setprio 0")
            a("s_mov_b32 s%d, s%d" % (S_T + 3, S_T))
            a("s_lshl_b32 s%d, s%d, 10" % (S_T + 1, S_RB32))
            a("s_lshl_b32 s%d, s%d, 7" % (S_T + 2, S_HI))
            a("s_add_u32 s%d, s%d, s%d" % (S_T + 1, S_T + 1, S_T + 2))
            a("s_add_u32 s%d, s%d, 0x%x" % (S_T + 1, S_T + 1, F2_O + 36))
            self.poll([(T1, 1, T3, "s%d" % (S_T + 1))], T3, sleep=self.gsleep, wave0=False, maxit=self.gmax)
            a("s_mov_b32 s%d, s%d" % (S_T, S_T + 3))
        if "early_st" not in dbg:
            for k in range(4):
                a("buffer_store_dwordx4 %s, v%d, %s, s%d offen offset:%d %s" % (vr(CSV + k * 4, 4), T0, sr(SWS), S_T, (k >> 1) * 2048 + (k & 1) * 512, SC))
        a.label("F1_PUB")
        a("s_lshl_b32 s%d, s%d, 11" % (S_T, S_RB))
        a("s_lshr_b32 s%d, s%d, 1" % (S_T + 1, S_HT))
        a("s_lshl_b32 s%d, s%d, 7" % (S_T + 1, S_T + 1))
        a("s_add_u32 s%d, s%d, s%d" % (S_T, S_T, S_T + 1))
        a("s_and_b32 s%d, s%d, 1" % (S_T + 1, S_HT))
        a("s_lshl_b32 s%d, s%d, 4" % (S_T + 1, S_T + 1))
        a("s_add_u32 s%d, s%d, s%d" % (S_T, S_T, S_T + 1))
        a("s_and_b32 s%d, s%d, 3" % (S_T + 1, S_W))
        a("s_lshl_b32 s%d, s%d, 2" % (S_T + 1, S_T + 1))
        a("s_add_u32 s%d, s%d, s%d" % (S_T, S_T, S_T + 1))
        a("s_add_u32 s%d, s%d, 0x%x" % (S_T, S_T, F2_H))
        self.wave_flag("s%d" % S_T, T3)
        self.stamp(3)
        if "noF" in dbg: self.finish()

    def kv_issue(self):
        a = self.a
        V_PI, V_WA, V_ONE, V_J, V_H = 120, 121, 122, 123, 124
        V_ST = 20
        XF = 24
        WF = 44
        AC = 64
        R = 80
        S_MAT, S_TILE, S_JOB = S_R + 10, S_R + 11, S_R + 12
        WO = 40960
        PB, PST, PCS = 49152, 16384, 18432
        a("s_lshr_b32 s%d, s%d, 3" % (S_MAT, S_IDX))
        a("s_cmp_eq_u32 s%d, 0" % S_MAT)
        a("s_cselect_b32 s%d, s%d, s%d" % (SC_, P_WK, P_WV))
        a("s_cselect_b32 s%d, s%d, s%d" % (SC_ + 1, P_WK + 1, P_WV + 1))
        a("s_mov_b32 s%d, 25600" % (SC_ + 2))
        a("s_mov_b32 s%d, 0x20000" % (SC_ + 3))
        a("s_bfe_u32 s%d, s%d, 0x10002" % (S_T, S_IDX))
        a("s_lshl_b32 s%d, s%d, 1" % (S_TILE, S_RB32))
        a("s_add_u32 s%d, s%d, s%d" % (S_TILE, S_TILE, S_T))
        a("s_mul_i32 s%d, s%d, 40960" % (S_T, S_TILE))
        a("s_lshl_b32 s%d, s%d, 10" % (S_T + 1, S_W))
        for m in range(5):
            a("v_add_u32 v%d, %d, v0" % (T0, 512 * m))
            a("v_mul_u32_u24 v%d, 3277, v%d" % (T1, T0))
            a("v_lshrrev_b32 v%d, 18, v%d" % (T1, T1))
            a("v_mul_u32_u24 v%d, 80, v%d" % (T2, T1))
            a("v_sub_u32 v%d, v%d, v%d" % (T0, T0, T2))
            a("v_and_b32 v%d, 15, v%d" % (T2, T1))
            a("v_xor_b32 v%d, v%d, v%d" % (T0, T0, T2))
            a("v_and_b32 v%d, 19, v%d" % (T2, T1))
            a("v_bfe_u32 v%d, v%d, 2, 1" % (T3, T1))
            a("v_lshl_add_u32 v%d, v%d, 3, v%d" % (T2, T3, T2))
            a("v_bfe_u32 v%d, v%d, 3, 1" % (T3, T1))
            a("v_lshl_add_u32 v%d, v%d, 2, v%d" % (T2, T3, T2))
            a("v_mul_u32_u24 v%d, 1280, v%d" % (T2, T2))
            a("s_add_u32 m0, s%d, %d" % (S_T + 1, m * 8192))
            a("v_lshl_add_u32 v%d, v%d, 4, v%d" % (T0, T0, T2))
            a("buffer_load_dwordx4 v%d, %s, s%d offen lds" % (T0, sr(SX), S_T))
        for m in range(4):
            if m == 3:
                a("s_cmp_lg_u32 s%d, 0" % S_W)
                a("s_cbranch_scc1 KV_I")
            a("s_add_u32 m0, s%d, %d" % (S_T + 1, WO + m * 8192))
            a("s_add_u32 s%d, s%d, %d" % (S_T + 2, S_T + 1, m * 8192))
            a("buffer_load_dwordx4 v%d, %s, s%d offen lds" % (V_L16, sr(SC_), S_T + 2))

    def kv_body(self):
        a = self.a
        V_PI, V_WA, V_ONE, V_J, V_H = 120, 121, 122, 123, 124
        V_ST = 20
        XF = 24
        WF = 44
        AC = 64
        R = 80
        S_MAT, S_TILE, S_JOB = S_R + 10, S_R + 11, S_R + 12
        WO = 40960
        PB, PST, PCS = 49152, 16384, 18432
        a("s_lshr_b32 s%d, s%d, 2" % (S_T, S_IDX))
        a("s_lshl_b32 s%d, s%d, 2" % (S_JOB, S_RB32))
        a("s_add_u32 s%d, s%d, s%d" % (S_JOB, S_JOB, S_T))
        a("s_lshl_b32 s%d, s%d, 5" % (S_JOB, S_JOB))
        a("s_add_u32 s%d, s%d, s%d" % (S_JOB, S_JOB, S_W))
        a("s_lshl_b32 s%d, s%d, 2" % (S_JOB, S_JOB))
        a("s_add_u32 s%d, s%d, 0x%x" % (S_JOB, S_JOB, F2_K))
        a("v_and_b32 v%d, 31, v%d" % (V_J, V_LANE))
        a("v_and_b32 v%d, 19, v%d" % (T0, V_LANE))
        a("v_bfe_u32 v%d, v%d, 2, 1" % (T1, V_LANE))
        a("v_lshl_add_u32 v%d, v%d, 3, v%d" % (T0, T1, T0))
        a("v_bfe_u32 v%d, v%d, 3, 1" % (T1, V_LANE))
        a("v_lshl_add_u32 v%d, v%d, 2, v%d" % (V_PI, T1, T0))
        a("v_lshrrev_b32 v%d, 5, v%d" % (V_H, V_LANE))
        a("v_bfe_u32 v%d, v%d, 2, 2" % (T2, V_LANE))
        a("v_lshl_add_u32 v%d, v%d, 3, v%d" % (T2, V_H, T2))
        a("v_mul_u32_u24 v%d, 40, v%d" % (T2, T2))
        a("v_bfe_u32 v%d, v%d, 4, 1" % (T3, V_LANE))
        a("v_lshl_add_u32 v%d, v%d, 5, v%d" % (T2, T3, T2))
        a("s_mul_i32 s%d, s%d, 3200" % (S_T, S_W))
        a("s_add_u32 s%d, s%d, %d" % (S_T, S_T, WO))
        a("s_sub_u32 s%d, 4, s%d" % (S_T + 1, S_MAT))
        a("s_add_u32 s%d, s%d, 3" % (S_T + 2, S_MAT))
        a("v_and_b32 v%d, 1, v%d" % (T3, V_LANE))
        a("v_lshlrev_b32 v%d, s%d, v%d" % (T3, S_T + 1, T3))
        a("v_add3_u32 v%d, v%d, v%d, s%d" % (T2, T2, T3, S_T))
        a("v_bfe_u32 v%d, v%d, 1, 1" % (T3, V_LANE))
        a("v_lshlrev_b32 v%d, s%d, v%d" % (T3, S_T + 2, T3))
        a("v_add_u32 v%d, v%d, v%d" % (V_WA, T2, T3))
        a("v_and_b32 v%d, 15, v%d" % (T2, V_LANE))
        a("v_xor_b32 v%d, v%d, v%d" % (T2, T2, V_H))
        a("v_mul_u32_u24 v%d, 1280, v%d" % (T3, V_J))
        a("s_mul_i32 s%d, s%d, 10" % (S_T, S_W))
        for s_ in range(5):
            a("v_xor_b32 v%d, s%d, v%d" % (T0, S_T, T2))
            a("s_add_u32 s%d, s%d, 2" % (S_T, S_T))
            a("v_lshl_add_u32 v%d, v%d, 4, v%d" % (R + s_, T0, T3))
        a("v_mov_b32 v%d, 0x3f803f80" % V_ONE)
        for r in range(6): a("v_mov_b32 v%d, 0" % (R + 8 + r))
        a("s_waitcnt vmcnt(0)")
        a("s_barrier")
        self.stamp(5, "kv")
        for s_ in range(5):
            a("ds_read_b128 %s, v%d" % (vr(XF + 4 * s_, 4), R + s_))
            a("ds_read_b64_tr_b16 %s, v%d offset:%d" % (vr(WF + 4 * s_, 2), V_WA, s_ * 640))
            a("ds_read_b64_tr_b16 %s, v%d offset:%d" % (vr(WF + 4 * s_ + 2, 2), V_WA, s_ * 640 + 160))
        self.load_nonce(T3)
        a("s_waitcnt lgkmcnt(0)")
        D = R + 8
        for r in range(20):
            o = 3 * (r & 1)
            a("v_dot2c_f32_bf16 v%d, v%d, v%d" % (D + o, V_ONE, XF + r))
            a("v_dot2c_f32_bf16 v%d, v%d, v%d" % (D + o + 1, XF + r, XF + r))
            a("v_dot2c_f32_bf16 v%d, v%d, v%d" % (D + o + 2, V_ONE, WF + r))
        a("s_cmp_eq_u32 s%d, 0" % S_MAT)
        a("s_cbranch_scc0 KV_MV")
        for s_ in range(5):
            a("v_mfma_f32_32x32x16_bf16 %s, %s, %s, %s" % (vr(AC, 16), vr(WF + 4 * s_, 4), vr(XF + 4 * s_, 4), "0" if s_ == 0 else vr(AC, 16)))
        a("s_branch KV_MD")
        a.label("KV_MV")
        for s_ in range(5):
            a("v_mfma_f32_32x32x16_bf16 %s, %s, %s, %s" % (vr(AC, 16), vr(XF + 4 * s_, 4), vr(WF + 4 * s_, 4), "0" if s_ == 0 else vr(AC, 16)))
        a.label("KV_MD")
        a("s_barrier")
        for r in range(3): a("v_add_f32 v%d, v%d, v%d" % (V_ST + r, D + r, D + 3 + r))
        self.halfsum([V_ST, V_ST + 1, V_ST + 2], R)
        a("s_lshl_b32 s%d, s%d, 8" % (S_T, S_W))
        a("v_lshl_add_u32 v%d, v%d, 3, s%d" % (T0, V_J, S_T))
        a("ds_write_b64 v%d, %s offset:%d" % (T0, vr(V_ST, 2), PST))
        a("s_lshl_b32 s%d, s%d, 7" % (S_T, S_W))
        a("v_lshl_add_u32 v%d, v%d, 2, s%d" % (T0, V_J, S_T))
        a("ds_write_b32 v%d, v%d offset:%d" % (T0, V_ST + 2, PCS))
        a("s_lshl_b32 s%d, s%d, 12" % (S_T, S_W))
        a("s_add_u32 s%d, s%d, %d" % (S_T, S_T, PB))
        a("v_add_u32 v%d, s%d, v%d" % (T0, S_T, V_L16))
        for q in range(4): a("ds_write_b128 v%d, %s offset:%d" % (T0, vr(AC + 4 * q, 4), q * 1024))
        a("s_waitcnt lgkmcnt(0)")
        a("s_barrier")
        a("s_cmp_ge_u32 s%d, 4" % S_W)
        a("s_cbranch_scc1 AUX_RL")
        a("s_lshl_b32 s%d, s%d, 10" % (S_T, S_W))
        a("s_add_u32 s%d, s%d, %d" % (S_T, S_T, PB))
        a("v_add_u32 v%d, s%d, v%d" % (T0, S_T, V_L16))
        for p in range(8): a("ds_read_b128 %s, v%d offset:%d" % (vr(XF + 4 * p, 4), T0, p * 4096))
        a("s_mul_i32 s%d, s%d, 2560" % (S_T + 3, S_TILE))
        a("s_add_u32 s%d, s%d, 0x%x" % (S_T + 3, S_T + 3, WS_KV))
        a("s_cmp_eq_u32 s%d, 0" % S_MAT)
        a("s_cbranch_scc0 KV_V")
        SP = 56; CP = 72
        a("v_lshlrev_b32 v%d, 3, v%d" % (T0, V_J))
        a("s_waitcnt lgkmcnt(4)")
        for p in range(8): a("ds_read_b64 %s, v%d offset:%d" % (vr(SP + 2 * p, 2), T0, PST + p * 256))
        a("s_lshl_b32 s%d, s%d, 5" % (S_T, S_W))
        a("v_lshl_add_u32 v%d, v%d, 4, s%d" % (T0, V_H, S_T))
        a("s_waitcnt lgkmcnt(4)")
        for p in range(8): a("ds_read_b128 %s, v%d offset:%d" % (vr(CP + 4 * p, 4), T0, PCS + p * 128))
        self.tree(XF, 4, 8, 4)
        a("s_waitcnt lgkmcnt(8)")
        self.tree(SP, 2, 8, 2)
        self.meanrstd(V_ST, SP)
        a("v_lshlrev_b32 v%d, 3, v%d" % (T2, V_PI))
        a("s_cmp_eq_u32 s%d, 3" % S_W)
        a("s_cbranch_scc0 KV_K1")
        a("s_lshl_b32 s%d, s%d, 8" % (S_T, S_TILE))
        a("s_add_u32 s%d, s%d, 0x%x" % (S_T, S_T, WS_ST))
        a("s_mov_b32 exec_hi, 0")
        a("buffer_store_dwordx2 %s, v%d, %s, s%d offen %s" % (vr(V_ST, 2), T2, sr(SWS), S_T, SC))
        a("s_mov_b64 exec, -1")
        a("s_branch KV_FLAG")
        a.label("KV_K1")
        a("s_waitcnt lgkmcnt(0)")
        self.tree(CP, 4, 8, 4)
        for r in range(4): a("v_fmac_f32 v%d, v%d, v%d" % (XF + r, V_ST, CP + r))
        for r in range(4): a("v_mul_f32 v%d, v%d, v%d" % (XF + r, V_ST + 1, XF + r))
        for r in range(2): a("v_cvt_pk_bf16_f32 v%d, v%d, v%d" % (SP + r, XF + 2 * r, XF + 2 * r + 1))
        a("v_mov_b32 v%d, 0" % T3)
        a("s_cmp_eq_u32 s%d, 2" % S_W)
        a("s_cbranch_scc1 KV_K2")
        a("v_lshlrev_b32 v%d, 9, v%d" % (T0, V_H))
        a("v_lshl_add_u32 v%d, v%d, 4, v%d" % (T2, V_PI, T0))
        a("s_lshl_b32 s%d, s%d, 3" % (S_T, S_W))
        a("s_add_u32 s%d, s%d, s%d" % (S_T + 3, S_T + 3, S_T))
        a("s_branch KV_K3")
        a.label("KV_K2")
        a("s_add_u32 s%d, s%d, 1024" % (S_T + 3, S_T + 3))
        a("s_mov_b32 exec_hi, 0")
        a.label("KV_K3")
        a("buffer_store_dwordx2 %s, v%d, %s, s%d offen %s" % (vr(SP, 2), T2, sr(SWS), S_T + 3, SC))
        for r in range(4): a("v_fmac_f32 v%d, v%d, v%d" % (T3, XF + r, XF + r))
        a("s_mov_b64 exec, -1")
        self.halfsum([T3], CP)
        for dpp in DPPS:
            a("s_nop 1")
            a("v_max_f32_dpp v%d, v%d, v%d %s row_mask:0xf bank_mask:0xf" % (T3, T3, T3, dpp))
        a("s_nop 1")
        a("v_readlane_b32 s%d, v%d, 0" % (S_T, T3))
        a("v_readlane_b32 s%d, v%d, 16" % (S_T + 1, T3))
        a("s_lshl_b32 s%d, s%d, 2" % (S_T + 2, S_TILE))
        a("s_add_u32 s%d, s%d, s%d" % (S_T + 2, S_T + 2, S_W))
        a("s_lshl_b32 s%d, s%d, 2" % (S_T + 2, S_T + 2))
        a("s_add_u32 s%d, s%d, 0x%x" % (S_T + 2, S_T + 2, WS_KN))
        a("s_max_u32 s%d, s%d, s%d" % (S_T, S_T, S_T + 1))
        a("v_mov_b32 v%d, s%d" % (T3, S_T))
        a("v_mov_b32 v%d, 0" % T0)
        a("s_mov_b64 exec, 1")
        a("buffer_store_dword v%d, v%d, %s, s%d offen %s" % (T3, T0, sr(SWS), S_T + 2, SC))
        a("s_mov_b64 exec, -1")
        a("s_branch KV_FLAG")
        a.label("KV_V")
        SP = 56
        CP = 28
        a("s_lshl_b32 s%d, s%d, 6" % (S_T, S_W))
        a("v_lshl_add_u32 v%d, v%d, 5, s%d" % (T0, V_H, S_T))
        a("s_waitcnt lgkmcnt(4)")
        for p in range(5):
            a("ds_read_b128 %s, v%d offset:%d" % (vr(SP + 8 * p, 4), T0, PST + p * 256))
            a("ds_read_b128 %s, v%d offset:%d" % (vr(SP + 8 * p + 4, 4), T0, PST + p * 256 + 16))
        a("v_lshlrev_b32 v%d, 2, v%d" % (T2, V_J))
        a("s_waitcnt lgkmcnt(8)")
        for p in range(5, 8):
            a("ds_read_b128 %s, v%d offset:%d" % (vr(SP + 8 * p, 4), T0, PST + p * 256))
            a("ds_read_b128 %s, v%d offset:%d" % (vr(SP + 8 * p + 4, 4), T0, PST + p * 256 + 16))
        self.tree(XF, 4, 8, 4)
        a("s_waitcnt lgkmcnt(6)")
        for p in range(8): a("ds_read_b32 v%d, v%d offset:%d" % (CP + p, T2, PCS + p * 128))
        a("s_waitcnt lgkmcnt(8)")
        self.tree(SP, 8, 8, 8)
        for r in range(4): self.meanrstd(SP + 8 + 2 * r, SP + 2 * r)
        a("s_waitcnt lgkmcnt(0)")
        self.tree(CP, 1, 8, 1)
        for r in range(4): a("v_fmac_f32 v%d, v%d, v%d" % (XF + r, CP, SP + 8 + 2 * r))
        for r in range(4): a("v_mul_f32 v%d, v%d, v%d" % (XF + r, SP + 9 + 2 * r, XF + r))
        for r in range(2): a("v_cvt_pk_bf16_f32 v%d, v%d, v%d" % (CP + 2 + r, XF + 2 * r, XF + 2 * r + 1))
        a("v_mul_u32_u24 v%d, 320, v%d" % (T0, V_H))
        a("v_lshl_add_u32 v%d, v%d, 4, v%d" % (T0, V_J, T0))
        a("s_lshr_b32 s%d, s%d, 1" % (S_T, S_W))
        a("s_mul_i32 s%d, s%d, 640" % (S_T, S_T))
        a("s_add_u32 s%d, s%d, s%d" % (S_T + 3, S_T + 3, S_T))
        a("s_and_b32 s%d, s%d, 1" % (S_T, S_W))
        a("s_lshl_b32 s%d, s%d, 3" % (S_T, S_T))
        a("s_add_u32 s%d, s%d, s%d" % (S_T + 3, S_T + 3, S_T))
        a("s_mov_b64 exec, s[%d:%d]" % (S_VM, S_VM + 1))
        a("buffer_store_dwordx2 %s, v%d, %s, s%d offen offset:1280 %s" % (vr(CP + 2, 2), T0, sr(SWS), S_T + 3, SC))
        a("s_mov_b64 exec, -1")
        a.label("KV_FLAG")
        a("s_mov_b32 s%d, s%d" % (S_R + 15, S_JOB))
        a("s_waitcnt lgkmcnt(0)")

    def role_sp(self):
        a = self.a
        S_J, S_G, S_LB, S_JJ = S_R, S_R + 1, S_R + 2, S_R + 3
        S_D = S_R + 4
        S_O, S_F = S_R + 12, S_R + 13
        LD = 16; AC = 8
        V_VD, V_TA = 126, 127
        RG = 96
        def cs_issue(lpr, stride, nload):
            sh = {16: 4, 8: 3}[lpr]
            a("v_lshrrev_b32 v%d, %d, v%d" % (T0, sh, V_LANE))
            a("v_mul_lo_u32 v%d, v%d, s%d" % (T0, T0, stride))
            a("s_lshl_b32 s%d, s%d, %d" % (stride, stride, 6 - sh))
            a("v_and_b32 v%d, %d, v%d" % (T1, lpr - 1, V_LANE))
            a("v_lshl_add_u32 v%d, v%d, 4, v%d" % (T0, T1, T0))
            for i in range(nload):
                a("buffer_load_dwordx4 %s, v%d, %s, s%d offen" % (vr(LD + 4 * i, 4), T0, sr(SB), S_T))
                a("s_add_u32 s%d, s%d, s%d" % (S_T, S_T, stride))
        def cs_finish(tag, lpr, nload, younger):
            sh = {16: 4, 8: 3}[lpr]; ncol = lpr * 8; csh = sh + 3; ng = 512 // ncol
            for r in range(8): a("v_mov_b32 v%d, 0" % (AC + r))
            for i in range(nload):
                a("s_waitcnt vmcnt(%d)" % (nload - 1 - i + younger))
                for q in range(4):
                    a("v_lshlrev_b32 v%d, 16, v%d" % (T2, LD + 4 * i + q))
                    a("v_and_b32 v%d, 0xffff0000, v%d" % (T3, LD + 4 * i + q))
                    a("v_add_f32 v%d, v%d, v%d" % (AC + 2 * q, AC + 2 * q, T2))
                    a("v_add_f32 v%d, v%d, v%d" % (AC + 2 * q + 1, AC + 2 * q + 1, T3))
            self.load_nonce(T3)
            a("v_lshlrev_b32 v%d, 5, v0" % T0)
            a("ds_write_b128 v%d, %s" % (T0, vr(AC, 4)))
            a("ds_write_b128 v%d, %s offset:16" % (T0, vr(AC + 4, 4)))
            a("v_lshrrev_b32 v%d, %d, v0" % (T1, csh))
            a("v_and_b32 v%d, %d, v0" % (T2, ncol - 1))
            a("v_lshlrev_b32 v%d, 2, v%d" % (T2, T2))
            a("v_lshl_add_u32 v%d, v%d, %d, v%d" % (T1, T1, csh + 5, T2))
            a("s_waitcnt lgkmcnt(0)")
            a("s_barrier")
            for p in range(8): a("ds_read_b32 v%d, v%d offset:%d" % (LD + p, T1, p * ncol * 4))
            a("v_lshlrev_b32 v%d, 2, v0" % T0)
            a("s_waitcnt lgkmcnt(0)")
            self.tree(LD, 1, 8, 1)
            a("ds_write_b32 v%d, v%d" % (T1, LD))
            a("s_waitcnt lgkmcnt(0)")
            a("s_barrier")
            a("s_cmp_lg_u32 s%d, 0" % S_W)
            a("s_cbranch_scc1 SP_%s" % tag)
            nw = ncol // 64
            for h in range(nw):
                for p in range(ng): a("ds_read_b32 v%d, v%d offset:%d" % (LD + h * ng + p, T0, p * ncol * 32 + h * 256))
            a("s_waitcnt lgkmcnt(0)")
            for h in range(nw):
                self.tree(LD + h * ng, 1, ng, 1)
                a("buffer_store_dword v%d, v%d, %s, s%d offen offset:%d %s" % (LD + h * ng, T0, sr(SWS), S_O, h * 256, SC))
            self.wave_flag("s%d" % S_F, T3)
            a.label("SP_%s" % tag)
        def issue(slot):
            a("s_mul_hi_u32 s%d, s%d, 0x%x" % (S_T + 1, S_G, (1 << 32) // 10 + 1))
            a("s_mul_i32 s%d, s%d, 10" % (S_T + 2, S_T + 1))
            a("s_sub_u32 s%d, s%d, s%d" % (S_T + 2, S_G, S_T + 2))
            for i in range(4):
                a("s_lshl_b32 s%d, s%d, 2" % (S_T + 3, S_T + 2))
                a("s_add_u32 s%d, s%d, %d" % (S_T + 3, S_T + 3, i))
                a("s_mul_hi_u32 s%d, s%d, 0x%x" % (S_T + 4, S_T + 3, (1 << 32) // 5 + 1))
                a("s_mul_i32 s%d, s%d, 365" % (S_T + 4, S_T + 4))
                a("s_add_u32 s%d, s%d, s%d" % (S_T + 4, S_T + 4, S_T + 3))
                a("s_mul_i32 s%d, s%d, 5" % (S_T + 3, S_T + 1))
                a("s_add_u32 s%d, s%d, s%d" % (S_T + 4, S_T + 4, S_T + 3))
                a("s_lshl_b32 s%d, s%d, 10" % (S_T + 4, S_T + 4))
                a("s_add_u32 s%d, s%d, 0x%x" % (S_D + slot * 4 + i, S_T + 4, WS_WF2))
            a("s_sub_u32 s%d, s%d, 54" % (S_T + 4, S_T + 1))
            a("s_cmp_lt_u32 s%d, 54" % (S_T + 1))
            a("s_cselect_b32 s%d, s%d, s%d" % (S_T + 1, S_T + 1, S_T + 4))
            a("s_cselect_b32 s%d, s%d, s%d" % (SA, P_WD, P_WO))
            a("s_cselect_b32 s%d, s%d, s%d" % (SA + 1, P_WD + 1, P_WO + 1))
            sel(a, SA + 2, 2211840, 819200)
            a("s_mul_i32 s%d, s%d, 40960" % (S_T + 1, S_T + 1))
            a("s_lshl_b32 s%d, s%d, 7" % (S_T + 2, S_T + 2))
            a("s_add_u32 s%d, s%d, s%d" % (S_T + 1, S_T + 1, S_T + 2))
            a("s_cmp_lt_u32 s%d, 740" % S_G)
            for i in range(4): a("s_cselect_b32 s%d, s%d, 0x40000000" % (S_D + slot * 4 + i, S_D + slot * 4 + i))
            for i in range(4):
                a("s_add_u32 m0, s%d, %d" % (S_LB, slot * 4096 + i * 1024))
                a("s_nop 0")
                a("buffer_load_dwordx4 v%d, %s, s%d offen lds" % (V_VD, sr(SA), S_T + 1))
                a("s_add_u32 s%d, s%d, 10240" % (S_T + 1, S_T + 1))
            a("s_add_u32 s%d, s%d, 512" % (S_G, S_G))
        def drain(slot, reg):
            for i in range(4):
                a("ds_read_b64_tr_b16 %s, v%d offset:%d" % (vr(reg + 4 * i, 2), V_TA, slot * 4096 + i * 32))
                a("ds_read_b64_tr_b16 %s, v%d offset:%d" % (vr(reg + 4 * i + 2, 2), V_TA, slot * 4096 + i * 32 + 512))
            a("s_waitcnt lgkmcnt(0)")
            for i in range(4):
                a("buffer_store_dwordx4 %s, v%d, %s, s%d offen %s" % (vr(reg + 4 * i, 4), V_L16, sr(SWS), S_D + slot * 4 + i, SC))
        def rl_setup():
            a("v_lshrrev_b32 v%d, 3, v%d" % (T0, V_LANE))
            a("v_mul_u32_u24 v%d, 1280, v%d" % (T0, T0))
            a("v_and_b32 v%d, 7, v%d" % (T1, V_LANE))
            a("v_lshl_add_u32 v%d, v%d, 4, v%d" % (V_VD, T1, T0))
            a("s_lshl_b32 s%d, s%d, 12" % (S_LB, S_W))
            a("s_cmp_ge_u32 s%d, 4" % S_W)
            a("s_cselect_b32 s%d, 8192, 0" % S_T)
            a("s_add_u32 s%d, s%d, s%d" % (S_LB, S_LB, S_T))
            a("v_lshrrev_b32 v%d, 4, v%d" % (T0, V_LANE))
            a("v_bfe_u32 v%d, v%d, 2, 2" % (T1, V_LANE))
            a("v_lshl_add_u32 v%d, v%d, 3, v%d" % (T0, T0, T1))
            a("v_lshlrev_b32 v%d, 7, v%d" % (T0, T0))
            a("v_and_b32 v%d, 3, v%d" % (T1, V_LANE))
            a("v_lshl_add_u32 v%d, v%d, 3, v%d" % (T0, T1, T0))
            a("v_add_u32 v%d, s%d, v%d" % (V_TA, S_LB, T0))
            a("s_mul_i32 s%d, s%d, 6" % (S_G, S_J))
            a("s_add_u32 s%d, s%d, s%d" % (S_G, S_G, S_W))
            a("s_sub_u32 s%d, s%d, 2" % (S_G, S_G))
            a("s_mov_b32 s%d, 0x20000" % (SA + 3))
            issue(0)
        a.label("AUX_2")
        a("s_setprio %d" % self.prio_sp)
        a("s_cmp_ge_u32 s%d, 6" % S_HI)
        a("s_cbranch_scc1 A_GO")
        a("s_and_b32 s%d, s%d, 1" % (S_J, S_HI))
        a("s_lshl_b32 s%d, s%d, 5" % (S_J, S_J))
        a("s_add_u32 s%d, s%d, s%d" % (S_J, S_J, S_RB32))
        a.label("AUX_CS")
        a("s_cmp_lt_u32 s%d, 27" % S_J)
        a("s_cselect_b32 s%d, s%d, s%d" % (SB, P_WG, P_WU))
        a("s_cselect_b32 s%d, s%d, s%d" % (SB + 1, P_WG + 1, P_WU + 1))
        a("s_cselect_b32 s%d, 0, 27" % (S_T + 1))
        a("s_cselect_b32 s%d, 0, 7168" % S_O)
        a("s_cmp_lt_u32 s%d, 54" % S_J)
        a("s_cselect_b32 s%d, s%d, s%d" % (SB, SB, P_WQ))
        a("s_cselect_b32 s%d, s%d, s%d" % (SB + 1, SB + 1, P_WQ + 1))
        a("s_cselect_b32 s%d, s%d, 54" % (S_T + 1, S_T + 1))
        a("s_cselect_b32 s%d, s%d, 14336" % (S_O, S_O))
        sel(a, SB + 2, 2211840, 819200)
        sel(a, S_T + 2, 3456, 1280)
        a("s_mov_b32 s%d, 0x20000" % (SB + 3))
        a("s_sub_u32 s%d, s%d, s%d" % (S_T + 1, S_J, S_T + 1))
        a("s_mul_i32 s%d, s%d, s%d" % (S_T, S_W, S_T + 2))
        a("s_mul_i32 s%d, s%d, 80" % (S_T, S_T))
        a("s_lshl_b32 s%d, s%d, 7" % (S_T + 3, S_T + 1))
        a("s_add_u32 s%d, s%d, s%d" % (S_T, S_T, S_T + 3))
        a("s_lshl_b32 s%d, s%d, 8" % (S_T + 3, S_T + 1))
        a("s_add_u32 s%d, s%d, s%d" % (S_O, S_O, S_T + 3))
        a("s_add_u32 s%d, s%d, 0x%x" % (S_O, S_O, WS_CS))
        a("s_lshl_b32 s%d, s%d, 7" % (S_F, S_J))
        a("s_add_u32 s%d, s%d, 0x%x" % (S_F, S_F, F3_C))
        cs_issue(8, S_T + 2, 10)
        cs_finish("CD", 8, 10, 0)
        a("s_branch A_GO")
        a.label("AUX_RL")
        a("s_setprio %d" % self.prio_rl)
        a("s_lshl_b32 s%d, s%d, 5" % (S_J, S_HI))
        a("s_add_u32 s%d, s%d, s%d" % (S_J, S_J, S_RB32))
        a("s_cmp_lt_u32 s%d, 2" % S_W)
        a("s_cbranch_scc1 AUX_RD")
        rl_setup()
        a("s_waitcnt vmcnt(0)")
        drain(0, 16)
        a.label("AUX_RD")
        a("s_lshl_b32 s%d, s%d, 7" % (S_T, S_J))
        a("s_add_u32 s%d, s%d, 0x%x" % (S_T, S_T, F2_P))
        self.wg_flag("s%d" % S_T)
        a("s_branch A_GO")

    def role_f23(self):
        a = self.a
        V_TA = T1
        VW = 8
        GA = 11
        HBS = [16, 68, 76]
        WS_ = [28, 48]
        ACC = 88
        S_H, S_WO, S_GB, S_LB, S_TH, S_KQ, S_W1K = [S_R + i for i in range(7)]
        a.label("F2_GO")
        a("s_setprio %d" % self.prio_fr)
        srd(a, SB, P_OUT, P_OUT + 1, 2621440)
        a("s_mul_i32 s%d, s%d, 81920" % (S_GB, S_RB32))
        a("s_mul_i32 s%d, s%d, 160" % (S_WO, S_HI))
        a("s_add_u32 s%d, s%d, s%d" % (S_GB, S_GB, S_WO))
        a("s_mul_i32 s%d, s%d, 10240" % (S_LB, S_W))
        a("s_lshl_b32 s%d, s%d, 10" % (S_W1K, S_W))
        a("s_and_b32 s%d, s%d, 1" % (S_TH, S_W))
        a("s_lshr_b32 s%d, s%d, 1" % (S_KQ, S_W))
        a("s_mul_i32 s%d, s%d, %d" % (S_WO, S_HI, 74 * 5120))
        a("s_add_u32 s%d, s%d, s%d" % (S_WO, S_WO, S_W1K))
        a("s_add_u32 s%d, s%d, 0x%x" % (S_WO, S_WO, WS_WF2))
        def dmaW(g, slot=None):
            lab = a.newlabel("F2D")
            slot = g % 4 if slot is None else slot
            base = g * 20480 if g < 14 else 54 * 5120 + (g - 14) * 20480
            for m in range(3):
                if m == 2:
                    a("s_cmp_ge_u32 s%d, 4" % S_W)
                    a("s_cbranch_scc1 %s" % lab)
                a("s_add_u32 m0, s%d, %d" % (S_W1K, slot * 20480 + m * 8192))
                a("s_add_u32 s%d, s%d, %d" % (S_T + 7, S_WO, base + m * 8192))
                a("buffer_load_dwordx4 v%d, %s, s%d offen %s lds" % (V_L16, sr(SWS), S_T + 7, SC))
            a.label(lab)
        if "wearly" in self.dbg:
            for g in range(4): dmaW(g)
        def set_h(base):
            a("s_mul_i32 s%d, s%d, 74" % (S_H, S_RB32))
            a("s_add_u32 s%d, s%d, s%d" % (S_H, S_H, S_KQ))
            if base: a("s_add_u32 s%d, s%d, %d" % (S_H, S_H, base))
            a("s_lshl_b32 s%d, s%d, 1" % (S_H, S_H))
            a("s_add_u32 s%d, s%d, s%d" % (S_H, S_H, S_TH))
            a("s_lshl_b32 s%d, s%d, 11" % (S_H, S_H))
            a("s_add_u32 s%d, s%d, 0x%x" % (S_H, S_H, WS_HO))
        set_h(0)
        a("s_mul_i32 s%d, s%d, 5120" % (S_T + 1, S_KQ))
        a("v_add_u32 v%d, s%d, v%d" % (V_TA, S_T + 1, V_L16))
        a("v_add_u32 v%d, 40960, v%d" % (VW, V_TA))
        def loadH(g):
            for tt in range(2):
                a("buffer_load_dwordx4 %s, v%d, %s, s%d offen offset:%d %s" % (vr(HBS[g % 3] + tt * 4, 4), V_L16, sr(SWS), S_H, tt * 1024, SC))
            a("s_add_u32 s%d, s%d, 16384" % (S_H, S_H))
        def rdW(dst, slot, c):
            a("ds_read_b128 %s, v%d offset:%d" % (vr(dst + 4 * c, 4), V_TA if slot < 2 else VW, (slot & 1) * 20480 + c * 1024))
        def mm(g, c):
            for tt in range(2):
                d = ACC + (tt * 5 + c) * 4
                a("v_mfma_f32_16x16x32_bf16 %s, %s, %s, %s" % (vr(d, 4), vr(WS_[g & 1] + 4 * c, 4), vr(HBS[g % 3] + tt * 4, 4), "0" if g == 0 else vr(d, 4)))
        a("v_min_u32 v%d, 13, v%d" % (T0, V_LANE))
        a("v_lshlrev_b32 v%d, 7, v%d" % (T0, T0))
        a("s_lshr_b32 s%d, s%d, 1" % (S_T + 1, S_RB32))
        a("s_lshl_b32 s%d, s%d, 11" % (S_T + 1, S_T + 1))
        a("s_and_b32 s%d, s%d, 1" % (S_T + 2, S_RB32))
        a("s_lshl_b32 s%d, s%d, 2" % (S_T + 2, S_T + 2))
        a("s_add_u32 s%d, s%d, s%d" % (S_T + 1, S_T + 1, S_T + 2))
        a("s_lshl_b32 s%d, s%d, 3" % (S_T + 2, S_KQ))
        a("s_add_u32 s%d, s%d, s%d" % (S_T + 1, S_T + 1, S_T + 2))
        a("s_add_u32 s%d, s%d, 0x%x" % (S_T + 1, S_T + 1, F2_H))
        a("v_lshlrev_b32 v9, 7, v%d" % V_LANE)
        a("s_mov_b32 s%d, 0x%x" % (S_T + 2, F2_P))
        a("s_mov_b32 s%d, 0x%x" % (S_T + 3, F2_P + 8192))
        self.poll([(16, 1, 9, "s%d" % (S_T + 2)), (17, 1, 9, "s%d" % (S_T + 3))], T3, sleep=24)
        self.poll([(T2, 1, T0, "s%d" % (S_T + 1))], T3, sleep=24, wave0=False)
        self.stamp(4, "f23")
        a("s_setprio %d" % self.prio_f2)
        if "nofill" not in self.dbg:
            a("s_mul_i32 s%d, s%d, 74" % (S_T, S_RB32))
            a("s_add_u32 s%d, s%d, 54" % (S_T, S_T))
            a("s_lshl_b32 s%d, s%d, 12" % (S_T, S_T))
            a("s_mul_i32 s%d, s%d, 10240" % (S_T + 1, S_HI))
            a("s_add_u32 s%d, s%d, s%d" % (S_T, S_T, S_T + 1))
            a("s_add_u32 s%d, s%d, s%d" % (S_T, S_T, S_W1K))
            a("s_add_u32 s%d, s%d, 0x%x" % (S_T, S_T, WS_HO))
            for r in range(4): a("v_mov_b32 v%d, -1" % (24 + r))
            a("buffer_store_dwordx4 v[24:27], v%d, %s, s%d offen %s" % (V_L16, sr(SWS), S_T, SC))
            a("s_cmp_ge_u32 s%d, 2" % S_W)
            a("s_cbranch_scc1 F2_NF")
            a("s_add_u32 s%d, s%d, 8192" % (S_T, S_T))
            a("buffer_store_dwordx4 v[24:27], v%d, %s, s%d offen %s" % (V_L16, sr(SWS), S_T, SC))
            a.label("F2_NF")
        q = []
        if "wearly" in self.dbg:
            for g in range(3):
                loadH(g); q += [("H", g)] * 2
        else:
            for g in range(4):
                dmaW(g); q += [("W", g)] * 2
                if g < 3:
                    loadH(g); q += [("H", g)] * 2
            a("s_waitcnt vmcnt(%d)" % (len(q) - 2))
            q = q[2:]
        a("s_barrier")
        for c in range(5): rdW(WS_[0], 0, c)
        if "nofill" not in self.dbg:
            a("s_cmp_lg_u32 s%d, 0" % S_W)
            a("s_cbranch_scc1 F2_NG")
            a("s_lshl_b32 s%d, s%d, 10" % (S_T, S_RB32))
            a("s_lshl_b32 s%d, s%d, 7" % (S_T + 1, S_HI))
            a("s_add_u32 s%d, s%d, s%d" % (S_T, S_T, S_T + 1))
            a("s_add_u32 s%d, s%d, 0x%x" % (S_T, S_T, F2_O + 32))
            a("v_mov_b32 v%d, 0" % T3)
            a("s_mov_b64 exec, 1")
            a("buffer_store_dword v%d, v%d, %s, s%d offen %s" % (V_NONCE, T3, sr(SWS), S_T, SC))
            a("s_mov_b64 exec, -1")
            a.label("F2_NG")
        NG = 14
        for g in range(NG):
            need = [("H", g), ("W", g + 1)]
            last = max([i for i, o in enumerate(q) if o in need] + [-1])
            a("s_waitcnt lgkmcnt(0) vmcnt(%d)" % (len(q) - 1 - last))
            q = q[last + 1:]
            if g == NG - 1:
                a("s_barrier")
                for c in range(5): rdW(WS_[0], (g + 1) % 4, c)
                a("s_cmp_ge_u32 s%d, 2" % S_KQ)
                a("s_cbranch_scc1 F2_X")
                for c in range(5): mm(g, c)
                break
            mm(g, 0)
            a("s_barrier")
            for c in range(3): rdW(WS_[(g + 1) & 1], (g + 1) % 4, c)
            mm(g, 1)
            for c in (3, 4): rdW(WS_[(g + 1) & 1], (g + 1) % 4, c)
            mm(g, 2)
            if g + 4 <= NG:
                dmaW(g + 4); q += [("W", g + 4)] * 2
            for c in (3, 4): mm(g, c)
            if g + 3 < NG:
                loadH(g + 3); q += [("H", g + 3)] * 2
        a.label("F2_X")
        if "noA" in self.dbg: self.stamp(6)
        a("s_setprio %d" % self.prio_fr)
        RS = 14; XR = 20
        WR = WS_[0]; OF = 48; A3 = 88; R = 48
        a("v_and_b32 v%d, 15, v%d" % (T2, V_LANE))
        a("v_mul_u32_u24 v%d, 1280, v%d" % (T0, T2))
        a("v_lshrrev_b32 v%d, 4, v%d" % (T3, V_LANE))
        a("v_lshl_add_u32 v%d, v%d, 3, v%d" % (T0, T3, T0))
        a("v_lshlrev_b32 v%d, 3, v%d" % (T2, T2))
        a("s_lshl_b32 s%d, s%d, 9" % (S_T + 4, S_RB32))
        a("s_add_u32 s%d, s%d, 0x%x" % (S_T + 4, S_T + 4, WS_ST + 4))
        for i in range(3):
            a("s_add_u32 s%d, s%d, %d" % (S_T, S_W, 8 * i))
            a("s_min_u32 s%d, s%d, 19" % (S_T, S_T))
            a("s_mul_hi_u32 s%d, s%d, 0x%x" % (S_T + 1, S_T, (1 << 32) // 5 + 1))
            a("s_mul_i32 s%d, s%d, 5" % (S_T + 2, S_T + 1))
            a("s_sub_u32 s%d, s%d, s%d" % (S_T + 2, S_T, S_T + 2))
            a("s_mul_i32 s%d, s%d, 20480" % (S_T + 3, S_T + 1))
            a("s_lshl_b32 s%d, s%d, 5" % (S_T + 2, S_T + 2))
            a("s_add_u32 s%d, s%d, s%d" % (S_T + 3, S_T + 3, S_T + 2))
            a("v_add_u32 v%d, s%d, v%d" % (GA + i, S_T + 3, T0))
            a("s_lshl_b32 s%d, s%d, 7" % (S_T + 1, S_T + 1))
            a("s_add_u32 s%d, s%d, s%d" % (S_T + 1, S_T + 1, S_T + 4))
            a("buffer_load_dword v%d, v%d, %s, s%d offen %s" % (RS + i, T2, sr(SWS), S_T + 1, SC))
        for i in range(3):
            a("buffer_load_dwordx2 %s, v%d, %s, s%d offen" % (vr(XR + 2 * i, 2), GA + i, sr(SX), S_GB))
        set_h(54)
        a("v_add_u32 v%d, s%d, v%d" % (T0, S_W1K, V_L16))
        a("v_add_u32 v%d, 16384, v%d" % (T2, T0))
        def red_write(mid=None):
            a("v_add_u32 v%d, s%d, v%d" % (T3, S_LB, V_L16))
            a("s_waitcnt lgkmcnt(0)")
            a("s_barrier")
            a("s_nop 4")
            for k in range(10): a("ds_write_b128 v%d, %s offset:%d" % (T3, vr(A3 + 4 * k, 4), k * 1024))
            if mid: mid()
            a("s_waitcnt lgkmcnt(0)")
            a("s_barrier")
        def own_read(after=None):
            for i in range(3):
                for k in range(4):
                    off = k * 20480 + i * 8192
                    if i < 2 and off < 65536: a("ds_read_b128 %s, v%d offset:%d" % (vr(R + i * 16 + k * 4, 4), T0, off))
                    else: a("ds_read_b128 %s, v%d offset:%d" % (vr(R + i * 16 + k * 4, 4), T2, off - 16384))
            a("s_waitcnt lgkmcnt(0)")
            if after: after()
            for i in range(3): self.tree(R + i * 16, 4, 4, 4)
        def loadW3():
            a("s_barrier")
            for G in range(1, 5): dmaW(14 + G, G - 1)
        red_write()
        own_read(loadW3)
        G_ = 96; GP = 14
        a("s_waitcnt vmcnt(8)")
        for i in range(3): a("v_mul_f32 v%d, v%d, v%d" % (RS + i, RS + i, RS + i))
        idx = [(i, r) for i in range(3) for r in range(4)]
        for i, r in idx: a("v_mul_f32 v%d, v%d, v%d" % (R + i * 16 + r, RS + i, R + i * 16 + r))
        for i, r in idx: a("v_mul_f32 v%d, 0x%x, v%d" % (G_ + 4 * i + r, f32bits(-LOG2E), R + i * 16 + r))
        for i, r in idx: a("v_exp_f32 v%d, v%d" % (G_ + 4 * i + r, G_ + 4 * i + r))
        a("s_nop 0")
        for i, r in idx: a("v_add_f32 v%d, 1.0, v%d" % (G_ + 4 * i + r, G_ + 4 * i + r))
        for i, r in idx: a("v_rcp_f32 v%d, v%d" % (G_ + 4 * i + r, G_ + 4 * i + r))
        a("s_nop 0")
        for i, r in idx: a("v_mul_f32 v%d, v%d, v%d" % (G_ + 4 * i + r, G_ + 4 * i + r, R + i * 16 + r))
        for k in range(6): a("v_cvt_pk_bf16_f32 v%d, v%d, v%d" % (GP + k, G_ + 2 * k, G_ + 2 * k + 1))
        self.stamp(5, "f23")
        if "noA" in self.dbg: self.finish()
        a("v_bfe_u32 v%d, v%d, 2, 3" % (T3, V_LANE))
        a("v_and_b32 v26, 3, v%d" % V_LANE)
        a("v_lshlrev_b32 v26, 3, v26")
        a("v_lshl_add_u32 v26, v%d, 7, v26" % T3)
        a("s_lshl_b32 s%d, s%d, 10" % (S_T + 1, S_RB32))
        a("s_lshl_b32 s%d, s%d, 2" % (S_T + 2, S_TH))
        a("s_add_u32 s%d, s%d, s%d" % (S_T + 1, S_T + 1, S_T + 2))
        a("s_add_u32 s%d, s%d, 0x%x" % (S_T + 1, S_T + 1, F2_O))
        a("s_waitcnt vmcnt(0)")
        if "owv" not in self.dbg:
            a("v_lshrrev_b32 v%d, 3, v%d" % (T3, V_LANE))
            a("v_and_b32 v26, 7, v%d" % V_LANE)
            a("v_lshlrev_b32 v26, 2, v26")
            a("v_lshl_add_u32 v26, v%d, 7, v26" % T3)
            self.poll([(27, 1, 26, "s%d" % (S_T + 1))], T3, sleep=self.osleep)
        else:
            a("s_barrier")
            self.poll([(27, 1, 26, "s%d" % (S_T + 1))], T3, sleep=self.osleep, wave0=False)
        def o_loads():
            a("s_mov_b32 s%d, s%d" % (S_T, S_H))
            for s_ in range(5):
                for tt in range(2):
                    a("buffer_load_dwordx4 %s, v%d, %s, s%d offen offset:%d %s" % (vr(OF + s_ * 8 + tt * 4, 4), V_L16, sr(SWS), S_T, tt * 1024, SC))
                a("s_add_u32 s%d, s%d, 16384" % (S_T, S_T))
        if "nofill" in self.dbg:
            a("s_setprio 3")
            self.stamp(6, "f23")
            o_loads()
        else:
            a("s_mov_b32 s%d, %d" % (S_T + 2, SPIN_MAX))
            a.label("F3_PL")
            o_loads()
            for s_ in range(5):
                a("s_waitcnt vmcnt(%d)" % (8 - 2 * s_))
                b = OF + s_ * 8
                if s_ == 0: a("v_max_u32 v27, v%d, v%d" % (b, b + 1))
                else: a("v_max3_u32 v27, v27, v%d, v%d" % (b, b + 1))
                for k in (2, 4, 6): a("v_max3_u32 v27, v27, v%d, v%d" % (b + k, b + k + 1))
            a("v_cmp_eq_u32 vcc, -1, v27")
            a("s_sub_u32 s%d, s%d, 1" % (S_T + 2, S_T + 2))
            a("s_cbranch_scc1 F3_GO")
            a("s_cbranch_vccnz F3_PL")
            a.label("F3_GO")
            a("s_setprio 3")
            self.stamp(6, "f23")
        for s_ in range(5):
            if "nofill" in self.dbg: a("s_waitcnt vmcnt(%d)" % (8 - 2 * s_))
            for c in range(5):
                if s_ > 0: a("s_waitcnt lgkmcnt(%d)" % (4 if s_ < 4 else 4 - c))
                for tt in range(2):
                    d = A3 + (tt * 5 + c) * 4
                    a("v_mfma_f32_16x16x32_bf16 %s, %s, %s, %s" % (vr(d, 4), vr(WR + 4 * c, 4), vr(OF + s_ * 8 + tt * 4, 4), "0" if s_ == 0 else vr(d, 4)))
                if s_ < 4: rdW(WR, s_, c)
        U = 28; GF = 96
        def unpack_x():
            for k in range(6):
                a("v_lshlrev_b32 v%d, 16, v%d" % (U + 2 * k, XR + k))
                a("v_and_b32 v%d, 0xffff0000, v%d" % (U + 2 * k + 1, XR + k))
        red_write(unpack_x)
        for k in range(6):
            a("v_lshlrev_b32 v%d, 16, v%d" % (GF + 2 * k, GP + k))
            a("v_and_b32 v%d, 0xffff0000, v%d" % (GF + 2 * k + 1, GP + k))
        own_read()
        for i, r in idx: a("v_fmac_f32 v%d, v%d, v%d" % (U + 4 * i + r, R + i * 16 + r, GF + 4 * i + r))
        for k in range(6): a("v_cvt_pk_bf16_f32 v%d, v%d, v%d" % (XR + k, U + 2 * k, U + 2 * k + 1))
        for i in range(3):
            if i == 2:
                a("s_cmp_ge_u32 s%d, 4" % S_W)
                a("s_cbranch_scc1 F3_FIN")
            a("buffer_store_dwordx2 %s, v%d, %s, s%d offen" % (vr(XR + 2 * i, 2), GA + i, sr(SB), S_GB))
        a.label("F3_FIN")
        self.finish()

    def build(self):
        name = NAME + "_kernel"
        self.prologue(name)
        if "ffirst" not in self.dbg: self.role_a()
        self.role_f1()
        self.role_f23()
        if "ffirst" in self.dbg: self.role_a()
        self.role_sp()
        self.a.end_kernel(name, NVGPR)
        return self.a.text(HEADER + "; @launch grid=(512,1,1) block=(512,1,1) lds=%d\n" % LDS_BYTES)

if __name__ == "__main__":
    dbg = sys.argv[2] if len(sys.argv) > 2 else ""
    import subprocess, re
    cb = 0x4000
    for it in range(2):
        m = Mega(stamps="st" in dbg.split(","), dbg=dbg, code_bytes=cb)
        open(sys.argv[1], "w").write(m.build())
        subprocess.run(["clang", "-x", "assembler", "-target", "amdgcn-amd-amdhsa", "-mcpu=gfx950", "-c", sys.argv[1], "-o", "_m.o"], check=True)
        o = subprocess.run(["llvm-objdump", "-h", "_m.o"], capture_output=True, text=True).stdout
        size = int(re.search(r"\.text\s+([0-9a-f]+)", o).group(1), 16)
        cb = (size - 256) & ~127
    print(sys.argv[1], "text bytes", size)
```

```python
from common import *

LDS_BYTES = 81920
NVGPR = 128
S_W = 3
SWS, SX, SA, SB, SDBG = 8, 12, 16, 20, 24
S_ID, S_RB32, S_HI, S_XCD, S_IDX = 28, 29, 30, 31, 32
S_VM = 34
P_X, P_WQ, P_WK, P_WV, P_WO, P_WG, P_WU, P_WD, P_OUT, P_DBG, P_WS = 36, 38, 40, 42, 44, 48, 50, 52, 54, 56, 58
SC_ = 4
S_T = 60
S_R = 70
STAMP0 = 86
V_LANE, V_L16, V_NONCE = 1, 2, 3
T0, T1, T2, T3 = 4, 5, 6, 7
SC = "sc1"
VMASK = 0x000FFFFF
TILE = 2560
CHUNK = 8 * TILE
SPIN_MAX = 1 << 14
DPPS = ("quad_perm:[1,0,3,2]", "quad_perm:[2,3,0,1]", "row_half_mirror", "row_mirror")

DOC = """;
;   role F: (1) raw x @ [Wq | Wgate/Wup] tiles (LayerNorm folded in afterwards: rstd*(acc - mean*colsum(W))),
;               writes Q' = q*log2(e)/sqrt(20) and h' = silu(gate)*up / rstd^2 ;
;           (2) f = rstd^2 * (h' @ Wdown), g = silu(f) ; (3) s = O @ Wo, out = x + s*g.
;   role A: small side jobs first (K/V projection + LayerNorm statistics, weight column sums, fragment
; Softmax shift: a Cauchy-Schwarz bound B = |q'|*max|k| on every score of the row gives the stand-in B-48;
;   a run-time check (B <= 72 for every row of the wave, so all exponents stay in [-96,48]) guards it and
;   otherwise the wave first computes the true row maximum (label A2_FB) and uses that.
; Hand-offs between workgroups: write-through stores, drained, then a flag word holding this launch's tag
"""

class Mega:
    def __init__(self, stamps=False, dbg="", code_bytes=0x4000):
        self.a = Asm()
        self.stamps = stamps
        self.code_bytes = code_bytes
        self.dbg = d = dbg.split(",")
        def opt(name, default):
            for x in d:
                if x.startswith(name + "="): return int(x.split("=")[1])
            return default
        self.prio_a = opt("pa", 1)
        self.prio_f1 = opt("pf1", 2)
        self.prio_fe = opt("pfe", 2)
        self.prio_f2 = opt("pf2", 0)
        self.prio_fr = opt("pfr", 0)
        self.hint_j = opt("hj", 6)
        self.pad = opt("pad", 0)
        self.pat1 = "".join(x[2:] for x in d if x.startswith("u="))
        self.pat2 = "".join(x[2:] for x in d if x.startswith("w="))
        self.qsleep = opt("qs", 6)
        self.gsleep = opt("gs", 8)
        self.prio_fp = opt("pfp", 0)
        self.prio_fp2 = opt("pfq", 0)
        self.hsleep = opt("hs", 16)
        self.gmax = opt("gm", 6)
        self.prio_rl = opt("prl", 1)
        self.ksleep = opt("ks", 24)
        self.osleep = opt("os", 2)
        self.prio_sp = opt("psp", 3)
        self.prio_q = opt("pq", 1)
        self.prio_kv = opt("pkv", 3)
        self.f1sw = opt("f1sw", 0)
        self.prio_f1b = opt("pf1b", 0)
        self.asw = opt("asw", 99)
        self.prio_ab = opt("pab", 1)

    def stamp(self, i, tag=""):
        if tag == "f23" and ("f1st" in self.dbg or "kvst" in self.dbg): return
        if tag == "kv" and "kvst" not in self.dbg: return
        if self.stamps:
            self.a("s_memrealtime s[%d:%d]" % (STAMP0 + 2 * i, STAMP0 + 2 * i + 1))

    def finish(self, i_end=7):
        a = self.a
        if self.stamps:
            a("s_waitcnt vmcnt(0)")
            self.stamp(i_end)
            a("s_waitcnt lgkmcnt(0)")
            lab = a.newlabel("LST")
            a("s_cmp_lg_u32 s%d, 0" % S_W)
            a("s_cbranch_scc1 %s" % lab)
            a("s_xor_b32 s%d, s2, %d" % (S_T, 0 if "ffirst" not in self.dbg else 256))
            a("s_lshl_b32 s%d, s%d, 6" % (S_T, S_T))
            a("s_add_u32 s%d, s%d, 0x%x" % (S_T, S_T, STAMP_OFF))
            a("s_add_u32 s%d, s%d, s%d" % (S_T + 2, P_WS, S_T))
            a("s_addc_u32 s%d, s%d, 0" % (S_T + 3, P_WS + 1))
            for r in range(16):
                a("v_mov_b32 v%d, s%d" % (8 + r, STAMP0 + r))
            a("v_mov_b32 v%d, 0" % T0)
            a("s_mov_b64 exec, 1")
            for q in range(4):
                a("global_store_dwordx4 v%d, %s, s[%d:%d] offset:%d" % (T0, vr(8 + 4 * q, 4), S_T + 2, S_T + 3, q * 16))
            a.label(lab)
        a("s_endpgm")

    def load_nonce(self, vz):
        self.a("v_mov_b32 v%d, 0" % vz)
        self.a("buffer_load_dword v%d, v%d, %s, 0 offen %s" % (V_NONCE, vz, sr(SDBG), SC))

    def poll(self, loads, vz, sleep=2, wave0=True, maxit=SPIN_MAX):
        a = self.a
        done = a.newlabel("PD"); loop = a.newlabel("PL")
        if wave0:
            a("s_cmp_lg_u32 s%d, 0" % S_W)
            a("s_cbranch_scc1 %s" % done)
        a("s_mov_b32 s%d, %d" % (S_T, maxit))
        a.label(loop)
        self.load_nonce(vz)
        for d, n, ad, so in loads:
            op = {1: "dword", 2: "dwordx2", 4: "dwordx4"}[n]
            a("buffer_load_%s %s, v%d, %s, %s offen %s" % (op, "v%d" % d if n == 1 else vr(d, n), ad, sr(SWS), so, SC))
        a("s_waitcnt vmcnt(0)")
        a("v_cmp_eq_u32 vcc, 0, v%d" % V_NONCE)
        for d, n, ad, so in loads:
            for r in range(n):
                a("v_cmp_ne_u32 s[%d:%d], v%d, v%d" % (S_T + 4, S_T + 5, V_NONCE, d + r))
                a("s_or_b64 vcc, vcc, s[%d:%d]" % (S_T + 4, S_T + 5))
        a("s_cbranch_scc0 %s" % done)
        a("s_sleep %d" % sleep)
        a("s_sub_u32 s%d, s%d, 1" % (S_T, S_T))
        a("s_cmp_lg_u32 s%d, 0" % S_T)
        a("s_cbranch_scc1 %s" % loop)
        a.label(done)
        if wave0: a("s_barrier")

    def wave_flag(self, soff, vz, first_wait=0):
        a = self.a
        loop = a.newlabel("GL"); ok = a.newlabel("GK")
        a("s_mov_b32 s%d, %d" % (S_T + 6, SPIN_MAX))
        a("v_mov_b32 v%d, 0" % vz)
        if first_wait:
            ent = a.newlabel("GE")
            a("s_waitcnt vmcnt(%d)" % first_wait)
            a("s_branch %s" % ent)
        a.label(loop)
        a("s_waitcnt vmcnt(0)")
        if first_wait: a.label(ent)
        a("v_cmp_ne_u32 vcc, 0, v%d" % V_NONCE)
        a("s_nop 0")
        a("s_cbranch_vccnz %s" % ok)
        a("buffer_load_dword v%d, v%d, %s, 0 offen %s" % (V_NONCE, vz, sr(SDBG), SC))
        a("s_sub_u32 s%d, s%d, 1" % (S_T + 6, S_T + 6))
        a("s_cmp_lg_u32 s%d, 0" % (S_T + 6))
        a("s_cbranch_scc1 %s" % loop)
        a.label(ok)
        a("s_mov_b64 exec, 1")
        a("buffer_store_dword v%d, v%d, %s, %s offen %s" % (V_NONCE, vz, sr(SWS), soff, SC))
        a("s_mov_b64 exec, -1")

    def wg_flag(self, soff):
        a = self.a
        done = a.newlabel("FD")
        self.load_nonce(T3)
        a("s_waitcnt vmcnt(0)")
        a("s_barrier")
        a("s_cmp_lg_u32 s%d, 0" % S_W)
        a("s_cbranch_scc1 %s" % done)
        self.wave_flag(soff, T3)
        a.label(done)

    def meanrstd(self, dst, s0):
        a = self.a
        a("v_mul_f32 v%d, 0x%x, v%d" % (dst, f32bits(-1.0 / 640), s0))
        a("v_mul_f32 v%d, 0x%x, v%d" % (s0 + 1, f32bits(1.0 / 640), s0 + 1))
        a("v_fma_f32 v%d, -v%d, v%d, v%d" % (s0 + 1, dst, dst, s0 + 1))
        a("v_max_f32 v%d, 0, v%d" % (s0 + 1, s0 + 1))
        a("v_add_f32 v%d, 0x%x, v%d" % (s0 + 1, f32bits(1e-5), s0 + 1))
        a("v_rsq_f32 v%d, v%d" % (dst + 1, s0 + 1))
        a("s_nop 0")

    def halfsum(self, regs, tmp):
        a = self.a
        for n, r in enumerate(regs): a("v_mov_b32 v%d, v%d" % (tmp + n, r))
        a("s_nop 1")
        for n, r in enumerate(regs): a("v_permlane32_swap_b32 v%d, v%d" % (tmp + n, r))
        a("s_nop 1")
        for n, r in enumerate(regs): a("v_add_f32 v%d, v%d, v%d" % (r, tmp + n, r))

    def tree(self, base, stride, n, width):
        step = 1
        while step < n:
            for p in range(0, n, 2 * step):
                for r in range(width):
                    self.a("v_add_f32 v%d, v%d, v%d" % (base + p * stride + r, base + p * stride + r, base + (p + step) * stride + r))
            step *= 2

    def prologue(self, name):
        a = self.a
        a.begin_kernel(name)
        if self.stamps:
            for i in range(1, 8): a("s_mov_b64 s[%d:%d], 0" % (STAMP0 + 2 * i, STAMP0 + 2 * i + 1))
        self.stamp(0)
        a("s_cmp_ge_u32 s2, 512")
        a("s_cbranch_scc0 M_GO")
        a("s_endpgm")
        a.label("M_GO")
        a("s_load_dwordx4 s[36:39], s[0:1], 0")
        a("s_load_dwordx4 s[40:43], s[0:1], 16")
        a("s_load_dwordx2 s[44:45], s[0:1], 32")
        a("s_load_dwordx4 s[48:51], s[0:1], 48")
        a("s_load_dwordx4 s[52:55], s[0:1], 64")
        a("s_load_dwordx4 s[56:59], s[0:1], 80")
        a("s_memrealtime s[%d:%d]" % (S_T + 8, S_T + 9))
        if "padown" in self.dbg: a("s_memrealtime s[100:101]")
        a("v_lshrrev_b32 v%d, 6, v0" % T0)
        a("v_and_b32 v%d, 63, v0" % V_LANE)
        a("v_readfirstlane_b32 s%d, v%d" % (S_W, T0))
        a("v_lshlrev_b32 v%d, 4, v%d" % (V_L16, V_LANE))
        if "pf" in self.dbg:
            a("s_getpc_b64 s[%d:%d]" % (S_T + 4, S_T + 5))
            a("v_lshlrev_b32 v%d, 7, v0" % T1)
            a("v_cmp_gt_u32 vcc, 0x%x, v%d" % (self.code_bytes, T1))
            a("s_and_saveexec_b64 s[%d:%d], vcc" % (S_T + 6, S_T + 7))
            a("s_cbranch_execz M_NPF")
            a("global_load_dword v19, v%d, s[%d:%d]" % (T1, S_T + 4, S_T + 5))
            a.label("M_NPF")
            a("s_mov_b64 exec, -1")
        a("v_mov_b32 v%d, 0" % V_NONCE)
        a("s_and_b32 s%d, s2, 255" % S_ID)
        a("s_and_b32 s%d, s2, 7" % S_XCD)
        a("s_lshr_b32 s%d, s%d, 3" % (S_IDX, S_ID))
        a("s_lshl_b32 s%d, s%d, 2" % (S_RB32, S_XCD))
        a("s_and_b32 s%d, s%d, 3" % (S_T + 2, S_IDX))
        a("s_add_u32 s%d, s%d, s%d" % (S_RB32, S_RB32, S_T + 2))
        a("s_lshr_b32 s%d, s%d, 5" % (S_HI, S_ID))
        a("s_mov_b32 s%d, 0x%x" % (S_VM, VMASK))
        a("s_mov_b32 s%d, 0x%x" % (S_VM + 1, VMASK))
        a("v_lshrrev_b32 v%d, 4, v%d" % (T0, V_LANE))
        a("s_and_b32 s%d, s%d, 1" % (S_T, S_W))
        a("s_lshl_b32 s%d, s%d, 2" % (S_T, S_T))
        a("v_add_u32 v%d, s%d, v%d" % (T0, S_T, T0))
        a("v_and_b32 v%d, 7, v%d" % (T1, V_LANE))
        a("v_xor_b32 v%d, v%d, v%d" % (T0, T0, T1))
        a("v_lshrrev_b32 v%d, 3, v%d" % (T1, V_LANE))
        a("v_mul_u32_u24 v%d, 1280, v%d" % (T1, T1))
        a("v_lshl_add_u32 v8, v%d, 4, v%d" % (T0, T1))
        a("s_cmp_lt_u32 s2, 256" if "ffirst" not in self.dbg else "s_cmp_ge_u32 s2, 256")
        a("s_waitcnt lgkmcnt(0)")
        srd(a, SWS, P_WS, P_WS + 1, WS_USED)
        srd(a, SX, P_X, P_X + 1, 2621440)
        srd(a, SDBG, P_DBG, P_DBG + 1, 256)
        a("s_cbranch_scc0 ROLE_F" if "ffirst" not in self.dbg else "s_cbranch_scc1 ROLE_A")

    def role_a(self):
        a = self.a; dbg = self.dbg
        S_TI, S_HEAD = S_R, S_R + 1
        a("; role A")
        a.label("ROLE_A")
        a("s_or_b32 s%d, s%d, s%d" % (S_T + 2, S_ID, S_W))
        a("s_cmp_lg_u32 s%d, 0" % (S_T + 2))
        a("s_cbranch_scc1 M_NT")
        a("s_or_b32 s%d, s%d, 1" % (S_T + 8, S_T + 8))
        a("v_mov_b32 v%d, s%d" % (T0, S_T + 8))
        a("v_mov_b32 v%d, 0" % T1)
        a("s_mov_b64 exec, 1")
        a("buffer_store_dword v%d, v%d, %s, 0 offen %s" % (T0, T1, sr(SDBG), SC))
        a("s_mov_b64 exec, -1")
        a.label("M_NT")
        a("s_cmp_lt_u32 s%d, 4" % S_HI)
        a("s_cbranch_scc0 AUX_2")
        a("s_setprio %d" % self.prio_kv)
        self.kv_issue()
        a.label("KV_I")
        self.kv_body()
        self.wave_flag("s%d" % (S_R + 15), T0)
        a("s_branch AUX_RL")
        a.label("A_GO")
        self.stamp(1)
        if "noA" in dbg: self.finish()
        a("s_setprio %d" % self.prio_q)
        V_KA, V_K1A, V_V0A, V_V1A, V_IDX = 120, 121, 122, 123, 124
        AD = 125
        O = 96
        V0, V1 = 112, 116
        Q0, Q1 = 8, 12
        K0, K1 = 16, 20
        SAa, SBb = 24, 40
        QA = 74
        S_SRC, S_DST, S_C, S_DK, S_CUR, S_OO, S_FO, S_KM, S_QO = S_R + 2, S_R + 3, S_R + 4, S_R + 5, S_R + 6, S_R + 8, S_R + 9, S_R + 10, S_R + 11
        a("s_and_b32 s%d, s%d, 1" % (S_TI, S_W))
        a("s_lshr_b32 s%d, s%d, 1" % (S_T + 2, S_W))
        a("s_lshl_b32 s%d, s%d, 2" % (S_HEAD, S_HI))
        a("s_add_u32 s%d, s%d, s%d" % (S_HEAD, S_HEAD, S_T + 2))
        a("v_and_b32 v%d, 31, v%d" % (T0, V_LANE))
        a("v_lshrrev_b32 v%d, 5, v%d" % (T1, V_LANE))
        a("v_mov_b32 v%d, v%d" % (V_KA, V_L16))
        a("v_lshlrev_b32 v%d, 3, v%d" % (V_K1A, T0))
        a("v_mul_u32_u24 v%d, 320, v%d" % (V_V0A, T1))
        a("v_lshl_add_u32 v%d, v%d, 4, v%d" % (V_V0A, T0, V_V0A))
        a("v_mov_b32 v%d, v%d" % (V_V1A, V_V0A))
        a("v_mov_b32 v%d, 0xdddddddd" % V_IDX)
        a("s_mul_i32 s%d, s%d, 20" % (S_T, S_HEAD))
        a("v_lshlrev_b32 v%d, 4, v%d" % (T0, T0))
        for j in range(3):
            if j < 2:
                a("v_lshl_add_u32 v%d, v%d, 3, s%d" % (T2, T1, S_T))
                if j: a("v_add_u32 v%d, 4, v%d" % (T2, T2))
            else:
                a("v_mov_b32 v%d, s%d" % (T2, S_T))
                a("v_add_u32 v%d, 16, v%d" % (T2, T2))
            a("v_lshrrev_b32 v%d, 3, v%d" % (T3, T2))
            a("v_lshl_add_u32 v%d, v%d, 9, v%d" % (QA + j, T3, T0))
            a("v_and_b32 v%d, 4, v%d" % (T3, T2))
            a("v_lshl_add_u32 v%d, v%d, 1, v%d" % (QA + j, T3, QA + j))
        a("s_lshl_b32 s%d, s%d, 1" % (S_QO, S_RB32))
        a("s_add_u32 s%d, s%d, s%d" % (S_QO, S_QO, S_TI))
        a("s_mul_i32 s%d, s%d, 40960" % (S_QO, S_QO))
        if WS_QP: a("s_add_u32 s%d, s%d, 0x%x" % (S_QO, S_QO, WS_QP))
        a("v_and_b32 v%d, 3, v%d" % (T2, V_LANE))
        a("v_lshlrev_b32 v%d, 5, v%d" % (T2, T2))
        a("v_min_u32 v%d, 79, v%d" % (T2, T2))
        a("s_mul_i32 s%d, s%d, 80" % (S_T + 1, S_HI))
        a("v_add_u32 v%d, s%d, v%d" % (T2, S_T + 1, T2))
        a("v_lshrrev_b32 v%d, 7, v%d" % (T3, T2))
        a("v_add_u32 v%d, 27, v%d" % (T3, T3))
        a("v_lshrrev_b32 v77, 1, v%d" % T3)
        a("v_lshlrev_b32 v77, 7, v77")
        a("v_and_b32 v%d, 1, v%d" % (T3, T3))
        a("v_lshl_add_u32 v77, v%d, 4, v77" % T3)
        a("v_bfe_u32 v%d, v%d, 5, 1" % (T3, T2))
        a("v_lshl_add_u32 v77, v%d, 3, v77" % T3)
        a("s_lshr_b32 s%d, s%d, 1" % (S_T + 1, S_RB32))
        a("s_lshl_b32 s%d, s%d, 11" % (S_T + 1, S_T + 1))
        a("s_and_b32 s%d, s%d, 1" % (S_T + 2, S_RB32))
        a("s_lshl_b32 s%d, s%d, 2" % (S_T + 2, S_T + 2))
        a("s_add_u32 s%d, s%d, s%d" % (S_T + 1, S_T + 1, S_T + 2))
        a("s_add_u32 s%d, s%d, 0x%x" % (S_T + 1, S_T + 1, F2_H))
        a("v_add_u32 v77, s%d, v77" % (S_T + 1))
        a("v_lshl_add_u32 v%d, v%d, 2, s%d" % (T1, T1, S_T))
        a("v_and_b32 v%d, 15, v%d" % (T0, V_LANE))
        a("v_lshlrev_b32 v%d, 4, v%d" % (T0, T0))
        a("v_bfe_u32 v%d, v%d, 4, 1" % (T2, V_LANE))
        a("v_lshl_add_u32 v%d, v%d, 10, v%d" % (T0, T2, T0))
        for j in range(3):
            a("v_add_u32 v%d, %d, v%d" % (T2, 8 * j, T1))
            a("v_lshrrev_b32 v%d, 5, v%d" % (T3, T2))
            a("v_lshl_add_u32 v%d, v%d, 12, v%d" % (AD + j, T3, T0))
            a("v_bfe_u32 v%d, v%d, 3, 2" % (T3, T2))
            a("v_lshl_add_u32 v%d, v%d, 8, v%d" % (AD + j, T3, AD + j))
            a("v_and_b32 v%d, 7, v%d" % (T3, T2))
            a("v_lshl_add_u32 v%d, v%d, 1, v%d" % (AD + j, T3, AD + j))
        a("s_mul_i32 s%d, s%d, 74" % (S_OO, S_RB32))
        a("s_add_u32 s%d, s%d, 54" % (S_OO, S_OO))
        a("s_lshl_b32 s%d, s%d, 12" % (S_OO, S_OO))
        a("s_lshl_b32 s%d, s%d, 11" % (S_T + 1, S_TI))
        a("s_add_u32 s%d, s%d, s%d" % (S_OO, S_OO, S_T + 1))
        a("s_add_u32 s%d, s%d, 0x%x" % (S_OO, S_OO, WS_HO))
        a("s_lshl_b32 s%d, s%d, 10" % (S_FO, S_RB32))
        a("s_lshl_b32 s%d, s%d, 7" % (S_T + 1, S_HI))
        a("s_add_u32 s%d, s%d, s%d" % (S_FO, S_FO, S_T + 1))
        a("s_lshl_b32 s%d, s%d, 2" % (S_T + 1, S_W))
        a("s_add_u32 s%d, s%d, s%d" % (S_FO, S_FO, S_T + 1))
        a("s_add_u32 s%d, s%d, 0x%x" % (S_FO, S_FO, F2_O))
        a("s_lshl_b32 s%d, s%d, 10" % (S_T + 1, S_RB32))
        a("s_add_u32 s%d, s%d, 0x%x" % (S_T + 1, S_T + 1, F2_O + 32))
        a("v_and_b32 v72, 7, v%d" % V_LANE)
        a("v_lshlrev_b32 v72, 7, v72")
        a("v_add_u32 v72, s%d, v72" % (S_T + 1))
        for r in range(8): a("v_mov_b32 v%d, 0" % (V0 + r))
        a("s_mov_b32 exec_lo, 0x11000000")
        a("s_mov_b32 exec_hi, 0x11000000")
        for r in range(8): a("v_mov_b32 v%d, 0x3f803f80" % (V0 + r))
        a("s_mov_b64 exec, -1")
        for r in range(8): a("v_mov_b32 v%d, v%d" % (64 + r, V0))
        for r in range(16): a("v_mov_b32 v%d, 0" % (O + r))
        for r in range(8, 16): a("v_mov_b32 v%d, 0" % (SBb + r))
        for k in (K1 + 2, 62): a("v_mov_b32 v%d, 0x3f803f80" % k)
        for k in (K1 + 3, 63): a("v_mov_b32 v%d, 0x00003f80" % k)
        a("v_mov_b32 v%d, 0" % (Q1 + 2))
        a("v_mov_b32 v%d, 0" % (Q1 + 3))
        a("v_lshlrev_b32 v%d, 7, v%d" % (T0, V_LANE))
        a("s_mov_b32 s%d, 0x%x" % (S_T + 1, F2_K))
        a("s_mov_b32 s%d, 0x%x" % (S_T + 2, F2_K + 8192))
        a("s_cmp_lg_u32 s%d, 0" % S_W)
        a("s_cbranch_scc1 A_PP")
        a("s_cmp_lt_u32 s%d, 4" % S_HI)
        a("s_cbranch_scc1 A_PP")
        a("v_and_b32 v%d, 0x180, v%d" % (T1, T0))
        a("s_lshl_b32 s%d, s%d, 9" % (S_T + 3, S_RB32))
        a("s_add_u32 s%d, s%d, 0x%x" % (S_T + 3, S_T + 3, F2_K))
        self.poll([(24, 4, T1, "s%d" % (S_T + 3))], T3, sleep=40, wave0=False)
        a("s_sleep 40")
        a.label("A_PP")
        self.poll([(24, 4, T0, "s%d" % (S_T + 1)), (28, 4, T0, "s%d" % (S_T + 2))], T3, sleep=self.ksleep)
        self.stamp(5)
        def dma_chunk(tag):
            for m in range(3):
                if m == 2:
                    a("s_cmp_ge_u32 s%d, 4" % S_W)
                    a("s_cbranch_scc1 A2_DS%s" % tag)
                a("s_add_u32 m0, s%d, %d" % (S_DST, m * 8192))
                a("s_add_u32 s%d, s%d, %d" % (S_T, S_SRC, m * 8192))
                a("buffer_load_dwordx4 v%d, %s, s%d offen %s lds" % (V_L16, sr(SWS), S_T, SC))
            a.label("A2_DS%s" % tag)
            a("s_add_u32 s%d, s%d, %d" % (S_SRC, S_SRC, CHUNK))
            a("s_add_u32 s%d, s%d, %d" % (S_DST, S_DST, CHUNK))
            a("s_cmp_ge_u32 s%d, %d" % (S_DST, 3 * CHUNK))
            a("s_cbranch_scc0 A2_DW%s" % tag)
            a("s_sub_u32 s%d, s%d, %d" % (S_DST, S_DST, 3 * CHUNK))
            a.label("A2_DW%s" % tag)
        KN = 24
        a("s_mov_b32 s%d, 0x%x" % (S_T, WS_KN))
        a("buffer_load_dwordx4 %s, v%d, %s, s%d offen %s" % (vr(KN, 4), V_L16, sr(SWS), S_T, SC))
        a("s_lshl_b32 s%d, s%d, 10" % (S_DST, S_W))
        a("s_add_u32 s%d, s%d, 0x%x" % (S_SRC, S_DST, WS_KV))
        dma_chunk("a")
        dma_chunk("b")
        a("s_waitcnt vmcnt(0)")
        a("s_barrier")
        a("v_add_f32 v%d, v%d, v%d" % (KN, KN, KN + 1))
        a("v_add_f32 v%d, v%d, v%d" % (KN, KN, KN + 2))
        for dpp in DPPS:
            a("s_nop 1")
            a("v_max_f32_dpp v%d, v%d, v%d %s row_mask:0xf bank_mask:0xf" % (KN, KN, KN, dpp))
        a("s_nop 0")
        for q in range(4): a("v_readlane_b32 s%d, v%d, %d" % (S_T + q, KN, 16 * q))
        a("s_nop 3")
        a("s_max_u32 s%d, s%d, s%d" % (S_T, S_T, S_T + 1))
        a("s_max_u32 s%d, s%d, s%d" % (S_T + 2, S_T + 2, S_T + 3))
        a("s_max_u32 s%d, s%d, s%d" % (S_KM, S_T, S_T + 2))
        self.load_nonce(T3)
        self.poll([(T1, 1, 77, "0")], T3, sleep=self.qsleep)
        a("s_setprio 3")
        self.stamp(2)
        a("buffer_load_dwordx2 %s, v%d, %s, s%d offen %s" % (vr(Q0, 2), QA, sr(SWS), S_QO, SC))
        a("buffer_load_dwordx2 %s, v%d, %s, s%d offen %s" % (vr(Q0 + 2, 2), QA + 1, sr(SWS), S_QO, SC))
        a("buffer_load_dwordx2 %s, v%d, %s, s%d offen %s" % (vr(Q1, 2), QA + 2, sr(SWS), S_QO, SC))
        a("v_mov_b32 v%d, 0" % T2)
        a("s_waitcnt vmcnt(0)")
        if "nogate" not in dbg:
            a("s_cmp_lg_u32 s%d, 0" % S_W)
            a("s_cbranch_scc1 A_NS")
            a("s_mov_b64 exec, 1")
            a("buffer_store_dword v%d, v%d, %s, s%d offen offset:36 %s" % (V_NONCE, T2, sr(SWS), S_FO, SC))
            a("s_mov_b64 exec, -1")
            a.label("A_NS")
        a("s_mov_b32 exec_lo, 0")
        a("v_mov_b32 v%d, 0" % Q1)
        a("v_mov_b32 v%d, 0" % (Q1 + 1))
        a("s_mov_b64 exec, -1")
        for r in range(6):
            a("v_lshlrev_b32 v%d, 16, v%d" % (T0, Q0 + r))
            a("v_and_b32 v%d, 0xffff0000, v%d" % (T1, Q0 + r))
            a("v_fmac_f32 v%d, v%d, v%d" % (T2, T0, T0))
            a("v_fmac_f32 v%d, v%d, v%d" % (T2, T1, T1))
        self.halfsum([T2], T3)
        a("v_mul_f32 v%d, s%d, v%d" % (T2, S_KM, T2))
        a("v_sqrt_f32 v%d, v%d" % (T2, T2))
        a("v_mov_b32 v%d, 0x%x" % (T3, f32bits(72.0)))
        a("v_mul_f32 v%d, 0x%x, v%d" % (T2, f32bits(1.02), T2))
        a("v_cmp_nle_f32 vcc, v%d, v%d" % (T2, T3))
        a("v_add_f32 v%d, 0x%x, v%d" % (T2, f32bits(-48.0), T2))
        a("s_nop 0")
        if "forcefb" in dbg: a("s_branch A2_FB")
        a("s_cbranch_vccnz A2_FB")
        a.label("A2_SETM")
        a("v_sub_f32 v%d, 0, v%d" % (T2, T2))
        a("v_and_b32 v%d, 0xffff0000, v%d" % (T3, T2))
        a("v_sub_f32 v%d, v%d, v%d" % (T2, T2, T3))
        a("v_and_b32 v%d, 0xffff0000, v%d" % (T0, T2))
        a("v_sub_f32 v%d, v%d, v%d" % (T2, T2, T0))
        a("v_lshrrev_b32 v%d, 16, v%d" % (T3, T3))
        a("s_mov_b32 exec_hi, 0")
        a("v_or_b32 v%d, v%d, v%d" % (Q1 + 2, T3, T0))
        a("v_lshrrev_b32 v%d, 16, v%d" % (Q1 + 3, T2))
        a("s_mov_b64 exec, -1")
        a("s_setprio %d" % self.prio_a)
        self.stamp(3)
        KS = [K0, 56]; VS = [V0, 64]
        def rdK0(p, off): a("ds_read_b128 %s, v%d offset:%d" % (vr(KS[p], 4), V_KA, off))
        def rdK1(p, off): a("ds_read_b64 %s, v%d offset:%d" % (vr(KS[p] + 4, 2), V_K1A, off + 1024))
        def qk0(S, p=0): a("v_mfma_f32_32x32x16_bf16 %s, %s, %s, 0" % (vr(S, 16), vr(KS[p], 4), vr(Q0, 4)))
        def qk1(S, p=0): a("v_mfma_f32_32x32x16_bf16 %s, %s, %s, %s" % (vr(S, 16), vr(KS[p] + 4, 4), vr(Q1, 4), vr(S, 16)))
        def pv(Vf, P): a("v_smfmac_f32_32x32x32_bf16 %s, %s, %s, v%d" % (vr(O, 16), vr(Vf, 4), vr(P, 8), V_IDX))
        def ex(S, lo, hi):
            for r in range(lo, hi): a("v_exp_f32 v%d, v%d" % (S + r, S + r))
        rdK0(1, 0); rdK1(1, 0)
        rdK0(0, TILE); rdK1(0, TILE)
        a("s_mov_b64 exec, s[%d:%d]" % (S_VM, S_VM + 1))
        a("ds_read_b128 %s, v%d offset:1280" % (vr(VS[0], 4), V_V0A))
        a("s_mov_b64 exec, -1")
        a("s_waitcnt lgkmcnt(3)")
        qk0(SAa, 1); qk1(SAa, 1)
        a("s_mov_b32 s%d, 0" % S_C)
        a("s_mov_b32 s%d, 0" % S_CUR)
        a("s_nop 7")
        a.label("A2_LOOP")
        a("s_add_u32 s%d, s%d, %d" % (S_CUR, S_CUR, CHUNK))
        a("s_cmp_eq_u32 s%d, %d" % (S_CUR, 3 * CHUNK))
        sel(a, S_DK, (-2 * CHUNK) & 0xffffffff, CHUNK)
        a("s_cselect_b32 s%d, 0, s%d" % (S_CUR, S_CUR))
        for j in range(8):
            Sc, Sn = (SAa, SBb) if j % 2 == 0 else (SBb, SAa)
            p = j & 1; n = 1 - p
            if j == self.hint_j and "nofill" not in dbg:
                a("s_cmp_lg_u32 s%d, 7" % S_C)
                a("s_cbranch_scc1 A2_NH")
                a("s_waitcnt vmcnt(0)")
                a("v_cmp_ne_u32 vcc, v%d, v73" % V_NONCE)
                a("v_cmp_eq_u32 s[%d:%d], 0, v73" % (S_T + 4, S_T + 5))
                a("s_or_b64 vcc, vcc, s[%d:%d]" % (S_T + 4, S_T + 5))
                a("s_cbranch_scc0 A2_PF")
                self.poll([(73, 1, 72, "0")], T0, sleep=4, wave0=False)
                a.label("A2_PF")
                self.wave_flag("s%d" % S_FO, T0)
                a.label("A2_NH")
            if j == 6:
                a("s_cmp_eq_u32 s%d, 7" % S_C)
                a("s_cbranch_scc1 A2_NODMA")
                a("s_waitcnt vmcnt(0)")
                a("s_barrier")
                a("s_cmp_ge_u32 s%d, 6" % S_C)
                a("s_cbranch_scc1 A2_LC")
                a("s_setprio 3")
                dma_chunk("c")
                a("s_setprio %d" % self.prio_a)
                a("s_branch A2_NODMA")
                a.label("A2_LC")
                self.load_nonce(T0)
                a("buffer_load_dword v73, v72, %s, 0 offen %s" % (sr(SWS), SC))
                a.label("A2_NODMA")
                a("v_add_u32 v%d, s%d, v%d" % (V_KA, S_DK, V_KA))
                a("v_add_u32 v%d, s%d, v%d" % (V_K1A, S_DK, V_K1A))
            if j == 7:
                a("v_add_u32 v%d, s%d, v%d" % (V_V0A, S_DK, V_V0A))
            a("s_waitcnt lgkmcnt(0)")
            rdK0(n, ((j + 2) % 8) * TILE)
            pv(VS[p] + 4, Sn + 8)
            rdK1(n, ((j + 2) % 8) * TILE)
            ex(Sc, 0, 4)
            qk0(Sn, p)
            a("s_mov_b64 exec, s[%d:%d]" % (S_VM, S_VM + 1))
            a("ds_read_b128 %s, v%d offset:%d" % (vr(VS[n] + 4, 4), V_V1A, j * TILE + 1920))
            a("ds_read_b128 %s, v%d offset:%d" % (vr(VS[n], 4), V_V0A, ((j + 1) % 8) * TILE + 1280))
            a("s_mov_b64 exec, -1")
            ex(Sc, 4, 8)
            qk1(Sn, p)
            ex(Sc, 8, 12)
            pv(VS[p], Sc)
            ex(Sc, 12, 16)
            if j == 7: a("v_add_u32 v%d, s%d, v%d" % (V_V1A, S_DK, V_V1A))
        a("s_add_u32 s%d, s%d, 1" % (S_C, S_C))
        if "atst" in dbg:
            for c_, sl in ((1, 1), (2, 2), (4, 5), (6, 6)):
                a("s_cmp_lg_u32 s%d, %d" % (S_C, c_))
                a("s_cbranch_scc1 A2_S%d" % c_)
                self.stamp(sl)
                a.label("A2_S%d" % c_)
        a("s_cmp_lt_u32 s%d, 8" % S_C)
        a("s_cbranch_scc1 A2_LOOP")
        a("s_setprio 3")
        a("s_waitcnt lgkmcnt(0)")
        pv(V1, SBb + 8)
        self.stamp(4)
        a("s_nop 11")
        a("v_rcp_f32 v%d, v%d" % (T3, O + 12))
        a("s_nop 0")
        for r in range(12): a("v_mul_f32 v%d, v%d, v%d" % (O + r, T3, O + r))
        PK = SAa
        for r in range(6): a("v_cvt_pk_bf16_f32 v%d, v%d, v%d" % (PK + r, O + 2 * r, O + 2 * r + 1))
        a("buffer_store_dwordx2 %s, v%d, %s, s%d offen %s" % (vr(PK, 2), AD, sr(SWS), S_OO, SC))
        a("buffer_store_dwordx2 %s, v%d, %s, s%d offen %s" % (vr(PK + 2, 2), AD + 1, sr(SWS), S_OO, SC))
        a("s_mov_b32 exec_hi, 0")
        a("buffer_store_dwordx2 %s, v%d, %s, s%d offen %s" % (vr(PK + 4, 2), AD + 2, sr(SWS), S_OO, SC))
        a("s_mov_b64 exec, -1")
        if "nofill" in dbg: self.wave_flag("s%d" % S_FO, T0)
        self.finish()
        a.label("A2_FB")
        a("v_mov_b32 v%d, 0xff800000" % T2)
        a("s_mov_b32 s%d, 0x%x" % (S_T, WS_KV))
        a.label("A2_FBL")
        a("buffer_load_dwordx4 %s, v%d, %s, s%d offen %s" % (vr(K0, 4), V_KA, sr(SWS), S_T, SC))
        a("buffer_load_dwordx2 %s, v%d, %s, s%d offen offset:1024 %s" % (vr(K1, 2), V_K1A, sr(SWS), S_T, SC))
        a("s_waitcnt vmcnt(0)")
        qk0(SAa); qk1(SAa)
        a("s_nop 15")
        for r in range(0, 16, 2): a("v_max3_f32 v%d, v%d, v%d, v%d" % (T2, T2, SAa + r, SAa + r + 1))
        a("s_add_u32 s%d, s%d, %d" % (S_T, S_T, TILE))
        a("s_cmp_lt_u32 s%d, 0x%x" % (S_T, WS_KV + 64 * TILE))
        a("s_cbranch_scc1 A2_FBL")
        a("v_mov_b32 v%d, v%d" % (T3, T2))
        a("s_nop 1")
        a("v_permlane32_swap_b32 v%d, v%d" % (T3, T2))
        a("s_nop 1")
        a("v_max_f32 v%d, v%d, v%d" % (T2, T2, T3))
        a("s_branch A2_SETM")

    F2_WO, F2_W1K, F2_RLOK = S_R + 12, S_R + 13, S_R + 14
    def f2_wsetup(self):
        a = self.a
        a("s_lshl_b32 s%d, s%d, 10" % (self.F2_W1K, S_W))
        a("s_mul_i32 s%d, s%d, %d" % (self.F2_WO, S_HI, 74 * 5120))
        a("s_add_u32 s%d, s%d, s%d" % (self.F2_WO, self.F2_WO, self.F2_W1K))
        a("s_add_u32 s%d, s%d, 0x%x" % (self.F2_WO, self.F2_WO, WS_WF2))
    def f2_dmaW(self, g):
        a = self.a
        lab = a.newlabel("F2D")
        for m in range(3):
            if m == 2:
                a("s_cmp_ge_u32 s%d, 4" % S_W)
                a("s_cbranch_scc1 %s" % lab)
            a("s_add_u32 m0, s%d, %d" % (self.F2_W1K, (g % 4) * 20480 + m * 8192))
            a("s_add_u32 s%d, s%d, %d" % (S_T + 7, self.F2_WO, g * 20480 + m * 8192))
            a("buffer_load_dwordx4 v%d, %s, s%d offen %s lds" % (V_L16, sr(SWS), S_T + 7, SC))
        a.label(lab)

    def role_f1(self):
        a = self.a; dbg = self.dbg
        V_VX, V_VG, V_VU = 8, 9, 10
        V_XA = 12
        V_WA = 14
        V_SX = 16
        F = [24, 40]
        ACC = 56
        S_RB, S_CB, S_TH, S_CG, S_OX, S_OW, S_BX, S_BW, S_STG, S_ACT = [S_R + i for i in range(10)]
        WREG = 32768
        S_HT, S_WST = S_R + 10, S_R + 11
        a.label("ROLE_F")
        a("s_setprio %d" % self.prio_f1)
        a("s_and_b32 s%d, s%d, 3" % (S_T, S_XCD))
        a("s_lshr_b32 s%d, s%d, 3" % (S_CB, S_IDX))
        a("s_sub_u32 s%d, 3, s%d" % (S_CB, S_CB))
        a("s_lshl_b32 s%d, s%d, 2" % (S_CB, S_CB))
        a("s_add_u32 s%d, s%d, s%d" % (S_CB, S_CB, S_T))
        a("s_and_b32 s%d, s%d, 7" % (S_T, S_IDX))
        a("s_and_b32 s%d, s%d, 4" % (S_RB, S_XCD))
        a("s_lshl_b32 s%d, s%d, 1" % (S_RB, S_RB))
        a("s_add_u32 s%d, s%d, s%d" % (S_RB, S_RB, S_T))
        a("s_lshl_b32 s%d, s%d, 4" % (S_T, S_RB))
        a("s_add_u32 s%d, s%d, s%d" % (S_T, S_T, S_W))
        a("s_mul_i32 s%d, s%d, 10240" % (S_OX, S_T))
        a("s_lshl_b32 s%d, s%d, 10" % (S_BW, S_W))
        a("s_mov_b32 s%d, s%d" % (S_BX, S_BW))
        def dmaX():
            return [
              ["s_mov_b32 m0, s%d" % S_BX, "s_add_u32 s%d, s%d, 81920" % (S_T, S_OX),
               "buffer_load_dwordx4 v%d, %s, s%d offen lds" % (V_VX, sr(SX), S_OX)],
              ["s_add_u32 m0, s%d, 8192" % S_BX, "s_add_u32 s%d, s%d, 128" % (S_OX, S_OX),
               "buffer_load_dwordx4 v%d, %s, s%d offen lds" % (V_VX, sr(SX), S_T), "s_xor_b32 s%d, s%d, 16384" % (S_BX, S_BX)],
            ]
        def dmaW(b):
            return [
              ["s_add_u32 m0, s%d, %d" % (S_BW, WREG + b * 16384), "s_nop 0",
               "buffer_load_dwordx4 v%d, %s, s%d offen lds" % (V_VG, sr(SA), S_OW)],
              ["s_add_u32 m0, s%d, %d" % (S_BW, WREG + b * 16384 + 8192), "s_nop 0",
               "buffer_load_dwordx4 v%d, %s, s%d offen lds" % (V_VU, sr(SB), S_OW), "s_add_u32 s%d, s%d, s%d" % (S_OW, S_OW, S_WST)],
            ]
        def emit(groups):
            for g in groups:
                for op in g: a(op)
        if "noF" in dbg:
            a("s_cmp_lt_u32 s%d, 3" % S_CB)
            a("s_cbranch_scc1 F1_KEEP")
            self.finish()
            a.label("F1_KEEP")
        emit(dmaX())
        a("s_lshr_b32 s%d, s%d, 2" % (S_T, S_W))
        a("s_lshl_b32 s%d, s%d, 1" % (S_HT, S_CB))
        a("s_add_u32 s%d, s%d, s%d" % (S_HT, S_HT, S_T))
        a("s_add_u32 s%d, s%d, 27" % (S_HT, S_HT))
        a("s_and_b32 s%d, s%d, 31" % (S_HT, S_HT))
        a("s_lshl_b32 s%d, s%d, 7" % (S_T + 1, S_HT))
        a("s_lshl_b32 s%d, s%d, 8" % (S_T + 2, S_HT))
        a("s_sub_u32 s%d, s%d, %d" % (S_T + 2, S_T + 2, 27 * 256))
        a("s_cmp_lt_u32 s%d, 27" % S_HT)
        a("s_cselect_b32 s%d, 1, 0" % S_ACT)
        a("s_cselect_b32 s%d, s%d, s%d" % (S_OW, S_T + 1, S_T + 2))
        sel(a, S_T + 3, 3456, 1280)
        a("s_cselect_b32 s%d, s%d, s%d" % (SA, P_WG, P_WQ))
        a("s_cselect_b32 s%d, s%d, s%d" % (SA + 1, P_WG + 1, P_WQ + 1))
        sel(a, SA + 2, 2211840, 819200)
        a("s_mov_b32 s%d, 0x20000" % (SA + 3))
        a("s_cselect_b32 s%d, s%d, s%d" % (SB, P_WU, P_WQ))
        a("s_cselect_b32 s%d, s%d, s%d" % (SB + 1, P_WU + 1, P_WQ + 1))
        a("s_mov_b32 s%d, s%d" % (SB + 2, SA + 2))
        a("s_mov_b32 s%d, 0x20000" % (SB + 3))
        a("s_cselect_b32 s%d, 32, 128" % (S_T + 4))
        a("s_lshl_b32 s%d, s%d, 5" % (S_WST, S_T + 3))
        a("s_and_b32 s%d, s%d, 3" % (S_T, S_W))
        a("s_mul_i32 s%d, s%d, s%d" % (S_T, S_T, S_T + 3))
        a("s_lshl_b32 s%d, s%d, 3" % (S_T, S_T))
        a("s_add_u32 s%d, s%d, s%d" % (S_OW, S_OW, S_T))
        a("v_lshrrev_b32 v%d, 5, v%d" % (T2, V_LANE))
        a("v_bfe_u32 v%d, v%d, 2, 2" % (T1, V_LANE))
        a("v_lshl_add_u32 v%d, v%d, 2, v%d" % (T0, T2, T1))
        a("v_mul_lo_u32 v%d, v%d, s%d" % (T0, T0, S_T + 3))
        a("v_bfe_u32 v%d, v%d, 4, 1" % (T3, V_LANE))
        a("v_lshl_add_u32 v%d, v%d, 6, v%d" % (T0, T3, T0))
        a("v_and_b32 v%d, 3, v%d" % (T3, V_LANE))
        a("v_lshl_add_u32 v%d, v%d, 4, v%d" % (V_VG, T3, T0))
        a("v_xor_b32 v%d, s%d, v%d" % (V_VU, S_T + 4, V_VG))
        emit(dmaW(0) + dmaW(1) + dmaX() + dmaW(2))
        a("s_and_b32 s%d, s%d, 1" % (S_TH, S_W))
        a("s_lshr_b32 s%d, s%d, 1" % (S_CG, S_W))
        a("v_bfe_u32 v%d, v%d, 2, 2" % (T1, V_LANE))
        a("v_and_b32 v%d, 31, v%d" % (T0, V_LANE))
        a("v_bfe_u32 v%d, v%d, 1, 3" % (T3, V_LANE))
        a("v_xor_b32 v%d, v%d, v%d" % (T3, T3, T2))
        a("v_lshlrev_b32 v%d, 4, v%d" % (T3, T3))
        a("v_lshl_add_u32 v%d, v%d, 7, v%d" % (T3, T0, T3))
        a("s_lshl_b32 s%d, s%d, 13" % (S_T, S_TH))
        a("v_add_u32 v%d, s%d, v%d" % (V_XA, S_T, T3))
        a("v_xor_b32 v%d, 32, v%d" % (V_XA + 1, V_XA))
        a("v_and_b32 v%d, 1, v%d" % (T0, V_LANE))
        a("v_lshlrev_b32 v%d, 4, v%d" % (T0, T0))
        a("v_bfe_u32 v%d, v%d, 1, 1" % (T3, V_LANE))
        a("v_lshl_add_u32 v%d, v%d, 3, v%d" % (T0, T3, T0))
        a("v_lshl_add_u32 v%d, v%d, 6, v%d" % (T0, T1, T0))
        a("v_lshl_add_u32 v%d, v%d, 10, v%d" % (T0, T2, T0))
        a("s_cmp_lg_u32 s%d, 0" % S_ACT)
        a("s_cselect_b32 s%d, 8224, 32" % (S_T + 1))
        a("s_cselect_b32 s%d, 32, 8192" % (S_T + 2))
        a("v_bfe_u32 v%d, v%d, 4, 1" % (T3, V_LANE))
        a("v_mul_lo_u32 v%d, v%d, s%d" % (T3, T3, S_T + 1))
        a("s_lshr_b32 s%d, s%d, 2" % (S_T, S_W))
        a("s_lshl_b32 s%d, s%d, 12" % (S_T, S_T))
        a("s_and_b32 s%d, s%d, 1" % (S_T + 3, S_CG))
        a("s_lshl_b32 s%d, s%d, 8" % (S_T + 3, S_T + 3))
        a("s_add_u32 s%d, s%d, s%d" % (S_T, S_T, S_T + 3))
        a("s_add_u32 s%d, s%d, %d" % (S_T, S_T, WREG))
        a("v_add3_u32 v%d, v%d, v%d, s%d" % (V_WA, T0, T3, S_T))
        a("v_xor_b32 v%d, s%d, v%d" % (V_WA + 1, S_T + 2, V_WA))
        for r in range(64): a("v_mov_b32 v%d, 0" % (ACC + r))
        V_C, V_FL, V_FA, V_CA, V_SA = 20, 22, 120, 121, 122
        S_R32, S_KS, S_CST, S_PRE = S_R + 12, S_R + 13, S_R + 14, S_R + 15
        a("s_lshl_b32 s%d, s%d, 1" % (S_R32, S_RB))
        a("s_add_u32 s%d, s%d, s%d" % (S_R32, S_R32, S_TH))
        a("s_and_b32 s%d, s%d, 1" % (S_T + 4, S_CG))
        a("s_lshl_b32 s%d, s%d, 1" % (S_T + 2, S_HT))
        a("s_add_u32 s%d, s%d, s%d" % (S_KS, S_T + 2, S_T + 4))
        a("s_lshl_b32 s%d, s%d, 9" % (S_T + 1, S_R32))
        a("s_add_u32 s%d, s%d, 0x%x" % (S_T, S_T + 1, WS_ST))
        a("v_and_b32 v%d, 31, v%d" % (T0, V_LANE))
        a("v_lshl_add_u32 v%d, v%d, 3, s%d" % (V_SA, T0, S_T))
        a("s_add_u32 s%d, s%d, 0x%x" % (S_T + 1, S_T + 1, F2_K + 12))
        a("s_lshl_b32 s%d, s%d, 7" % (S_T + 5, S_KS))
        a("s_lshl_b32 s%d, s%d, 9" % (S_T + 3, S_HT))
        a("s_lshl_b32 s%d, s%d, 7" % (S_T + 4, S_T + 4))
        a("s_add_u32 s%d, s%d, s%d" % (S_T + 3, S_T + 3, S_T + 4))
        a("s_add_u32 s%d, s%d, %d" % (S_T + 3, S_T + 3, 14336 - 27 * 512))
        a("s_cmp_lg_u32 s%d, 0" % S_ACT)
        a("s_cselect_b32 s%d, s%d, s%d" % (S_T + 2, S_HT, S_T + 2))
        a("s_cselect_b32 s%d, s%d, s%d" % (S_T + 5, S_T + 5, S_T + 3))
        a("s_cselect_b32 s%d, 64, 256" % S_CST)
        a("s_cselect_b32 s%d, 7168, 64" % (S_T + 6))
        sel(a, S_T + 3, 27 * 128, 128)
        a("s_add_u32 s%d, s%d, 0x%x" % (S_T + 5, S_T + 5, WS_CS))
        a("s_lshl_b32 s%d, s%d, 7" % (S_T + 2, S_T + 2))
        a("s_add_u32 s%d, s%d, 0x%x" % (S_T + 2, S_T + 2, F3_C))
        a("v_and_b32 v%d, 1, v%d" % (T1, V_LANE))
        a("v_lshlrev_b32 v%d, 7, v%d" % (T0, T1))
        a("v_add_u32 v%d, s%d, v%d" % (V_FA, S_T + 1, T0))
        a("v_mul_lo_u32 v%d, v%d, s%d" % (T1, T1, S_T + 3))
        a("s_mov_b32 exec_lo, 0")
        a("v_add_u32 v%d, s%d, v%d" % (V_FA, S_T + 2, T1))
        a("s_mov_b64 exec, -1")
        a("v_bfe_u32 v%d, v%d, 4, 1" % (T0, V_LANE))
        a("v_mul_lo_u32 v%d, v%d, s%d" % (T0, T0, S_T + 6))
        a("v_and_b32 v%d, 3, v%d" % (T1, V_LANE))
        a("v_lshl_add_u32 v%d, v%d, 2, v%d" % (T0, T1, T0))
        a("v_bfe_u32 v%d, v%d, 2, 1" % (T1, V_LANE))
        a("v_lshl_add_u32 v%d, v%d, 5, v%d" % (T0, T1, T0))
        a("v_bfe_u32 v%d, v%d, 3, 1" % (T1, V_LANE))
        a("v_lshl_add_u32 v%d, v%d, 4, v%d" % (T0, T1, T0))
        a("v_add_u32 v%d, s%d, v%d" % (V_CA, S_T + 5, T0))
        a("s_mov_b32 s%d, 0" % S_PRE)
        def pre_loads():
            a("buffer_load_dwordx2 %s, v%d, %s, 0 offen %s" % (vr(V_SX, 2), V_SA, sr(SWS), SC))
            a("buffer_load_dwordx2 %s, v%d, %s, 0 offen offset:256 %s" % (vr(V_SX + 2, 2), V_SA, sr(SWS), SC))
            a("buffer_load_dword v%d, v%d, %s, 0 offen %s" % (V_C, V_CA, sr(SWS), SC))
            a("buffer_load_dword v%d, v%d, %s, s%d offen %s" % (V_C + 1, V_CA, sr(SWS), S_CST, SC))
        def rops(p, b, kk):
            f = F[p]
            ops = ["ds_read_b128 %s, v%d" % (vr(f, 4), V_XA + kk)]
            for ct in range(2):
                for j in range(2):
                    ops.append("ds_read_b64_tr_b16 %s, v%d offset:%d" % (vr(f + 8 + 4 * ct + 2 * j, 2), V_WA + ct, b * 16384 + kk * 2048 + j * 512))
            ops.append("ds_read_b128 %s, v%d offset:4096" % (vr(f + 4, 4), V_XA + kk))
            return ops
        def mf(p, q):
            if self.pat1:
                pr = self.pat1[(p * 4 + q) % len(self.pat1)]; prev = self.pat1[(p * 4 + q - 1) % len(self.pat1)]
                if pr != prev: a("s_setprio %s" % pr)
            ti, ct = [(0, 0), (0, 1), (1, 0), (1, 1)][q]
            f = F[p]; d = ACC + (ti * 2 + ct) * 16
            a("v_mfma_f32_32x32x16_bf16 %s, %s, %s, %s" % (vr(d, 16), vr(f + 8 + 4 * ct, 4), vr(f + 4 * ti, 4), vr(d, 16)))
        a("s_mov_b32 s%d, 0" % S_STG)
        a("s_waitcnt vmcnt(6)")
        a("s_barrier")
        self.stamp(1)
        for op in rops(0, 0, 0): a(op)
        a.label("F1_LOOP")
        a("s_cmp_lg_u32 s%d, 18" % S_STG)
        a("s_cbranch_scc1 F1_P2")
        a("v_cmp_ne_u32 vcc, v%d, v%d" % (V_NONCE, V_FL))
        a("v_cmp_eq_u32 s[%d:%d], 0, v%d" % (S_T + 4, S_T + 5, V_FL))
        a("s_or_b64 vcc, vcc, s[%d:%d]" % (S_T + 4, S_T + 5))
        a("s_cbranch_scc1 F1_P2")
        a("s_mov_b32 s%d, 1" % S_PRE)
        pre_loads()
        a.label("F1_P2")
        if self.f1sw:
            a("s_cmp_lg_u32 s%d, %d" % (S_STG, self.f1sw))
            a("s_cbranch_scc1 F1_SW")
            a("s_setprio %d" % self.prio_f1b)
            a.label("F1_SW")
        if "f1st" in dbg:
            for c_, sl in ((6, 4), (12, 5), (18, 6)):
                a("s_cmp_lg_u32 s%d, %d" % (S_STG, c_))
                a("s_cbranch_scc1 F1_S%d" % c_)
                self.stamp(sl)
                a.label("F1_S%d" % c_)
        for u in range(6):
            b = u % 3; odd = u & 1
            if u == 4:
                a("s_cmp_lg_u32 s%d, 16" % S_STG)
                a("s_cbranch_scc1 F1_P1")
                self.load_nonce(T3)
                a("buffer_load_dword v%d, v%d, %s, 0 offen %s" % (V_FL, V_FA, sr(SWS), SC))
                a.label("F1_P1")
            a("s_waitcnt lgkmcnt(0)")
            mf(0, 0)
            for op in rops(1, b, 1): a(op)
            mf(0, 1)
            dl = 64 | (16384 if odd else 0)
            a("v_xor_b32 v%d, 0x%x, v%d" % (V_XA, dl, V_XA))
            a("v_xor_b32 v%d, 0x%x, v%d" % (V_XA + 1, dl, V_XA + 1))
            mf(0, 2)
            if u == 1:
                a("s_cmp_eq_u32 s%d, 19" % S_STG)
                a("s_cbranch_scc1 F1_LAST")
            if u in (5, 0):
                a("s_cmp_ge_u32 s%d, 17" % S_STG)
                a("s_cbranch_scc1 F1_T%d" % u)
            a("s_waitcnt vmcnt(%d) lgkmcnt(0)" % (2 if odd else 4))
            mf(0, 3)
            a("s_barrier")
            mf(1, 0)
            for op in rops(0, (b + 1) % 3, 0): a(op)
            ops = dmaW(b) + (dmaX() if odd else [])
            mf(1, 1)
            if "vlow1" in dbg:
                mf(1, 2); mf(1, 3)
                a("s_setprio 0")
                emit(ops)
                a("s_setprio %d" % self.prio_f1)
            else:
                emit(ops[:2])
                mf(1, 2)
                emit(ops[2:])
                mf(1, 3)
            if u in (5, 0):
                a("s_branch F1_N%d" % u)
                a.label("F1_T%d" % u)
                a("s_waitcnt vmcnt(0) lgkmcnt(0)" if u == 5 else "s_waitcnt lgkmcnt(0)")
                mf(0, 3)
                a("s_barrier")
                mf(1, 0)
                for op in rops(0, (b + 1) % 3, 0): a(op)
                for q in (1, 2, 3): mf(1, q)
                a.label("F1_N%d" % u)
            a("s_add_u32 s%d, s%d, 1" % (S_STG, S_STG))
        a("s_branch F1_LOOP")
        a.label("F1_LAST")
        mf(0, 3)
        a("s_waitcnt lgkmcnt(0)")
        a("s_barrier")
        for q in range(4): mf(1, q)
        a("s_setprio %d" % self.prio_fe)
        self.stamp(2)
        a("s_cmp_lg_u32 s%d, 0" % S_PRE)
        a("s_cbranch_scc1 F1_P3")
        self.poll([(V_FL, 1, V_FA, "0")], T3, wave0=False)
        pre_loads()
        a.label("F1_P3")
        a("s_waitcnt vmcnt(0)")
        CSV = F[0]
        FA, FB = F[0], F[0] + 8
        for k in range(2):
            a("v_and_b32 v%d, 0xffff0000, v%d" % (T0, V_C + k))
            a("v_sub_f32 v%d, v%d, v%d" % (T1, V_C + k, T0))
            a("v_lshrrev_b32 v%d, 16, v%d" % (FA + 4 * k + 1, T0))
            a("v_and_b32 v%d, 0xffff0000, v%d" % (T1, T1))
            a("v_or_b32 v%d, v%d, v%d" % (FA + 4 * k, FA + 4 * k + 1, T1))
            a("v_and_b32 v%d, 0xffff0000, v%d" % (T0, V_SX + 2 * k))
            a("v_sub_f32 v%d, v%d, v%d" % (T1, V_SX + 2 * k, T0))
            a("v_lshrrev_b32 v%d, 16, v%d" % (FB + 4 * k + 1, T1))
            a("v_lshrrev_b32 v%d, 16, v%d" % (T1, T0))
            a("v_or_b32 v%d, v%d, v%d" % (FB + 4 * k, T0, T1))
            for r in (2, 3):
                a("v_mov_b32 v%d, 0" % (FA + 4 * k + r))
                a("v_mov_b32 v%d, 0" % (FB + 4 * k + r))
        a("s_mov_b32 exec_lo, 0")
        for k in range(2):
            a("v_mov_b32 v%d, 0" % (FA + 4 * k))
            a("v_mov_b32 v%d, 0" % (FA + 4 * k + 1))
        a("s_mov_b64 exec, -1")
        a("v_lshrrev_b32 v%d, 5, v%d" % (T2, V_LANE))
        a("v_and_b32 v%d, 15, v%d" % (T0, V_LANE))
        for ti in range(2):
            for ct in range(2):
                d = ACC + (ti * 2 + ct) * 16
                a("v_mfma_f32_32x32x16_bf16 %s, %s, %s, %s" % (vr(d, 16), vr(FA + 4 * ct, 4), vr(FB + 4 * ti, 4), vr(d, 16)))
        a("v_lshlrev_b32 v%d, 4, v%d" % (T0, T0))
        a("v_lshl_add_u32 v%d, v%d, 8, v%d" % (T0, T2, T0))
        a("v_bfe_u32 v%d, v%d, 4, 1" % (T1, V_LANE))
        a("v_lshl_add_u32 v%d, v%d, 10, v%d" % (T0, T1, T0))
        a("s_mul_i32 s%d, s%d, 74" % (S_T, S_R32))
        a("s_add_u32 s%d, s%d, s%d" % (S_T, S_T, S_KS))
        a("s_lshl_b32 s%d, s%d, 12" % (S_T, S_T))
        a("s_add_u32 s%d, s%d, 0x%x" % (S_T, S_T, WS_HO))
        a("s_nop 3")
        a("s_cmp_lg_u32 s%d, 0" % S_ACT)
        a("s_cbranch_scc1 F1_GU")
        a("s_setprio 3")
        a("s_mul_i32 s%d, s%d, 81920" % (S_T, S_R32))
        a("s_sub_u32 s%d, s%d, 27" % (S_T + 1, S_HT))
        a("s_lshl_b32 s%d, s%d, 13" % (S_T + 1, S_T + 1))
        a("s_add_u32 s%d, s%d, s%d" % (S_T, S_T, S_T + 1))
        a("s_and_b32 s%d, s%d, 1" % (S_T + 4, S_CG))
        a("s_lshl_b32 s%d, s%d, 11" % (S_T + 4, S_T + 4))
        a("s_add_u32 s%d, s%d, s%d" % (S_T, S_T, S_T + 4))
        if WS_QP: a("s_add_u32 s%d, s%d, 0x%x" % (S_T, S_T, WS_QP))
        for ti in range(2):
            a("v_mul_f32 v%d, 0x%x, v%d" % (T1, f32bits(LOG2E * 20 ** -0.5), V_SX + 2 * ti + 1))
            for ct in range(2):
                d = ACC + (ti * 2 + ct) * 16
                for r in range(16): a("v_mul_f32 v%d, v%d, v%d" % (d + r, T1, d + r))
                o = CSV + (ti * 2 + ct) * 8
                for r in range(8): a("v_cvt_pk_bf16_f32 v%d, v%d, v%d" % (o + r, d + 2 * r, d + 2 * r + 1))
                a("s_add_u32 s%d, s%d, %d" % (S_T + 1, S_T, ti * 40960 + ct * 4096))
                a("buffer_store_dwordx4 %s, v%d, %s, s%d offen %s" % (vr(o, 4), V_L16, sr(SWS), S_T + 1, SC))
                a("buffer_store_dwordx4 %s, v%d, %s, s%d offen offset:1024 %s" % (vr(o + 4, 4), V_L16, sr(SWS), S_T + 1, SC))
        a("s_branch F1_PUB")
        a.label("F1_GU")
        TE = CSV + 16
        for ti in range(2):
            a("v_mul_f32 v%d, 0x%x, v%d" % (T1, f32bits(-LOG2E), V_SX + 2 * ti + 1))
            for ct in range(2):
                d = ACC + (ti * 2 + ct) * 16
                for r in range(8): a("v_mul_f32 v%d, v%d, v%d" % (TE + r, T1, d + r))
                for r in range(8): a("v_exp_f32 v%d, v%d" % (TE + r, TE + r))
                for r in range(8): a("v_mul_f32 v%d, v%d, v%d" % (d + r, d + r, d + 8 + r))
                for r in range(8): a("v_add_f32 v%d, 1.0, v%d" % (TE + r, TE + r))
                for r in range(8): a("v_rcp_f32 v%d, v%d" % (TE + r, TE + r))
                a("s_nop 0")
                for r in range(8): a("v_mul_f32 v%d, v%d, v%d" % (d + r, TE + r, d + r))
                o = CSV + (ti * 2 + ct) * 4
                for r in range(4): a("v_cvt_pk_bf16_f32 v%d, v%d, v%d" % (o + r, d + 2 * r, d + 2 * r + 1))
                if "early_st" in dbg: a("buffer_store_dwordx4 %s, v%d, %s, s%d offen offset:%d %s" % (vr(o, 4), T0, sr(SWS), S_T, ti * 2048 + ct * 512, SC))
        if "nogate" not in dbg:
            a("s_setprio 0")
            a("s_mov_b32 s%d, s%d" % (S_T + 3, S_T))
            a("s_lshl_b32 s%d, s%d, 10" % (S_T + 1, S_RB32))
            a("s_lshl_b32 s%d, s%d, 7" % (S_T + 2, S_HI))
            a("s_add_u32 s%d, s%d, s%d" % (S_T + 1, S_T + 1, S_T + 2))
            a("s_add_u32 s%d, s%d, 0x%x" % (S_T + 1, S_T + 1, F2_O + 36))
            self.poll([(T1, 1, T3, "s%d" % (S_T + 1))], T3, sleep=self.gsleep, wave0=False, maxit=self.gmax)
            a("s_mov_b32 s%d, s%d" % (S_T, S_T + 3))
        if "early_st" not in dbg:
            for k in range(4):
                a("buffer_store_dwordx4 %s, v%d, %s, s%d offen offset:%d %s" % (vr(CSV + k * 4, 4), T0, sr(SWS), S_T, (k >> 1) * 2048 + (k & 1) * 512, SC))
        a.label("F1_PUB")
        a("s_lshl_b32 s%d, s%d, 11" % (S_T, S_RB))
        a("s_lshr_b32 s%d, s%d, 1" % (S_T + 1, S_HT))
        a("s_lshl_b32 s%d, s%d, 7" % (S_T + 1, S_T + 1))
        a("s_add_u32 s%d, s%d, s%d" % (S_T, S_T, S_T + 1))
        a("s_and_b32 s%d, s%d, 1" % (S_T + 1, S_HT))
        a("s_lshl_b32 s%d, s%d, 4" % (S_T + 1, S_T + 1))
        a("s_add_u32 s%d, s%d, s%d" % (S_T, S_T, S_T + 1))
        a("s_and_b32 s%d, s%d, 3" % (S_T + 1, S_W))
        a("s_lshl_b32 s%d, s%d, 2" % (S_T + 1, S_T + 1))
        a("s_add_u32 s%d, s%d, s%d" % (S_T, S_T, S_T + 1))
        a("s_add_u32 s%d, s%d, 0x%x" % (S_T, S_T, F2_H))
        self.wave_flag("s%d" % S_T, T3)
        self.stamp(3)
        if "noF" in dbg: self.finish()

    def kv_issue(self):
        a = self.a
        V_PI, V_WA, V_ONE, V_J, V_H = 120, 121, 122, 123, 124
        V_ST = 20
        XF = 24
        WF = 44
        AC = 64
        R = 80
        S_MAT, S_TILE, S_JOB = S_R + 10, S_R + 11, S_R + 12
        WO = 40960
        PB, PST, PCS = 49152, 16384, 18432
        a("s_lshr_b32 s%d, s%d, 3" % (S_MAT, S_IDX))
        a("s_cmp_eq_u32 s%d, 0" % S_MAT)
        a("s_cselect_b32 s%d, s%d, s%d" % (SC_, P_WK, P_WV))
        a("s_cselect_b32 s%d, s%d, s%d" % (SC_ + 1, P_WK + 1, P_WV + 1))
        a("s_mov_b32 s%d, 25600" % (SC_ + 2))
        a("s_mov_b32 s%d, 0x20000" % (SC_ + 3))
        a("s_bfe_u32 s%d, s%d, 0x10002" % (S_T, S_IDX))
        a("s_lshl_b32 s%d, s%d, 1" % (S_TILE, S_RB32))
        a("s_add_u32 s%d, s%d, s%d" % (S_TILE, S_TILE, S_T))
        a("s_mul_i32 s%d, s%d, 40960" % (S_T, S_TILE))
        a("s_lshl_b32 s%d, s%d, 10" % (S_T + 1, S_W))
        for m in range(5):
            a("v_add_u32 v%d, %d, v0" % (T0, 512 * m))
            a("v_mul_u32_u24 v%d, 3277, v%d" % (T1, T0))
            a("v_lshrrev_b32 v%d, 18, v%d" % (T1, T1))
            a("v_mul_u32_u24 v%d, 80, v%d" % (T2, T1))
            a("v_sub_u32 v%d, v%d, v%d" % (T0, T0, T2))
            a("v_and_b32 v%d, 15, v%d" % (T2, T1))
            a("v_xor_b32 v%d, v%d, v%d" % (T0, T0, T2))
            a("v_and_b32 v%d, 19, v%d" % (T2, T1))
            a("v_bfe_u32 v%d, v%d, 2, 1" % (T3, T1))
            a("v_lshl_add_u32 v%d, v%d, 3, v%d" % (T2, T3, T2))
            a("v_bfe_u32 v%d, v%d, 3, 1" % (T3, T1))
            a("v_lshl_add_u32 v%d, v%d, 2, v%d" % (T2, T3, T2))
            a("v_mul_u32_u24 v%d, 1280, v%d" % (T2, T2))
            a("s_add_u32 m0, s%d, %d" % (S_T + 1, m * 8192))
            a("v_lshl_add_u32 v%d, v%d, 4, v%d" % (T0, T0, T2))
            a("buffer_load_dwordx4 v%d, %s, s%d offen lds" % (T0, sr(SX), S_T))
        for m in range(4):
            if m == 3:
                a("s_cmp_lg_u32 s%d, 0" % S_W)
                a("s_cbranch_scc1 KV_I")
            a("s_add_u32 m0, s%d, %d" % (S_T + 1, WO + m * 8192))
            a("s_add_u32 s%d, s%d, %d" % (S_T + 2, S_T + 1, m * 8192))
            a("buffer_load_dwordx4 v%d, %s, s%d offen lds" % (V_L16, sr(SC_), S_T + 2))

    def kv_body(self):
        a = self.a
        V_PI, V_WA, V_ONE, V_J, V_H = 120, 121, 122, 123, 124
        V_ST = 20
        XF = 24
        WF = 44
        AC = 64
        R = 80
        S_MAT, S_TILE, S_JOB = S_R + 10, S_R + 11, S_R + 12
        WO = 40960
        PB, PST, PCS = 49152, 16384, 18432
        a("s_lshr_b32 s%d, s%d, 2" % (S_T, S_IDX))
        a("s_lshl_b32 s%d, s%d, 2" % (S_JOB, S_RB32))
        a("s_add_u32 s%d, s%d, s%d" % (S_JOB, S_JOB, S_T))
        a("s_lshl_b32 s%d, s%d, 5" % (S_JOB, S_JOB))
        a("s_add_u32 s%d, s%d, s%d" % (S_JOB, S_JOB, S_W))
        a("s_lshl_b32 s%d, s%d, 2" % (S_JOB, S_JOB))
        a("s_add_u32 s%d, s%d, 0x%x" % (S_JOB, S_JOB, F2_K))
        a("v_and_b32 v%d, 31, v%d" % (V_J, V_LANE))
        a("v_and_b32 v%d, 19, v%d" % (T0, V_LANE))
        a("v_bfe_u32 v%d, v%d, 2, 1" % (T1, V_LANE))
        a("v_lshl_add_u32 v%d, v%d, 3, v%d" % (T0, T1, T0))
        a("v_bfe_u32 v%d, v%d, 3, 1" % (T1, V_LANE))
        a("v_lshl_add_u32 v%d, v%d, 2, v%d" % (V_PI, T1, T0))
        a("v_lshrrev_b32 v%d, 5, v%d" % (V_H, V_LANE))
        a("v_bfe_u32 v%d, v%d, 2, 2" % (T2, V_LANE))
        a("v_lshl_add_u32 v%d, v%d, 3, v%d" % (T2, V_H, T2))
        a("v_mul_u32_u24 v%d, 40, v%d" % (T2, T2))
        a("v_bfe_u32 v%d, v%d, 4, 1" % (T3, V_LANE))
        a("v_lshl_add_u32 v%d, v%d, 5, v%d" % (T2, T3, T2))
        a("s_mul_i32 s%d, s%d, 3200" % (S_T, S_W))
        a("s_add_u32 s%d, s%d, %d" % (S_T, S_T, WO))
        a("s_sub_u32 s%d, 4, s%d" % (S_T + 1, S_MAT))
        a("s_add_u32 s%d, s%d, 3" % (S_T + 2, S_MAT))
        a("v_and_b32 v%d, 1, v%d" % (T3, V_LANE))
        a("v_lshlrev_b32 v%d, s%d, v%d" % (T3, S_T + 1, T3))
        a("v_add3_u32 v%d, v%d, v%d, s%d" % (T2, T2, T3, S_T))
        a("v_bfe_u32 v%d, v%d, 1, 1" % (T3, V_LANE))
        a("v_lshlrev_b32 v%d, s%d, v%d" % (T3, S_T + 2, T3))
        a("v_add_u32 v%d, v%d, v%d" % (V_WA, T2, T3))
        a("v_and_b32 v%d, 15, v%d" % (T2, V_LANE))
        a("v_xor_b32 v%d, v%d, v%d" % (T2, T2, V_H))
        a("v_mul_u32_u24 v%d, 1280, v%d" % (T3, V_J))
        a("s_mul_i32 s%d, s%d, 10" % (S_T, S_W))
        for s_ in range(5):
            a("v_xor_b32 v%d, s%d, v%d" % (T0, S_T, T2))
            a("s_add_u32 s%d, s%d, 2" % (S_T, S_T))
            a("v_lshl_add_u32 v%d, v%d, 4, v%d" % (R + s_, T0, T3))
        a("v_mov_b32 v%d, 0x3f803f80" % V_ONE)
        for r in range(6): a("v_mov_b32 v%d, 0" % (R + 8 + r))
        a("s_waitcnt vmcnt(0)")
        a("s_barrier")
        self.stamp(5, "kv")
        for s_ in range(5):
            a("ds_read_b128 %s, v%d" % (vr(XF + 4 * s_, 4), R + s_))
            a("ds_read_b64_tr_b16 %s, v%d offset:%d" % (vr(WF + 4 * s_, 2), V_WA, s_ * 640))
            a("ds_read_b64_tr_b16 %s, v%d offset:%d" % (vr(WF + 4 * s_ + 2, 2), V_WA, s_ * 640 + 160))
        self.load_nonce(T3)
        a("s_waitcnt lgkmcnt(0)")
        D = R + 8
        for r in range(20):
            o = 3 * (r & 1)
            a("v_dot2c_f32_bf16 v%d, v%d, v%d" % (D + o, V_ONE, XF + r))
            a("v_dot2c_f32_bf16 v%d, v%d, v%d" % (D + o + 1, XF + r, XF + r))
            a("v_dot2c_f32_bf16 v%d, v%d, v%d" % (D + o + 2, V_ONE, WF + r))
        a("s_cmp_eq_u32 s%d, 0" % S_MAT)
        a("s_cbranch_scc0 KV_MV")
        for s_ in range(5):
            a("v_mfma_f32_32x32x16_bf16 %s, %s, %s, %s" % (vr(AC, 16), vr(WF + 4 * s_, 4), vr(XF + 4 * s_, 4), "0" if s_ == 0 else vr(AC, 16)))
        a("s_branch KV_MD")
        a.label("KV_MV")
        for s_ in range(5):
            a("v_mfma_f32_32x32x16_bf16 %s, %s, %s, %s" % (vr(AC, 16), vr(XF + 4 * s_, 4), vr(WF + 4 * s_, 4), "0" if s_ == 0 else vr(AC, 16)))
        a.label("KV_MD")
        a("s_barrier")
        for r in range(3): a("v_add_f32 v%d, v%d, v%d" % (V_ST + r, D + r, D + 3 + r))
        self.halfsum([V_ST, V_ST + 1, V_ST + 2], R)
        a("s_lshl_b32 s%d, s%d, 8" % (S_T, S_W))
        a("v_lshl_add_u32 v%d, v%d, 3, s%d" % (T0, V_J, S_T))
        a("ds_write_b64 v%d, %s offset:%d" % (T0, vr(V_ST, 2), PST))
        a("s_lshl_b32 s%d, s%d, 7" % (S_T, S_W))
        a("v_lshl_add_u32 v%d, v%d, 2, s%d" % (T0, V_J, S_T))
        a("ds_write_b32 v%d, v%d offset:%d" % (T0, V_ST + 2, PCS))
        a("s_lshl_b32 s%d, s%d, 12" % (S_T, S_W))
        a("s_add_u32 s%d, s%d, %d" % (S_T, S_T, PB))
        a("v_add_u32 v%d, s%d, v%d" % (T0, S_T, V_L16))
        for q in range(4): a("ds_write_b128 v%d, %s offset:%d" % (T0, vr(AC + 4 * q, 4), q * 1024))
        a("s_waitcnt lgkmcnt(0)")
        a("s_barrier")
        a("s_cmp_ge_u32 s%d, 4" % S_W)
        a("s_cbranch_scc1 AUX_RL")
        a("s_lshl_b32 s%d, s%d, 10" % (S_T, S_W))
        a("s_add_u32 s%d, s%d, %d" % (S_T, S_T, PB))
        a("v_add_u32 v%d, s%d, v%d" % (T0, S_T, V_L16))
        for p in range(8): a("ds_read_b128 %s, v%d offset:%d" % (vr(XF + 4 * p, 4), T0, p * 4096))
        a("s_mul_i32 s%d, s%d, 2560" % (S_T + 3, S_TILE))
        a("s_add_u32 s%d, s%d, 0x%x" % (S_T + 3, S_T + 3, WS_KV))
        a("s_cmp_eq_u32 s%d, 0" % S_MAT)
        a("s_cbranch_scc0 KV_V")
        SP = 56; CP = 72
        a("v_lshlrev_b32 v%d, 3, v%d" % (T0, V_J))
        a("s_waitcnt lgkmcnt(4)")
        for p in range(8): a("ds_read_b64 %s, v%d offset:%d" % (vr(SP + 2 * p, 2), T0, PST + p * 256))
        a("s_lshl_b32 s%d, s%d, 5" % (S_T, S_W))
        a("v_lshl_add_u32 v%d, v%d, 4, s%d" % (T0, V_H, S_T))
        a("s_waitcnt lgkmcnt(4)")
        for p in range(8): a("ds_read_b128 %s, v%d offset:%d" % (vr(CP + 4 * p, 4), T0, PCS + p * 128))
        self.tree(XF, 4, 8, 4)
        a("s_waitcnt lgkmcnt(8)")
        self.tree(SP, 2, 8, 2)
        self.meanrstd(V_ST, SP)
        a("v_lshlrev_b32 v%d, 3, v%d" % (T2, V_PI))
        a("s_cmp_eq_u32 s%d, 3" % S_W)
        a("s_cbranch_scc0 KV_K1")
        a("s_lshl_b32 s%d, s%d, 8" % (S_T, S_TILE))
        a("s_add_u32 s%d, s%d, 0x%x" % (S_T, S_T, WS_ST))
        a("s_mov_b32 exec_hi, 0")
        a("buffer_store_dwordx2 %s, v%d, %s, s%d offen %s" % (vr(V_ST, 2), T2, sr(SWS), S_T, SC))
        a("s_mov_b64 exec, -1")
        a("s_branch KV_FLAG")
        a.label("KV_K1")
        a("s_waitcnt lgkmcnt(0)")
        self.tree(CP, 4, 8, 4)
        for r in range(4): a("v_fmac_f32 v%d, v%d, v%d" % (XF + r, V_ST, CP + r))
        for r in range(4): a("v_mul_f32 v%d, v%d, v%d" % (XF + r, V_ST + 1, XF + r))
        for r in range(2): a("v_cvt_pk_bf16_f32 v%d, v%d, v%d" % (SP + r, XF + 2 * r, XF + 2 * r + 1))
        a("v_mov_b32 v%d, 0" % T3)
        a("s_cmp_eq_u32 s%d, 2" % S_W)
        a("s_cbranch_scc1 KV_K2")
        a("v_lshlrev_b32 v%d, 9, v%d" % (T0, V_H))
        a("v_lshl_add_u32 v%d, v%d, 4, v%d" % (T2, V_PI, T0))
        a("s_lshl_b32 s%d, s%d, 3" % (S_T, S_W))
        a("s_add_u32 s%d, s%d, s%d" % (S_T + 3, S_T + 3, S_T))
        a("s_branch KV_K3")
        a.label("KV_K2")
        a("s_add_u32 s%d, s%d, 1024" % (S_T + 3, S_T + 3))
        a("s_mov_b32 exec_hi, 0")
        a.label("KV_K3")
        a("buffer_store_dwordx2 %s, v%d, %s, s%d offen %s" % (vr(SP, 2), T2, sr(SWS), S_T + 3, SC))
        for r in range(4): a("v_fmac_f32 v%d, v%d, v%d" % (T3, XF + r, XF + r))
        a("s_mov_b64 exec, -1")
        self.halfsum([T3], CP)
        for dpp in DPPS:
            a("s_nop 1")
            a("v_max_f32_dpp v%d, v%d, v%d %s row_mask:0xf bank_mask:0xf" % (T3, T3, T3, dpp))
        a("s_nop 1")
        a("v_readlane_b32 s%d, v%d, 0" % (S_T, T3))
        a("v_readlane_b32 s%d, v%d, 16" % (S_T + 1, T3))
        a("s_lshl_b32 s%d, s%d, 2" % (S_T + 2, S_TILE))
        a("s_add_u32 s%d, s%d, s%d" % (S_T + 2, S_T + 2, S_W))
        a("s_lshl_b32 s%d, s%d, 2" % (S_T + 2, S_T + 2))
        a("s_add_u32 s%d, s%d, 0x%x" % (S_T + 2, S_T + 2, WS_KN))
        a("s_max_u32 s%d, s%d, s%d" % (S_T, S_T, S_T + 1))
        a("v_mov_b32 v%d, s%d" % (T3, S_T))
        a("v_mov_b32 v%d, 0" % T0)
        a("s_mov_b64 exec, 1")
        a("buffer_store_dword v%d, v%d, %s, s%d offen %s" % (T3, T0, sr(SWS), S_T + 2, SC))
        a("s_mov_b64 exec, -1")
        a("s_branch KV_FLAG")
        a.label("KV_V")
        SP = 56
        CP = 28
        a("s_lshl_b32 s%d, s%d, 6" % (S_T, S_W))
        a("v_lshl_add_u32 v%d, v%d, 5, s%d" % (T0, V_H, S_T))
        a("s_waitcnt lgkmcnt(4)")
        for p in range(5):
            a("ds_read_b128 %s, v%d offset:%d" % (vr(SP + 8 * p, 4), T0, PST + p * 256))
            a("ds_read_b128 %s, v%d offset:%d" % (vr(SP + 8 * p + 4, 4), T0, PST + p * 256 + 16))
        a("v_lshlrev_b32 v%d, 2, v%d" % (T2, V_J))
        a("s_waitcnt lgkmcnt(8)")
        for p in range(5, 8):
            a("ds_read_b128 %s, v%d offset:%d" % (vr(SP + 8 * p, 4), T0, PST + p * 256))
            a("ds_read_b128 %s, v%d offset:%d" % (vr(SP + 8 * p + 4, 4), T0, PST + p * 256 + 16))
        self.tree(XF, 4, 8, 4)
        a("s_waitcnt lgkmcnt(6)")
        for p in range(8): a("ds_read_b32 v%d, v%d offset:%d" % (CP + p, T2, PCS + p * 128))
        a("s_waitcnt lgkmcnt(8)")
        self.tree(SP, 8, 8, 8)
        for r in range(4): self.meanrstd(SP + 8 + 2 * r, SP + 2 * r)
        a("s_waitcnt lgkmcnt(0)")
        self.tree(CP, 1, 8, 1)
        for r in range(4): a("v_fmac_f32 v%d, v%d, v%d" % (XF + r, CP, SP + 8 + 2 * r))
        for r in range(4): a("v_mul_f32 v%d, v%d, v%d" % (XF + r, SP + 9 + 2 * r, XF + r))
        for r in range(2): a("v_cvt_pk_bf16_f32 v%d, v%d, v%d" % (CP + 2 + r, XF + 2 * r, XF + 2 * r + 1))
        a("v_mul_u32_u24 v%d, 320, v%d" % (T0, V_H))
        a("v_lshl_add_u32 v%d, v%d, 4, v%d" % (T0, V_J, T0))
        a("s_lshr_b32 s%d, s%d, 1" % (S_T, S_W))
        a("s_mul_i32 s%d, s%d, 640" % (S_T, S_T))
        a("s_add_u32 s%d, s%d, s%d" % (S_T + 3, S_T + 3, S_T))
        a("s_and_b32 s%d, s%d, 1" % (S_T, S_W))
        a("s_lshl_b32 s%d, s%d, 3" % (S_T, S_T))
        a("s_add_u32 s%d, s%d, s%d" % (S_T + 3, S_T + 3, S_T))
        a("s_mov_b64 exec, s[%d:%d]" % (S_VM, S_VM + 1))
        a("buffer_store_dwordx2 %s, v%d, %s, s%d offen offset:1280 %s" % (vr(CP + 2, 2), T0, sr(SWS), S_T + 3, SC))
        a("s_mov_b64 exec, -1")
        a.label("KV_FLAG")
        a("s_mov_b32 s%d, s%d" % (S_R + 15, S_JOB))
        a("s_waitcnt lgkmcnt(0)")

    def role_sp(self):
        a = self.a
        S_J, S_G, S_LB, S_JJ = S_R, S_R + 1, S_R + 2, S_R + 3
        S_D = S_R + 4
        S_O, S_F = S_R + 12, S_R + 13
        LD = 16; AC = 8
        V_VD, V_TA = 126, 127
        RG = 96
        def cs_issue(lpr, stride, nload):
            sh = {16: 4, 8: 3}[lpr]
            a("v_lshrrev_b32 v%d, %d, v%d" % (T0, sh, V_LANE))
            a("v_mul_lo_u32 v%d, v%d, s%d" % (T0, T0, stride))
            a("s_lshl_b32 s%d, s%d, %d" % (stride, stride, 6 - sh))
            a("v_and_b32 v%d, %d, v%d" % (T1, lpr - 1, V_LANE))
            a("v_lshl_add_u32 v%d, v%d, 4, v%d" % (T0, T1, T0))
            for i in range(nload):
                a("buffer_load_dwordx4 %s, v%d, %s, s%d offen" % (vr(LD + 4 * i, 4), T0, sr(SB), S_T))
                a("s_add_u32 s%d, s%d, s%d" % (S_T, S_T, stride))
        def cs_finish(tag, lpr, nload, younger):
            sh = {16: 4, 8: 3}[lpr]; ncol = lpr * 8; csh = sh + 3; ng = 512 // ncol
            for r in range(8): a("v_mov_b32 v%d, 0" % (AC + r))
            for i in range(nload):
                a("s_waitcnt vmcnt(%d)" % (nload - 1 - i + younger))
                for q in range(4):
                    a("v_lshlrev_b32 v%d, 16, v%d" % (T2, LD + 4 * i + q))
                    a("v_and_b32 v%d, 0xffff0000, v%d" % (T3, LD + 4 * i + q))
                    a("v_add_f32 v%d, v%d, v%d" % (AC + 2 * q, AC + 2 * q, T2))
                    a("v_add_f32 v%d, v%d, v%d" % (AC + 2 * q + 1, AC + 2 * q + 1, T3))
            self.load_nonce(T3)
            a("v_lshlrev_b32 v%d, 5, v0" % T0)
            a("ds_write_b128 v%d, %s" % (T0, vr(AC, 4)))
            a("ds_write_b128 v%d, %s offset:16" % (T0, vr(AC + 4, 4)))
            a("v_lshrrev_b32 v%d, %d, v0" % (T1, csh))
            a("v_and_b32 v%d, %d, v0" % (T2, ncol - 1))
            a("v_lshlrev_b32 v%d, 2, v%d" % (T2, T2))
            a("v_lshl_add_u32 v%d, v%d, %d, v%d" % (T1, T1, csh + 5, T2))
            a("s_waitcnt lgkmcnt(0)")
            a("s_barrier")
            for p in range(8): a("ds_read_b32 v%d, v%d offset:%d" % (LD + p, T1, p * ncol * 4))
            a("v_lshlrev_b32 v%d, 2, v0" % T0)
            a("s_waitcnt lgkmcnt(0)")
            self.tree(LD, 1, 8, 1)
            a("ds_write_b32 v%d, v%d" % (T1, LD))
            a("s_waitcnt lgkmcnt(0)")
            a("s_barrier")
            a("s_cmp_lg_u32 s%d, 0" % S_W)
            a("s_cbranch_scc1 SP_%s" % tag)
            nw = ncol // 64
            for h in range(nw):
                for p in range(ng): a("ds_read_b32 v%d, v%d offset:%d" % (LD + h * ng + p, T0, p * ncol * 32 + h * 256))
            a("s_waitcnt lgkmcnt(0)")
            for h in range(nw):
                self.tree(LD + h * ng, 1, ng, 1)
                a("buffer_store_dword v%d, v%d, %s, s%d offen offset:%d %s" % (LD + h * ng, T0, sr(SWS), S_O, h * 256, SC))
            self.wave_flag("s%d" % S_F, T3)
            a.label("SP_%s" % tag)
        def issue(slot):
            a("s_mul_hi_u32 s%d, s%d, 0x%x" % (S_T + 1, S_G, (1 << 32) // 10 + 1))
            a("s_mul_i32 s%d, s%d, 10" % (S_T + 2, S_T + 1))
            a("s_sub_u32 s%d, s%d, s%d" % (S_T + 2, S_G, S_T + 2))
            for i in range(4):
                a("s_lshl_b32 s%d, s%d, 2" % (S_T + 3, S_T + 2))
                a("s_add_u32 s%d, s%d, %d" % (S_T + 3, S_T + 3, i))
                a("s_mul_hi_u32 s%d, s%d, 0x%x" % (S_T + 4, S_T + 3, (1 << 32) // 5 + 1))
                a("s_mul_i32 s%d, s%d, 365" % (S_T + 4, S_T + 4))
                a("s_add_u32 s%d, s%d, s%d" % (S_T + 4, S_T + 4, S_T + 3))
                a("s_mul_i32 s%d, s%d, 5" % (S_T + 3, S_T + 1))
                a("s_add_u32 s%d, s%d, s%d" % (S_T + 4, S_T + 4, S_T + 3))
                a("s_lshl_b32 s%d, s%d, 10" % (S_T + 4, S_T + 4))
                a("s_add_u32 s%d, s%d, 0x%x" % (S_D + slot * 4 + i, S_T + 4, WS_WF2))
            a("s_sub_u32 s%d, s%d, 54" % (S_T + 4, S_T + 1))
            a("s_cmp_lt_u32 s%d, 54" % (S_T + 1))
            a("s_cselect_b32 s%d, s%d, s%d" % (S_T + 1, S_T + 1, S_T + 4))
            a("s_cselect_b32 s%d, s%d, s%d" % (SA, P_WD, P_WO))
            a("s_cselect_b32 s%d, s%d, s%d" % (SA + 1, P_WD + 1, P_WO + 1))
            sel(a, SA + 2, 2211840, 819200)
            a("s_mul_i32 s%d, s%d, 40960" % (S_T + 1, S_T + 1))
            a("s_lshl_b32 s%d, s%d, 7" % (S_T + 2, S_T + 2))
            a("s_add_u32 s%d, s%d, s%d" % (S_T + 1, S_T + 1, S_T + 2))
            a("s_cmp_lt_u32 s%d, 740" % S_G)
            for i in range(4): a("s_cselect_b32 s%d, s%d, 0x40000000" % (S_D + slot * 4 + i, S_D + slot * 4 + i))
            for i in range(4):
                a("s_add_u32 m0, s%d, %d" % (S_LB, slot * 4096 + i * 1024))
                a("s_nop 0")
                a("buffer_load_dwordx4 v%d, %s, s%d offen lds" % (V_VD, sr(SA), S_T + 1))
                a("s_add_u32 s%d, s%d, 10240" % (S_T + 1, S_T + 1))
            a("s_add_u32 s%d, s%d, 512" % (S_G, S_G))
        def drain(slot, reg):
            for i in range(4):
                a("ds_read_b64_tr_b16 %s, v%d offset:%d" % (vr(reg + 4 * i, 2), V_TA, slot * 4096 + i * 32))
                a("ds_read_b64_tr_b16 %s, v%d offset:%d" % (vr(reg + 4 * i + 2, 2), V_TA, slot * 4096 + i * 32 + 512))
            a("s_waitcnt lgkmcnt(0)")
            for i in range(4):
                a("buffer_store_dwordx4 %s, v%d, %s, s%d offen %s" % (vr(reg + 4 * i, 4), V_L16, sr(SWS), S_D + slot * 4 + i, SC))
        def rl_setup():
            a("v_lshrrev_b32 v%d, 3, v%d" % (T0, V_LANE))
            a("v_mul_u32_u24 v%d, 1280, v%d" % (T0, T0))
            a("v_and_b32 v%d, 7, v%d" % (T1, V_LANE))
            a("v_lshl_add_u32 v%d, v%d, 4, v%d" % (V_VD, T1, T0))
            a("s_lshl_b32 s%d, s%d, 12" % (S_LB, S_W))
            a("s_cmp_ge_u32 s%d, 4" % S_W)
            a("s_cselect_b32 s%d, 8192, 0" % S_T)
            a("s_add_u32 s%d, s%d, s%d" % (S_LB, S_LB, S_T))
            a("v_lshrrev_b32 v%d, 4, v%d" % (T0, V_LANE))
            a("v_bfe_u32 v%d, v%d, 2, 2" % (T1, V_LANE))
            a("v_lshl_add_u32 v%d, v%d, 3, v%d" % (T0, T0, T1))
            a("v_lshlrev_b32 v%d, 7, v%d" % (T0, T0))
            a("v_and_b32 v%d, 3, v%d" % (T1, V_LANE))
            a("v_lshl_add_u32 v%d, v%d, 3, v%d" % (T0, T1, T0))
            a("v_add_u32 v%d, s%d, v%d" % (V_TA, S_LB, T0))
            a("s_mul_i32 s%d, s%d, 6" % (S_G, S_J))
            a("s_add_u32 s%d, s%d, s%d" % (S_G, S_G, S_W))
            a("s_sub_u32 s%d, s%d, 2" % (S_G, S_G))
            a("s_mov_b32 s%d, 0x20000" % (SA + 3))
            issue(0)
        a.label("AUX_2")
        a("s_setprio %d" % self.prio_sp)
        a("s_cmp_ge_u32 s%d, 6" % S_HI)
        a("s_cbranch_scc1 A_GO")
        a("s_and_b32 s%d, s%d, 1" % (S_J, S_HI))
        a("s_lshl_b32 s%d, s%d, 5" % (S_J, S_J))
        a("s_add_u32 s%d, s%d, s%d" % (S_J, S_J, S_RB32))
        a.label("AUX_CS")
        a("s_cmp_lt_u32 s%d, 27" % S_J)
        a("s_cselect_b32 s%d, s%d, s%d" % (SB, P_WG, P_WU))
        a("s_cselect_b32 s%d, s%d, s%d" % (SB + 1, P_WG + 1, P_WU + 1))
        a("s_cselect_b32 s%d, 0, 27" % (S_T + 1))
        a("s_cselect_b32 s%d, 0, 7168" % S_O)
        a("s_cmp_lt_u32 s%d, 54" % S_J)
        a("s_cselect_b32 s%d, s%d, s%d" % (SB, SB, P_WQ))
        a("s_cselect_b32 s%d, s%d, s%d" % (SB + 1, SB + 1, P_WQ + 1))
        a("s_cselect_b32 s%d, s%d, 54" % (S_T + 1, S_T + 1))
        a("s_cselect_b32 s%d, s%d, 14336" % (S_O, S_O))
        sel(a, SB + 2, 2211840, 819200)
        sel(a, S_T + 2, 3456, 1280)
        a("s_mov_b32 s%d, 0x20000" % (SB + 3))
        a("s_sub_u32 s%d, s%d, s%d" % (S_T + 1, S_J, S_T + 1))
        a("s_mul_i32 s%d, s%d, s%d" % (S_T, S_W, S_T + 2))
        a("s_mul_i32 s%d, s%d, 80" % (S_T, S_T))
        a("s_lshl_b32 s%d, s%d, 7" % (S_T + 3, S_T + 1))
        a("s_add_u32 s%d, s%d, s%d" % (S_T, S_T, S_T + 3))
        a("s_lshl_b32 s%d, s%d, 8" % (S_T + 3, S_T + 1))
        a("s_add_u32 s%d, s%d, s%d" % (S_O, S_O, S_T + 3))
        a("s_add_u32 s%d, s%d, 0x%x" % (S_O, S_O, WS_CS))
        a("s_lshl_b32 s%d, s%d, 7" % (S_F, S_J))
        a("s_add_u32 s%d, s%d, 0x%x" % (S_F, S_F, F3_C))
        cs_issue(8, S_T + 2, 10)
        cs_finish("CD", 8, 10, 0)
        a("s_branch A_GO")
        a.label("AUX_RL")
        a("s_setprio %d" % self.prio_rl)
        a("s_lshl_b32 s%d, s%d, 5" % (S_J, S_HI))
        a("s_add_u32 s%d, s%d, s%d" % (S_J, S_J, S_RB32))
        a("s_cmp_lt_u32 s%d, 2" % S_W)
        a("s_cbranch_scc1 AUX_RD")
        rl_setup()
        a("s_waitcnt vmcnt(0)")
        drain(0, 16)
        a.label("AUX_RD")
        a("s_lshl_b32 s%d, s%d, 7" % (S_T, S_J))
        a("s_add_u32 s%d, s%d, 0x%x" % (S_T, S_T, F2_P))
        self.wg_flag("s%d" % S_T)
        a("s_branch A_GO")

    def role_f23(self):
        a = self.a
        V_TA = T1
        VW = 8
        GA = 11
        HBS = [16, 68, 76]
        WS_ = [28, 48]
        ACC = 88
        S_H, S_WO, S_GB, S_LB, S_TH, S_KQ, S_W1K = [S_R + i for i in range(7)]
        a.label("F2_GO")
        a("s_setprio %d" % self.prio_fr)
        srd(a, SB, P_OUT, P_OUT + 1, 2621440)
        a("s_mul_i32 s%d, s%d, 81920" % (S_GB, S_RB32))
        a("s_mul_i32 s%d, s%d, 160" % (S_WO, S_HI))
        a("s_add_u32 s%d, s%d, s%d" % (S_GB, S_GB, S_WO))
        a("s_mul_i32 s%d, s%d, 10240" % (S_LB, S_W))
        a("s_lshl_b32 s%d, s%d, 10" % (S_W1K, S_W))
        a("s_and_b32 s%d, s%d, 1" % (S_TH, S_W))
        a("s_lshr_b32 s%d, s%d, 1" % (S_KQ, S_W))
        a("s_mul_i32 s%d, s%d, %d" % (S_WO, S_HI, 74 * 5120))
        a("s_add_u32 s%d, s%d, s%d" % (S_WO, S_WO, S_W1K))
        a("s_add_u32 s%d, s%d, 0x%x" % (S_WO, S_WO, WS_WF2))
        def dmaW(g, slot=None):
            lab = a.newlabel("F2D")
            slot = g % 4 if slot is None else slot
            base = g * 20480 if g < 14 else 54 * 5120 + (g - 14) * 20480
            for m in range(3):
                if m == 2:
                    a("s_cmp_ge_u32 s%d, 4" % S_W)
                    a("s_cbranch_scc1 %s" % lab)
                a("s_add_u32 m0, s%d, %d" % (S_W1K, slot * 20480 + m * 8192))
                a("s_add_u32 s%d, s%d, %d" % (S_T + 7, S_WO, base + m * 8192))
                a("buffer_load_dwordx4 v%d, %s, s%d offen %s lds" % (V_L16, sr(SWS), S_T + 7, SC))
            a.label(lab)
        if "wearly" in self.dbg:
            for g in range(4): dmaW(g)
        def set_h(base):
            a("s_mul_i32 s%d, s%d, 74" % (S_H, S_RB32))
            a("s_add_u32 s%d, s%d, s%d" % (S_H, S_H, S_KQ))
            if base: a("s_add_u32 s%d, s%d, %d" % (S_H, S_H, base))
            a("s_lshl_b32 s%d, s%d, 1" % (S_H, S_H))
            a("s_add_u32 s%d, s%d, s%d" % (S_H, S_H, S_TH))
            a("s_lshl_b32 s%d, s%d, 11" % (S_H, S_H))
            a("s_add_u32 s%d, s%d, 0x%x" % (S_H, S_H, WS_HO))
        set_h(0)
        a("s_mul_i32 s%d, s%d, 5120" % (S_T + 1, S_KQ))
        a("v_add_u32 v%d, s%d, v%d" % (V_TA, S_T + 1, V_L16))
        a("v_add_u32 v%d, 40960, v%d" % (VW, V_TA))
        def loadH(g):
            for tt in range(2):
                a("buffer_load_dwordx4 %s, v%d, %s, s%d offen offset:%d %s" % (vr(HBS[g % 3] + tt * 4, 4), V_L16, sr(SWS), S_H, tt * 1024, SC))
            a("s_add_u32 s%d, s%d, 16384" % (S_H, S_H))
        def rdW(dst, slot, c):
            a("ds_read_b128 %s, v%d offset:%d" % (vr(dst + 4 * c, 4), V_TA if slot < 2 else VW, (slot & 1) * 20480 + c * 1024))
        def mm(g, c):
            for tt in range(2):
                d = ACC + (tt * 5 + c) * 4
                a("v_mfma_f32_16x16x32_bf16 %s, %s, %s, %s" % (vr(d, 4), vr(WS_[g & 1] + 4 * c, 4), vr(HBS[g % 3] + tt * 4, 4), "0" if g == 0 else vr(d, 4)))
        a("v_min_u32 v%d, 53, v%d" % (T0, V_LANE))
        a("v_lshrrev_b32 v%d, 2, v%d" % (T2, T0))
        a("v_and_b32 v%d, 3, v%d" % (T0, T0))
        a("v_lshlrev_b32 v%d, 3, v%d" % (T0, T0))
        a("v_lshl_add_u32 v%d, v%d, 7, v%d" % (T0, T2, T0))
        a("s_lshr_b32 s%d, s%d, 1" % (S_T + 1, S_RB32))
        a("s_lshl_b32 s%d, s%d, 11" % (S_T + 1, S_T + 1))
        a("s_and_b32 s%d, s%d, 1" % (S_T + 2, S_RB32))
        a("s_lshl_b32 s%d, s%d, 2" % (S_T + 2, S_T + 2))
        a("s_add_u32 s%d, s%d, s%d" % (S_T + 1, S_T + 1, S_T + 2))
        a("s_add_u32 s%d, s%d, 0x%x" % (S_T + 1, S_T + 1, F2_H))
        a("v_lshlrev_b32 v9, 7, v%d" % V_LANE)
        a("s_mov_b32 s%d, 0x%x" % (S_T + 2, F2_P))
        a("s_mov_b32 s%d, 0x%x" % (S_T + 3, F2_P + 8192))
        a("s_cmp_lg_u32 s%d, 1" % S_W)
        a("s_cbranch_scc1 F2_NR")
        self.poll([(16, 1, 9, "s%d" % (S_T + 2)), (17, 1, 9, "s%d" % (S_T + 3))], T3, sleep=24, wave0=False)
        a.label("F2_NR")
        self.poll([(T2, 1, T0, "s%d" % (S_T + 1))], T3, sleep=self.hsleep)
        self.stamp(4, "f23")
        a("s_setprio %d" % self.prio_f2)
        if "nofill" not in self.dbg:
            a("s_mul_i32 s%d, s%d, 74" % (S_T, S_RB32))
            a("s_add_u32 s%d, s%d, 54" % (S_T, S_T))
            a("s_lshl_b32 s%d, s%d, 12" % (S_T, S_T))
            a("s_mul_i32 s%d, s%d, 10240" % (S_T + 1, S_HI))
            a("s_add_u32 s%d, s%d, s%d" % (S_T, S_T, S_T + 1))
            a("s_add_u32 s%d, s%d, s%d" % (S_T, S_T, S_W1K))
            a("s_add_u32 s%d, s%d, 0x%x" % (S_T, S_T, WS_HO))
            for r in range(4): a("v_mov_b32 v%d, -1" % (24 + r))
            a("buffer_store_dwordx4 v[24:27], v%d, %s, s%d offen %s" % (V_L16, sr(SWS), S_T, SC))
            a("s_cmp_ge_u32 s%d, 2" % S_W)
            a("s_cbranch_scc1 F2_NF")
            a("s_add_u32 s%d, s%d, 8192" % (S_T, S_T))
            a("buffer_store_dwordx4 v[24:27], v%d, %s, s%d offen %s" % (V_L16, sr(SWS), S_T, SC))
            a.label("F2_NF")
        q = []
        if "wearly" in self.dbg:
            for g in range(3):
                loadH(g); q += [("H", g)] * 2
        else:
            for g in range(4):
                dmaW(g); q += [("W", g)] * 2
                if g < 3:
                    loadH(g); q += [("H", g)] * 2
            a("s_waitcnt vmcnt(%d)" % (len(q) - 2))
            q = q[2:]
        a("s_barrier")
        for c in range(5): rdW(WS_[0], 0, c)
        if "nofill" not in self.dbg:
            a("s_cmp_lg_u32 s%d, 0" % S_W)
            a("s_cbranch_scc1 F2_NG")
            a("s_lshl_b32 s%d, s%d, 10" % (S_T, S_RB32))
            a("s_lshl_b32 s%d, s%d, 7" % (S_T + 1, S_HI))
            a("s_add_u32 s%d, s%d, s%d" % (S_T, S_T, S_T + 1))
            a("s_add_u32 s%d, s%d, 0x%x" % (S_T, S_T, F2_O + 32))
            a("v_mov_b32 v%d, 0" % T3)
            a("s_mov_b64 exec, 1")
            a("buffer_store_dword v%d, v%d, %s, s%d offen %s" % (V_NONCE, T3, sr(SWS), S_T, SC))
            a("s_mov_b64 exec, -1")
            a.label("F2_NG")
        NG = 14
        for g in range(NG):
            need = [("H", g), ("W", g + 1)]
            last = max([i for i, o in enumerate(q) if o in need] + [-1])
            a("s_waitcnt lgkmcnt(0) vmcnt(%d)" % (len(q) - 1 - last))
            q = q[last + 1:]
            if g == NG - 1:
                a("s_barrier")
                for c in range(5): rdW(WS_[0], (g + 1) % 4, c)
                a("s_cmp_ge_u32 s%d, 2" % S_KQ)
                a("s_cbranch_scc1 F2_X")
                for c in range(5): mm(g, c)
                break
            mm(g, 0)
            a("s_barrier")
            for c in range(3): rdW(WS_[(g + 1) & 1], (g + 1) % 4, c)
            mm(g, 1)
            for c in (3, 4): rdW(WS_[(g + 1) & 1], (g + 1) % 4, c)
            mm(g, 2)
            if g + 4 <= NG:
                dmaW(g + 4); q += [("W", g + 4)] * 2
            for c in (3, 4): mm(g, c)
            if g + 3 < NG:
                loadH(g + 3); q += [("H", g + 3)] * 2
        a.label("F2_X")
        if "noA" in self.dbg: self.stamp(6)
        a("s_setprio %d" % self.prio_fp)
        RS = 14; XR = 20
        WR = WS_[0]; OF = 48; A3 = 88; R = 48
        a("v_and_b32 v%d, 15, v%d" % (T2, V_LANE))
        a("v_mul_u32_u24 v%d, 1280, v%d" % (T0, T2))
        a("v_lshrrev_b32 v%d, 4, v%d" % (T3, V_LANE))
        a("v_lshl_add_u32 v%d, v%d, 3, v%d" % (T0, T3, T0))
        a("v_lshlrev_b32 v%d, 3, v%d" % (T2, T2))
        a("s_lshl_b32 s%d, s%d, 9" % (S_T + 4, S_RB32))
        a("s_add_u32 s%d, s%d, 0x%x" % (S_T + 4, S_T + 4, WS_ST + 4))
        for i in range(3):
            a("s_add_u32 s%d, s%d, %d" % (S_T, S_W, 8 * i))
            a("s_min_u32 s%d, s%d, 19" % (S_T, S_T))
            a("s_mul_hi_u32 s%d, s%d, 0x%x" % (S_T + 1, S_T, (1 << 32) // 5 + 1))
            a("s_mul_i32 s%d, s%d, 5" % (S_T + 2, S_T + 1))
            a("s_sub_u32 s%d, s%d, s%d" % (S_T + 2, S_T, S_T + 2))
            a("s_mul_i32 s%d, s%d, 20480" % (S_T + 3, S_T + 1))
            a("s_lshl_b32 s%d, s%d, 5" % (S_T + 2, S_T + 2))
            a("s_add_u32 s%d, s%d, s%d" % (S_T + 3, S_T + 3, S_T + 2))
            a("v_add_u32 v%d, s%d, v%d" % (GA + i, S_T + 3, T0))
            a("s_lshl_b32 s%d, s%d, 7" % (S_T + 1, S_T + 1))
            a("s_add_u32 s%d, s%d, s%d" % (S_T + 1, S_T + 1, S_T + 4))
            a("buffer_load_dword v%d, v%d, %s, s%d offen %s" % (RS + i, T2, sr(SWS), S_T + 1, SC))
        for i in range(3):
            a("buffer_load_dwordx2 %s, v%d, %s, s%d offen" % (vr(XR + 2 * i, 2), GA + i, sr(SX), S_GB))
        set_h(54)
        a("v_add_u32 v%d, s%d, v%d" % (T0, S_W1K, V_L16))
        a("v_add_u32 v%d, 16384, v%d" % (T2, T0))
        def red_write(mid=None):
            a("v_add_u32 v%d, s%d, v%d" % (T3, S_LB, V_L16))
            a("s_waitcnt lgkmcnt(0)")
            a("s_barrier")
            a("s_nop 4")
            for k in range(10): a("ds_write_b128 v%d, %s offset:%d" % (T3, vr(A3 + 4 * k, 4), k * 1024))
            if mid: mid()
            a("s_waitcnt lgkmcnt(0)")
            a("s_barrier")
        def own_read(after=None):
            for i in range(3):
                for k in range(4):
                    off = k * 20480 + i * 8192
                    if i < 2 and off < 65536: a("ds_read_b128 %s, v%d offset:%d" % (vr(R + i * 16 + k * 4, 4), T0, off))
                    else: a("ds_read_b128 %s, v%d offset:%d" % (vr(R + i * 16 + k * 4, 4), T2, off - 16384))
            a("s_waitcnt lgkmcnt(0)")
            if after: after()
            for i in range(3): self.tree(R + i * 16, 4, 4, 4)
        def loadW3():
            a("s_barrier")
            for G in range(1, 5): dmaW(14 + G, G - 1)
        red_write()
        own_read(loadW3)
        a("s_setprio %d" % self.prio_fp2)
        G_ = 96; GP = 14
        a("s_waitcnt vmcnt(8)")
        for i in range(3): a("v_mul_f32 v%d, v%d, v%d" % (RS + i, RS + i, RS + i))
        idx = [(i, r) for i in range(3) for r in range(4)]
        for i, r in idx: a("v_mul_f32 v%d, v%d, v%d" % (R + i * 16 + r, RS + i, R + i * 16 + r))
        for i, r in idx: a("v_mul_f32 v%d, 0x%x, v%d" % (G_ + 4 * i + r, f32bits(-LOG2E), R + i * 16 + r))
        for i, r in idx: a("v_exp_f32 v%d, v%d" % (G_ + 4 * i + r, G_ + 4 * i + r))
        a("s_nop 0")
        for i, r in idx: a("v_add_f32 v%d, 1.0, v%d" % (G_ + 4 * i + r, G_ + 4 * i + r))
        for i, r in idx: a("v_rcp_f32 v%d, v%d" % (G_ + 4 * i + r, G_ + 4 * i + r))
        a("s_nop 0")
        for i, r in idx: a("v_mul_f32 v%d, v%d, v%d" % (G_ + 4 * i + r, G_ + 4 * i + r, R + i * 16 + r))
        for k in range(6): a("v_cvt_pk_bf16_f32 v%d, v%d, v%d" % (GP + k, G_ + 2 * k, G_ + 2 * k + 1))
        a("s_setprio %d" % self.prio_fr)
        self.stamp(5, "f23")
        if "noA" in self.dbg: self.finish()
        a("v_bfe_u32 v%d, v%d, 2, 3" % (T3, V_LANE))
        a("v_and_b32 v26, 3, v%d" % V_LANE)
        a("v_lshlrev_b32 v26, 3, v26")
        a("v_lshl_add_u32 v26, v%d, 7, v26" % T3)
        a("s_lshl_b32 s%d, s%d, 10" % (S_T + 1, S_RB32))
        a("s_lshl_b32 s%d, s%d, 2" % (S_T + 2, S_TH))
        a("s_add_u32 s%d, s%d, s%d" % (S_T + 1, S_T + 1, S_T + 2))
        a("s_add_u32 s%d, s%d, 0x%x" % (S_T + 1, S_T + 1, F2_O))
        a("s_waitcnt vmcnt(0)")
        if "owv" not in self.dbg:
            a("v_lshrrev_b32 v%d, 3, v%d" % (T3, V_LANE))
            a("v_and_b32 v26, 7, v%d" % V_LANE)
            a("v_lshlrev_b32 v26, 2, v26")
            a("v_lshl_add_u32 v26, v%d, 7, v26" % T3)
            self.poll([(27, 1, 26, "s%d" % (S_T + 1))], T3, sleep=self.osleep)
        else:
            a("s_barrier")
            self.poll([(27, 1, 26, "s%d" % (S_T + 1))], T3, sleep=self.osleep, wave0=False)
        def o_loads():
            a("s_mov_b32 s%d, s%d" % (S_T, S_H))
            for s_ in range(5):
                for tt in range(2):
                    a("buffer_load_dwordx4 %s, v%d, %s, s%d offen offset:%d %s" % (vr(OF + s_ * 8 + tt * 4, 4), V_L16, sr(SWS), S_T, tt * 1024, SC))
                a("s_add_u32 s%d, s%d, 16384" % (S_T, S_T))
        if "nofill" in self.dbg:
            a("s_setprio 3")
            self.stamp(6, "f23")
            o_loads()
        else:
            a("s_mov_b32 s%d, %d" % (S_T + 2, SPIN_MAX))
            a.label("F3_PL")
            o_loads()
            for s_ in range(5):
                a("s_waitcnt vmcnt(%d)" % (8 - 2 * s_))
                b = OF + s_ * 8
                if s_ == 0: a("v_max_u32 v27, v%d, v%d" % (b, b + 1))
                else: a("v_max3_u32 v27, v27, v%d, v%d" % (b, b + 1))
                for k in (2, 4, 6): a("v_max3_u32 v27, v27, v%d, v%d" % (b + k, b + k + 1))
            a("v_cmp_eq_u32 vcc, -1, v27")
            a("s_sub_u32 s%d, s%d, 1" % (S_T + 2, S_T + 2))
            a("s_cbranch_scc1 F3_GO")
            a("s_cbranch_vccnz F3_PL")
            a.label("F3_GO")
            a("s_setprio 3")
            self.stamp(6, "f23")
        for s_ in range(5):
            if "nofill" in self.dbg: a("s_waitcnt vmcnt(%d)" % (8 - 2 * s_))
            for c in range(5):
                if s_ > 0: a("s_waitcnt lgkmcnt(%d)" % (4 if s_ < 4 else 4 - c))
                for tt in range(2):
                    d = A3 + (tt * 5 + c) * 4
                    a("v_mfma_f32_16x16x32_bf16 %s, %s, %s, %s" % (vr(d, 4), vr(WR + 4 * c, 4), vr(OF + s_ * 8 + tt * 4, 4), "0" if s_ == 0 else vr(d, 4)))
                if s_ < 4: rdW(WR, s_, c)
        U = 28; GF = 96
        def unpack_x():
            for k in range(6):
                a("v_lshlrev_b32 v%d, 16, v%d" % (U + 2 * k, XR + k))
                a("v_and_b32 v%d, 0xffff0000, v%d" % (U + 2 * k + 1, XR + k))
        red_write(unpack_x)
        for k in range(6):
            a("v_lshlrev_b32 v%d, 16, v%d" % (GF + 2 * k, GP + k))
            a("v_and_b32 v%d, 0xffff0000, v%d" % (GF + 2 * k + 1, GP + k))
        own_read()
        for i, r in idx: a("v_fmac_f32 v%d, v%d, v%d" % (U + 4 * i + r, R + i * 16 + r, GF + 4 * i + r))
        for k in range(6): a("v_cvt_pk_bf16_f32 v%d, v%d, v%d" % (XR + k, U + 2 * k, U + 2 * k + 1))
        for i in range(3):
            if i == 2:
                a("s_cmp_ge_u32 s%d, 4" % S_W)
                a("s_cbranch_scc1 F3_FIN")
            a("buffer_store_dwordx2 %s, v%d, %s, s%d offen" % (vr(XR + 2 * i, 2), GA + i, sr(SB), S_GB))
        a.label("F3_FIN")
        self.finish()

    def build(self):
        name = NAME + "_kernel"
        self.prologue(name)
        if "ffirst" not in self.dbg: self.role_a()
        self.role_f1()
        self.role_f23()
        if "ffirst" in self.dbg: self.role_a()
        self.role_sp()
        self.a.end_kernel(name, NVGPR)
        return self.a.text(HEADER + DOC + "; @launch grid=(512,1,1) block=(512,1,1) lds=%d\n" % LDS_BYTES)

if __name__ == "__main__":
    dbg = sys.argv[2] if len(sys.argv) > 2 else ""
    import subprocess, re
    cb = 0x4000
    for it in range(2):
        m = Mega(stamps="st" in dbg.split(","), dbg=dbg, code_bytes=cb)
        open(sys.argv[1], "w").write(m.build())
        subprocess.run(["clang", "-x", "assembler", "-target", "amdgcn-amd-amdhsa", "-mcpu=gfx950", "-c", sys.argv[1], "-o", "_m.o"], check=True)
        o = subprocess.run(["llvm-objdump", "-h", "_m.o"], capture_output=True, text=True).stdout
        size = int(re.search(r"\.text\s+([0-9a-f]+)", o).group(1), 16)
        cb = (size - 256) & ~127
    print(sys.argv[1], "text bytes", size)
```

```python
from common import *

LDS_BYTES = 81920
NVGPR = 128
S_W = 3
SWS, SX, SA, SB, SDBG = 8, 12, 16, 20, 24
S_ID, S_RB32, S_HI, S_XCD, S_IDX = 28, 29, 30, 31, 32
S_VM = 34
P_X, P_WQ, P_WK, P_WV, P_WO, P_WG, P_WU, P_WD, P_OUT, P_DBG, P_WS = 36, 38, 40, 42, 44, 48, 50, 52, 54, 56, 58
SC_ = 4
S_T = 60
S_R = 70
STAMP0 = 86
V_LANE, V_L16, V_NONCE = 1, 2, 3
T0, T1, T2, T3 = 4, 5, 6, 7
SC = "sc1"
VMASK = 0x000FFFFF
TILE = 2560
CHUNK = 8 * TILE
SPIN_MAX = 1 << 14
DPPS = ("quad_perm:[1,0,3,2]", "quad_perm:[2,3,0,1]", "row_half_mirror", "row_mirror")

DOC = """;
;   role F: (1) raw x @ [Wq | Wgate/Wup] tiles (LayerNorm folded in afterwards: rstd*(acc - mean*colsum(W))),
;               writes Q' = q*log2(e)/sqrt(20) and h' = silu(gate)*up / rstd^2 ;
;           (2) f = rstd^2 * (h' @ Wdown), g = silu(f) ; (3) s = O @ Wo, out = x + s*g.
;   role A: small side jobs first (K/V projection + LayerNorm statistics, weight column sums, fragment
; Softmax shift: a Cauchy-Schwarz bound B = |q'|*max|k| on every score of the row gives the stand-in B-48;
;   a run-time check (B <= 72 for every row of the wave, so all exponents stay in [-96,48]) guards it and
;   otherwise the wave first computes the true row maximum (label A2_FB) and uses that.
; Hand-offs between workgroups: write-through stores, drained, then a flag word holding this launch's tag
"""

class Mega:
    def __init__(self, stamps=False, dbg="", code_bytes=0x4000):
        self.a = Asm()
        self.stamps = stamps
        self.code_bytes = code_bytes
        self.dbg = d = dbg.split(",")
        def opt(name, default):
            for x in d:
                if x.startswith(name + "="): return int(x.split("=")[1])
            return default
        self.prio_a = opt("pa", 1)
        self.prio_f1 = opt("pf1", 2)
        self.prio_fe = opt("pfe", 2)
        self.prio_f2 = opt("pf2", 0)
        self.prio_fr = opt("pfr", 0)
        self.hint_j = opt("hj", 6)
        self.pad = opt("pad", 0)
        self.pat1 = "".join(x[2:] for x in d if x.startswith("u="))
        self.pat2 = "".join(x[2:] for x in d if x.startswith("w="))
        self.qsleep = opt("qs", 6)
        self.gsleep = opt("gs", 8)
        self.prio_fp = opt("pfp", 0)
        self.prio_fp2 = opt("pfq", 0)
        self.hsleep = opt("hs", 16)
        self.gmax = opt("gm", 6)
        self.prio_rl = opt("prl", 1)
        self.ksleep = opt("ks", 40)
        self.osleep = opt("os", 2)
        self.prio_sp = opt("psp", 3)
        self.prio_q = opt("pq", 1)
        self.prio_kv = opt("pkv", 3)
        self.f1sw = opt("f1sw", 0)
        self.prio_f1b = opt("pf1b", 0)
        self.asw = opt("asw", 99)
        self.prio_ab = opt("pab", 1)

    def stamp(self, i, tag=""):
        if tag == "f23" and ("f1st" in self.dbg or "kvst" in self.dbg): return
        if tag == "kv" and "kvst" not in self.dbg: return
        if self.stamps:
            self.a("s_memrealtime s[%d:%d]" % (STAMP0 + 2 * i, STAMP0 + 2 * i + 1))

    def finish(self, i_end=7):
        a = self.a
        if self.stamps:
            a("s_waitcnt vmcnt(0)")
            self.stamp(i_end)
            a("s_waitcnt lgkmcnt(0)")
            lab = a.newlabel("LST")
            a("s_cmp_lg_u32 s%d, 0" % S_W)
            a("s_cbranch_scc1 %s" % lab)
            a("s_xor_b32 s%d, s2, %d" % (S_T, 0 if "ffirst" not in self.dbg else 256))
            a("s_lshl_b32 s%d, s%d, 6" % (S_T, S_T))
            a("s_add_u32 s%d, s%d, 0x%x" % (S_T, S_T, STAMP_OFF))
            a("s_add_u32 s%d, s%d, s%d" % (S_T + 2, P_WS, S_T))
            a("s_addc_u32 s%d, s%d, 0" % (S_T + 3, P_WS + 1))
            for r in range(16):
                a("v_mov_b32 v%d, s%d" % (8 + r, STAMP0 + r))
            a("v_mov_b32 v%d, 0" % T0)
            a("s_mov_b64 exec, 1")
            for q in range(4):
                a("global_store_dwordx4 v%d, %s, s[%d:%d] offset:%d" % (T0, vr(8 + 4 * q, 4), S_T + 2, S_T + 3, q * 16))
            a.label(lab)
        a("s_endpgm")

    def load_nonce(self, vz):
        self.a("v_mov_b32 v%d, 0" % vz)
        self.a("buffer_load_dword v%d, v%d, %s, 0 offen %s" % (V_NONCE, vz, sr(SDBG), SC))

    def poll(self, loads, vz, sleep=2, wave0=True, maxit=SPIN_MAX):
        a = self.a
        done = a.newlabel("PD"); loop = a.newlabel("PL")
        if wave0:
            a("s_cmp_lg_u32 s%d, 0" % S_W)
            a("s_cbranch_scc1 %s" % done)
        a("s_mov_b32 s%d, %d" % (S_T, maxit))
        a.label(loop)
        self.load_nonce(vz)
        for d, n, ad, so in loads:
            op = {1: "dword", 2: "dwordx2", 4: "dwordx4"}[n]
            a("buffer_load_%s %s, v%d, %s, %s offen %s" % (op, "v%d" % d if n == 1 else vr(d, n), ad, sr(SWS), so, SC))
        a("s_waitcnt vmcnt(0)")
        a("v_cmp_eq_u32 vcc, 0, v%d" % V_NONCE)
        for d, n, ad, so in loads:
            for r in range(n):
                a("v_cmp_ne_u32 s[%d:%d], v%d, v%d" % (S_T + 4, S_T + 5, V_NONCE, d + r))
                a("s_or_b64 vcc, vcc, s[%d:%d]" % (S_T + 4, S_T + 5))
        a("s_cbranch_scc0 %s" % done)
        a("s_sleep %d                ; back-off between polls of a hand-off word" % sleep)
        a("s_sub_u32 s%d, s%d, 1" % (S_T, S_T))
        a("s_cmp_lg_u32 s%d, 0" % S_T)
        a("s_cbranch_scc1 %s" % loop)
        a.label(done)
        if wave0: a("s_barrier")

    def wave_flag(self, soff, vz, first_wait=0):
        a = self.a
        loop = a.newlabel("GL"); ok = a.newlabel("GK")
        a("s_mov_b32 s%d, %d" % (S_T + 6, SPIN_MAX))
        a("v_mov_b32 v%d, 0" % vz)
        if first_wait:
            ent = a.newlabel("GE")
            a("s_waitcnt vmcnt(%d)" % first_wait)
            a("s_branch %s" % ent)
        a.label(loop)
        a("s_waitcnt vmcnt(0)")
        if first_wait: a.label(ent)
        a("v_cmp_ne_u32 vcc, 0, v%d" % V_NONCE)
        a("s_nop 0")
        a("s_cbranch_vccnz %s" % ok)
        a("buffer_load_dword v%d, v%d, %s, 0 offen %s" % (V_NONCE, vz, sr(SDBG), SC))
        a("s_sub_u32 s%d, s%d, 1" % (S_T + 6, S_T + 6))
        a("s_cmp_lg_u32 s%d, 0" % (S_T + 6))
        a("s_cbranch_scc1 %s" % loop)
        a.label(ok)
        a("s_mov_b64 exec, 1")
        a("buffer_store_dword v%d, v%d, %s, %s offen %s" % (V_NONCE, vz, sr(SWS), soff, SC))
        a("s_mov_b64 exec, -1")

    def wg_flag(self, soff):
        a = self.a
        done = a.newlabel("FD")
        self.load_nonce(T3)
        a("s_waitcnt vmcnt(0)")
        a("s_barrier")
        a("s_cmp_lg_u32 s%d, 0" % S_W)
        a("s_cbranch_scc1 %s" % done)
        self.wave_flag(soff, T3)
        a.label(done)

    def meanrstd(self, dst, s0):
        a = self.a
        a("v_mul_f32 v%d, 0x%x, v%d" % (dst, f32bits(-1.0 / 640), s0))
        a("v_mul_f32 v%d, 0x%x, v%d" % (s0 + 1, f32bits(1.0 / 640), s0 + 1))
        a("v_fma_f32 v%d, -v%d, v%d, v%d" % (s0 + 1, dst, dst, s0 + 1))
        a("v_max_f32 v%d, 0, v%d" % (s0 + 1, s0 + 1))
        a("v_add_f32 v%d, 0x%x, v%d" % (s0 + 1, f32bits(1e-5), s0 + 1))
        a("v_rsq_f32 v%d, v%d" % (dst + 1, s0 + 1))
        a("s_nop 0")

    def halfsum(self, regs, tmp):
        a = self.a
        for n, r in enumerate(regs): a("v_mov_b32 v%d, v%d" % (tmp + n, r))
        a("s_nop 1")
        for n, r in enumerate(regs): a("v_permlane32_swap_b32 v%d, v%d" % (tmp + n, r))
        a("s_nop 1")
        for n, r in enumerate(regs): a("v_add_f32 v%d, v%d, v%d" % (r, tmp + n, r))

    def tree(self, base, stride, n, width):
        step = 1
        while step < n:
            for p in range(0, n, 2 * step):
                for r in range(width):
                    self.a("v_add_f32 v%d, v%d, v%d" % (base + p * stride + r, base + p * stride + r, base + (p + step) * stride + r))
            step *= 2

    def prologue(self, name):
        a = self.a
        a.begin_kernel(name)
        if self.stamps:
            for i in range(1, 8): a("s_mov_b64 s[%d:%d], 0" % (STAMP0 + 2 * i, STAMP0 + 2 * i + 1))
        self.stamp(0)
        a("s_cmp_ge_u32 s2, 512")
        a("s_cbranch_scc0 M_GO")
        a("s_endpgm")
        a.label("M_GO")
        a("s_load_dwordx4 s[36:39], s[0:1], 0")
        a("s_load_dwordx4 s[40:43], s[0:1], 16")
        a("s_load_dwordx2 s[44:45], s[0:1], 32")
        a("s_load_dwordx4 s[48:51], s[0:1], 48")
        a("s_load_dwordx4 s[52:55], s[0:1], 64")
        a("s_load_dwordx4 s[56:59], s[0:1], 80")
        a("s_memrealtime s[%d:%d]" % (S_T + 8, S_T + 9))
        if "padown" in self.dbg: a("s_memrealtime s[100:101]")
        a("v_lshrrev_b32 v%d, 6, v0" % T0)
        a("v_and_b32 v%d, 63, v0" % V_LANE)
        a("v_readfirstlane_b32 s%d, v%d" % (S_W, T0))
        a("v_lshlrev_b32 v%d, 4, v%d" % (V_L16, V_LANE))
        if "pf" in self.dbg:
            a("s_getpc_b64 s[%d:%d]" % (S_T + 4, S_T + 5))
            a("v_lshlrev_b32 v%d, 7, v0" % T1)
            a("v_cmp_gt_u32 vcc, 0x%x, v%d" % (self.code_bytes, T1))
            a("s_and_saveexec_b64 s[%d:%d], vcc" % (S_T + 6, S_T + 7))
            a("s_cbranch_execz M_NPF")
            a("global_load_dword v19, v%d, s[%d:%d]" % (T1, S_T + 4, S_T + 5))
            a.label("M_NPF")
            a("s_mov_b64 exec, -1")
        a("v_mov_b32 v%d, 0" % V_NONCE)
        a("s_and_b32 s%d, s2, 255" % S_ID)
        a("s_and_b32 s%d, s2, 7" % S_XCD)
        a("s_lshr_b32 s%d, s%d, 3" % (S_IDX, S_ID))
        a("s_lshl_b32 s%d, s%d, 2" % (S_RB32, S_XCD))
        a("s_and_b32 s%d, s%d, 3" % (S_T + 2, S_IDX))
        a("s_add_u32 s%d, s%d, s%d" % (S_RB32, S_RB32, S_T + 2))
        a("s_lshr_b32 s%d, s%d, 5" % (S_HI, S_ID))
        a("s_mov_b32 s%d, 0x%x" % (S_VM, VMASK))
        a("s_mov_b32 s%d, 0x%x" % (S_VM + 1, VMASK))
        a("v_lshrrev_b32 v%d, 4, v%d" % (T0, V_LANE))
        a("s_and_b32 s%d, s%d, 1" % (S_T, S_W))
        a("s_lshl_b32 s%d, s%d, 2" % (S_T, S_T))
        a("v_add_u32 v%d, s%d, v%d" % (T0, S_T, T0))
        a("v_and_b32 v%d, 7, v%d" % (T1, V_LANE))
        a("v_xor_b32 v%d, v%d, v%d" % (T0, T0, T1))
        a("v_lshrrev_b32 v%d, 3, v%d" % (T1, V_LANE))
        a("v_mul_u32_u24 v%d, 1280, v%d" % (T1, T1))
        a("v_lshl_add_u32 v8, v%d, 4, v%d" % (T0, T1))
        a("s_cmp_lt_u32 s2, 256" if "ffirst" not in self.dbg else "s_cmp_ge_u32 s2, 256")
        a("s_waitcnt lgkmcnt(0)")
        srd(a, SWS, P_WS, P_WS + 1, WS_USED)
        srd(a, SX, P_X, P_X + 1, 2621440)
        srd(a, SDBG, P_DBG, P_DBG + 1, 256)
        a("s_cbranch_scc0 ROLE_F" if "ffirst" not in self.dbg else "s_cbranch_scc1 ROLE_A")

    def role_a(self):
        a = self.a; dbg = self.dbg
        S_TI, S_HEAD = S_R, S_R + 1
        a("; role A")
        a.label("ROLE_A")
        a("s_or_b32 s%d, s%d, s%d" % (S_T + 2, S_ID, S_W))
        a("s_cmp_lg_u32 s%d, 0" % (S_T + 2))
        a("s_cbranch_scc1 M_NT")
        a("s_or_b32 s%d, s%d, 1" % (S_T + 8, S_T + 8))
        a("v_mov_b32 v%d, s%d" % (T0, S_T + 8))
        a("v_mov_b32 v%d, 0" % T1)
        a("s_mov_b64 exec, 1")
        a("buffer_store_dword v%d, v%d, %s, 0 offen %s" % (T0, T1, sr(SDBG), SC))
        a("s_mov_b64 exec, -1")
        a.label("M_NT")
        a("s_cmp_lt_u32 s%d, 4" % S_HI)
        a("s_cbranch_scc0 AUX_2")
        a("s_setprio %d" % self.prio_kv)
        self.kv_issue()
        a.label("KV_I")
        self.kv_body()
        self.wave_flag("s%d" % (S_R + 15), T0)
        a("s_branch AUX_RL")
        a.label("A_GO")
        self.stamp(1)
        if "noA" in dbg: self.finish()
        a("s_setprio %d" % self.prio_q)
        V_KA, V_K1A, V_V0A, V_V1A, V_IDX = 120, 121, 122, 123, 124
        AD = 125
        O = 96
        V0, V1 = 112, 116
        Q0, Q1 = 8, 12
        K0, K1 = 16, 20
        SAa, SBb = 24, 40
        QA = 74
        S_SRC, S_DST, S_C, S_DK, S_CUR, S_OO, S_FO, S_KM, S_QO = S_R + 2, S_R + 3, S_R + 4, S_R + 5, S_R + 6, S_R + 8, S_R + 9, S_R + 10, S_R + 11
        a("s_and_b32 s%d, s%d, 1" % (S_TI, S_W))
        a("s_lshr_b32 s%d, s%d, 1" % (S_T + 2, S_W))
        a("s_lshl_b32 s%d, s%d, 2" % (S_HEAD, S_HI))
        a("s_add_u32 s%d, s%d, s%d" % (S_HEAD, S_HEAD, S_T + 2))
        a("v_and_b32 v%d, 31, v%d" % (T0, V_LANE))
        a("v_lshrrev_b32 v%d, 5, v%d" % (T1, V_LANE))
        a("v_mov_b32 v%d, v%d" % (V_KA, V_L16))
        a("v_lshlrev_b32 v%d, 3, v%d" % (V_K1A, T0))
        a("v_mul_u32_u24 v%d, 320, v%d" % (V_V0A, T1))
        a("v_lshl_add_u32 v%d, v%d, 4, v%d" % (V_V0A, T0, V_V0A))
        a("v_mov_b32 v%d, v%d" % (V_V1A, V_V0A))
        a("v_mov_b32 v%d, 0xdddddddd" % V_IDX)
        a("s_mul_i32 s%d, s%d, 20" % (S_T, S_HEAD))
        a("v_lshlrev_b32 v%d, 4, v%d" % (T0, T0))
        for j in range(3):
            if j < 2:
                a("v_lshl_add_u32 v%d, v%d, 3, s%d" % (T2, T1, S_T))
                if j: a("v_add_u32 v%d, 4, v%d" % (T2, T2))
            else:
                a("v_mov_b32 v%d, s%d" % (T2, S_T))
                a("v_add_u32 v%d, 16, v%d" % (T2, T2))
            a("v_lshrrev_b32 v%d, 3, v%d" % (T3, T2))
            a("v_lshl_add_u32 v%d, v%d, 9, v%d" % (QA + j, T3, T0))
            a("v_and_b32 v%d, 4, v%d" % (T3, T2))
            a("v_lshl_add_u32 v%d, v%d, 1, v%d" % (QA + j, T3, QA + j))
        a("s_lshl_b32 s%d, s%d, 1" % (S_QO, S_RB32))
        a("s_add_u32 s%d, s%d, s%d" % (S_QO, S_QO, S_TI))
        a("s_mul_i32 s%d, s%d, 40960" % (S_QO, S_QO))
        if WS_QP: a("s_add_u32 s%d, s%d, 0x%x" % (S_QO, S_QO, WS_QP))
        a("v_and_b32 v%d, 3, v%d" % (T2, V_LANE))
        a("v_lshlrev_b32 v%d, 5, v%d" % (T2, T2))
        a("v_min_u32 v%d, 79, v%d" % (T2, T2))
        a("s_mul_i32 s%d, s%d, 80" % (S_T + 1, S_HI))
        a("v_add_u32 v%d, s%d, v%d" % (T2, S_T + 1, T2))
        a("v_lshrrev_b32 v%d, 7, v%d" % (T3, T2))
        a("v_add_u32 v%d, 27, v%d" % (T3, T3))
        a("v_lshrrev_b32 v77, 1, v%d" % T3)
        a("v_lshlrev_b32 v77, 7, v77")
        a("v_and_b32 v%d, 1, v%d" % (T3, T3))
        a("v_lshl_add_u32 v77, v%d, 4, v77" % T3)
        a("v_bfe_u32 v%d, v%d, 5, 1" % (T3, T2))
        a("v_lshl_add_u32 v77, v%d, 3, v77" % T3)
        a("s_lshr_b32 s%d, s%d, 1" % (S_T + 1, S_RB32))
        a("s_lshl_b32 s%d, s%d, 11" % (S_T + 1, S_T + 1))
        a("s_and_b32 s%d, s%d, 1" % (S_T + 2, S_RB32))
        a("s_lshl_b32 s%d, s%d, 2" % (S_T + 2, S_T + 2))
        a("s_add_u32 s%d, s%d, s%d" % (S_T + 1, S_T + 1, S_T + 2))
        a("s_add_u32 s%d, s%d, 0x%x" % (S_T + 1, S_T + 1, F2_H))
        a("v_add_u32 v77, s%d, v77" % (S_T + 1))
        a("v_lshl_add_u32 v%d, v%d, 2, s%d" % (T1, T1, S_T))
        a("v_and_b32 v%d, 15, v%d" % (T0, V_LANE))
        a("v_lshlrev_b32 v%d, 4, v%d" % (T0, T0))
        a("v_bfe_u32 v%d, v%d, 4, 1" % (T2, V_LANE))
        a("v_lshl_add_u32 v%d, v%d, 10, v%d" % (T0, T2, T0))
        for j in range(3):
            a("v_add_u32 v%d, %d, v%d" % (T2, 8 * j, T1))
            a("v_lshrrev_b32 v%d, 5, v%d" % (T3, T2))
            a("v_lshl_add_u32 v%d, v%d, 12, v%d" % (AD + j, T3, T0))
            a("v_bfe_u32 v%d, v%d, 3, 2" % (T3, T2))
            a("v_lshl_add_u32 v%d, v%d, 8, v%d" % (AD + j, T3, AD + j))
            a("v_and_b32 v%d, 7, v%d" % (T3, T2))
            a("v_lshl_add_u32 v%d, v%d, 1, v%d" % (AD + j, T3, AD + j))
        a("s_mul_i32 s%d, s%d, 74" % (S_OO, S_RB32))
        a("s_add_u32 s%d, s%d, 54" % (S_OO, S_OO))
        a("s_lshl_b32 s%d, s%d, 12" % (S_OO, S_OO))
        a("s_lshl_b32 s%d, s%d, 11" % (S_T + 1, S_TI))
        a("s_add_u32 s%d, s%d, s%d" % (S_OO, S_OO, S_T + 1))
        a("s_add_u32 s%d, s%d, 0x%x" % (S_OO, S_OO, WS_HO))
        a("s_lshl_b32 s%d, s%d, 10" % (S_FO, S_RB32))
        a("s_lshl_b32 s%d, s%d, 7" % (S_T + 1, S_HI))
        a("s_add_u32 s%d, s%d, s%d" % (S_FO, S_FO, S_T + 1))
        a("s_lshl_b32 s%d, s%d, 2" % (S_T + 1, S_W))
        a("s_add_u32 s%d, s%d, s%d" % (S_FO, S_FO, S_T + 1))
        a("s_add_u32 s%d, s%d, 0x%x" % (S_FO, S_FO, F2_O))
        a("s_lshl_b32 s%d, s%d, 10" % (S_T + 1, S_RB32))
        a("s_add_u32 s%d, s%d, 0x%x" % (S_T + 1, S_T + 1, F2_O + 32))
        a("v_and_b32 v72, 7, v%d" % V_LANE)
        a("v_lshlrev_b32 v72, 7, v72")
        a("v_add_u32 v72, s%d, v72" % (S_T + 1))
        for r in range(8): a("v_mov_b32 v%d, 0" % (V0 + r))
        a("s_mov_b32 exec_lo, 0x11000000")
        a("s_mov_b32 exec_hi, 0x11000000")
        for r in range(8): a("v_mov_b32 v%d, 0x3f803f80" % (V0 + r))
        a("s_mov_b64 exec, -1")
        for r in range(8): a("v_mov_b32 v%d, v%d" % (64 + r, V0))
        for r in range(16): a("v_mov_b32 v%d, 0" % (O + r))
        for r in range(8, 16): a("v_mov_b32 v%d, 0" % (SBb + r))
        for k in (K1 + 2, 62): a("v_mov_b32 v%d, 0x3f803f80" % k)
        for k in (K1 + 3, 63): a("v_mov_b32 v%d, 0x00003f80" % k)
        a("v_mov_b32 v%d, 0" % (Q1 + 2))
        a("v_mov_b32 v%d, 0" % (Q1 + 3))
        a("v_lshlrev_b32 v%d, 7, v%d" % (T0, V_LANE))
        a("s_mov_b32 s%d, 0x%x" % (S_T + 1, F2_K))
        a("s_mov_b32 s%d, 0x%x" % (S_T + 2, F2_K + 8192))
        a("s_cmp_lg_u32 s%d, 0" % S_W)
        a("s_cbranch_scc1 A_PP")
        a("s_cmp_lt_u32 s%d, 4" % S_HI)
        a("s_cbranch_scc1 A_PP")
        a("v_and_b32 v%d, 0x180, v%d" % (T1, T0))
        a("s_lshl_b32 s%d, s%d, 9" % (S_T + 3, S_RB32))
        a("s_add_u32 s%d, s%d, 0x%x" % (S_T + 3, S_T + 3, F2_K))
        self.poll([(24, 4, T1, "s%d" % (S_T + 3))], T3, sleep=40, wave0=False)
        a.label("A_PP")
        self.poll([(24, 4, T0, "s%d" % (S_T + 1)), (28, 4, T0, "s%d" % (S_T + 2))], T3, sleep=self.ksleep)
        self.stamp(5)
        def dma_chunk(tag):
            for m in range(3):
                if m == 2:
                    a("s_cmp_ge_u32 s%d, 4" % S_W)
                    a("s_cbranch_scc1 A2_DS%s" % tag)
                a("s_add_u32 m0, s%d, %d" % (S_DST, m * 8192))
                a("s_add_u32 s%d, s%d, %d" % (S_T, S_SRC, m * 8192))
                a("buffer_load_dwordx4 v%d, %s, s%d offen %s lds" % (V_L16, sr(SWS), S_T, SC))
            a.label("A2_DS%s" % tag)
            a("s_add_u32 s%d, s%d, %d" % (S_SRC, S_SRC, CHUNK))
            a("s_add_u32 s%d, s%d, %d" % (S_DST, S_DST, CHUNK))
            a("s_cmp_ge_u32 s%d, %d" % (S_DST, 3 * CHUNK))
            a("s_cbranch_scc0 A2_DW%s" % tag)
            a("s_sub_u32 s%d, s%d, %d" % (S_DST, S_DST, 3 * CHUNK))
            a.label("A2_DW%s" % tag)
        KN = 24
        a("s_mov_b32 s%d, 0x%x" % (S_T, WS_KN))
        a("buffer_load_dwordx4 %s, v%d, %s, s%d offen %s" % (vr(KN, 4), V_L16, sr(SWS), S_T, SC))
        a("s_lshl_b32 s%d, s%d, 10" % (S_DST, S_W))
        a("s_add_u32 s%d, s%d, 0x%x" % (S_SRC, S_DST, WS_KV))
        dma_chunk("a")
        dma_chunk("b")
        a("s_waitcnt vmcnt(0)")
        a("s_barrier")
        a("v_add_f32 v%d, v%d, v%d" % (KN, KN, KN + 1))
        a("v_add_f32 v%d, v%d, v%d" % (KN, KN, KN + 2))
        for dpp in DPPS:
            a("s_nop 1")
            a("v_max_f32_dpp v%d, v%d, v%d %s row_mask:0xf bank_mask:0xf" % (KN, KN, KN, dpp))
        a("s_nop 0")
        for q in range(4): a("v_readlane_b32 s%d, v%d, %d" % (S_T + q, KN, 16 * q))
        a("s_nop 3")
        a("s_max_u32 s%d, s%d, s%d" % (S_T, S_T, S_T + 1))
        a("s_max_u32 s%d, s%d, s%d" % (S_T + 2, S_T + 2, S_T + 3))
        a("s_max_u32 s%d, s%d, s%d" % (S_KM, S_T, S_T + 2))
        self.load_nonce(T3)
        self.poll([(T1, 1, 77, "0")], T3, sleep=self.qsleep)
        a("s_setprio 3")
        self.stamp(2)
        a("buffer_load_dwordx2 %s, v%d, %s, s%d offen %s" % (vr(Q0, 2), QA, sr(SWS), S_QO, SC))
        a("buffer_load_dwordx2 %s, v%d, %s, s%d offen %s" % (vr(Q0 + 2, 2), QA + 1, sr(SWS), S_QO, SC))
        a("buffer_load_dwordx2 %s, v%d, %s, s%d offen %s" % (vr(Q1, 2), QA + 2, sr(SWS), S_QO, SC))
        a("v_mov_b32 v%d, 0" % T2)
        a("s_waitcnt vmcnt(0)")
        if "nogate" not in dbg:
            a("s_cmp_lg_u32 s%d, 0" % S_W)
            a("s_cbranch_scc1 A_NS")
            a("s_mov_b64 exec, 1")
            a("buffer_store_dword v%d, v%d, %s, s%d offen offset:36 %s" % (V_NONCE, T2, sr(SWS), S_FO, SC))
            a("s_mov_b64 exec, -1")
            a.label("A_NS")
        a("s_mov_b32 exec_lo, 0")
        a("v_mov_b32 v%d, 0" % Q1)
        a("v_mov_b32 v%d, 0" % (Q1 + 1))
        a("s_mov_b64 exec, -1")
        for r in range(6):
            a("v_lshlrev_b32 v%d, 16, v%d" % (T0, Q0 + r))
            a("v_and_b32 v%d, 0xffff0000, v%d" % (T1, Q0 + r))
            a("v_fmac_f32 v%d, v%d, v%d" % (T2, T0, T0))
            a("v_fmac_f32 v%d, v%d, v%d" % (T2, T1, T1))
        self.halfsum([T2], T3)
        a("v_mul_f32 v%d, s%d, v%d" % (T2, S_KM, T2))
        a("v_sqrt_f32 v%d, v%d" % (T2, T2))
        a("v_mov_b32 v%d, 0x%x" % (T3, f32bits(72.0)))
        a("v_mul_f32 v%d, 0x%x, v%d" % (T2, f32bits(1.02), T2))
        a("v_cmp_nle_f32 vcc, v%d, v%d" % (T2, T3))
        a("v_add_f32 v%d, 0x%x, v%d" % (T2, f32bits(-48.0), T2))
        a("s_nop 0")
        if "forcefb" in dbg: a("s_branch A2_FB")
        a("s_cbranch_vccnz A2_FB")
        a.label("A2_SETM")
        a("v_sub_f32 v%d, 0, v%d" % (T2, T2))
        a("v_and_b32 v%d, 0xffff0000, v%d" % (T3, T2))
        a("v_sub_f32 v%d, v%d, v%d" % (T2, T2, T3))
        a("v_and_b32 v%d, 0xffff0000, v%d" % (T0, T2))
        a("v_sub_f32 v%d, v%d, v%d" % (T2, T2, T0))
        a("v_lshrrev_b32 v%d, 16, v%d" % (T3, T3))
        a("s_mov_b32 exec_hi, 0")
        a("v_or_b32 v%d, v%d, v%d" % (Q1 + 2, T3, T0))
        a("v_lshrrev_b32 v%d, 16, v%d" % (Q1 + 3, T2))
        a("s_mov_b64 exec, -1")
        a("s_setprio %d" % self.prio_a)
        self.stamp(3)
        KS = [K0, 56]; VS = [V0, 64]
        def rdK0(p, off): a("ds_read_b128 %s, v%d offset:%d" % (vr(KS[p], 4), V_KA, off))
        def rdK1(p, off): a("ds_read_b64 %s, v%d offset:%d" % (vr(KS[p] + 4, 2), V_K1A, off + 1024))
        def qk0(S, p=0): a("v_mfma_f32_32x32x16_bf16 %s, %s, %s, 0" % (vr(S, 16), vr(KS[p], 4), vr(Q0, 4)))
        def qk1(S, p=0): a("v_mfma_f32_32x32x16_bf16 %s, %s, %s, %s" % (vr(S, 16), vr(KS[p] + 4, 4), vr(Q1, 4), vr(S, 16)))
        def pv(Vf, P): a("v_smfmac_f32_32x32x32_bf16 %s, %s, %s, v%d" % (vr(O, 16), vr(Vf, 4), vr(P, 8), V_IDX))
        def ex(S, lo, hi):
            for r in range(lo, hi): a("v_exp_f32 v%d, v%d" % (S + r, S + r))
        rdK0(1, 0); rdK1(1, 0)
        rdK0(0, TILE); rdK1(0, TILE)
        a("s_mov_b64 exec, s[%d:%d]" % (S_VM, S_VM + 1))
        a("ds_read_b128 %s, v%d offset:1280" % (vr(VS[0], 4), V_V0A))
        a("s_mov_b64 exec, -1")
        a("s_waitcnt lgkmcnt(3)")
        qk0(SAa, 1); qk1(SAa, 1)
        a("s_mov_b32 s%d, 0" % S_C)
        a("s_mov_b32 s%d, 0" % S_CUR)
        a("s_nop 7")
        a.label("A2_LOOP")
        a("s_add_u32 s%d, s%d, %d" % (S_CUR, S_CUR, CHUNK))
        a("s_cmp_eq_u32 s%d, %d" % (S_CUR, 3 * CHUNK))
        sel(a, S_DK, (-2 * CHUNK) & 0xffffffff, CHUNK)
        a("s_cselect_b32 s%d, 0, s%d" % (S_CUR, S_CUR))
        for j in range(8):
            Sc, Sn = (SAa, SBb) if j % 2 == 0 else (SBb, SAa)
            p = j & 1; n = 1 - p
            if j == self.hint_j and "nofill" not in dbg:
                a("s_cmp_lg_u32 s%d, 7" % S_C)
                a("s_cbranch_scc1 A2_NH")
                a("s_waitcnt vmcnt(0)")
                a("v_cmp_ne_u32 vcc, v%d, v73" % V_NONCE)
                a("v_cmp_eq_u32 s[%d:%d], 0, v73" % (S_T + 4, S_T + 5))
                a("s_or_b64 vcc, vcc, s[%d:%d]" % (S_T + 4, S_T + 5))
                a("s_cbranch_scc0 A2_PF")
                self.poll([(73, 1, 72, "0")], T0, sleep=4, wave0=False)
                a.label("A2_PF")
                self.wave_flag("s%d" % S_FO, T0)
                a.label("A2_NH")
            if j == 6:
                a("s_cmp_eq_u32 s%d, 7" % S_C)
                a("s_cbranch_scc1 A2_NODMA")
                a("s_waitcnt vmcnt(0)")
                a("s_barrier")
                a("s_cmp_ge_u32 s%d, 6" % S_C)
                a("s_cbranch_scc1 A2_LC")
                a("s_setprio 3")
                dma_chunk("c")
                a("s_setprio %d" % self.prio_a)
                a("s_branch A2_NODMA")
                a.label("A2_LC")
                self.load_nonce(T0)
                a("buffer_load_dword v73, v72, %s, 0 offen %s" % (sr(SWS), SC))
                a.label("A2_NODMA")
                a("v_add_u32 v%d, s%d, v%d" % (V_KA, S_DK, V_KA))
                a("v_add_u32 v%d, s%d, v%d" % (V_K1A, S_DK, V_K1A))
            if j == 7:
                a("v_add_u32 v%d, s%d, v%d" % (V_V0A, S_DK, V_V0A))
            a("s_waitcnt lgkmcnt(0)")
            rdK0(n, ((j + 2) % 8) * TILE)
            pv(VS[p] + 4, Sn + 8)
            rdK1(n, ((j + 2) % 8) * TILE)
            ex(Sc, 0, 4)
            qk0(Sn, p)
            a("s_mov_b64 exec, s[%d:%d]" % (S_VM, S_VM + 1))
            a("ds_read_b128 %s, v%d offset:%d" % (vr(VS[n] + 4, 4), V_V1A, j * TILE + 1920))
            a("ds_read_b128 %s, v%d offset:%d" % (vr(VS[n], 4), V_V0A, ((j + 1) % 8) * TILE + 1280))
            a("s_mov_b64 exec, -1")
            ex(Sc, 4, 8)
            qk1(Sn, p)
            ex(Sc, 8, 12)
            pv(VS[p], Sc)
            ex(Sc, 12, 16)
            if j == 7: a("v_add_u32 v%d, s%d, v%d" % (V_V1A, S_DK, V_V1A))
        a("s_add_u32 s%d, s%d, 1" % (S_C, S_C))
        if "atst" in dbg:
            for c_, sl in ((1, 1), (2, 2), (4, 5), (6, 6)):
                a("s_cmp_lg_u32 s%d, %d" % (S_C, c_))
                a("s_cbranch_scc1 A2_S%d" % c_)
                self.stamp(sl)
                a.label("A2_S%d" % c_)
        a("s_cmp_lt_u32 s%d, 8" % S_C)
        a("s_cbranch_scc1 A2_LOOP")
        a("s_setprio 3")
        a("s_waitcnt lgkmcnt(0)")
        pv(V1, SBb + 8)
        self.stamp(4)
        a("s_nop 11")
        a("v_rcp_f32 v%d, v%d" % (T3, O + 12))
        a("s_nop 0")
        for r in range(12): a("v_mul_f32 v%d, v%d, v%d" % (O + r, T3, O + r))
        PK = SAa
        for r in range(6): a("v_cvt_pk_bf16_f32 v%d, v%d, v%d" % (PK + r, O + 2 * r, O + 2 * r + 1))
        a("buffer_store_dwordx2 %s, v%d, %s, s%d offen %s" % (vr(PK, 2), AD, sr(SWS), S_OO, SC))
        a("buffer_store_dwordx2 %s, v%d, %s, s%d offen %s" % (vr(PK + 2, 2), AD + 1, sr(SWS), S_OO, SC))
        a("s_mov_b32 exec_hi, 0")
        a("buffer_store_dwordx2 %s, v%d, %s, s%d offen %s" % (vr(PK + 4, 2), AD + 2, sr(SWS), S_OO, SC))
        a("s_mov_b64 exec, -1")
        if "nofill" in dbg: self.wave_flag("s%d" % S_FO, T0)
        self.finish()
        a.label("A2_FB")
        a("v_mov_b32 v%d, 0xff800000" % T2)
        a("s_mov_b32 s%d, 0x%x" % (S_T, WS_KV))
        a.label("A2_FBL")
        a("buffer_load_dwordx4 %s, v%d, %s, s%d offen %s" % (vr(K0, 4), V_KA, sr(SWS), S_T, SC))
        a("buffer_load_dwordx2 %s, v%d, %s, s%d offen offset:1024 %s" % (vr(K1, 2), V_K1A, sr(SWS), S_T, SC))
        a("s_waitcnt vmcnt(0)")
        qk0(SAa); qk1(SAa)
        a("s_nop 15")
        for r in range(0, 16, 2): a("v_max3_f32 v%d, v%d, v%d, v%d" % (T2, T2, SAa + r, SAa + r + 1))
        a("s_add_u32 s%d, s%d, %d" % (S_T, S_T, TILE))
        a("s_cmp_lt_u32 s%d, 0x%x" % (S_T, WS_KV + 64 * TILE))
        a("s_cbranch_scc1 A2_FBL")
        a("v_mov_b32 v%d, v%d" % (T3, T2))
        a("s_nop 1")
        a("v_permlane32_swap_b32 v%d, v%d" % (T3, T2))
        a("s_nop 1")
        a("v_max_f32 v%d, v%d, v%d" % (T2, T2, T3))
        a("s_branch A2_SETM")

    F2_WO, F2_W1K, F2_RLOK = S_R + 12, S_R + 13, S_R + 14
    def f2_wsetup(self):
        a = self.a
        a("s_lshl_b32 s%d, s%d, 10" % (self.F2_W1K, S_W))
        a("s_mul_i32 s%d, s%d, %d" % (self.F2_WO, S_HI, 74 * 5120))
        a("s_add_u32 s%d, s%d, s%d" % (self.F2_WO, self.F2_WO, self.F2_W1K))
        a("s_add_u32 s%d, s%d, 0x%x" % (self.F2_WO, self.F2_WO, WS_WF2))
    def f2_dmaW(self, g):
        a = self.a
        lab = a.newlabel("F2D")
        for m in range(3):
            if m == 2:
                a("s_cmp_ge_u32 s%d, 4" % S_W)
                a("s_cbranch_scc1 %s" % lab)
            a("s_add_u32 m0, s%d, %d" % (self.F2_W1K, (g % 4) * 20480 + m * 8192))
            a("s_add_u32 s%d, s%d, %d" % (S_T + 7, self.F2_WO, g * 20480 + m * 8192))
            a("buffer_load_dwordx4 v%d, %s, s%d offen %s lds" % (V_L16, sr(SWS), S_T + 7, SC))
        a.label(lab)

    def role_f1(self):
        a = self.a; dbg = self.dbg
        V_VX, V_VG, V_VU = 8, 9, 10
        V_XA = 12
        V_WA = 14
        V_SX = 16
        F = [24, 40]
        ACC = 56
        S_RB, S_CB, S_TH, S_CG, S_OX, S_OW, S_BX, S_BW, S_STG, S_ACT = [S_R + i for i in range(10)]
        WREG = 32768
        S_HT, S_WST = S_R + 10, S_R + 11
        a.label("ROLE_F")
        a("s_setprio %d" % self.prio_f1)
        a("s_and_b32 s%d, s%d, 3" % (S_T, S_XCD))
        a("s_lshr_b32 s%d, s%d, 3" % (S_CB, S_IDX))
        a("s_sub_u32 s%d, 3, s%d" % (S_CB, S_CB))
        a("s_lshl_b32 s%d, s%d, 2" % (S_CB, S_CB))
        a("s_add_u32 s%d, s%d, s%d" % (S_CB, S_CB, S_T))
        a("s_and_b32 s%d, s%d, 7" % (S_T, S_IDX))
        a("s_and_b32 s%d, s%d, 4" % (S_RB, S_XCD))
        a("s_lshl_b32 s%d, s%d, 1" % (S_RB, S_RB))
        a("s_add_u32 s%d, s%d, s%d" % (S_RB, S_RB, S_T))
        a("s_lshl_b32 s%d, s%d, 4" % (S_T, S_RB))
        a("s_add_u32 s%d, s%d, s%d" % (S_T, S_T, S_W))
        a("s_mul_i32 s%d, s%d, 10240" % (S_OX, S_T))
        a("s_lshl_b32 s%d, s%d, 10" % (S_BW, S_W))
        a("s_mov_b32 s%d, s%d" % (S_BX, S_BW))
        def dmaX():
            return [
              ["s_mov_b32 m0, s%d" % S_BX, "s_add_u32 s%d, s%d, 81920" % (S_T, S_OX),
               "buffer_load_dwordx4 v%d, %s, s%d offen lds" % (V_VX, sr(SX), S_OX)],
              ["s_add_u32 m0, s%d, 8192" % S_BX, "s_add_u32 s%d, s%d, 128" % (S_OX, S_OX),
               "buffer_load_dwordx4 v%d, %s, s%d offen lds" % (V_VX, sr(SX), S_T), "s_xor_b32 s%d, s%d, 16384" % (S_BX, S_BX)],
            ]
        def dmaW(b):
            return [
              ["s_add_u32 m0, s%d, %d" % (S_BW, WREG + b * 16384), "s_nop 0",
               "buffer_load_dwordx4 v%d, %s, s%d offen lds" % (V_VG, sr(SA), S_OW)],
              ["s_add_u32 m0, s%d, %d" % (S_BW, WREG + b * 16384 + 8192), "s_nop 0",
               "buffer_load_dwordx4 v%d, %s, s%d offen lds" % (V_VU, sr(SB), S_OW), "s_add_u32 s%d, s%d, s%d" % (S_OW, S_OW, S_WST)],
            ]
        def emit(groups):
            for g in groups:
                for op in g: a(op)
        if "noF" in dbg:
            a("s_cmp_lt_u32 s%d, 3" % S_CB)
            a("s_cbranch_scc1 F1_KEEP")
            self.finish()
            a.label("F1_KEEP")
        emit(dmaX())
        a("s_lshr_b32 s%d, s%d, 2" % (S_T, S_W))
        a("s_lshl_b32 s%d, s%d, 1" % (S_HT, S_CB))
        a("s_add_u32 s%d, s%d, s%d" % (S_HT, S_HT, S_T))
        a("s_add_u32 s%d, s%d, 27" % (S_HT, S_HT))
        a("s_and_b32 s%d, s%d, 31" % (S_HT, S_HT))
        a("s_lshl_b32 s%d, s%d, 7" % (S_T + 1, S_HT))
        a("s_lshl_b32 s%d, s%d, 8" % (S_T + 2, S_HT))
        a("s_sub_u32 s%d, s%d, %d" % (S_T + 2, S_T + 2, 27 * 256))
        a("s_cmp_lt_u32 s%d, 27" % S_HT)
        a("s_cselect_b32 s%d, 1, 0" % S_ACT)
        a("s_cselect_b32 s%d, s%d, s%d" % (S_OW, S_T + 1, S_T + 2))
        sel(a, S_T + 3, 3456, 1280)
        a("s_cselect_b32 s%d, s%d, s%d" % (SA, P_WG, P_WQ))
        a("s_cselect_b32 s%d, s%d, s%d" % (SA + 1, P_WG + 1, P_WQ + 1))
        sel(a, SA + 2, 2211840, 819200)
        a("s_mov_b32 s%d, 0x20000" % (SA + 3))
        a("s_cselect_b32 s%d, s%d, s%d" % (SB, P_WU, P_WQ))
        a("s_cselect_b32 s%d, s%d, s%d" % (SB + 1, P_WU + 1, P_WQ + 1))
        a("s_mov_b32 s%d, s%d" % (SB + 2, SA + 2))
        a("s_mov_b32 s%d, 0x20000" % (SB + 3))
        a("s_cselect_b32 s%d, 32, 128" % (S_T + 4))
        a("s_lshl_b32 s%d, s%d, 5" % (S_WST, S_T + 3))
        a("s_and_b32 s%d, s%d, 3" % (S_T, S_W))
        a("s_mul_i32 s%d, s%d, s%d" % (S_T, S_T, S_T + 3))
        a("s_lshl_b32 s%d, s%d, 3" % (S_T, S_T))
        a("s_add_u32 s%d, s%d, s%d" % (S_OW, S_OW, S_T))
        a("v_lshrrev_b32 v%d, 5, v%d" % (T2, V_LANE))
        a("v_bfe_u32 v%d, v%d, 2, 2" % (T1, V_LANE))
        a("v_lshl_add_u32 v%d, v%d, 2, v%d" % (T0, T2, T1))
        a("v_mul_lo_u32 v%d, v%d, s%d" % (T0, T0, S_T + 3))
        a("v_bfe_u32 v%d, v%d, 4, 1" % (T3, V_LANE))
        a("v_lshl_add_u32 v%d, v%d, 6, v%d" % (T0, T3, T0))
        a("v_and_b32 v%d, 3, v%d" % (T3, V_LANE))
        a("v_lshl_add_u32 v%d, v%d, 4, v%d" % (V_VG, T3, T0))
        a("v_xor_b32 v%d, s%d, v%d" % (V_VU, S_T + 4, V_VG))
        emit(dmaW(0) + dmaW(1) + dmaX() + dmaW(2))
        a("s_and_b32 s%d, s%d, 1" % (S_TH, S_W))
        a("s_lshr_b32 s%d, s%d, 1" % (S_CG, S_W))
        a("v_bfe_u32 v%d, v%d, 2, 2" % (T1, V_LANE))
        a("v_and_b32 v%d, 31, v%d" % (T0, V_LANE))
        a("v_bfe_u32 v%d, v%d, 1, 3" % (T3, V_LANE))
        a("v_xor_b32 v%d, v%d, v%d" % (T3, T3, T2))
        a("v_lshlrev_b32 v%d, 4, v%d" % (T3, T3))
        a("v_lshl_add_u32 v%d, v%d, 7, v%d" % (T3, T0, T3))
        a("s_lshl_b32 s%d, s%d, 13" % (S_T, S_TH))
        a("v_add_u32 v%d, s%d, v%d" % (V_XA, S_T, T3))
        a("v_xor_b32 v%d, 32, v%d" % (V_XA + 1, V_XA))
        a("v_and_b32 v%d, 1, v%d" % (T0, V_LANE))
        a("v_lshlrev_b32 v%d, 4, v%d" % (T0, T0))
        a("v_bfe_u32 v%d, v%d, 1, 1" % (T3, V_LANE))
        a("v_lshl_add_u32 v%d, v%d, 3, v%d" % (T0, T3, T0))
        a("v_lshl_add_u32 v%d, v%d, 6, v%d" % (T0, T1, T0))
        a("v_lshl_add_u32 v%d, v%d, 10, v%d" % (T0, T2, T0))
        a("s_cmp_lg_u32 s%d, 0" % S_ACT)
        a("s_cselect_b32 s%d, 8224, 32" % (S_T + 1))
        a("s_cselect_b32 s%d, 32, 8192" % (S_T + 2))
        a("v_bfe_u32 v%d, v%d, 4, 1" % (T3, V_LANE))
        a("v_mul_lo_u32 v%d, v%d, s%d" % (T3, T3, S_T + 1))
        a("s_lshr_b32 s%d, s%d, 2" % (S_T, S_W))
        a("s_lshl_b32 s%d, s%d, 12" % (S_T, S_T))
        a("s_and_b32 s%d, s%d, 1" % (S_T + 3, S_CG))
        a("s_lshl_b32 s%d, s%d, 8" % (S_T + 3, S_T + 3))
        a("s_add_u32 s%d, s%d, s%d" % (S_T, S_T, S_T + 3))
        a("s_add_u32 s%d, s%d, %d" % (S_T, S_T, WREG))
        a("v_add3_u32 v%d, v%d, v%d, s%d" % (V_WA, T0, T3, S_T))
        a("v_xor_b32 v%d, s%d, v%d" % (V_WA + 1, S_T + 2, V_WA))
        for r in range(64): a("v_mov_b32 v%d, 0" % (ACC + r))
        V_C, V_FL, V_FA, V_CA, V_SA = 20, 22, 120, 121, 122
        S_R32, S_KS, S_CST, S_PRE = S_R + 12, S_R + 13, S_R + 14, S_R + 15
        a("s_lshl_b32 s%d, s%d, 1" % (S_R32, S_RB))
        a("s_add_u32 s%d, s%d, s%d" % (S_R32, S_R32, S_TH))
        a("s_and_b32 s%d, s%d, 1" % (S_T + 4, S_CG))
        a("s_lshl_b32 s%d, s%d, 1" % (S_T + 2, S_HT))
        a("s_add_u32 s%d, s%d, s%d" % (S_KS, S_T + 2, S_T + 4))
        a("s_lshl_b32 s%d, s%d, 9" % (S_T + 1, S_R32))
        a("s_add_u32 s%d, s%d, 0x%x" % (S_T, S_T + 1, WS_ST))
        a("v_and_b32 v%d, 31, v%d" % (T0, V_LANE))
        a("v_lshl_add_u32 v%d, v%d, 3, s%d" % (V_SA, T0, S_T))
        a("s_add_u32 s%d, s%d, 0x%x" % (S_T + 1, S_T + 1, F2_K + 12))
        a("s_lshl_b32 s%d, s%d, 7" % (S_T + 5, S_KS))
        a("s_lshl_b32 s%d, s%d, 9" % (S_T + 3, S_HT))
        a("s_lshl_b32 s%d, s%d, 7" % (S_T + 4, S_T + 4))
        a("s_add_u32 s%d, s%d, s%d" % (S_T + 3, S_T + 3, S_T + 4))
        a("s_add_u32 s%d, s%d, %d" % (S_T + 3, S_T + 3, 14336 - 27 * 512))
        a("s_cmp_lg_u32 s%d, 0" % S_ACT)
        a("s_cselect_b32 s%d, s%d, s%d" % (S_T + 2, S_HT, S_T + 2))
        a("s_cselect_b32 s%d, s%d, s%d" % (S_T + 5, S_T + 5, S_T + 3))
        a("s_cselect_b32 s%d, 64, 256" % S_CST)
        a("s_cselect_b32 s%d, 7168, 64" % (S_T + 6))
        sel(a, S_T + 3, 27 * 128, 128)
        a("s_add_u32 s%d, s%d, 0x%x" % (S_T + 5, S_T + 5, WS_CS))
        a("s_lshl_b32 s%d, s%d, 7" % (S_T + 2, S_T + 2))
        a("s_add_u32 s%d, s%d, 0x%x" % (S_T + 2, S_T + 2, F3_C))
        a("v_and_b32 v%d, 1, v%d" % (T1, V_LANE))
        a("v_lshlrev_b32 v%d, 7, v%d" % (T0, T1))
        a("v_add_u32 v%d, s%d, v%d" % (V_FA, S_T + 1, T0))
        a("v_mul_lo_u32 v%d, v%d, s%d" % (T1, T1, S_T + 3))
        a("s_mov_b32 exec_lo, 0")
        a("v_add_u32 v%d, s%d, v%d" % (V_FA, S_T + 2, T1))
        a("s_mov_b64 exec, -1")
        a("v_bfe_u32 v%d, v%d, 4, 1" % (T0, V_LANE))
        a("v_mul_lo_u32 v%d, v%d, s%d" % (T0, T0, S_T + 6))
        a("v_and_b32 v%d, 3, v%d" % (T1, V_LANE))
        a("v_lshl_add_u32 v%d, v%d, 2, v%d" % (T0, T1, T0))
        a("v_bfe_u32 v%d, v%d, 2, 1" % (T1, V_LANE))
        a("v_lshl_add_u32 v%d, v%d, 5, v%d" % (T0, T1, T0))
        a("v_bfe_u32 v%d, v%d, 3, 1" % (T1, V_LANE))
        a("v_lshl_add_u32 v%d, v%d, 4, v%d" % (T0, T1, T0))
        a("v_add_u32 v%d, s%d, v%d" % (V_CA, S_T + 5, T0))
        a("s_mov_b32 s%d, 0" % S_PRE)
        def pre_loads():
            a("buffer_load_dwordx2 %s, v%d, %s, 0 offen %s" % (vr(V_SX, 2), V_SA, sr(SWS), SC))
            a("buffer_load_dwordx2 %s, v%d, %s, 0 offen offset:256 %s" % (vr(V_SX + 2, 2), V_SA, sr(SWS), SC))
            a("buffer_load_dword v%d, v%d, %s, 0 offen %s" % (V_C, V_CA, sr(SWS), SC))
            a("buffer_load_dword v%d, v%d, %s, s%d offen %s" % (V_C + 1, V_CA, sr(SWS), S_CST, SC))
        def rops(p, b, kk):
            f = F[p]
            ops = ["ds_read_b128 %s, v%d" % (vr(f, 4), V_XA + kk)]
            for ct in range(2):
                for j in range(2):
                    ops.append("ds_read_b64_tr_b16 %s, v%d offset:%d" % (vr(f + 8 + 4 * ct + 2 * j, 2), V_WA + ct, b * 16384 + kk * 2048 + j * 512))
            ops.append("ds_read_b128 %s, v%d offset:4096" % (vr(f + 4, 4), V_XA + kk))
            return ops
        def mf(p, q):
            if self.pat1:
                pr = self.pat1[(p * 4 + q) % len(self.pat1)]; prev = self.pat1[(p * 4 + q - 1) % len(self.pat1)]
                if pr != prev: a("s_setprio %s" % pr)
            ti, ct = [(0, 0), (0, 1), (1, 0), (1, 1)][q]
            f = F[p]; d = ACC + (ti * 2 + ct) * 16
            a("v_mfma_f32_32x32x16_bf16 %s, %s, %s, %s" % (vr(d, 16), vr(f + 8 + 4 * ct, 4), vr(f + 4 * ti, 4), vr(d, 16)))
        a("s_mov_b32 s%d, 0" % S_STG)
        a("s_waitcnt vmcnt(6)")
        a("s_barrier")
        self.stamp(1)
        for op in rops(0, 0, 0): a(op)
        a.label("F1_LOOP")
        a("s_cmp_lg_u32 s%d, 18" % S_STG)
        a("s_cbranch_scc1 F1_P2")
        a("v_cmp_ne_u32 vcc, v%d, v%d" % (V_NONCE, V_FL))
        a("v_cmp_eq_u32 s[%d:%d], 0, v%d" % (S_T + 4, S_T + 5, V_FL))
        a("s_or_b64 vcc, vcc, s[%d:%d]" % (S_T + 4, S_T + 5))
        a("s_cbranch_scc1 F1_P2")
        a("s_mov_b32 s%d, 1" % S_PRE)
        pre_loads()
        a.label("F1_P2")
        if self.f1sw:
            a("s_cmp_lg_u32 s%d, %d" % (S_STG, self.f1sw))
            a("s_cbranch_scc1 F1_SW")
            a("s_setprio %d" % self.prio_f1b)
            a.label("F1_SW")
        if "f1st" in dbg:
            for c_, sl in ((6, 4), (12, 5), (18, 6)):
                a("s_cmp_lg_u32 s%d, %d" % (S_STG, c_))
                a("s_cbranch_scc1 F1_S%d" % c_)
                self.stamp(sl)
                a.label("F1_S%d" % c_)
        for u in range(6):
            b = u % 3; odd = u & 1
            if u == 4:
                a("s_cmp_lg_u32 s%d, 16" % S_STG)
                a("s_cbranch_scc1 F1_P1")
                self.load_nonce(T3)
                a("buffer_load_dword v%d, v%d, %s, 0 offen %s" % (V_FL, V_FA, sr(SWS), SC))
                a.label("F1_P1")
            a("s_waitcnt lgkmcnt(0)")
            mf(0, 0)
            for op in rops(1, b, 1): a(op)
            mf(0, 1)
            dl = 64 | (16384 if odd else 0)
            a("v_xor_b32 v%d, 0x%x, v%d" % (V_XA, dl, V_XA))
            a("v_xor_b32 v%d, 0x%x, v%d" % (V_XA + 1, dl, V_XA + 1))
            mf(0, 2)
            if u == 1:
                a("s_cmp_eq_u32 s%d, 19" % S_STG)
                a("s_cbranch_scc1 F1_LAST")
            if u in (5, 0):
                a("s_cmp_ge_u32 s%d, 17" % S_STG)
                a("s_cbranch_scc1 F1_T%d" % u)
            a("s_waitcnt vmcnt(%d) lgkmcnt(0)" % (2 if odd else 4))
            mf(0, 3)
            a("s_barrier")
            mf(1, 0)
            for op in rops(0, (b + 1) % 3, 0): a(op)
            ops = dmaW(b) + (dmaX() if odd else [])
            mf(1, 1)
            if "vlow1" in dbg:
                mf(1, 2); mf(1, 3)
                a("s_setprio 0")
                emit(ops)
                a("s_setprio %d" % self.prio_f1)
            else:
                emit(ops[:2])
                mf(1, 2)
                emit(ops[2:])
                mf(1, 3)
            if u in (5, 0):
                a("s_branch F1_N%d" % u)
                a.label("F1_T%d" % u)
                a("s_waitcnt vmcnt(0) lgkmcnt(0)" if u == 5 else "s_waitcnt lgkmcnt(0)")
                mf(0, 3)
                a("s_barrier")
                mf(1, 0)
                for op in rops(0, (b + 1) % 3, 0): a(op)
                for q in (1, 2, 3): mf(1, q)
                a.label("F1_N%d" % u)
            a("s_add_u32 s%d, s%d, 1" % (S_STG, S_STG))
        a("s_branch F1_LOOP")
        a.label("F1_LAST")
        mf(0, 3)
        a("s_waitcnt lgkmcnt(0)")
        a("s_barrier")
        for q in range(4): mf(1, q)
        a("s_setprio %d" % self.prio_fe)
        self.stamp(2)
        a("s_cmp_lg_u32 s%d, 0" % S_PRE)
        a("s_cbranch_scc1 F1_P3")
        self.poll([(V_FL, 1, V_FA, "0")], T3, wave0=False)
        pre_loads()
        a.label("F1_P3")
        a("s_waitcnt vmcnt(0)")
        CSV = F[0]
        FA, FB = F[0], F[0] + 8
        for k in range(2):
            a("v_and_b32 v%d, 0xffff0000, v%d" % (T0, V_C + k))
            a("v_sub_f32 v%d, v%d, v%d" % (T1, V_C + k, T0))
            a("v_lshrrev_b32 v%d, 16, v%d" % (FA + 4 * k + 1, T0))
            a("v_and_b32 v%d, 0xffff0000, v%d" % (T1, T1))
            a("v_or_b32 v%d, v%d, v%d" % (FA + 4 * k, FA + 4 * k + 1, T1))
            a("v_and_b32 v%d, 0xffff0000, v%d" % (T0, V_SX + 2 * k))
            a("v_sub_f32 v%d, v%d, v%d" % (T1, V_SX + 2 * k, T0))
            a("v_lshrrev_b32 v%d, 16, v%d" % (FB + 4 * k + 1, T1))
            a("v_lshrrev_b32 v%d, 16, v%d" % (T1, T0))
            a("v_or_b32 v%d, v%d, v%d" % (FB + 4 * k, T0, T1))
            for r in (2, 3):
                a("v_mov_b32 v%d, 0" % (FA + 4 * k + r))
                a("v_mov_b32 v%d, 0" % (FB + 4 * k + r))
        a("s_mov_b32 exec_lo, 0")
        for k in range(2):
            a("v_mov_b32 v%d, 0" % (FA + 4 * k))
            a("v_mov_b32 v%d, 0" % (FA + 4 * k + 1))
        a("s_mov_b64 exec, -1")
        a("v_lshrrev_b32 v%d, 5, v%d" % (T2, V_LANE))
        a("v_and_b32 v%d, 15, v%d" % (T0, V_LANE))
        for ti in range(2):
            for ct in range(2):
                d = ACC + (ti * 2 + ct) * 16
                a("v_mfma_f32_32x32x16_bf16 %s, %s, %s, %s" % (vr(d, 16), vr(FA + 4 * ct, 4), vr(FB + 4 * ti, 4), vr(d, 16)))
        a("v_lshlrev_b32 v%d, 4, v%d" % (T0, T0))
        a("v_lshl_add_u32 v%d, v%d, 8, v%d" % (T0, T2, T0))
        a("v_bfe_u32 v%d, v%d, 4, 1" % (T1, V_LANE))
        a("v_lshl_add_u32 v%d, v%d, 10, v%d" % (T0, T1, T0))
        a("s_mul_i32 s%d, s%d, 74" % (S_T, S_R32))
        a("s_add_u32 s%d, s%d, s%d" % (S_T, S_T, S_KS))
        a("s_lshl_b32 s%d, s%d, 12" % (S_T, S_T))
        a("s_add_u32 s%d, s%d, 0x%x" % (S_T, S_T, WS_HO))
        a("s_nop 3")
        a("s_cmp_lg_u32 s%d, 0" % S_ACT)
        a("s_cbranch_scc1 F1_GU")
        a("s_setprio 3")
        a("s_mul_i32 s%d, s%d, 81920" % (S_T, S_R32))
        a("s_sub_u32 s%d, s%d, 27" % (S_T + 1, S_HT))
        a("s_lshl_b32 s%d, s%d, 13" % (S_T + 1, S_T + 1))
        a("s_add_u32 s%d, s%d, s%d" % (S_T, S_T, S_T + 1))
        a("s_and_b32 s%d, s%d, 1" % (S_T + 4, S_CG))
        a("s_lshl_b32 s%d, s%d, 11" % (S_T + 4, S_T + 4))
        a("s_add_u32 s%d, s%d, s%d" % (S_T, S_T, S_T + 4))
        if WS_QP: a("s_add_u32 s%d, s%d, 0x%x" % (S_T, S_T, WS_QP))
        for ti in range(2):
            a("v_mul_f32 v%d, 0x%x, v%d" % (T1, f32bits(LOG2E * 20 ** -0.5), V_SX + 2 * ti + 1))
            for ct in range(2):
                d = ACC + (ti * 2 + ct) * 16
                for r in range(16): a("v_mul_f32 v%d, v%d, v%d" % (d + r, T1, d + r))
                o = CSV + (ti * 2 + ct) * 8
                for r in range(8): a("v_cvt_pk_bf16_f32 v%d, v%d, v%d" % (o + r, d + 2 * r, d + 2 * r + 1))
                a("s_add_u32 s%d, s%d, %d" % (S_T + 1, S_T, ti * 40960 + ct * 4096))
                a("buffer_store_dwordx4 %s, v%d, %s, s%d offen %s" % (vr(o, 4), V_L16, sr(SWS), S_T + 1, SC))
                a("buffer_store_dwordx4 %s, v%d, %s, s%d offen offset:1024 %s" % (vr(o + 4, 4), V_L16, sr(SWS), S_T + 1, SC))
        a("s_branch F1_PUB")
        a.label("F1_GU")
        TE = CSV + 16
        for ti in range(2):
            a("v_mul_f32 v%d, 0x%x, v%d" % (T1, f32bits(-LOG2E), V_SX + 2 * ti + 1))
            for ct in range(2):
                d = ACC + (ti * 2 + ct) * 16
                for r in range(8): a("v_mul_f32 v%d, v%d, v%d" % (TE + r, T1, d + r))
                for r in range(8): a("v_exp_f32 v%d, v%d" % (TE + r, TE + r))
                for r in range(8): a("v_mul_f32 v%d, v%d, v%d" % (d + r, d + r, d + 8 + r))
                for r in range(8): a("v_add_f32 v%d, 1.0, v%d" % (TE + r, TE + r))
                for r in range(8): a("v_rcp_f32 v%d, v%d" % (TE + r, TE + r))
                a("s_nop 0")
                for r in range(8): a("v_mul_f32 v%d, v%d, v%d" % (d + r, TE + r, d + r))
                o = CSV + (ti * 2 + ct) * 4
                for r in range(4): a("v_cvt_pk_bf16_f32 v%d, v%d, v%d" % (o + r, d + 2 * r, d + 2 * r + 1))
                if "early_st" in dbg: a("buffer_store_dwordx4 %s, v%d, %s, s%d offen offset:%d %s" % (vr(o, 4), T0, sr(SWS), S_T, ti * 2048 + ct * 512, SC))
        if "nogate" not in dbg:
            a("s_setprio 0")
            a("s_mov_b32 s%d, s%d" % (S_T + 3, S_T))
            a("s_lshl_b32 s%d, s%d, 10" % (S_T + 1, S_RB32))
            a("s_lshl_b32 s%d, s%d, 7" % (S_T + 2, S_HI))
            a("s_add_u32 s%d, s%d, s%d" % (S_T + 1, S_T + 1, S_T + 2))
            a("s_add_u32 s%d, s%d, 0x%x" % (S_T + 1, S_T + 1, F2_O + 36))
            self.poll([(T1, 1, T3, "s%d" % (S_T + 1))], T3, sleep=self.gsleep, wave0=False, maxit=self.gmax)
            a("s_mov_b32 s%d, s%d" % (S_T, S_T + 3))
        if "early_st" not in dbg:
            for k in range(4):
                a("buffer_store_dwordx4 %s, v%d, %s, s%d offen offset:%d %s" % (vr(CSV + k * 4, 4), T0, sr(SWS), S_T, (k >> 1) * 2048 + (k & 1) * 512, SC))
        a.label("F1_PUB")
        a("s_lshl_b32 s%d, s%d, 11" % (S_T, S_RB))
        a("s_lshr_b32 s%d, s%d, 1" % (S_T + 1, S_HT))
        a("s_lshl_b32 s%d, s%d, 7" % (S_T + 1, S_T + 1))
        a("s_add_u32 s%d, s%d, s%d" % (S_T, S_T, S_T + 1))
        a("s_and_b32 s%d, s%d, 1" % (S_T + 1, S_HT))
        a("s_lshl_b32 s%d, s%d, 4" % (S_T + 1, S_T + 1))
        a("s_add_u32 s%d, s%d, s%d" % (S_T, S_T, S_T + 1))
        a("s_and_b32 s%d, s%d, 3" % (S_T + 1, S_W))
        a("s_lshl_b32 s%d, s%d, 2" % (S_T + 1, S_T + 1))
        a("s_add_u32 s%d, s%d, s%d" % (S_T, S_T, S_T + 1))
        a("s_add_u32 s%d, s%d, 0x%x" % (S_T, S_T, F2_H))
        self.wave_flag("s%d" % S_T, T3)
        self.stamp(3)
        if "noF" in dbg: self.finish()

    def kv_issue(self):
        a = self.a
        V_PI, V_WA, V_ONE, V_J, V_H = 120, 121, 122, 123, 124
        V_ST = 20
        XF = 24
        WF = 44
        AC = 64
        R = 80
        S_MAT, S_TILE, S_JOB = S_R + 10, S_R + 11, S_R + 12
        WO = 40960
        PB, PST, PCS = 49152, 16384, 18432
        a("s_lshr_b32 s%d, s%d, 3" % (S_MAT, S_IDX))
        a("s_cmp_eq_u32 s%d, 0" % S_MAT)
        a("s_cselect_b32 s%d, s%d, s%d" % (SC_, P_WK, P_WV))
        a("s_cselect_b32 s%d, s%d, s%d" % (SC_ + 1, P_WK + 1, P_WV + 1))
        a("s_mov_b32 s%d, 25600" % (SC_ + 2))
        a("s_mov_b32 s%d, 0x20000" % (SC_ + 3))
        a("s_bfe_u32 s%d, s%d, 0x10002" % (S_T, S_IDX))
        a("s_lshl_b32 s%d, s%d, 1" % (S_TILE, S_RB32))
        a("s_add_u32 s%d, s%d, s%d" % (S_TILE, S_TILE, S_T))
        a("s_mul_i32 s%d, s%d, 40960" % (S_T, S_TILE))
        a("s_lshl_b32 s%d, s%d, 10" % (S_T + 1, S_W))
        for m in range(5):
            a("v_add_u32 v%d, %d, v0" % (T0, 512 * m))
            a("v_mul_u32_u24 v%d, 3277, v%d" % (T1, T0))
            a("v_lshrrev_b32 v%d, 18, v%d" % (T1, T1))
            a("v_mul_u32_u24 v%d, 80, v%d" % (T2, T1))
            a("v_sub_u32 v%d, v%d, v%d" % (T0, T0, T2))
            a("v_and_b32 v%d, 15, v%d" % (T2, T1))
            a("v_xor_b32 v%d, v%d, v%d" % (T0, T0, T2))
            a("v_and_b32 v%d, 19, v%d" % (T2, T1))
            a("v_bfe_u32 v%d, v%d, 2, 1" % (T3, T1))
            a("v_lshl_add_u32 v%d, v%d, 3, v%d" % (T2, T3, T2))
            a("v_bfe_u32 v%d, v%d, 3, 1" % (T3, T1))
            a("v_lshl_add_u32 v%d, v%d, 2, v%d" % (T2, T3, T2))
            a("v_mul_u32_u24 v%d, 1280, v%d" % (T2, T2))
            a("s_add_u32 m0, s%d, %d" % (S_T + 1, m * 8192))
            a("v_lshl_add_u32 v%d, v%d, 4, v%d" % (T0, T0, T2))
            a("buffer_load_dwordx4 v%d, %s, s%d offen lds" % (T0, sr(SX), S_T))
        for m in range(4):
            if m == 3:
                a("s_cmp_lg_u32 s%d, 0" % S_W)
                a("s_cbranch_scc1 KV_I")
            a("s_add_u32 m0, s%d, %d" % (S_T + 1, WO + m * 8192))
            a("s_add_u32 s%d, s%d, %d" % (S_T + 2, S_T + 1, m * 8192))
            a("buffer_load_dwordx4 v%d, %s, s%d offen lds" % (V_L16, sr(SC_), S_T + 2))

    def kv_body(self):
        a = self.a
        V_PI, V_WA, V_ONE, V_J, V_H = 120, 121, 122, 123, 124
        V_ST = 20
        XF = 24
        WF = 44
        AC = 64
        R = 80
        S_MAT, S_TILE, S_JOB = S_R + 10, S_R + 11, S_R + 12
        WO = 40960
        PB, PST, PCS = 49152, 16384, 18432
        a("s_lshr_b32 s%d, s%d, 2" % (S_T, S_IDX))
        a("s_lshl_b32 s%d, s%d, 2" % (S_JOB, S_RB32))
        a("s_add_u32 s%d, s%d, s%d" % (S_JOB, S_JOB, S_T))
        a("s_lshl_b32 s%d, s%d, 5" % (S_JOB, S_JOB))
        a("s_add_u32 s%d, s%d, s%d" % (S_JOB, S_JOB, S_W))
        a("s_lshl_b32 s%d, s%d, 2" % (S_JOB, S_JOB))
        a("s_add_u32 s%d, s%d, 0x%x" % (S_JOB, S_JOB, F2_K))
        a("v_and_b32 v%d, 31, v%d" % (V_J, V_LANE))
        a("v_and_b32 v%d, 19, v%d" % (T0, V_LANE))
        a("v_bfe_u32 v%d, v%d, 2, 1" % (T1, V_LANE))
        a("v_lshl_add_u32 v%d, v%d, 3, v%d" % (T0, T1, T0))
        a("v_bfe_u32 v%d, v%d, 3, 1" % (T1, V_LANE))
        a("v_lshl_add_u32 v%d, v%d, 2, v%d" % (V_PI, T1, T0))
        a("v_lshrrev_b32 v%d, 5, v%d" % (V_H, V_LANE))
        a("v_bfe_u32 v%d, v%d, 2, 2" % (T2, V_LANE))
        a("v_lshl_add_u32 v%d, v%d, 3, v%d" % (T2, V_H, T2))
        a("v_mul_u32_u24 v%d, 40, v%d" % (T2, T2))
        a("v_bfe_u32 v%d, v%d, 4, 1" % (T3, V_LANE))
        a("v_lshl_add_u32 v%d, v%d, 5, v%d" % (T2, T3, T2))
        a("s_mul_i32 s%d, s%d, 3200" % (S_T, S_W))
        a("s_add_u32 s%d, s%d, %d" % (S_T, S_T, WO))
        a("s_sub_u32 s%d, 4, s%d" % (S_T + 1, S_MAT))
        a("s_add_u32 s%d, s%d, 3" % (S_T + 2, S_MAT))
        a("v_and_b32 v%d, 1, v%d" % (T3, V_LANE))
        a("v_lshlrev_b32 v%d, s%d, v%d" % (T3, S_T + 1, T3))
        a("v_add3_u32 v%d, v%d, v%d, s%d" % (T2, T2, T3, S_T))
        a("v_bfe_u32 v%d, v%d, 1, 1" % (T3, V_LANE))
        a("v_lshlrev_b32 v%d, s%d, v%d" % (T3, S_T + 2, T3))
        a("v_add_u32 v%d, v%d, v%d" % (V_WA, T2, T3))
        a("v_and_b32 v%d, 15, v%d" % (T2, V_LANE))
        a("v_xor_b32 v%d, v%d, v%d" % (T2, T2, V_H))
        a("v_mul_u32_u24 v%d, 1280, v%d" % (T3, V_J))
        a("s_mul_i32 s%d, s%d, 10" % (S_T, S_W))
        for s_ in range(5):
            a("v_xor_b32 v%d, s%d, v%d" % (T0, S_T, T2))
            a("s_add_u32 s%d, s%d, 2" % (S_T, S_T))
            a("v_lshl_add_u32 v%d, v%d, 4, v%d" % (R + s_, T0, T3))
        a("v_mov_b32 v%d, 0x3f803f80" % V_ONE)
        for r in range(6): a("v_mov_b32 v%d, 0" % (R + 8 + r))
        a("s_waitcnt vmcnt(0)")
        a("s_barrier")
        self.stamp(5, "kv")
        for s_ in range(5):
            a("ds_read_b128 %s, v%d" % (vr(XF + 4 * s_, 4), R + s_))
            a("ds_read_b64_tr_b16 %s, v%d offset:%d" % (vr(WF + 4 * s_, 2), V_WA, s_ * 640))
            a("ds_read_b64_tr_b16 %s, v%d offset:%d" % (vr(WF + 4 * s_ + 2, 2), V_WA, s_ * 640 + 160))
        self.load_nonce(T3)
        a("s_waitcnt lgkmcnt(0)")
        D = R + 8
        for r in range(20):
            o = 3 * (r & 1)
            a("v_dot2c_f32_bf16 v%d, v%d, v%d" % (D + o, V_ONE, XF + r))
            a("v_dot2c_f32_bf16 v%d, v%d, v%d" % (D + o + 1, XF + r, XF + r))
            a("v_dot2c_f32_bf16 v%d, v%d, v%d" % (D + o + 2, V_ONE, WF + r))
        a("s_cmp_eq_u32 s%d, 0" % S_MAT)
        a("s_cbranch_scc0 KV_MV")
        for s_ in range(5):
            a("v_mfma_f32_32x32x16_bf16 %s, %s, %s, %s" % (vr(AC, 16), vr(WF + 4 * s_, 4), vr(XF + 4 * s_, 4), "0" if s_ == 0 else vr(AC, 16)))
        a("s_branch KV_MD")
        a.label("KV_MV")
        for s_ in range(5):
            a("v_mfma_f32_32x32x16_bf16 %s, %s, %s, %s" % (vr(AC, 16), vr(XF + 4 * s_, 4), vr(WF + 4 * s_, 4), "0" if s_ == 0 else vr(AC, 16)))
        a.label("KV_MD")
        a("s_barrier")
        for r in range(3): a("v_add_f32 v%d, v%d, v%d" % (V_ST + r, D + r, D + 3 + r))
        self.halfsum([V_ST, V_ST + 1, V_ST + 2], R)
        a("s_lshl_b32 s%d, s%d, 8" % (S_T, S_W))
        a("v_lshl_add_u32 v%d, v%d, 3, s%d" % (T0, V_J, S_T))
        a("ds_write_b64 v%d, %s offset:%d" % (T0, vr(V_ST, 2), PST))
        a("s_lshl_b32 s%d, s%d, 7" % (S_T, S_W))
        a("v_lshl_add_u32 v%d, v%d, 2, s%d" % (T0, V_J, S_T))
        a("ds_write_b32 v%d, v%d offset:%d" % (T0, V_ST + 2, PCS))
        a("s_lshl_b32 s%d, s%d, 12" % (S_T, S_W))
        a("s_add_u32 s%d, s%d, %d" % (S_T, S_T, PB))
        a("v_add_u32 v%d, s%d, v%d" % (T0, S_T, V_L16))
        for q in range(4): a("ds_write_b128 v%d, %s offset:%d" % (T0, vr(AC + 4 * q, 4), q * 1024))
        a("s_waitcnt lgkmcnt(0)")
        a("s_barrier")
        a("s_cmp_ge_u32 s%d, 4" % S_W)
        a("s_cbranch_scc1 AUX_RL")
        a("s_lshl_b32 s%d, s%d, 10" % (S_T, S_W))
        a("s_add_u32 s%d, s%d, %d" % (S_T, S_T, PB))
        a("v_add_u32 v%d, s%d, v%d" % (T0, S_T, V_L16))
        for p in range(8): a("ds_read_b128 %s, v%d offset:%d" % (vr(XF + 4 * p, 4), T0, p * 4096))
        a("s_mul_i32 s%d, s%d, 2560" % (S_T + 3, S_TILE))
        a("s_add_u32 s%d, s%d, 0x%x" % (S_T + 3, S_T + 3, WS_KV))
        a("s_cmp_eq_u32 s%d, 0" % S_MAT)
        a("s_cbranch_scc0 KV_V")
        SP = 56; CP = 72
        a("v_lshlrev_b32 v%d, 3, v%d" % (T0, V_J))
        a("s_waitcnt lgkmcnt(4)")
        for p in range(8): a("ds_read_b64 %s, v%d offset:%d" % (vr(SP + 2 * p, 2), T0, PST + p * 256))
        a("s_lshl_b32 s%d, s%d, 5" % (S_T, S_W))
        a("v_lshl_add_u32 v%d, v%d, 4, s%d" % (T0, V_H, S_T))
        a("s_waitcnt lgkmcnt(4)")
        for p in range(8): a("ds_read_b128 %s, v%d offset:%d" % (vr(CP + 4 * p, 4), T0, PCS + p * 128))
        self.tree(XF, 4, 8, 4)
        a("s_waitcnt lgkmcnt(8)")
        self.tree(SP, 2, 8, 2)
        self.meanrstd(V_ST, SP)
        a("v_lshlrev_b32 v%d, 3, v%d" % (T2, V_PI))
        a("s_cmp_eq_u32 s%d, 3" % S_W)
        a("s_cbranch_scc0 KV_K1")
        a("s_lshl_b32 s%d, s%d, 8" % (S_T, S_TILE))
        a("s_add_u32 s%d, s%d, 0x%x" % (S_T, S_T, WS_ST))
        a("s_mov_b32 exec_hi, 0")
        a("buffer_store_dwordx2 %s, v%d, %s, s%d offen %s" % (vr(V_ST, 2), T2, sr(SWS), S_T, SC))
        a("s_mov_b64 exec, -1")
        a("s_branch KV_FLAG")
        a.label("KV_K1")
        a("s_waitcnt lgkmcnt(0)")
        self.tree(CP, 4, 8, 4)
        for r in range(4): a("v_fmac_f32 v%d, v%d, v%d" % (XF + r, V_ST, CP + r))
        for r in range(4): a("v_mul_f32 v%d, v%d, v%d" % (XF + r, V_ST + 1, XF + r))
        for r in range(2): a("v_cvt_pk_bf16_f32 v%d, v%d, v%d" % (SP + r, XF + 2 * r, XF + 2 * r + 1))
        a("v_mov_b32 v%d, 0" % T3)
        a("s_cmp_eq_u32 s%d, 2" % S_W)
        a("s_cbranch_scc1 KV_K2")
        a("v_lshlrev_b32 v%d, 9, v%d" % (T0, V_H))
        a("v_lshl_add_u32 v%d, v%d, 4, v%d" % (T2, V_PI, T0))
        a("s_lshl_b32 s%d, s%d, 3" % (S_T, S_W))
        a("s_add_u32 s%d, s%d, s%d" % (S_T + 3, S_T + 3, S_T))
        a("s_branch KV_K3")
        a.label("KV_K2")
        a("s_add_u32 s%d, s%d, 1024" % (S_T + 3, S_T + 3))
        a("s_mov_b32 exec_hi, 0")
        a.label("KV_K3")
        a("buffer_store_dwordx2 %s, v%d, %s, s%d offen %s" % (vr(SP, 2), T2, sr(SWS), S_T + 3, SC))
        for r in range(4): a("v_fmac_f32 v%d, v%d, v%d" % (T3, XF + r, XF + r))
        a("s_mov_b64 exec, -1")
        self.halfsum([T3], CP)
        for dpp in DPPS:
            a("s_nop 1")
            a("v_max_f32_dpp v%d, v%d, v%d %s row_mask:0xf bank_mask:0xf" % (T3, T3, T3, dpp))
        a("s_nop 1")
        a("v_readlane_b32 s%d, v%d, 0" % (S_T, T3))
        a("v_readlane_b32 s%d, v%d, 16" % (S_T + 1, T3))
        a("s_lshl_b32 s%d, s%d, 2" % (S_T + 2, S_TILE))
        a("s_add_u32 s%d, s%d, s%d" % (S_T + 2, S_T + 2, S_W))
        a("s_lshl_b32 s%d, s%d, 2" % (S_T + 2, S_T + 2))
        a("s_add_u32 s%d, s%d, 0x%x" % (S_T + 2, S_T + 2, WS_KN))
        a("s_max_u32 s%d, s%d, s%d" % (S_T, S_T, S_T + 1))
        a("v_mov_b32 v%d, s%d" % (T3, S_T))
        a("v_mov_b32 v%d, 0" % T0)
        a("s_mov_b64 exec, 1")
        a("buffer_store_dword v%d, v%d, %s, s%d offen %s" % (T3, T0, sr(SWS), S_T + 2, SC))
        a("s_mov_b64 exec, -1")
        a("s_branch KV_FLAG")
        a.label("KV_V")
        SP = 56
        CP = 28
        a("s_lshl_b32 s%d, s%d, 6" % (S_T, S_W))
        a("v_lshl_add_u32 v%d, v%d, 5, s%d" % (T0, V_H, S_T))
        a("s_waitcnt lgkmcnt(4)")
        for p in range(5):
            a("ds_read_b128 %s, v%d offset:%d" % (vr(SP + 8 * p, 4), T0, PST + p * 256))
            a("ds_read_b128 %s, v%d offset:%d" % (vr(SP + 8 * p + 4, 4), T0, PST + p * 256 + 16))
        a("v_lshlrev_b32 v%d, 2, v%d" % (T2, V_J))
        a("s_waitcnt lgkmcnt(8)")
        for p in range(5, 8):
            a("ds_read_b128 %s, v%d offset:%d" % (vr(SP + 8 * p, 4), T0, PST + p * 256))
            a("ds_read_b128 %s, v%d offset:%d" % (vr(SP + 8 * p + 4, 4), T0, PST + p * 256 + 16))
        self.tree(XF, 4, 8, 4)
        a("s_waitcnt lgkmcnt(6)")
        for p in range(8): a("ds_read_b32 v%d, v%d offset:%d" % (CP + p, T2, PCS + p * 128))
        a("s_waitcnt lgkmcnt(8)")
        self.tree(SP, 8, 8, 8)
        for r in range(4): self.meanrstd(SP + 8 + 2 * r, SP + 2 * r)
        a("s_waitcnt lgkmcnt(0)")
        self.tree(CP, 1, 8, 1)
        for r in range(4): a("v_fmac_f32 v%d, v%d, v%d" % (XF + r, CP, SP + 8 + 2 * r))
        for r in range(4): a("v_mul_f32 v%d, v%d, v%d" % (XF + r, SP + 9 + 2 * r, XF + r))
        for r in range(2): a("v_cvt_pk_bf16_f32 v%d, v%d, v%d" % (CP + 2 + r, XF + 2 * r, XF + 2 * r + 1))
        a("v_mul_u32_u24 v%d, 320, v%d" % (T0, V_H))
        a("v_lshl_add_u32 v%d, v%d, 4, v%d" % (T0, V_J, T0))
        a("s_lshr_b32 s%d, s%d, 1" % (S_T, S_W))
        a("s_mul_i32 s%d, s%d, 640" % (S_T, S_T))
        a("s_add_u32 s%d, s%d, s%d" % (S_T + 3, S_T + 3, S_T))
        a("s_and_b32 s%d, s%d, 1" % (S_T, S_W))
        a("s_lshl_b32 s%d, s%d, 3" % (S_T, S_T))
        a("s_add_u32 s%d, s%d, s%d" % (S_T + 3, S_T + 3, S_T))
        a("s_mov_b64 exec, s[%d:%d]" % (S_VM, S_VM + 1))
        a("buffer_store_dwordx2 %s, v%d, %s, s%d offen offset:1280 %s" % (vr(CP + 2, 2), T0, sr(SWS), S_T + 3, SC))
        a("s_mov_b64 exec, -1")
        a.label("KV_FLAG")
        a("s_mov_b32 s%d, s%d" % (S_R + 15, S_JOB))
        a("s_waitcnt lgkmcnt(0)")

    def role_sp(self):
        a = self.a
        S_J, S_G, S_LB, S_JJ = S_R, S_R + 1, S_R + 2, S_R + 3
        S_D = S_R + 4
        S_O, S_F = S_R + 12, S_R + 13
        LD = 16; AC = 8
        V_VD, V_TA = 126, 127
        RG = 96
        def cs_issue(lpr, stride, nload):
            sh = {16: 4, 8: 3}[lpr]
            a("v_lshrrev_b32 v%d, %d, v%d" % (T0, sh, V_LANE))
            a("v_mul_lo_u32 v%d, v%d, s%d" % (T0, T0, stride))
            a("s_lshl_b32 s%d, s%d, %d" % (stride, stride, 6 - sh))
            a("v_and_b32 v%d, %d, v%d" % (T1, lpr - 1, V_LANE))
            a("v_lshl_add_u32 v%d, v%d, 4, v%d" % (T0, T1, T0))
            for i in range(nload):
                a("buffer_load_dwordx4 %s, v%d, %s, s%d offen" % (vr(LD + 4 * i, 4), T0, sr(SB), S_T))
                a("s_add_u32 s%d, s%d, s%d" % (S_T, S_T, stride))
        def cs_finish(tag, lpr, nload, younger):
            sh = {16: 4, 8: 3}[lpr]; ncol = lpr * 8; csh = sh + 3; ng = 512 // ncol
            for r in range(8): a("v_mov_b32 v%d, 0" % (AC + r))
            for i in range(nload):
                a("s_waitcnt vmcnt(%d)" % (nload - 1 - i + younger))
                for q in range(4):
                    a("v_lshlrev_b32 v%d, 16, v%d" % (T2, LD + 4 * i + q))
                    a("v_and_b32 v%d, 0xffff0000, v%d" % (T3, LD + 4 * i + q))
                    a("v_add_f32 v%d, v%d, v%d" % (AC + 2 * q, AC + 2 * q, T2))
                    a("v_add_f32 v%d, v%d, v%d" % (AC + 2 * q + 1, AC + 2 * q + 1, T3))
            self.load_nonce(T3)
            a("v_lshlrev_b32 v%d, 5, v0" % T0)
            a("ds_write_b128 v%d, %s" % (T0, vr(AC, 4)))
            a("ds_write_b128 v%d, %s offset:16" % (T0, vr(AC + 4, 4)))
            a("v_lshrrev_b32 v%d, %d, v0" % (T1, csh))
            a("v_and_b32 v%d, %d, v0" % (T2, ncol - 1))
            a("v_lshlrev_b32 v%d, 2, v%d" % (T2, T2))
            a("v_lshl_add_u32 v%d, v%d, %d, v%d" % (T1, T1, csh + 5, T2))
            a("s_waitcnt lgkmcnt(0)")
            a("s_barrier")
            for p in range(8): a("ds_read_b32 v%d, v%d offset:%d" % (LD + p, T1, p * ncol * 4))
            a("v_lshlrev_b32 v%d, 2, v0" % T0)
            a("s_waitcnt lgkmcnt(0)")
            self.tree(LD, 1, 8, 1)
            a("ds_write_b32 v%d, v%d" % (T1, LD))
            a("s_waitcnt lgkmcnt(0)")
            a("s_barrier")
            a("s_cmp_lg_u32 s%d, 0" % S_W)
            a("s_cbranch_scc1 SP_%s" % tag)
            nw = ncol // 64
            for h in range(nw):
                for p in range(ng): a("ds_read_b32 v%d, v%d offset:%d" % (LD + h * ng + p, T0, p * ncol * 32 + h * 256))
            a("s_waitcnt lgkmcnt(0)")
            for h in range(nw):
                self.tree(LD + h * ng, 1, ng, 1)
                a("buffer_store_dword v%d, v%d, %s, s%d offen offset:%d %s" % (LD + h * ng, T0, sr(SWS), S_O, h * 256, SC))
            self.wave_flag("s%d" % S_F, T3)
            a.label("SP_%s" % tag)
        def issue(slot):
            a("s_mul_hi_u32 s%d, s%d, 0x%x" % (S_T + 1, S_G, (1 << 32) // 10 + 1))
            a("s_mul_i32 s%d, s%d, 10" % (S_T + 2, S_T + 1))
            a("s_sub_u32 s%d, s%d, s%d" % (S_T + 2, S_G, S_T + 2))
            for i in range(4):
                a("s_lshl_b32 s%d, s%d, 2" % (S_T + 3, S_T + 2))
                a("s_add_u32 s%d, s%d, %d" % (S_T + 3, S_T + 3, i))
                a("s_mul_hi_u32 s%d, s%d, 0x%x" % (S_T + 4, S_T + 3, (1 << 32) // 5 + 1))
                a("s_mul_i32 s%d, s%d, 365" % (S_T + 4, S_T + 4))
                a("s_add_u32 s%d, s%d, s%d" % (S_T + 4, S_T + 4, S_T + 3))
                a("s_mul_i32 s%d, s%d, 5" % (S_T + 3, S_T + 1))
                a("s_add_u32 s%d, s%d, s%d" % (S_T + 4, S_T + 4, S_T + 3))
                a("s_lshl_b32 s%d, s%d, 10" % (S_T + 4, S_T + 4))
                a("s_add_u32 s%d, s%d, 0x%x" % (S_D + slot * 4 + i, S_T + 4, WS_WF2))
            a("s_sub_u32 s%d, s%d, 54" % (S_T + 4, S_T + 1))
            a("s_cmp_lt_u32 s%d, 54" % (S_T + 1))
            a("s_cselect_b32 s%d, s%d, s%d" % (S_T + 1, S_T + 1, S_T + 4))
            a("s_cselect_b32 s%d, s%d, s%d" % (SA, P_WD, P_WO))
            a("s_cselect_b32 s%d, s%d, s%d" % (SA + 1, P_WD + 1, P_WO + 1))
            sel(a, SA + 2, 2211840, 819200)
            a("s_mul_i32 s%d, s%d, 40960" % (S_T + 1, S_T + 1))
            a("s_lshl_b32 s%d, s%d, 7" % (S_T + 2, S_T + 2))
            a("s_add_u32 s%d, s%d, s%d" % (S_T + 1, S_T + 1, S_T + 2))
            a("s_cmp_lt_u32 s%d, 740" % S_G)
            for i in range(4): a("s_cselect_b32 s%d, s%d, 0x40000000" % (S_D + slot * 4 + i, S_D + slot * 4 + i))
            for i in range(4):
                a("s_add_u32 m0, s%d, %d" % (S_LB, slot * 4096 + i * 1024))
                a("s_nop 0")
                a("buffer_load_dwordx4 v%d, %s, s%d offen lds" % (V_VD, sr(SA), S_T + 1))
                a("s_add_u32 s%d, s%d, 10240" % (S_T + 1, S_T + 1))
            a("s_add_u32 s%d, s%d, 512" % (S_G, S_G))
        def drain(slot, reg):
            for i in range(4):
                a("ds_read_b64_tr_b16 %s, v%d offset:%d" % (vr(reg + 4 * i, 2), V_TA, slot * 4096 + i * 32))
                a("ds_read_b64_tr_b16 %s, v%d offset:%d" % (vr(reg + 4 * i + 2, 2), V_TA, slot * 4096 + i * 32 + 512))
            a("s_waitcnt lgkmcnt(0)")
            for i in range(4):
                a("buffer_store_dwordx4 %s, v%d, %s, s%d offen %s" % (vr(reg + 4 * i, 4), V_L16, sr(SWS), S_D + slot * 4 + i, SC))
        def rl_setup():
            a("v_lshrrev_b32 v%d, 3, v%d" % (T0, V_LANE))
            a("v_mul_u32_u24 v%d, 1280, v%d" % (T0, T0))
            a("v_and_b32 v%d, 7, v%d" % (T1, V_LANE))
            a("v_lshl_add_u32 v%d, v%d, 4, v%d" % (V_VD, T1, T0))
            a("s_lshl_b32 s%d, s%d, 12" % (S_LB, S_W))
            a("s_cmp_ge_u32 s%d, 4" % S_W)
            a("s_cselect_b32 s%d, 8192, 0" % S_T)
            a("s_add_u32 s%d, s%d, s%d" % (S_LB, S_LB, S_T))
            a("v_lshrrev_b32 v%d, 4, v%d" % (T0, V_LANE))
            a("v_bfe_u32 v%d, v%d, 2, 2" % (T1, V_LANE))
            a("v_lshl_add_u32 v%d, v%d, 3, v%d" % (T0, T0, T1))
            a("v_lshlrev_b32 v%d, 7, v%d" % (T0, T0))
            a("v_and_b32 v%d, 3, v%d" % (T1, V_LANE))
            a("v_lshl_add_u32 v%d, v%d, 3, v%d" % (T0, T1, T0))
            a("v_add_u32 v%d, s%d, v%d" % (V_TA, S_LB, T0))
            a("s_mul_i32 s%d, s%d, 6" % (S_G, S_J))
            a("s_add_u32 s%d, s%d, s%d" % (S_G, S_G, S_W))
            a("s_sub_u32 s%d, s%d, 2" % (S_G, S_G))
            a("s_mov_b32 s%d, 0x20000" % (SA + 3))
            issue(0)
        a.label("AUX_2")
        a("s_setprio %d" % self.prio_sp)
        a("s_cmp_ge_u32 s%d, 6" % S_HI)
        a("s_cbranch_scc1 A_GO")
        a("s_and_b32 s%d, s%d, 1" % (S_J, S_HI))
        a("s_lshl_b32 s%d, s%d, 5" % (S_J, S_J))
        a("s_add_u32 s%d, s%d, s%d" % (S_J, S_J, S_RB32))
        a.label("AUX_CS")
        a("s_cmp_lt_u32 s%d, 27" % S_J)
        a("s_cselect_b32 s%d, s%d, s%d" % (SB, P_WG, P_WU))
        a("s_cselect_b32 s%d, s%d, s%d" % (SB + 1, P_WG + 1, P_WU + 1))
        a("s_cselect_b32 s%d, 0, 27" % (S_T + 1))
        a("s_cselect_b32 s%d, 0, 7168" % S_O)
        a("s_cmp_lt_u32 s%d, 54" % S_J)
        a("s_cselect_b32 s%d, s%d, s%d" % (SB, SB, P_WQ))
        a("s_cselect_b32 s%d, s%d, s%d" % (SB + 1, SB + 1, P_WQ + 1))
        a("s_cselect_b32 s%d, s%d, 54" % (S_T + 1, S_T + 1))
        a("s_cselect_b32 s%d, s%d, 14336" % (S_O, S_O))
        sel(a, SB + 2, 2211840, 819200)
        sel(a, S_T + 2, 3456, 1280)
        a("s_mov_b32 s%d, 0x20000" % (SB + 3))
        a("s_sub_u32 s%d, s%d, s%d" % (S_T + 1, S_J, S_T + 1))
        a("s_mul_i32 s%d, s%d, s%d" % (S_T, S_W, S_T + 2))
        a("s_mul_i32 s%d, s%d, 80" % (S_T, S_T))
        a("s_lshl_b32 s%d, s%d, 7" % (S_T + 3, S_T + 1))
        a("s_add_u32 s%d, s%d, s%d" % (S_T, S_T, S_T + 3))
        a("s_lshl_b32 s%d, s%d, 8" % (S_T + 3, S_T + 1))
        a("s_add_u32 s%d, s%d, s%d" % (S_O, S_O, S_T + 3))
        a("s_add_u32 s%d, s%d, 0x%x" % (S_O, S_O, WS_CS))
        a("s_lshl_b32 s%d, s%d, 7" % (S_F, S_J))
        a("s_add_u32 s%d, s%d, 0x%x" % (S_F, S_F, F3_C))
        cs_issue(8, S_T + 2, 10)
        cs_finish("CD", 8, 10, 0)
        a("s_branch A_GO")
        a.label("AUX_RL")
        a("s_setprio %d" % self.prio_rl)
        a("s_lshl_b32 s%d, s%d, 5" % (S_J, S_HI))
        a("s_add_u32 s%d, s%d, s%d" % (S_J, S_J, S_RB32))
        a("s_cmp_lt_u32 s%d, 2" % S_W)
        a("s_cbranch_scc1 AUX_RD")
        rl_setup()
        a("s_waitcnt vmcnt(0)")
        drain(0, 16)
        a.label("AUX_RD")
        a("s_lshl_b32 s%d, s%d, 7" % (S_T, S_J))
        a("s_add_u32 s%d, s%d, 0x%x" % (S_T, S_T, F2_P))
        self.wg_flag("s%d" % S_T)
        a("s_branch A_GO")

    def role_f23(self):
        a = self.a
        V_TA = T1
        VW = 8
        GA = 11
        HBS = [16, 68, 76]
        WS_ = [28, 48]
        ACC = 88
        S_H, S_WO, S_GB, S_LB, S_TH, S_KQ, S_W1K = [S_R + i for i in range(7)]
        a.label("F2_GO")
        a("s_setprio %d" % self.prio_fr)
        srd(a, SB, P_OUT, P_OUT + 1, 2621440)
        a("s_mul_i32 s%d, s%d, 81920" % (S_GB, S_RB32))
        a("s_mul_i32 s%d, s%d, 160" % (S_WO, S_HI))
        a("s_add_u32 s%d, s%d, s%d" % (S_GB, S_GB, S_WO))
        a("s_mul_i32 s%d, s%d, 10240" % (S_LB, S_W))
        a("s_lshl_b32 s%d, s%d, 10" % (S_W1K, S_W))
        a("s_and_b32 s%d, s%d, 1" % (S_TH, S_W))
        a("s_lshr_b32 s%d, s%d, 1" % (S_KQ, S_W))
        a("s_mul_i32 s%d, s%d, %d" % (S_WO, S_HI, 74 * 5120))
        a("s_add_u32 s%d, s%d, s%d" % (S_WO, S_WO, S_W1K))
        a("s_add_u32 s%d, s%d, 0x%x" % (S_WO, S_WO, WS_WF2))
        def dmaW(g, slot=None):
            lab = a.newlabel("F2D")
            slot = g % 4 if slot is None else slot
            base = g * 20480 if g < 14 else 54 * 5120 + (g - 14) * 20480
            for m in range(3):
                if m == 2:
                    a("s_cmp_ge_u32 s%d, 4" % S_W)
                    a("s_cbranch_scc1 %s" % lab)
                a("s_add_u32 m0, s%d, %d" % (S_W1K, slot * 20480 + m * 8192))
                a("s_add_u32 s%d, s%d, %d" % (S_T + 7, S_WO, base + m * 8192))
                a("buffer_load_dwordx4 v%d, %s, s%d offen %s lds" % (V_L16, sr(SWS), S_T + 7, SC))
            a.label(lab)
        if "wearly" in self.dbg:
            for g in range(4): dmaW(g)
        def set_h(base):
            a("s_mul_i32 s%d, s%d, 74" % (S_H, S_RB32))
            a("s_add_u32 s%d, s%d, s%d" % (S_H, S_H, S_KQ))
            if base: a("s_add_u32 s%d, s%d, %d" % (S_H, S_H, base))
            a("s_lshl_b32 s%d, s%d, 1" % (S_H, S_H))
            a("s_add_u32 s%d, s%d, s%d" % (S_H, S_H, S_TH))
            a("s_lshl_b32 s%d, s%d, 11" % (S_H, S_H))
            a("s_add_u32 s%d, s%d, 0x%x" % (S_H, S_H, WS_HO))
        set_h(0)
        a("s_mul_i32 s%d, s%d, 5120" % (S_T + 1, S_KQ))
        a("v_add_u32 v%d, s%d, v%d" % (V_TA, S_T + 1, V_L16))
        a("v_add_u32 v%d, 40960, v%d" % (VW, V_TA))
        def loadH(g):
            for tt in range(2):
                a("buffer_load_dwordx4 %s, v%d, %s, s%d offen offset:%d %s" % (vr(HBS[g % 3] + tt * 4, 4), V_L16, sr(SWS), S_H, tt * 1024, SC))
            a("s_add_u32 s%d, s%d, 16384" % (S_H, S_H))
        def rdW(dst, slot, c):
            a("ds_read_b128 %s, v%d offset:%d" % (vr(dst + 4 * c, 4), V_TA if slot < 2 else VW, (slot & 1) * 20480 + c * 1024))
        def mm(g, c):
            for tt in range(2):
                d = ACC + (tt * 5 + c) * 4
                a("v_mfma_f32_16x16x32_bf16 %s, %s, %s, %s" % (vr(d, 4), vr(WS_[g & 1] + 4 * c, 4), vr(HBS[g % 3] + tt * 4, 4), "0" if g == 0 else vr(d, 4)))
        a("v_min_u32 v%d, 53, v%d" % (T0, V_LANE))
        a("v_lshrrev_b32 v%d, 2, v%d" % (T2, T0))
        a("v_and_b32 v%d, 3, v%d" % (T0, T0))
        a("v_lshlrev_b32 v%d, 3, v%d" % (T0, T0))
        a("v_lshl_add_u32 v%d, v%d, 7, v%d" % (T0, T2, T0))
        a("s_lshr_b32 s%d, s%d, 1" % (S_T + 1, S_RB32))
        a("s_lshl_b32 s%d, s%d, 11" % (S_T + 1, S_T + 1))
        a("s_and_b32 s%d, s%d, 1" % (S_T + 2, S_RB32))
        a("s_lshl_b32 s%d, s%d, 2" % (S_T + 2, S_T + 2))
        a("s_add_u32 s%d, s%d, s%d" % (S_T + 1, S_T + 1, S_T + 2))
        a("s_add_u32 s%d, s%d, 0x%x" % (S_T + 1, S_T + 1, F2_H))
        a("v_lshlrev_b32 v9, 7, v%d" % V_LANE)
        a("s_mov_b32 s%d, 0x%x" % (S_T + 2, F2_P))
        a("s_mov_b32 s%d, 0x%x" % (S_T + 3, F2_P + 8192))
        a("s_cmp_lg_u32 s%d, 1" % S_W)
        a("s_cbranch_scc1 F2_NR")
        self.poll([(16, 1, 9, "s%d" % (S_T + 2)), (17, 1, 9, "s%d" % (S_T + 3))], T3, sleep=24, wave0=False)
        a.label("F2_NR")
        self.poll([(T2, 1, T0, "s%d" % (S_T + 1))], T3, sleep=self.hsleep)
        self.stamp(4, "f23")
        a("s_setprio %d" % self.prio_f2)
        if "nofill" not in self.dbg:
            a("s_mul_i32 s%d, s%d, 74" % (S_T, S_RB32))
            a("s_add_u32 s%d, s%d, 54" % (S_T, S_T))
            a("s_lshl_b32 s%d, s%d, 12" % (S_T, S_T))
            a("s_mul_i32 s%d, s%d, 10240" % (S_T + 1, S_HI))
            a("s_add_u32 s%d, s%d, s%d" % (S_T, S_T, S_T + 1))
            a("s_add_u32 s%d, s%d, s%d" % (S_T, S_T, S_W1K))
            a("s_add_u32 s%d, s%d, 0x%x" % (S_T, S_T, WS_HO))
            for r in range(4): a("v_mov_b32 v%d, -1" % (24 + r))
            a("buffer_store_dwordx4 v[24:27], v%d, %s, s%d offen %s" % (V_L16, sr(SWS), S_T, SC))
            a("s_cmp_ge_u32 s%d, 2" % S_W)
            a("s_cbranch_scc1 F2_NF")
            a("s_add_u32 s%d, s%d, 8192" % (S_T, S_T))
            a("buffer_store_dwordx4 v[24:27], v%d, %s, s%d offen %s" % (V_L16, sr(SWS), S_T, SC))
            a.label("F2_NF")
        q = []
        if "wearly" in self.dbg:
            for g in range(3):
                loadH(g); q += [("H", g)] * 2
        else:
            for g in range(4):
                dmaW(g); q += [("W", g)] * 2
                if g < 3:
                    loadH(g); q += [("H", g)] * 2
            a("s_waitcnt vmcnt(%d)" % (len(q) - 2))
            q = q[2:]
        a("s_barrier")
        for c in range(5): rdW(WS_[0], 0, c)
        if "nofill" not in self.dbg:
            a("s_cmp_lg_u32 s%d, 0" % S_W)
            a("s_cbranch_scc1 F2_NG")
            a("s_lshl_b32 s%d, s%d, 10" % (S_T, S_RB32))
            a("s_lshl_b32 s%d, s%d, 7" % (S_T + 1, S_HI))
            a("s_add_u32 s%d, s%d, s%d" % (S_T, S_T, S_T + 1))
            a("s_add_u32 s%d, s%d, 0x%x" % (S_T, S_T, F2_O + 32))
            a("v_mov_b32 v%d, 0" % T3)
            a("s_mov_b64 exec, 1")
            a("buffer_store_dword v%d, v%d, %s, s%d offen %s" % (V_NONCE, T3, sr(SWS), S_T, SC))
            a("s_mov_b64 exec, -1")
            a.label("F2_NG")
        NG = 14
        for g in range(NG):
            need = [("H", g), ("W", g + 1)]
            last = max([i for i, o in enumerate(q) if o in need] + [-1])
            a("s_waitcnt lgkmcnt(0) vmcnt(%d)" % (len(q) - 1 - last))
            q = q[last + 1:]
            if g == NG - 1:
                a("s_barrier")
                for c in range(5): rdW(WS_[0], (g + 1) % 4, c)
                a("s_cmp_ge_u32 s%d, 2" % S_KQ)
                a("s_cbranch_scc1 F2_X")
                for c in range(5): mm(g, c)
                break
            mm(g, 0)
            a("s_barrier")
            for c in range(3): rdW(WS_[(g + 1) & 1], (g + 1) % 4, c)
            mm(g, 1)
            for c in (3, 4): rdW(WS_[(g + 1) & 1], (g + 1) % 4, c)
            mm(g, 2)
            if g + 4 <= NG:
                dmaW(g + 4); q += [("W", g + 4)] * 2
            for c in (3, 4): mm(g, c)
            if g + 3 < NG:
                loadH(g + 3); q += [("H", g + 3)] * 2
        a.label("F2_X")
        if "noA" in self.dbg: self.stamp(6)
        a("s_setprio %d" % self.prio_fp)
        RS = 14; XR = 20
        WR = WS_[0]; OF = 48; A3 = 88; R = 48
        a("v_and_b32 v%d, 15, v%d" % (T2, V_LANE))
        a("v_mul_u32_u24 v%d, 1280, v%d" % (T0, T2))
        a("v_lshrrev_b32 v%d, 4, v%d" % (T3, V_LANE))
        a("v_lshl_add_u32 v%d, v%d, 3, v%d" % (T0, T3, T0))
        a("v_lshlrev_b32 v%d, 3, v%d" % (T2, T2))
        a("s_lshl_b32 s%d, s%d, 9" % (S_T + 4, S_RB32))
        a("s_add_u32 s%d, s%d, 0x%x" % (S_T + 4, S_T + 4, WS_ST + 4))
        for i in range(3):
            a("s_add_u32 s%d, s%d, %d" % (S_T, S_W, 8 * i))
            a("s_min_u32 s%d, s%d, 19" % (S_T, S_T))
            a("s_mul_hi_u32 s%d, s%d, 0x%x" % (S_T + 1, S_T, (1 << 32) // 5 + 1))
            a("s_mul_i32 s%d, s%d, 5" % (S_T + 2, S_T + 1))
            a("s_sub_u32 s%d, s%d, s%d" % (S_T + 2, S_T, S_T + 2))
            a("s_mul_i32 s%d, s%d, 20480" % (S_T + 3, S_T + 1))
            a("s_lshl_b32 s%d, s%d, 5" % (S_T + 2, S_T + 2))
            a("s_add_u32 s%d, s%d, s%d" % (S_T + 3, S_T + 3, S_T + 2))
            a("v_add_u32 v%d, s%d, v%d" % (GA + i, S_T + 3, T0))
            a("s_lshl_b32 s%d, s%d, 7" % (S_T + 1, S_T + 1))
            a("s_add_u32 s%d, s%d, s%d" % (S_T + 1, S_T + 1, S_T + 4))
            a("buffer_load_dword v%d, v%d, %s, s%d offen %s" % (RS + i, T2, sr(SWS), S_T + 1, SC))
        for i in range(3):
            a("buffer_load_dwordx2 %s, v%d, %s, s%d offen" % (vr(XR + 2 * i, 2), GA + i, sr(SX), S_GB))
        set_h(54)
        a("v_add_u32 v%d, s%d, v%d" % (T0, S_W1K, V_L16))
        a("v_add_u32 v%d, 16384, v%d" % (T2, T0))
        def red_write(mid=None):
            a("v_add_u32 v%d, s%d, v%d" % (T3, S_LB, V_L16))
            a("s_waitcnt lgkmcnt(0)")
            a("s_barrier")
            a("s_nop 4")
            for k in range(10): a("ds_write_b128 v%d, %s offset:%d" % (T3, vr(A3 + 4 * k, 4), k * 1024))
            if mid: mid()
            a("s_waitcnt lgkmcnt(0)")
            a("s_barrier")
        def own_read(after=None):
            for i in range(3):
                for k in range(4):
                    off = k * 20480 + i * 8192
                    if i < 2 and off < 65536: a("ds_read_b128 %s, v%d offset:%d" % (vr(R + i * 16 + k * 4, 4), T0, off))
                    else: a("ds_read_b128 %s, v%d offset:%d" % (vr(R + i * 16 + k * 4, 4), T2, off - 16384))
            a("s_waitcnt lgkmcnt(0)")
            if after: after()
            for i in range(3): self.tree(R + i * 16, 4, 4, 4)
        def loadW3():
            a("s_barrier")
            for G in range(1, 5): dmaW(14 + G, G - 1)
        red_write()
        own_read(loadW3)
        a("s_setprio %d" % self.prio_fp2)
        G_ = 96; GP = 14
        a("s_waitcnt vmcnt(8)")
        for i in range(3): a("v_mul_f32 v%d, v%d, v%d" % (RS + i, RS + i, RS + i))
        idx = [(i, r) for i in range(3) for r in range(4)]
        for i, r in idx: a("v_mul_f32 v%d, v%d, v%d" % (R + i * 16 + r, RS + i, R + i * 16 + r))
        for i, r in idx: a("v_mul_f32 v%d, 0x%x, v%d" % (G_ + 4 * i + r, f32bits(-LOG2E), R + i * 16 + r))
        for i, r in idx: a("v_exp_f32 v%d, v%d" % (G_ + 4 * i + r, G_ + 4 * i + r))
        a("s_nop 0")
        for i, r in idx: a("v_add_f32 v%d, 1.0, v%d" % (G_ + 4 * i + r, G_ + 4 * i + r))
        for i, r in idx: a("v_rcp_f32 v%d, v%d" % (G_ + 4 * i + r, G_ + 4 * i + r))
        a("s_nop 0")
        for i, r in idx: a("v_mul_f32 v%d, v%d, v%d" % (G_ + 4 * i + r, G_ + 4 * i + r, R + i * 16 + r))
        for k in range(6): a("v_cvt_pk_bf16_f32 v%d, v%d, v%d" % (GP + k, G_ + 2 * k, G_ + 2 * k + 1))
        a("s_setprio %d" % self.prio_fr)
        self.stamp(5, "f23")
        if "noA" in self.dbg: self.finish()
        a("v_bfe_u32 v%d, v%d, 2, 3" % (T3, V_LANE))
        a("v_and_b32 v26, 3, v%d" % V_LANE)
        a("v_lshlrev_b32 v26, 3, v26")
        a("v_lshl_add_u32 v26, v%d, 7, v26" % T3)
        a("s_lshl_b32 s%d, s%d, 10" % (S_T + 1, S_RB32))
        a("s_lshl_b32 s%d, s%d, 2" % (S_T + 2, S_TH))
        a("s_add_u32 s%d, s%d, s%d" % (S_T + 1, S_T + 1, S_T + 2))
        a("s_add_u32 s%d, s%d, 0x%x" % (S_T + 1, S_T + 1, F2_O))
        a("s_waitcnt vmcnt(0)")
        if "owv" not in self.dbg:
            a("v_lshrrev_b32 v%d, 3, v%d" % (T3, V_LANE))
            a("v_and_b32 v26, 7, v%d" % V_LANE)
            a("v_lshlrev_b32 v26, 2, v26")
            a("v_lshl_add_u32 v26, v%d, 7, v26" % T3)
            self.poll([(27, 1, 26, "s%d" % (S_T + 1))], T3, sleep=self.osleep)
        else:
            a("s_barrier")
            self.poll([(27, 1, 26, "s%d" % (S_T + 1))], T3, sleep=self.osleep, wave0=False)
        def o_loads():
            a("s_mov_b32 s%d, s%d" % (S_T, S_H))
            for s_ in range(5):
                for tt in range(2):
                    a("buffer_load_dwordx4 %s, v%d, %s, s%d offen offset:%d %s" % (vr(OF + s_ * 8 + tt * 4, 4), V_L16, sr(SWS), S_T, tt * 1024, SC))
                a("s_add_u32 s%d, s%d, 16384" % (S_T, S_T))
        if "nofill" in self.dbg:
            a("s_setprio 3")
            self.stamp(6, "f23")
            o_loads()
        else:
            a("s_mov_b32 s%d, %d" % (S_T + 2, SPIN_MAX))
            a.label("F3_PL")
            o_loads()
            for s_ in range(5):
                a("s_waitcnt vmcnt(%d)" % (8 - 2 * s_))
                b = OF + s_ * 8
                if s_ == 0: a("v_max_u32 v27, v%d, v%d" % (b, b + 1))
                else: a("v_max3_u32 v27, v27, v%d, v%d" % (b, b + 1))
                for k in (2, 4, 6): a("v_max3_u32 v27, v27, v%d, v%d" % (b + k, b + k + 1))
            a("v_cmp_eq_u32 vcc, -1, v27")
            a("s_sub_u32 s%d, s%d, 1" % (S_T + 2, S_T + 2))
            a("s_cbranch_scc1 F3_GO")
            a("s_cbranch_vccnz F3_PL")
            a.label("F3_GO")
            a("s_setprio 3")
            self.stamp(6, "f23")
        for s_ in range(5):
            if "nofill" in self.dbg: a("s_waitcnt vmcnt(%d)" % (8 - 2 * s_))
            for c in range(5):
                if s_ > 0: a("s_waitcnt lgkmcnt(%d)" % (4 if s_ < 4 else 4 - c))
                for tt in range(2):
                    d = A3 + (tt * 5 + c) * 4
                    a("v_mfma_f32_16x16x32_bf16 %s, %s, %s, %s" % (vr(d, 4), vr(WR + 4 * c, 4), vr(OF + s_ * 8 + tt * 4, 4), "0" if s_ == 0 else vr(d, 4)))
                if s_ < 4: rdW(WR, s_, c)
        U = 28; GF = 96
        def unpack_x():
            for k in range(6):
                a("v_lshlrev_b32 v%d, 16, v%d" % (U + 2 * k, XR + k))
                a("v_and_b32 v%d, 0xffff0000, v%d" % (U + 2 * k + 1, XR + k))
        red_write(unpack_x)
        for k in range(6):
            a("v_lshlrev_b32 v%d, 16, v%d" % (GF + 2 * k, GP + k))
            a("v_and_b32 v%d, 0xffff0000, v%d" % (GF + 2 * k + 1, GP + k))
        own_read()
        for i, r in idx: a("v_fmac_f32 v%d, v%d, v%d" % (U + 4 * i + r, R + i * 16 + r, GF + 4 * i + r))
        for k in range(6): a("v_cvt_pk_bf16_f32 v%d, v%d, v%d" % (XR + k, U + 2 * k, U + 2 * k + 1))
        for i in range(3):
            if i == 2:
                a("s_cmp_ge_u32 s%d, 4" % S_W)
                a("s_cbranch_scc1 F3_FIN")
            a("buffer_store_dwordx2 %s, v%d, %s, s%d offen" % (vr(XR + 2 * i, 2), GA + i, sr(SB), S_GB))
        a.label("F3_FIN")
        self.finish()

    def build(self):
        name = NAME + "_kernel"
        self.prologue(name)
        if "ffirst" not in self.dbg: self.role_a()
        self.role_f1()
        self.role_f23()
        if "ffirst" in self.dbg: self.role_a()
        self.role_sp()
        self.a.end_kernel(name, NVGPR)
        return self.a.text(HEADER + DOC + "; @launch grid=(512,1,1) block=(512,1,1) lds=%d\n" % LDS_BYTES)

if __name__ == "__main__":
    dbg = sys.argv[2] if len(sys.argv) > 2 else ""
    import subprocess, re
    cb = 0x4000
    for it in range(2):
        m = Mega(stamps="st" in dbg.split(","), dbg=dbg, code_bytes=cb)
        open(sys.argv[1], "w").write(m.build())
        subprocess.run(["clang", "-x", "assembler", "-target", "amdgcn-amd-amdhsa", "-mcpu=gfx950", "-c", sys.argv[1], "-o", "_m.o"], check=True)
        o = subprocess.run(["llvm-objdump", "-h", "_m.o"], capture_output=True, text=True).stdout
        size = int(re.search(r"\.text\s+([0-9a-f]+)", o).group(1), 16)
        cb = (size - 256) & ~127
    print(sys.argv[1], "text bytes", size)
```
